```python
import torch

def _softmax(x, axis=-1):
    return torch.softmax(x, dim=axis)

def _gelu(x):
    return torch.nn.functional.gelu(x, approximate='tanh')

def _silu(x):
    return torch.nn.functional.silu(x)

def _sigmoid(x):
    return torch.sigmoid(x)

def _layernorm(x, axis=-1, eps=1e-05):
    m = x.mean(dim=axis, keepdim=True)
    v = x.var(dim=axis, keepdim=True, unbiased=False)
    return (x - m) / torch.sqrt(v + eps)

def _scatter_add(tgt, idx, src, axis=0):
    return tgt.clone().index_add_(axis, idx, src)

def _segment_sum(src, seg, n):
    out = torch.zeros((n,) + src.shape[1:], dtype=src.dtype)
    return out.index_add_(0, seg, src)

def _pad(x, pw):
    flat = tuple((v for pair in reversed(pw) for v in pair))
    return torch.nn.functional.pad(x, flat)
kernel_name = 'sequential_preLN__spectral_gfnet__mixer_gmlp__prompt'

def setup_inputs():

    _w = lambda a: (lambda t: t.to(torch.bfloat16) if t.is_floating_point() else t)(torch.as_tensor(a))

    def _A_setup():
        B, S, D = (1, 2048, 1024)
        Df = D // 2 + 1
        return {'x': _w((lambda *s: torch.randn(*s, dtype=torch.bfloat16) * 0.05)(B, S, D)), 'w_r': _w((lambda *s: torch.randn(*s, dtype=torch.bfloat16) * 0.4)(S, Df) * 0.02), 'w_i': _w((lambda *s: torch.randn(*s, dtype=torch.bfloat16) * 0.4)(S, Df) * 0.02)}
    _A_in = _A_setup()

    def _B_setup():
        B, S, D, F = (1, 2048, 1024, 3584)
        Fh = F // 2
        return {'x': _w((lambda *s: torch.randn(*s, dtype=torch.bfloat16) * 0.05)(B, S, D)), 'w_in': _w((lambda *s: torch.randn(*s, dtype=torch.bfloat16) * 0.4)(D, 2 * Fh)), 'w_sp': _w(0.01 * (lambda *s: torch.randn(*s, dtype=torch.bfloat16) * 0.4)(S, S)), 'b_sp': _w(1.0 + 0.01 * (lambda *s: torch.randn(*s, dtype=torch.bfloat16) * 0.05)(S)), 'w_out': _w((lambda *s: torch.randn(*s, dtype=torch.bfloat16) * 0.05)(Fh, D))}
    _B_in = _B_setup()
    return {'A_x': _A_in['x'], 'A_w_r': _A_in['w_r'], 'A_w_i': _A_in['w_i'], 'B_x': _B_in['x'], 'B_w_in': _B_in['w_in'], 'B_w_sp': _B_in['w_sp'], 'B_b_sp': _B_in['b_sp'], 'B_w_out': _B_in['w_out']}

def reference(A_x, A_w_r, A_w_i, B_x, B_w_in, B_w_sp, B_b_sp, B_w_out):

    def _A_ref(x, w_r, w_i):
        B, S, D = x.shape
        X = (lambda x, axes=(-2, -1): torch.fft.rfft2(x.float(), dim=axes))(x, axes=(-2, -1))
        W = w_r + 1j * w_i
        X = X * W
        y = (lambda x, s, axes=(-2, -1): torch.fft.irfft2(x, s=s, dim=axes).to(torch.bfloat16))(X, (S, D), axes=(-2, -1))
        return y

    def _B_ref(x, w_in, w_sp, b_sp, w_out):
        B, S, D = x.shape
        F = w_in.shape[-1]
        Fh = F // 2
        z = _gelu(torch.einsum('bsd,df->bsf', x, w_in))
        z1 = z[..., :Fh].clone()
        z2 = _layernorm(z[..., Fh:], axis=-1)
        g = torch.einsum('ts,bsf->btf', w_sp, z2) + b_sp[None, :, None]
        return torch.einsum('bsf,fd->bsd', z1 * g, w_out)
    x = A_x
    h = x + _A_ref(_layernorm(x, axis=-1), A_w_r, A_w_i)
    h2 = h + _B_ref(_layernorm(h, axis=-1), B_w_in, B_w_sp, B_b_sp, B_w_out)
    return h2
```

```python
import re
_OFF = re.compile(r"offset:(-?\d+)")
def lint(ln):
    t = ln.strip()
    m = _OFF.search(t)
    if m:
        o = int(m.group(1))
        if t.startswith("buffer_"): assert 0 <= o < 4096, ln
        elif t.startswith("ds_"): assert 0 <= o < 65536, ln
        elif t.startswith("global_"): assert -4096 <= o < 4096, ln

class Asm:
    def __init__(self):
        self.lines = []
        self.uid = 0
    def e(self, s=""):
        for ln in s.split("\n"):
            lint(ln)
            self.lines.append("  " + ln.strip() if ln.strip() and not ln.strip().endswith(":") else ln.strip())
    def c(self, s):
        self.lines.append("  ; " + s)
    def label(self, name):
        self.lines.append(name + ":")
    def newlabel(self, base):
        self.uid += 1
        return f"{base}_{self.uid}"
    def text(self):
        return "\n".join(self.lines) + "\n"

def v(a, n=1):
    return f"v{a}" if n == 1 else f"v[{a}:{a+n-1}]"
def s(a, n=1):
    return f"s{a}" if n == 1 else f"s[{a}:{a+n-1}]"
def acc(a, n=1):
    return f"a{a}" if n == 1 else f"a[{a}:{a+n-1}]"

def kernel_header(A, name):
    A.e(f".globl {name}")
    A.lines.append(".p2align 8")
    A.lines.append(f".type {name},@function")
    A.label(name)

def kernel_desc(name, vgpr, sgpr=102, accum=None, agpr=0):
    va = (vgpr + 3)//4*4
    tot = va + agpr if agpr else vgpr
    return "\n".join([
        ".p2align 6",
        f".amdhsa_kernel {name}",
        f"  .amdhsa_next_free_vgpr {tot}",
        f"  .amdhsa_next_free_sgpr {sgpr}",
        f"  .amdhsa_accum_offset {va}",
        "  .amdhsa_group_segment_fixed_size 0",
        "  .amdhsa_kernarg_size 88",
        "  .amdhsa_user_sgpr_count 2",
        "  .amdhsa_user_sgpr_kernarg_segment_ptr 1",
        "  .amdhsa_system_sgpr_workgroup_id_x 1",
        "  .amdhsa_float_denorm_mode_32 3",
        ".end_amdhsa_kernel"]) + "\n"

def file_text(launches, bodies, descs, header_comment=""):
    out = []
    if header_comment:
        out += ["; " + l for l in header_comment.split("\n")]
    for (n, g, b, l) in launches:
        out.append(f"; @launch kernel={n} grid=({g},1,1) block=({b},1,1) lds={l}")
    out.append('.amdgcn_target "amdgcn-amd-amdhsa--gfx950"')
    out.append(".text")
    t = "\n".join(out) + "\n" + "".join(bodies)
    t += '.section .rodata,"a"\n' + "".join(descs)
    return t
```

```python
def groups_b128():
    g1 = list(range(0,4))+list(range(12,16))+list(range(20,28))
    g2 = list(range(4,12))+list(range(16,20))+list(range(28,32))
    return [g1, g2, [x+32 for x in g1], [x+32 for x in g2]]
def cycles(addrs, kind):
    if kind == 'b128':
        groups, nb, w = groups_b128(), 64, 4
    elif kind in ('b64','tr_b64'):
        groups, nb, w = [list(range(32)), list(range(32,64))], 64, 2
    elif kind == 'b32':
        groups, nb, w = [list(range(32)), list(range(32,64))], 32, 1
    elif kind == 'w_b32':
        groups, nb, w = [list(range(32)), list(range(32,64))], 32, 1
    elif kind == 'w_b64':
        groups, nb, w = [list(range(16*i,16*i+16)) for i in range(4)], 32, 2
    elif kind == 'w_b128':
        groups, nb, w = [list(range(8*i,8*i+8)) for i in range(8)], 32, 4
    tot = 0
    for g in groups:
        bank = {}
        for l in g:
            a = addrs[l]
            if a is None: continue
            for d in range(w):
                dw = a//4 + d
                bank.setdefault(dw % nb, set()).add(dw)
        tot += max([len(s) for s in bank.values()] or [0])
    return tot
if __name__ == "__main__":
    for h in range(2):
        a = []
        for l in range(64):
            row = l & 15; g = l >> 4
            c = (4*h+g) ^ ((row>>1)&7)
            a.append(row*128 + c*16)
        print("Kcontig b128 h",h, cycles(a,'b128'), "(ideal 4)")
    for rd in range(2):
      for u in range(8):
        a = []
        for l in range(64):
            G = l>>4; r = (l>>2)&3; c = l&3
            k = 8*G + 4*rd + r
            sig = (k&3) | (((k>>3)&1)<<2)
            byte = u*32 + c*8
            c16 = (byte>>4) ^ (sig<<1)
            a.append(k*256 + c16*16 + (byte&15))
        print("Kslow256 tr rd",rd,"u",u, cycles(a,'tr_b64'), "(ideal 2)")
```

```python
from asmlib import *
from banks import cycles

KS = 64

def sigma(RB, k):
    if RB == 256: return (k & 3) | (((k >> 3) & 1) << 2)
    if RB == 448: return (k >> 3) & 1
    if RB == 128: return ((k >> 1) & 1) | (((k >> 3) & 1) << 1)
    raise ValueError(RB)

class Op:
    def __init__(self, kind, R, stride, srd):
        self.kind, self.R, self.stride, self.srd = kind, R, stride, srd
        self.bytes = R * KS * 2
        self.ndma = self.bytes // 1024
        self.RB = 2 * R if kind == 'ks' else 128
    def read_addr(self, lane, idx0, t, h, rd=0):
        if self.kind == 'kc':
            row = idx0 + 16 * t + (lane & 15)
            return row * 128 + (((4 * h + (lane >> 4)) ^ ((row >> 1) & 7)) * 16)
        G, r, c = lane >> 4, (lane >> 2) & 3, lane & 3
        k = 32 * h + 8 * G + 4 * rd + r
        u = idx0 // 16 + t
        return k * self.RB + ((2 * u + (c >> 1)) ^ (sigma(self.RB, k) << 1)) * 16 + (c & 1) * 8

def check_conflicts(op, origins, T):
    for idx0 in origins:
        for t in range(T):
            for h in range(2):
                if op.kind == 'kc':
                    a = [op.read_addr(l, idx0, t, h) for l in range(64)]
                    assert cycles(a, 'b128') == 4
                else:
                    for rd in range(2):
                        a = [op.read_addr(l, idx0, t, h, rd) for l in range(64)]
                        assert cycles(a, 'tr_b64') == 2, (op.RB, idx0, t, h, rd, cycles(a, 'tr_b64'))

class Gemm:
    def __init__(self, A, name, Ktot, NS, X, Y, WX, WY, mode='pc', no_mfma=False, no_dma=False, no_read=False):
        self.A, self.name, self.Ktot, self.NS, self.X, self.Y = A, name, Ktot, NS, X, Y
        self.WX, self.WY = WX, WY
        self.TX = X.R // 16 // WX
        self.TY = Y.R // 16 // WY
        self.nst = Ktot // KS
        self.slot = X.bytes + Y.bytes
        self.mode = mode
        self.no_mfma, self.no_dma, self.no_read = no_mfma, no_dma, no_read
        self.nd = X.ndma + Y.ndma
        assert self.nd % 4 == 0
        self.P = self.nd // 4
        check_conflicts(X, [16 * self.TX * w for w in range(WX)], self.TX)
        check_conflicts(Y, [16 * self.TY * w for w in range(WY)], self.TY)
        assert self.NS * self.slot <= 163840

    S_WAVE, S_X0, S_Y0, S_SOX, S_SOY, S_SLOT, S_CNT, S_T0, S_T1, S_LW = 16, 17, 18, 19, 20, 21, 22, 23, 24, 25

    def emit_dma_setup(self, vb, lane):
        A = self.A
        t0, t1, t2 = vb + self.P, vb + self.P + 1, vb + self.P + 2
        self.pieces = []
        X, Y = self.X, self.Y
        assert X.ndma % 4 == 0 and Y.ndma % 4 == 0
        n = 0
        for op in (X, Y):
            for jj in range(op.ndma // 4):
                dst = vb + n
                if getattr(op, 'tiled', False):
                    A.e(f"s_lshl_b32 {s(self.S_T0)}, {s(self.S_LW)}, 10")
                    A.e(f"s_add_u32 {s(self.S_T0)}, {s(self.S_T0)}, {4096 * jj}")
                    A.e(f"v_lshlrev_b32 {v(t0)}, 4, {v(lane)}")
                    A.e(f"v_add_u32 {v(dst)}, {s(self.S_T0)}, {v(t0)}")
                elif op.kind == 'kc':
                    A.e(f"s_and_b32 {s(self.S_T0)}, {s(self.S_LW)}, 1")
                    A.e(f"s_lshl_b32 {s(self.S_T0)}, {s(self.S_T0)}, 2")
                    A.e(f"v_lshrrev_b32 {v(t0)}, 4, {v(lane)}")
                    A.e(f"v_xor_b32 {v(t0)}, {s(self.S_T0)}, {v(t0)}")
                    A.e(f"v_and_b32 {v(t1)}, 7, {v(lane)}")
                    A.e(f"v_xor_b32 {v(t0)}, {v(t0)}, {v(t1)}")
                    A.e(f"v_lshlrev_b32 {v(t0)}, 4, {v(t0)}")
                    A.e(f"s_lshl_b32 {s(self.S_T0)}, {s(self.S_LW)}, 3")
                    A.e(f"s_add_u32 {s(self.S_T0)}, {s(self.S_T0)}, {32 * jj}")
                    A.e(f"v_lshrrev_b32 {v(t1)}, 3, {v(lane)}")
                    A.e(f"v_add_u32 {v(t1)}, {s(self.S_T0)}, {v(t1)}")
                    A.e(f"s_mov_b32 {s(self.S_T1)}, {op.stride}")
                    A.e(f"v_mul_lo_u32 {v(t1)}, {v(t1)}, {s(self.S_T1)}")
                    A.e(f"v_add_u32 {v(dst)}, {v(t0)}, {v(t1)}")
                else:
                    CPR = op.RB // 16
                    A.e(f"s_lshl_b32 {s(self.S_T0)}, {s(self.S_LW)}, 6")
                    A.e(f"s_add_u32 {s(self.S_T0)}, {s(self.S_T0)}, {256 * jj}")
                    A.e(f"v_add_u32 {v(t0)}, {s(self.S_T0)}, {v(lane)}")
                    if CPR & (CPR - 1) == 0:
                        sh = CPR.bit_length() - 1
                        A.e(f"v_lshrrev_b32 {v(t1)}, {sh}, {v(t0)}")
                        A.e(f"v_and_b32 {v(t0)}, {CPR - 1}, {v(t0)}")
                    else:
                        magic = (65536 + CPR - 1) // CPR
                        for p in range(64 * op.ndma):
                            assert (p * magic) >> 16 == p // CPR
                        A.e(f"v_mul_u32_u24 {v(t1)}, {magic}, {v(t0)}")
                        A.e(f"v_lshrrev_b32 {v(t1)}, 16, {v(t1)}")
                        A.e(f"v_mul_u32_u24 {v(t2)}, {CPR}, {v(t1)}")
                        A.e(f"v_sub_u32 {v(t0)}, {v(t0)}, {v(t2)}")
                    if op.RB == 256:
                        A.e(f"v_and_b32 {v(t2)}, 3, {v(t1)}")
                        A.e(f"v_lshlrev_b32 {v(t2)}, 1, {v(t2)}")
                        A.e(f"v_xor_b32 {v(t0)}, {v(t0)}, {v(t2)}")
                        A.e(f"v_and_b32 {v(t2)}, 8, {v(t1)}")
                        A.e(f"v_xor_b32 {v(t0)}, {v(t0)}, {v(t2)}")
                    elif op.RB == 448:
                        A.e(f"v_lshrrev_b32 {v(t2)}, 2, {v(t1)}")
                        A.e(f"v_and_b32 {v(t2)}, 2, {v(t2)}")
                        A.e(f"v_xor_b32 {v(t0)}, {v(t0)}, {v(t2)}")
                    elif op.RB == 128:
                        A.e(f"v_and_b32 {v(t2)}, 2, {v(t1)}")
                        A.e(f"v_xor_b32 {v(t0)}, {v(t0)}, {v(t2)}")
                        A.e(f"v_lshrrev_b32 {v(t2)}, 1, {v(t1)}")
                        A.e(f"v_and_b32 {v(t2)}, 4, {v(t2)}")
                        A.e(f"v_xor_b32 {v(t0)}, {v(t0)}, {v(t2)}")
                    A.e(f"v_lshlrev_b32 {v(t0)}, 4, {v(t0)}")
                    A.e(f"s_mov_b32 {s(self.S_T1)}, {op.stride}")
                    A.e(f"v_mul_lo_u32 {v(t1)}, {v(t1)}, {s(self.S_T1)}")
                    A.e(f"v_add_u32 {v(dst)}, {v(t0)}, {v(t1)}")
                ldsoff = (0 if op is X else X.bytes) + 4096 * jj
                self.pieces.append((op, dst, ldsoff))
                n += 1

    def emit_dma_stage(self, sslot, interleave=None):
        groups = []
        for (op, vo, ldsoff) in self.pieces:
            so = self.S_SOX if op is self.X else self.S_SOY
            g = [f"s_add_u32 m0, {s(sslot)}, {ldsoff}", "s_nop 0",
                 f"buffer_load_dwordx4 {v(vo)}, {s(op.srd, 4)}, {s(so)} offen lds"]
            if self.no_dma: g = []
            groups.append(g)
        adv = [f"s_add_u32 {s(self.S_SOX)}, {s(self.S_SOX)}, {self.advX}",
               f"s_add_u32 {s(self.S_SOY)}, {s(self.S_SOY)}, {self.advY}"]
        return groups, adv

    def adv(self, op):
        if getattr(op, 'tiled', False): return op.bytes
        return 128 if op.kind == 'kc' else KS * op.stride
    @property
    def advX(self): return self.adv(self.X)
    @property
    def advY(self): return self.adv(self.Y)

    def emit_soff_init(self):
        A = self.A
        for op, so, o in ((self.X, self.S_SOX, self.S_X0), (self.Y, self.S_SOY, self.S_Y0)):
            if getattr(op, 'tiled', False):
                A.e(f"s_mul_i32 {s(so)}, {s(o)}, {self.nst * op.bytes // op.R}")
            elif op.kind == 'kc':
                A.e(f"s_mul_i32 {s(so)}, {s(o)}, {op.stride}")
            else:
                A.e(f"s_lshl_b32 {s(so)}, {s(o)}, 1")

    def slot_next(self, sreg):
        return [f"s_add_u32 {s(sreg)}, {s(sreg)}, {self.slot}",
                f"s_cmp_ge_u32 {s(sreg)}, {s(self.S_T1)}",
                f"s_cselect_b32 {s(self.S_T0)}, {self.NS * self.slot}, 0",
                f"s_sub_u32 {s(sreg)}, {s(sreg)}, {s(self.S_T0)}"]

    def emit_producer(self, lane, vb):
        A, P, NS, nst = self.A, self.P, self.NS, self.nst
        self.emit_dma_setup(vb, lane)
        self.emit_soff_init()
        SL = self.S_SLOT
        A.e(f"s_lshl_b32 {s(SL)}, {s(self.S_LW)}, 10")
        A.e(f"s_add_u32 {s(26)}, {s(SL)}, {NS * self.slot}")
        def nxt():
            A.e(f"s_add_u32 {s(SL)}, {s(SL)}, {self.slot}")
            A.e(f"s_cmp_ge_u32 {s(SL)}, {s(26)}")
            A.e(f"s_cselect_b32 {s(self.S_T0)}, {NS * self.slot}, 0")
            A.e(f"s_sub_u32 {s(SL)}, {s(SL)}, {s(self.S_T0)}")
        def stage():
            groups, adv = self.emit_dma_stage(SL)
            for g in groups:
                for ln in g: A.e(ln)
            for ln in adv: A.e(ln)
            nxt()
        npro = min(NS, nst)
        for i in range(npro):
            stage()
        A.e(f"s_waitcnt vmcnt({(npro - 1) * P})")
        A.e("s_barrier")
        nsteady = nst - NS
        lp = A.newlabel(self.name + "_pl")
        if nsteady > 0:
            A.e(f"s_mov_b32 {s(self.S_CNT)}, {nsteady}")
            A.label(lp)
            A.e(f"s_waitcnt vmcnt({(NS - 2) * P})")
            A.e("s_barrier")
            stage()
            A.e(f"s_sub_u32 {s(self.S_CNT)}, {s(self.S_CNT)}, 1")
            A.e(f"s_cmp_lg_u32 {s(self.S_CNT)}, 0")
            A.e(f"s_cbranch_scc1 {lp}")
        for b in range(max(nsteady, 0) + 1, nst):
            left = nst - 1 - b
            A.e(f"s_waitcnt vmcnt({min(left, NS - 2) * P})")
            A.e("s_barrier")

    def emit_consumer_setup(self, lane, vb):
        A, X, Y = self.A, self.X, self.Y
        self.addr = {}
        self.abase = []
        SWX, SWY = 27, 28
        A.e(f"s_and_b32 {s(SWX)}, {s(self.S_WAVE)}, {self.WX - 1}")
        A.e(f"s_lshr_b32 {s(SWY)}, {s(self.S_WAVE)}, {self.WX.bit_length() - 1}")
        nxt = vb
        t0, t1, t2, t3 = 0, 0, 0, 0
        plan = []
        for nm, op, T, W in (('X', X, self.TX, self.WX), ('Y', Y, self.TY, self.WY)):
            origins = [16 * T * w for w in range(W)]
            keys = []
            for t in range(T):
                for h in range(2):
                    for rd in (range(2) if op.kind == 'ks' else [0]):
                        vec = [[op.read_addr(l, o, t, h, rd) for l in range(64)] for o in origins]
                        found = None
                        for (kv, reg) in keys:
                            d = vec[0][0] - kv[0][0]
                            if d >= 0 and all(vec[w][l] - kv[w][l] == d for w in range(W) for l in range(64)):
                                found = (reg, d); break
                        if found is None:
                            reg = len(plan)
                            plan.append((nm, op, t, h, rd))
                            keys.append((vec, reg))
                            found = (reg, 0)
                        self.addr[(nm, t, h, rd)] = found
        nreg = len(plan)
        base0 = vb; cur0 = vb + nreg
        tmp = vb + 2 * nreg
        a, b, c = tmp, tmp + 1, tmp + 2
        for i, (nm, op, t, h, rd) in enumerate(plan):
            dst = base0 + i
            T = self.TX if nm == 'X' else self.TY
            sw = SWX if nm == 'X' else SWY
            opoff = 0 if nm == 'X' else X.bytes
            if op.kind == 'kc':
                A.e(f"v_and_b32 {v(a)}, 15, {v(lane)}")
                A.e(f"v_lshrrev_b32 {v(b)}, 1, {v(a)}")
                A.e(f"v_lshrrev_b32 {v(c)}, 4, {v(lane)}")
                A.e(f"v_xor_b32 {v(b)}, {v(b)}, {v(c)}")
                if h: A.e(f"v_xor_b32 {v(b)}, 4, {v(b)}")
                A.e(f"v_lshlrev_b32 {v(b)}, 4, {v(b)}")
                A.e(f"v_lshlrev_b32 {v(a)}, 7, {v(a)}")
                A.e(f"v_add_u32 {v(a)}, {v(a)}, {v(b)}")
                A.e(f"s_mul_i32 {s(self.S_T0)}, {s(sw)}, {16 * T * 128}")
                A.e(f"s_add_u32 {s(self.S_T0)}, {s(self.S_T0)}, {opoff + t * 2048}")
                A.e(f"v_add_u32 {v(dst)}, {s(self.S_T0)}, {v(a)}")
            else:
                RB = op.RB
                A.e(f"v_lshrrev_b32 {v(a)}, 4, {v(lane)}")
                A.e(f"v_bfe_u32 {v(b)}, {v(lane)}, 2, 2")
                if RB == 256:
                    A.e(f"v_and_b32 {v(c)}, 1, {v(a)}")
                    A.e(f"v_lshlrev_b32 {v(c)}, 2, {v(c)}")
                    A.e(f"v_or_b32 {v(c)}, {v(c)}, {v(b)}")
                elif RB == 448:
                    A.e(f"v_and_b32 {v(c)}, 1, {v(a)}")
                elif RB == 128:
                    A.e(f"v_and_b32 {v(c)}, 1, {v(a)}")
                    A.e(f"v_lshlrev_b32 {v(c)}, 1, {v(c)}")
                    A.e(f"v_lshrrev_b32 {v(dst)}, 1, {v(b)}")
                    A.e(f"v_or_b32 {v(c)}, {v(c)}, {v(dst)}")
                A.e(f"v_lshl_add_u32 {v(a)}, {v(a)}, 3, {v(b)}")
                A.e(f"s_mov_b32 {s(self.S_T1)}, {RB}")
                A.e(f"v_mul_lo_u32 {v(a)}, {v(a)}, {s(self.S_T1)}")
                A.e(f"s_mul_i32 {s(self.S_T0)}, {s(sw)}, {T}")
                A.e(f"s_add_u32 {s(self.S_T0)}, {s(self.S_T0)}, {t}")
                A.e(f"v_xor_b32 {v(c)}, {s(self.S_T0)}, {v(c)}")
                A.e(f"v_lshlrev_b32 {v(c)}, 5, {v(c)}")
                A.e(f"v_add_u32 {v(a)}, {v(a)}, {v(c)}")
                A.e(f"v_and_b32 {v(b)}, 3, {v(lane)}")
                A.e(f"v_lshlrev_b32 {v(b)}, 3, {v(b)}")
                A.e(f"v_add_u32 {v(a)}, {v(a)}, {v(b)}")
                A.e(f"v_add_u32 {v(dst)}, {opoff + (32 * h + 4 * rd) * RB}, {v(a)}")
        self.nab = nreg; self.base0 = base0; self.cur0 = cur0
        return tmp

    def reads(self, setbase, h):
        out = []
        X, Y = self.X, self.Y
        def one(nm, op, t, dst):
            if op.kind == 'kc':
                reg, imm = self.addr[(nm, t, h, 0)]
                return [f"ds_read_b128 {v(dst, 4)}, {v(self.cur0 + reg)} offset:{imm}"]
            res = []
            for rd in range(2):
                reg, imm = self.addr[(nm, t, h, rd)]
                res.append(f"ds_read_b64_tr_b16 {v(dst + 2 * rd, 2)}, {v(self.cur0 + reg)} offset:{imm}")
            return res
        xs = [one('X', X, t, setbase + 4 * t) for t in range(self.TX)]
        ys = [one('Y', Y, t, setbase + 4 * self.TX + 4 * t) for t in range(self.TY)]
        order = []
        order += ys[0] + xs[0]
        rest = ys[1:]
        for y in rest: order += y
        for x in xs[1:]: order += x
        if self.no_read: return []
        return order

    def mfmas(self, setbase):
        out = []
        for i in range(self.TX):
            for j in range(self.TY):
                a0 = self.accb + 4 * (i * self.TY + j)
                out.append(f"v_mfma_f32_16x16x32_bf16 {v(a0,4)}, {v(setbase + 4*i, 4)}, {v(setbase + 4*self.TX + 4*j, 4)}, {v(a0,4)}")
        if self.no_mfma: return []
        return out

    def interleave(self, mf, other, per=1, start=0):
        A = self.A
        o = list(other)
        if not mf:
            for ln in o: A.e(ln)
            return
        for n, m in enumerate(mf):
            A.e(m)
            if n >= start:
                for _ in range(per):
                    if o: A.e(o.pop(0))
        for ln in o: A.e(ln)

    def cur_update(self):
        return [f"v_add_u32 {v(self.cur0 + i)}, {s(self.S_SLOT)}, {v(self.base0 + i)}" for i in range(self.nab)]

    def emit_consumer(self, lane, vb, pre_last=None):
        A, NS, nst = self.A, self.NS, self.nst
        f = self.emit_consumer_setup(lane, vb)
        nfr = 4 * (self.TX + self.TY)
        set0 = (f + 3) // 4 * 4; set1 = set0 + nfr
        self.set0, self.set1 = set0, set1
        self.accb = set1 + nfr
        self.vend = self.accb + 4 * self.TX * self.TY
        for i in range(4 * self.TX * self.TY):
            A.e(f"v_mov_b32 {v(self.accb + i)}, 0")
        SL = self.S_SLOT
        A.e(f"s_mov_b32 {s(SL)}, 0")
        A.e(f"s_mov_b32 {s(self.S_T1)}, {NS * self.slot}")
        for ln in self.cur_update(): A.e(ln)
        if getattr(self, 'stamp', None): self.stamp(0)
        A.e("s_barrier")
        if getattr(self, 'stamp', None): self.stamp(1)
        for ln in self.reads(set0, 0): A.e(ln)
        A.e("s_waitcnt lgkmcnt(0)")
        def body(last):
            self.interleave(self.mfmas(set0), self.reads(set1, 1))
            if last:
                A.e("s_waitcnt lgkmcnt(0)")
                self.interleave(self.mfmas(set1), [])
                return
            sl = [f"s_add_u32 {s(SL)}, {s(SL)}, {self.slot}",
                  f"s_cmp_ge_u32 {s(SL)}, {NS * self.slot}",
                  f"s_cselect_b32 {s(self.S_T0)}, {NS * self.slot}, 0",
                  f"s_sub_u32 {s(SL)}, {s(SL)}, {s(self.S_T0)}"]
            for ln in sl: A.e(ln)
            A.e("s_waitcnt lgkmcnt(0)")
            for ln in self.cur_update(): A.e(ln)
            A.e("s_barrier")
            self.interleave(self.mfmas(set1), self.reads(set0, 0))
            A.e("s_waitcnt lgkmcnt(0)")
        lp = A.newlabel(self.name + "_cl")
        A.e(f"s_mov_b32 {s(self.S_CNT)}, {nst - 1}")
        A.label(lp)
        body(False)
        A.e(f"s_sub_u32 {s(self.S_CNT)}, {s(self.S_CNT)}, 1")
        A.e(f"s_cmp_lg_u32 {s(self.S_CNT)}, 0")
        A.e(f"s_cbranch_scc1 {lp}")
        if pre_last: pre_last()
        body(True)
```

```python
from asmlib import *
from layout import *
from kern_gemm import srd_from, stamp_start, stamp_mid, stamp_end, f2u, bf16_round, group_reduce

def nop(A, n):
    while n > 0:
        k = min(n, 16); A.e(f"s_nop {k-1}"); n -= k

def fconst(A, x):
    inl = {0.0: "0", 0.5: "0.5", 1.0: "1.0", 2.0: "2.0", 4.0: "4.0", -0.5: "-0.5", -1.0: "-1.0", -2.0: "-2.0", -4.0: "-4.0"}
    return inl.get(float(x), hex(f2u(x)))

def affine(A, dst, P, c, Q):
    if c == 0: A.e(f"v_mov_b32 {v(dst)}, {v(Q)}")
    else: A.e(f"v_fmamk_f32 {v(dst)}, {v(P)}, {hex(f2u(c))}, {v(Q)}")

def cos_frag(A, dst, P, Q, coefs, offs, tmp):
    for j in range(8):
        affine(A, tmp + j, P, coefs[j], Q)
    for j in range(8):
        if offs[j] != 0: A.e(f"v_add_f32 {v(tmp+j)}, {fconst(A, offs[j])}, {v(tmp+j)}")
    for j in range(8):
        A.e(f"v_cos_f32 {v(tmp+j)}, {v(tmp+j)}")
    A.e("s_nop 0")
    for jj in range(4):
        A.e(f"v_cvt_pk_bf16_f32 {v(dst+jj)}, {v(tmp+2*jj)}, {v(tmp+2*jj+1)}")

def wg_index(A, dst):
    A.e(f"s_and_b32 s{dst}, s2, 7\ns_lshl_b32 s{dst}, s{dst}, 1\ns_bfe_u32 s3, s2, 0x10003\ns_or_b32 s{dst}, s{dst}, s3\ns_and_b32 s3, s2, 0xf0\ns_or_b32 s{dst}, s{dst}, s3")

def row_reduce(A, regs, tmp):
    for sh in (8, 4, 2, 1):
        for r in regs:
            A.e(f"v_add_f32_dpp {v(r)}, {v(r)}, {v(r)} row_ror:{sh} row_mask:0xf bank_mask:0xf")
        if len(regs) < 3: A.e("s_nop 1")
    group_reduce(A, regs, tmp)

def ln_stats(A, m, q, n, stmp=44):
    A.e(f"v_mul_f32 {v(m)}, {fconst(A, 1.0/n)}, {v(m)}")
    A.e(f"v_mul_f32 {v(q)}, {fconst(A, 1.0/n)}, {v(q)}")
    A.e(f"v_fma_f32 {v(q)}, -{v(m)}, {v(m)}, {v(q)}")
    A.e(f"v_max_f32 {v(q)}, 0, {v(q)}")
    bf16_round(A, m); bf16_round(A, q)
    A.e(f"v_add_f32 {v(q)}, {hex(f2u(1e-5))}, {v(q)}")
    bf16_round(A, q)
    A.e(f"v_sqrt_f32 {v(q)}, {v(q)}\ns_nop 0")
    bf16_round(A, q)
    A.e(f"v_rcp_f32 {v(q)}, {v(q)}\ns_nop 0")

def twiddle_table(A, TC, TS, P, Q, tmp):
    for r in range(16):
        affine(A, TS + r, P, 8 * (r >> 2) + (r & 3), Q)
    for r in range(16):
        A.e(f"v_cos_f32 {v(TC + r)}, {v(TS + r)}")
    for r in range(16):
        A.e(f"v_sin_f32 {v(TS + r)}, {v(TS + r)}")

MF32 = "v_mfma_f32_32x32x16_bf16"
MF16 = "v_mfma_f32_16x16x32_bf16"

def gen_k1(A, name="k1_kernel", stamps=False, kidx=0):
    LU, LX, LW = 0, 16384, 16384 + 17408
    lds = LW + 2 * 9216
    kernel_header(A, name)
    done = name + "_done"
    if stamps: stamp_start(A)
    A.e("s_load_dwordx2 s[40:41], s[0:1], 0\ns_load_dwordx4 s[44:47], s[0:1], 8\ns_load_dwordx2 s[30:31], s[0:1], 80")
    A.e(f"s_cmp_ge_u32 s2, 256\ns_cbranch_scc1 {done}")
    wg_index(A, 17)
    A.e("v_mov_b32 v1, v0")
    A.e("v_lshrrev_b32 v2, 6, v0\nv_and_b32 v0, 63, v0\ns_nop 0\nv_readfirstlane_b32 s16, v2")
    A.e("s_waitcnt lgkmcnt(0)")
    srd_from(A, 4, 40, 0, S * D * 2)
    srd_from(A, 8, 44, 0, S * 513 * 2)
    srd_from(A, 12, 46, 0, S * 513 * 2)
    XR = 4
    A.e("v_lshlrev_b32 v2, 4, v0")
    A.e("s_lshl_b32 s18, s16, 9\ns_add_u32 s18, s18, s17\ns_lshl_b32 s18, s18, 11")
    A.e(f"s_add_u32 s19, s18, {256 * 2048}")
    for rho, so in ((0, 18), (1, 19)):
        A.e(f"buffer_load_dwordx4 {v(XR + 8*rho, 4)}, v2, s[4:7], s{so} offen")
        A.e(f"buffer_load_dwordx4 {v(XR + 8*rho + 4, 4)}, v2, s[4:7], s{so} offen offset:1024")
    A.e("s_mul_i32 s20, s17, 8208")
    A.e("s_lshl_b32 s21, s16, 10\nv_add_u32 v3, s21, v2")
    for arr, srd in ((0, 8), (1, 12)):
        for q in (0, 4):
            A.e(f"s_add_u32 m0, s21, {LW + arr * 9216 + q * 1024}")
            A.e(f"s_add_u32 s22, s20, {q * 1024}")
            A.e(f"buffer_load_dwordx4 v3, {s(srd,4)}, s22 offen lds")
    lw = A.newlabel("k1_w8")
    A.e(f"s_cmp_ge_u32 s16, 2\ns_cbranch_scc1 {lw}")
    A.e(f"s_mul_i32 s22, s16, 9216\ns_add_u32 m0, s22, {LW + 8192}\ns_add_u32 s22, s20, 8192")
    l0 = A.newlabel("k1_w8a")
    A.e(f"s_cmp_eq_u32 s16, 0\ns_cbranch_scc0 {l0}")
    A.e("buffer_load_dwordx4 v2, s[8:11], s22 offen lds")
    A.e(f"s_branch {lw}")
    A.label(l0)
    A.e("buffer_load_dwordx4 v2, s[12:15], s22 offen lds")
    A.label(lw)
    srd_from(A, 36, 30, WS_ST, S * 128)
    A.e("v_lshlrev_b32 v3, 2, v1\ns_lshl_b32 s22, s2, 10\nv_mov_b32 v20, -1")
    A.e("buffer_store_dword v20, v3, s[36:39], s22 offen")
    BC, BS = 20, 28
    TC, TS = 36, 52
    FA, FB = 68, 76
    FN = 84
    A8 = 88
    P, Q, T = 92, 93, 96
    K1F, HF = 94, 95
    A.e(f"v_and_b32 {v(K1F)}, 31, v0\nv_cvt_f32_u32 {v(K1F)}, {v(K1F)}")
    A.e(f"v_lshrrev_b32 {v(HF)}, 5, v0\nv_cvt_f32_u32 {v(HF)}, {v(HF)}")
    A.e(f"v_mul_f32 {v(P)}, {fconst(A, 1/32)}, {v(K1F)}")
    A.e(f"v_mul_f32 {v(Q)}, {fconst(A, 8.0)}, {v(HF)}\nv_mul_f32 {v(Q)}, {v(Q)}, {v(P)}")
    for t in range(2):
        cos_frag(A, BC + 4*t, P, Q, [16*t + j for j in range(8)], [0]*8, T)
        cos_frag(A, BS + 4*t, P, Q, [16*t + j for j in range(8)], [0.25]*8, T)
    A.e(f"v_mul_f32 {v(P)}, {fconst(A, 1/1024)}, {v(K1F)}")
    A.e(f"v_mul_f32 {v(Q)}, 4.0, {v(HF)}\nv_mul_f32 {v(Q)}, {v(Q)}, {v(P)}")
    twiddle_table(A, TC, TS, P, Q, T)
    A.e(f"v_bfe_u32 {v(P)}, v0, 1, 4\nv_cvt_f32_u32 {v(P)}, {v(P)}\nv_mul_f32 {v(P)}, {fconst(A, 1/32)}, {v(P)}")
    A.e(f"v_and_b32 {v(T)}, 1, v0\nv_cvt_f32_u32 {v(T)}, {v(T)}\nv_mul_f32 {v(T)}, {fconst(A, 0.25)}, {v(T)}")
    A.e(f"v_mul_f32 {v(Q)}, 4.0, {v(HF)}\nv_fma_f32 {v(Q)}, {v(Q)}, {v(P)}, {v(T)}")
    for t in range(2):
        co = [16*t + 8*(j >> 2) + (j & 3) for j in range(8)]
        cos_frag(A, FA + 4*t, P, Q, co, [0]*8, T)
        cos_frag(A, FB + 4*t, P, Q, co, [-0.25]*8, T)
    for n in range(4): A.e(f"v_mov_b32 {v(FN + n)}, 0xbf803f80")
    A.e(f"v_bfe_u32 {v(T)}, v0, 2, 1\nv_lshlrev_b32 {v(T)}, 2, {v(T)}")
    A.e(f"v_bfe_u32 {v(T+1)}, v0, 3, 1\nv_lshl_add_u32 {v(T)}, {v(T+1)}, 1, {v(T)}")
    A.e(f"v_bfe_u32 {v(T+1)}, v0, 1, 1\nv_add_u32 {v(T)}, {v(T)}, {v(T+1)}\nv_cvt_f32_u32 {v(T)}, {v(T)}")
    A.e(f"v_mul_f32 {v(P)}, {fconst(A, 0.125)}, {v(T)}")
    A.e(f"v_cvt_f32_u32 {v(T+1)}, s17\nv_mul_f32 {v(T+1)}, {fconst(A, 1/2048)}, {v(T+1)}\nv_mul_f32 {v(Q)}, {v(T)}, {v(T+1)}")
    A.e(f"v_and_b32 {v(T+1)}, 1, v0\nv_cvt_f32_u32 {v(T+1)}, {v(T+1)}\nv_fmamk_f32 {v(Q)}, {v(T+1)}, {hex(f2u(0.25))}, {v(Q)}")
    A.e(f"v_mul_f32 {v(T+1)}, 4.0, {v(HF)}\nv_fma_f32 {v(Q)}, {v(T+1)}, {v(P)}, {v(Q)}")
    cos_frag(A, A8, P, Q, [j >> 1 for j in range(8)], [-0.25 * (j & 1) for j in range(8)], T)
    if stamps: stamp_mid(A, 0)
    FX = 104
    ST = 136
    A.e("s_mov_b32 s26, 0xffff0000")
    nw = 4 + 1
    A.e("s_waitcnt vmcnt(5)")
    for rho in range(2):
        for n in range(8):
            A.e(f"v_lshlrev_b32 {v(FX + 16*rho + 2*n)}, 16, {v(XR + 8*rho + n)}")
            A.e(f"v_and_b32 {v(FX + 16*rho + 2*n + 1)}, s26, {v(XR + 8*rho + n)}")
    for rho in range(2):
        sp, qp = ST + 4 + 4*rho, ST + 6 + 4*rho
        f = FX + 16*rho
        A.e(f"v_pk_add_f32 {v(sp,2)}, {v(f,2)}, {v(f+2,2)}")
        A.e(f"v_pk_mul_f32 {v(qp,2)}, {v(f,2)}, {v(f,2)}")
        for n in range(1, 8):
            if n >= 2: A.e(f"v_pk_add_f32 {v(sp,2)}, {v(sp,2)}, {v(f+2*n,2)}")
            A.e(f"v_pk_fma_f32 {v(qp,2)}, {v(f+2*n,2)}, {v(f+2*n,2)}, {v(qp,2)}")
        A.e(f"v_add_f32 {v(ST + 2*rho)}, {v(sp)}, {v(sp+1)}")
        A.e(f"v_add_f32 {v(ST + 2*rho + 1)}, {v(qp)}, {v(qp+1)}")
    row_reduce(A, [ST + n for n in range(4)], ST + 12)
    for rho in range(2):
        ln_stats(A, ST + 2*rho, ST + 2*rho + 1, D)
    U = XR
    for rho in range(2):
        m, r = ST + 2*rho, ST + 2*rho + 1
        A.e(f"v_sub_f32 {v(ST+4)}, 0, {v(m)}\nv_mov_b32 {v(ST+5)}, {v(ST+4)}\nv_mov_b32 {v(ST+6)}, {v(r)}\nv_mov_b32 {v(ST+7)}, {v(r)}")
        for n in range(8):
            f = FX + 16*rho + 2*n
            A.e(f"v_pk_add_f32 {v(f,2)}, {v(f,2)}, {v(ST+4,2)}")
            A.e(f"v_pk_mul_f32 {v(f,2)}, {v(f,2)}, {v(ST+6,2)}")
            A.e(f"v_cvt_pk_bf16_f32 {v(U + 8*rho + n)}, {v(f)}, {v(f+1)}")
    AD = 212
    A.e(f"s_lshl_b32 s22, s16, 12\nv_lshlrev_b32 {v(AD)}, 4, v0\nv_add_u32 {v(AD)}, s22, {v(AD)}")
    for rho in range(2):
        A.e(f"ds_write_b128 {v(AD)}, {v(U + 8*rho, 4)} offset:{LU + 2048*rho}")
        A.e(f"ds_write_b128 {v(AD)}, {v(U + 8*rho + 4, 4)} offset:{LU + 2048*rho + 1024}")
    A.e(f"v_lshrrev_b32 {v(T)}, 5, v0\nv_lshlrev_b32 {v(T)}, 3, {v(T)}\nv_bfe_u32 {v(T+1)}, v0, 2, 2\nv_add_u32 {v(T)}, {v(T)}, {v(T+1)}\nv_lshlrev_b32 {v(T)}, 6, {v(T)}")
    A.e(f"v_bfe_u32 {v(T+1)}, v0, 4, 1\nv_lshl_add_u32 {v(T)}, {v(T+1)}, 5, {v(T)}\nv_and_b32 {v(T+1)}, 3, v0\nv_lshl_add_u32 {v(T)}, {v(T+1)}, 3, {v(T)}")
    A.e(f"v_add_u32 {v(AD)}, s22, {v(T)}")
    AF = FX
    for rho in range(2):
        for t in range(2):
            for rd in range(2):
                A.e(f"ds_read_b64_tr_b16 {v(AF + 8*rho + 4*t + 2*rd, 2)}, {v(AD)} offset:{LU + 2048*rho + 1024*t + 256*rd}")
    DR = 144
    for rho in range(2):
        A.e(f"s_waitcnt lgkmcnt({4 * (1 - rho)})")
        for t in range(2):
            for im, Bf in ((0, BC), (1, BS)):
                d = DR + 32*rho + 16*im
                c = v(d, 16) if t else "0"
                A.e(f"{MF32} {v(d,16)}, {v(AF + 8*rho + 4*t, 4)}, {v(Bf + 4*t, 4)}, {c}")
    TP = FX
    W0 = 208
    for rho in range(2):
        if rho == 0: nop(A, 12)
        dre, dim = DR + 32*rho, DR + 32*rho + 16
        for p in range(8):
            c, sn = TC + 2*p, TS + 2*p
            A.e(f"v_pk_mul_f32 {v(W0,2)}, {v(dre + 2*p,2)}, {v(c,2)}")
            A.e(f"v_pk_mul_f32 {v(W0+2,2)}, {v(dim + 2*p,2)}, {v(c,2)}")
            A.e(f"v_pk_fma_f32 {v(W0,2)}, {v(dim + 2*p,2)}, {v(sn,2)}, {v(W0,2)}")
            A.e(f"v_pk_fma_f32 {v(W0+2,2)}, {v(dre + 2*p,2)}, {v(sn,2)}, {v(W0+2,2)} neg_lo:[1,0,0] neg_hi:[1,0,0]")
            A.e(f"v_cvt_pk_bf16_f32 {v(TP + 16*rho + p)}, {v(W0)}, {v(W0+1)}")
            A.e(f"v_cvt_pk_bf16_f32 {v(TP + 16*rho + 8 + p)}, {v(W0+2)}, {v(W0+3)}")
    A.e("s_nop 1")
    for rho in range(2):
        d, dn = DR + 32*rho, DR + 32*rho + 16
        tre, tim = TP + 16*rho, TP + 16*rho + 8
        A.e(f"{MF32} {v(d,16)}, {v(FA,4)}, {v(tre,4)}, 0")
        A.e(f"{MF32} {v(dn,16)}, {v(FN,4)}, {v(tre,4)}, 0")
        A.e(f"{MF32} {v(d,16)}, {v(FA+4,4)}, {v(tre+4,4)}, {v(d,16)}")
        A.e(f"{MF32} {v(dn,16)}, {v(FN,4)}, {v(tre+4,4)}, {v(dn,16)}")
        A.e(f"{MF32} {v(d,16)}, {v(FB,4)}, {v(tim,4)}, {v(d,16)}")
        A.e(f"{MF32} {v(d,16)}, {v(FB+4,4)}, {v(tim+4,4)}, {v(d,16)}")
    A.e(f"v_and_b32 {v(T)}, 31, v0\nv_lshlrev_b32 {v(AD)}, 5, {v(T)}")
    A.e(f"v_lshrrev_b32 {v(T+1)}, 5, v0\nv_lshl_add_u32 {v(AD)}, {v(T+1)}, 11, {v(AD)}")
    A.e(f"s_lshr_b32 s22, s16, 1\nv_bfe_u32 {v(T+1)}, v0, 3, 1\nv_xor_b32 {v(T+1)}, s22, {v(T+1)}\nv_lshl_add_u32 {v(AD)}, {v(T+1)}, 4, {v(AD)}")
    A.e(f"s_and_b32 s22, s16, 1\ns_lshl_b32 s22, s22, 3\nv_add_u32 {v(AD)}, s22, {v(AD)}")
    OV = 4
    nop(A, 4)
    for rho in range(2):
        d = DR + 32*rho
        if rho == 1: nop(A, 12)
        for e in range(8):
            A.e(f"v_cvt_pk_bf16_f32 {v(OV + 2*e + rho)}, {v(d + 2*e)}, {v(d + 2*e + 1)}")
    for e in range(8):
        A.e(f"ds_write_b64 {v(AD)}, {v(OV + 2*e, 2)} offset:{LX + (4*(e >> 1) + (e & 1)) * 1024}")
    A.e(f"v_cvt_pk_bf16_f32 {v(W0)}, {v(DR + 16)}, 0\nv_cvt_pk_bf16_f32 {v(W0+1)}, {v(DR + 48)}, 0")
    A.e(f"s_lshl_b32 s22, s16, 3\nv_mov_b32 {v(W0+2)}, s22")
    A.e("s_mov_b64 exec, 1")
    A.e(f"ds_write_b64 {v(W0+2)}, {v(W0,2)} offset:{LX + 512*32}")
    A.e("s_mov_b64 exec, -1")
    if stamps: stamp_mid(A, 1)
    A.e("s_waitcnt vmcnt(0) lgkmcnt(0)\ns_barrier")
    srd_from(A, 48, 30, WS_U, 257 * KP_STRIDE)
    srd_from(A, 52, 30, WS_WT, 257 * KP_STRIDE)
    A.e(f"v_and_b32 {v(T)}, 31, v0\nv_lshlrev_b32 {v(AD)}, 5, {v(T)}\nv_lshrrev_b32 {v(T+1)}, 5, v0\nv_bfe_u32 {v(T+2)}, v0, 3, 1\nv_xor_b32 {v(T+1)}, {v(T+1)}, {v(T+2)}\nv_lshl_add_u32 {v(AD)}, {v(T+1)}, 4, {v(AD)}")
    A.e(f"s_lshl_b32 s22, s16, 12\nv_add_u32 {v(AD)}, s22, {v(AD)}")
    RB = FX
    for b in range(4):
        A.e(f"ds_read_b128 {v(RB + 4*b, 4)}, {v(AD)} offset:{LX + 1024*b}")
    lny = A.newlabel("k1_ny")
    SA = AD + 1
    A.e(f"v_bfe_u32 {v(T)}, v0, 1, 4\ns_mov_b32 s22, {KP_STRIDE}\nv_mul_lo_u32 {v(SA)}, {v(T)}, s22")
    A.e(f"v_and_b32 {v(T)}, 1, v0\nv_lshl_add_u32 {v(SA)}, {v(T)}, 5, {v(SA)}\nv_lshrrev_b32 {v(T)}, 5, v0\nv_lshl_add_u32 {v(SA)}, {v(T)}, 4, {v(SA)}")
    A.e(f"s_mul_i32 s22, s16, {64 * KP_STRIDE}\ns_lshl_b32 s23, s17, 6\ns_add_u32 s22, s22, s23")
    for b in range(4):
        A.e(f"s_waitcnt lgkmcnt({3 - b})")
        A.e(f"{MF32} {v(DR + 16*b, 16)}, {v(A8,4)}, {v(RB + 4*b, 4)}, 0")
    for b in range(4):
        nop(A, 12 if b == 0 else 1)
        for n in range(4):
            A.e(f"v_cvt_pk_bf16_f32 {v(OV + 4*b + n)}, {v(DR + 16*b + 2*n)}, {v(DR + 16*b + 2*n + 1)}")
        A.e(f"buffer_store_dwordx4 {v(OV + 4*b, 4)}, {v(SA)}, s[48:51], s22 offen")
        A.e(f"s_add_u32 s22, s22, {16 * KP_STRIDE}")
    A.e(f"s_cmp_lg_u32 s16, 0\ns_cbranch_scc1 {lny}")
    A.e(f"ds_read_b128 {v(RB, 4)}, {v(AD)} offset:{LX + 16384}")
    A.e("s_waitcnt lgkmcnt(0)")
    A.e(f"{MF32} {v(DR, 16)}, {v(A8,4)}, {v(RB, 4)}, 0")
    nop(A, 12)
    for n in range(4):
        A.e(f"v_cvt_pk_bf16_f32 {v(OV + n)}, {v(DR + 2*n)}, {v(DR + 2*n + 1)}")
    A.e(f"s_lshl_b32 s23, s17, 6\ns_add_u32 s22, s23, {256 * KP_STRIDE}")
    A.e("s_mov_b32 exec_lo, 1\ns_mov_b32 exec_hi, 1")
    A.e(f"buffer_store_dwordx4 {v(OV, 4)}, {v(SA)}, s[48:51], s22 offen")
    A.e("s_mov_b64 exec, -1")
    A.label(lny)
    WA, WS_ = AD, AD + 1
    A.e(f"v_and_b32 {v(T)}, 1, v1\nv_mul_u32_u24 {v(WA)}, 4104, {v(T)}")
    A.e(f"v_lshrrev_b32 {v(T)}, 2, v1\nv_lshl_add_u32 {v(WA)}, {v(T)}, 2, {v(WA)}")
    A.e(f"v_bfe_u32 {v(T+1)}, v1, 1, 1\nv_lshl_add_u32 {v(WA)}, {v(T+1)}, 1, {v(WA)}")
    A.e(f"s_mov_b32 s22, {KP_STRIDE}\nv_mul_lo_u32 {v(WS_)}, {v(T)}, s22\nv_and_b32 {v(T)}, 3, v1\nv_lshl_add_u32 {v(WS_)}, {v(T)}, 4, {v(WS_)}")
    A.e("s_lshl_b32 s22, s17, 6")
    WO = FX; WI = DR
    for n in range(4):
        if n: A.e("s_waitcnt lgkmcnt(7)")
        for nn in range(4):
            A.e(f"ds_read_u16 {v(WO + 4*n + nn)}, {v(WA)} offset:{LW + 256*n + 1026*nn}")
            A.e(f"ds_read_u16 {v(WI + 4*n + nn)}, {v(WA)} offset:{LW + 9216 + 256*n + 1026*nn}")
    A.e("s_waitcnt lgkmcnt(0)")
    for n in range(16):
        A.e(f"v_lshl_or_b32 {v(WO + n)}, {v(WI + n)}, 16, {v(WO + n)}")
    for n in range(4):
        A.e(f"buffer_store_dwordx4 {v(WO + 4*n, 4)}, {v(WS_)}, s[52:55], s22 offen")
        A.e(f"s_add_u32 s22, s22, {64 * KP_STRIDE}")
    lwe = A.newlabel("k1_we")
    A.e(f"s_cmp_lg_u32 s16, 0\ns_cbranch_scc1 {lwe}")
    A.e("s_mov_b64 exec, 3")
    WO2 = WO + 16
    for nn in range(4):
        A.e(f"ds_read_u16 {v(WO2 + nn)}, {v(WA)} offset:{LW + 1024 + 1026*nn}")
        A.e(f"ds_read_u16 {v(WI + nn)}, {v(WA)} offset:{LW + 9216 + 1024 + 1026*nn}")
    A.e("s_waitcnt lgkmcnt(0)")
    for nn in range(4):
        A.e(f"v_lshl_or_b32 {v(WO2 + nn)}, {v(WI + nn)}, 16, {v(WO2 + nn)}")
    A.e(f"buffer_store_dwordx4 {v(WO2, 4)}, {v(WS_)}, s[52:55], s22 offen")
    A.e("s_mov_b64 exec, -1")
    A.label(lwe)
    if stamps:
        A.e("s_waitcnt vmcnt(0)")
        stamp_mid(A, 2)
        stamp_end(A, name, kidx, 30)
    A.label(done)
    A.e("s_endpgm")
    return lds, 216

def gen_k2(A, name="k2_kernel", stamps=False, kidx=0):
    kernel_header(A, name)
    done = name + "_done"
    if stamps: stamp_start(A)
    A.e("s_load_dwordx2 s[30:31], s[0:1], 80")
    A.e(f"s_cmp_ge_u32 s2, 257\ns_cbranch_scc1 {done}")
    A.e("v_lshrrev_b32 v2, 6, v0\nv_and_b32 v0, 63, v0\ns_nop 0\nv_readfirstlane_b32 s16, v2")
    A.e("s_nop 3")
    A.e("s_lshr_b32 s3, s16, 1\ns_lshr_b32 s17, s2, 8\ns_and_b32 s3, s3, s17")
    A.e(f"s_cmp_lg_u32 s3, 0\ns_cbranch_scc1 {done}")
    A.e("s_waitcnt lgkmcnt(0)")
    srd_from(A, 4, 30, WS_U, 257 * KP_STRIDE)
    srd_from(A, 8, 30, WS_WT, 257 * KP_STRIDE)
    srd_from(A, 12, 30, WS_Y, 257 * KP_STRIDE)
    A.e(f"s_mul_i32 s18, s2, {KP_STRIDE}\ns_add_u32 s19, s18, 8192\ns_lshl_b32 s20, s16, 4")
    R0, WT = 4, 20
    VA, VB = 2, 3
    A.e("v_and_b32 v36, 15, v0\nv_lshrrev_b32 v37, 4, v0")
    A.e(f"v_lshl_add_u32 {v(VA)}, v37, 6, v36\nv_lshlrev_b32 {v(VA)}, 6, {v(VA)}\nv_add_u32 {v(VA)}, s20, {v(VA)}")
    A.e(f"v_lshl_add_u32 {v(VB)}, v37, 5, v36\nv_lshlrev_b32 {v(VB)}, 6, {v(VB)}\nv_add_u32 {v(VB)}, s20, {v(VB)}")
    for i in range(4):
        A.e(f"buffer_load_dwordx4 {v(R0 + 4*i, 4)}, {v(VA)}, s[4:7], s18 offen offset:{1024*i}")
    for e in range(4):
        A.e(f"buffer_load_dwordx4 {v(WT + 4*e, 4)}, {v(VB)}, s[8:11], s{18 + (e >> 1)} offen offset:{1024*(e & 1)}")
    CA, CB, CI, CJ = 40, 48, 56, 64
    TC, TS = 72, 76
    P, Q, T = 80, 81, 84
    LF, GF = 82, 83
    A.e(f"v_cvt_f32_u32 {v(LF)}, v36\nv_cvt_f32_u32 {v(GF)}, v37")
    A.e(f"v_mul_f32 {v(P)}, {fconst(A, 1/16)}, {v(LF)}\nv_mul_f32 {v(Q)}, 4.0, {v(GF)}\nv_mul_f32 {v(Q)}, {v(Q)}, {v(P)}")
    co = [j >> 1 for j in range(8)]
    cos_frag(A, CA, P, Q, co, [-0.25*(j & 1) for j in range(8)], T)
    cos_frag(A, CA + 4, P, Q, co, [0.25*(1 - (j & 1)) for j in range(8)], T)
    A.e(f"v_add_f32 {v(Q)}, {v(GF)}, {v(GF)}\nv_mul_f32 {v(Q)}, {v(Q)}, {v(P)}")
    ci = [((j >> 1) & 1) + 8*(j >> 2) for j in range(8)]
    cos_frag(A, CI, P, Q, ci, [0.25*(j & 1) for j in range(8)], T)
    cos_frag(A, CI + 4, P, Q, ci, [-0.25*(1 - (j & 1)) for j in range(8)], T)
    A.e(f"v_mul_f32 {v(P)}, {fconst(A, 1/256)}, {v(LF)}\nv_mul_f32 {v(Q)}, 4.0, {v(GF)}\nv_mul_f32 {v(Q)}, {v(Q)}, {v(P)}")
    for r in range(4): affine(A, TS + r, P, r, Q)
    for r in range(4): A.e(f"v_cos_f32 {v(TC + r)}, {v(TS + r)}")
    for r in range(4): A.e(f"v_sin_f32 {v(TS + r)}, {v(TS + r)}")
    RO = 92
    A.e(f"v_and_b32 {v(RO)}, 1, v0\nv_cvt_f32_u32 {v(RO)}, {v(RO)}\nv_mul_f32 {v(RO)}, {fconst(A, 0.25)}, {v(RO)}")
    for t in range(2):
        A.e(f"v_bfe_u32 {v(P)}, v0, 1, 3\nv_add_u32 {v(P)}, {8*t}, {v(P)}\nv_cvt_f32_u32 {v(P)}, {v(P)}\nv_mul_f32 {v(P)}, {fconst(A, 1/16)}, {v(P)}")
        A.e(f"v_mul_f32 {v(93)}, 4.0, {v(GF)}\nv_mul_f32 {v(93)}, {v(93)}, {v(P)}")
        A.e(f"v_add_f32 {v(Q)}, {v(93)}, {v(RO)}")
        cos_frag(A, CB + 4*t, P, Q, co, [-0.25*(j & 1) for j in range(8)], T)
        A.e(f"v_sub_f32 {v(Q)}, {v(93)}, {v(RO)}")
        cos_frag(A, CJ + 4*t, P, Q, co, [0.25*(j & 1) for j in range(8)], T)
    if stamps: stamp_mid(A, 0)
    A.e("s_waitcnt vmcnt(4)")
    for i in range(4):
        for tau in range(i + 1, 4):
            A.e(f"v_swap_b32 {v(R0 + 4*i + tau)}, {v(R0 + 4*tau + i)}")
    A.e("s_nop 1")
    DD = 96
    W0 = 128
    OP = R0
    def twiddle(conj):
        for tau in range(4):
            re, im = DD + 8*tau, DD + 8*tau + 4
            for hh in (0, 2):
                A.e(f"v_pk_mul_f32 {v(W0+hh,2)}, {v(re+hh,2)}, {v(TC+hh,2)}")
                A.e(f"v_pk_mul_f32 {v(W0+4+hh,2)}, {v(im+hh,2)}, {v(TC+hh,2)}")
            for hh in (0, 2):
                n1 = " neg_lo:[1,0,0] neg_hi:[1,0,0]"
                A.e(f"v_pk_fma_f32 {v(W0+hh,2)}, {v(im+hh,2)}, {v(TS+hh,2)}, {v(W0+hh,2)}" + (n1 if conj else ""))
                A.e(f"v_pk_fma_f32 {v(W0+4+hh,2)}, {v(re+hh,2)}, {v(TS+hh,2)}, {v(W0+4+hh,2)}" + ("" if conj else n1))
            for r in range(4):
                A.e(f"v_cvt_pk_bf16_f32 {v(OP + 4*tau + r)}, {v(W0 + r)}, {v(W0 + 4 + r)}")
        A.e("s_nop 1")
    for tau in range(4):
        A.e(f"{MF16} {v(DD + 8*tau, 4)}, {v(R0 + 4*tau, 4)}, {v(CA, 4)}, 0")
        A.e(f"{MF16} {v(DD + 8*tau + 4, 4)}, {v(R0 + 4*tau, 4)}, {v(CA + 4, 4)}, 0")
    nop(A, 4)
    twiddle(False)
    for tau in range(4):
        for t in range(2):
            A.e(f"{MF16} {v(DD + 8*tau + 4*t, 4)}, {v(CB + 4*t, 4)}, {v(OP + 4*tau, 4)}, 0")
    A.e("s_mov_b32 s26, 0xffff0000")
    A.e("s_waitcnt vmcnt(0)")
    nop(A, 3)
    for tau in range(4):
        for e in range(4):
            vv = DD + 8*tau + 2*e
            w = WT + 4*e + tau
            A.e(f"v_lshlrev_b32 {v(W0)}, 16, {v(w)}\nv_and_b32 {v(W0+1)}, s26, {v(w)}")
            A.e(f"v_pk_mul_f32 {v(W0+2,2)}, {v(vv,2)}, {v(W0,2)} op_sel:[0,0] op_sel_hi:[1,0]")
            A.e(f"v_pk_fma_f32 {v(W0+2,2)}, {v(vv,2)}, {v(W0,2)}, {v(W0+2,2)} op_sel:[1,1,0] op_sel_hi:[0,1,1] neg_lo:[1,0,0]")
            A.e(f"v_cvt_pk_bf16_f32 {v(OP + 4*tau + e)}, {v(W0+2)}, {v(W0+3)}")
    A.e("s_nop 1")
    if stamps: stamp_mid(A, 1)
    for tau in range(4):
        A.e(f"{MF16} {v(DD + 8*tau, 4)}, {v(OP + 4*tau, 4)}, {v(CI, 4)}, 0")
        A.e(f"{MF16} {v(DD + 8*tau + 4, 4)}, {v(OP + 4*tau, 4)}, {v(CI + 4, 4)}, 0")
    nop(A, 4)
    twiddle(True)
    for tau in range(4):
        for t in range(2):
            A.e(f"{MF16} {v(DD + 8*tau + 4*t, 4)}, {v(CJ + 4*t, 4)}, {v(OP + 4*tau, 4)}, 0")
    nop(A, 8)
    for e in range(4):
        for tau in range(4):
            vv = DD + 8*tau + 2*e
            A.e(f"v_cvt_pk_bf16_f32 {v(WT + 4*e + tau)}, {v(vv)}, {v(vv+1)}")
        A.e(f"buffer_store_dwordx4 {v(WT + 4*e, 4)}, {v(VB)}, s[12:15], s{18 + (e >> 1)} offen offset:{1024*(e & 1)}")
    if stamps:
        A.e("s_waitcnt vmcnt(0)")
        stamp_mid(A, 2)
        stamp_end(A, name, kidx, 30)
    A.label(done)
    A.e("s_endpgm")
    return 0, 136

def gen_k3(A, name="k3_kernel", stamps=False, kidx=0, mimic=True):
    LY = 0
    LN = 16384
    lds = LN + 64
    kernel_header(A, name)
    done = name + "_done"
    if stamps: stamp_start(A)
    A.e("s_load_dwordx2 s[40:41], s[0:1], 0\ns_load_dwordx2 s[30:31], s[0:1], 80")
    A.e(f"s_cmp_ge_u32 s2, 256\ns_cbranch_scc1 {done}")
    wg_index(A, 17)
    A.e("v_lshrrev_b32 v2, 6, v0\nv_and_b32 v0, 63, v0\ns_nop 0\nv_readfirstlane_b32 s16, v2")
    A.e("s_waitcnt lgkmcnt(0)")
    srd_from(A, 4, 40, 0, S * D * 2)
    srd_from(A, 8, 30, WS_Y, 257 * KP_STRIDE)
    srd_from(A, 12, 30, WS_H, S * D * 2)
    srd_from(A, 48, 30, WS_LN2, S * D * 2)
    T = 96
    RB = 4
    SA = 2
    A.e(f"v_bfe_u32 {v(T)}, v0, 1, 4\ns_mov_b32 s22, {KP_STRIDE}\nv_mul_lo_u32 {v(SA)}, {v(T)}, s22")
    A.e(f"v_and_b32 {v(T)}, 1, v0\nv_lshl_add_u32 {v(SA)}, {v(T)}, 5, {v(SA)}\nv_lshrrev_b32 {v(T)}, 5, v0\nv_lshl_add_u32 {v(SA)}, {v(T)}, 4, {v(SA)}")
    A.e(f"s_mul_i32 s22, s16, {64 * KP_STRIDE}\ns_lshl_b32 s23, s17, 6\ns_add_u32 s22, s22, s23")
    for b in range(4):
        A.e(f"buffer_load_dwordx4 {v(RB + 4*b, 4)}, {v(SA)}, s[8:11], s22 offen")
        A.e(f"s_add_u32 s22, s22, {16 * KP_STRIDE}")
    A.e(f"s_add_u32 s22, s23, {256 * KP_STRIDE}\nv_lshrrev_b32 {v(T)}, 5, v0\nv_lshlrev_b32 {v(T)}, 4, {v(T)}")
    A.e(f"buffer_load_dwordx4 {v(20, 4)}, {v(T)}, s[8:11], s22 offen")
    XR = 24
    A.e("v_and_b32 v3, 31, v0\nv_lshlrev_b32 v3, 6, v3\nv_lshrrev_b32 v40, 5, v0\nv_lshl_add_u32 v3, v40, 3, v3")
    A.e("s_lshl_b32 s18, s16, 9\ns_add_u32 s18, s18, s17\ns_lshl_b32 s18, s18, 11")
    A.e(f"s_add_u32 s19, s18, {256 * 2048}")
    for rho, so in ((0, 18), (1, 19)):
        for q in range(4):
            A.e(f"buffer_load_dwordx2 {v(XR + 8*rho + 2*q, 2)}, v3, s[4:7], s{so} offen offset:{16*q}")
    A8 = 40
    BR, BI = 44, 52
    TC, TS = 60, 76
    P, Q = 92, 93
    K1F, HF = 94, 95
    CC, CS = 104, 112
    A.e(f"v_and_b32 {v(K1F)}, 31, v0\nv_cvt_f32_u32 {v(K1F)}, {v(K1F)}")
    A.e(f"v_lshrrev_b32 {v(HF)}, 5, v0\nv_cvt_f32_u32 {v(HF)}, {v(HF)}")
    A.e(f"v_bfe_u32 {v(T)}, v0, 2, 1\nv_lshlrev_b32 {v(T)}, 2, {v(T)}")
    A.e(f"v_bfe_u32 {v(T+1)}, v0, 3, 1\nv_lshl_add_u32 {v(T)}, {v(T+1)}, 1, {v(T)}")
    A.e(f"v_bfe_u32 {v(T+1)}, v0, 1, 1\nv_add_u32 {v(T)}, {v(T)}, {v(T+1)}\nv_cvt_f32_u32 {v(T)}, {v(T)}")
    A.e(f"v_cvt_f32_u32 {v(T+1)}, s17\nv_mul_f32 {v(T+1)}, {fconst(A, 1/2048)}, {v(T+1)}")
    A.e(f"v_fmamk_f32 {v(P)}, {v(T)}, {hex(f2u(0.125))}, {v(T+1)}")
    A.e(f"v_and_b32 {v(T+1)}, 1, v0\nv_cvt_f32_u32 {v(T+1)}, {v(T+1)}\nv_mul_f32 {v(T+1)}, {fconst(A, -0.25)}, {v(T+1)}")
    A.e(f"v_mul_f32 {v(Q)}, 4.0, {v(HF)}\nv_fma_f32 {v(Q)}, {v(Q)}, {v(P)}, {v(T+1)}")
    cos_frag(A, A8, P, Q, [j >> 1 for j in range(8)], [0.25 * (j & 1) for j in range(8)], T)
    A.e(f"v_mul_f32 {v(P)}, {fconst(A, 1/32)}, {v(K1F)}")
    A.e(f"v_mul_f32 {v(Q)}, 4.0, {v(HF)}\nv_mul_f32 {v(Q)}, {v(Q)}, {v(P)}")
    for t in range(2):
        co = [8*t + (j >> 1) for j in range(8)]
        cos_frag(A, BR + 4*t, P, Q, co, [0.25*(j & 1) for j in range(8)], T)
        cos_frag(A, BI + 4*t, P, Q, co, [-0.25*(1 - (j & 1)) for j in range(8)], T)
    for t in range(2):
        co = [16*t + 8*(j >> 2) + (j & 3) for j in range(8)]
        cos_frag(A, CC + 4*t, P, Q, co, [0]*8, T)
        cos_frag(A, CS + 4*t, P, Q, co, [0.25]*8, T)
    A.e(f"v_mul_f32 {v(P)}, {fconst(A, 1/1024)}, {v(K1F)}")
    A.e(f"v_mul_f32 {v(Q)}, 4.0, {v(HF)}\nv_mul_f32 {v(Q)}, {v(Q)}, {v(P)}")
    twiddle_table(A, TC, TS, P, Q, T)
    if stamps: stamp_mid(A, 0)
    DR = 144
    AD = 212
    OV = 120
    A.e("s_waitcnt vmcnt(9)")
    for b in range(4):
        A.e(f"{MF32} {v(DR + 16*b, 16)}, {v(A8,4)}, {v(RB + 4*b, 4)}, 0")
    A.e(f"v_lshrrev_b32 {v(T)}, 5, v0\nv_lshlrev_b32 {v(AD)}, 13, {v(T)}")
    A.e(f"v_and_b32 {v(T)}, 31, v0\nv_lshl_add_u32 {v(AD)}, {v(T)}, 6, {v(AD)}")
    A.e(f"v_bfe_u32 {v(T)}, v0, 2, 2\nv_xor_b32 {v(T)}, s16, {v(T)}\nv_lshl_add_u32 {v(AD)}, {v(T)}, 4, {v(AD)}")
    nop(A, 4)
    for b in range(4):
        for n in range(4):
            A.e(f"v_cvt_pk_bf16_f32 {v(OV + 4*b + n)}, {v(DR + 16*b + 2*n)}, {v(DR + 16*b + 2*n + 1)}")
        if b == 0:
            pass
    l0 = A.newlabel("k3_dc")
    A.e(f"s_cmp_lg_u32 s16, 0\ns_cbranch_scc1 {l0}")
    A.e("s_mov_b32 exec_lo, 1\ns_mov_b32 exec_hi, 1")
    for n in range(4):
        A.e(f"v_mul_f32 {v(T)}, 0.5, {v(DR + 2*n)}\nv_cvt_pk_bf16_f32 {v(OV + n)}, {v(T)}, 0")
    A.e("s_mov_b64 exec, -1")
    A.e("s_waitcnt vmcnt(8)")
    A.e(f"{MF32} {v(DR, 16)}, {v(A8,4)}, {v(20, 4)}, 0")
    A.e(f"v_lshrrev_b32 {v(T+1)}, 5, v0\nv_lshlrev_b32 {v(T+1)}, 4, {v(T+1)}")
    nop(A, 12)
    for n in range(4):
        A.e(f"v_mul_f32 {v(T+2+n)}, 0.5, {v(DR + 2*n)}")
    A.e("s_mov_b32 exec_lo, 1\ns_mov_b32 exec_hi, 1")
    A.e(f"ds_write_b128 {v(T+1)}, {v(T+2, 4)} offset:{LN}")
    A.e("s_mov_b64 exec, -1")
    A.label(l0)
    for b in range(4):
        for n in range(4):
            A.e(f"ds_write_b32 {v(AD)}, {v(OV + 4*b + n)} offset:{LY + 2048*n + 4*b}")
    A.e("s_waitcnt lgkmcnt(0)\ns_barrier")
    if stamps: stamp_mid(A, 1)
    TA, TB = T, T + 1
    A.e(f"v_and_b32 {v(T+2)}, 31, v0\nv_lshlrev_b32 {v(TA)}, 6, {v(T+2)}\ns_lshl_b32 s22, s16, 12\nv_add_u32 {v(TA)}, s22, {v(TA)}")
    A.e(f"v_lshrrev_b32 {v(T+2)}, 5, v0\nv_bfe_u32 {v(T+3)}, v0, 2, 2\nv_xor_b32 {v(T+2)}, {v(T+2)}, {v(T+3)}")
    A.e(f"v_xor_b32 {v(T+3)}, 2, {v(T+2)}")
    A.e(f"v_lshl_add_u32 {v(TB)}, {v(T+3)}, 4, {v(TA)}\nv_lshl_add_u32 {v(TA)}, {v(T+2)}, 4, {v(TA)}")
    AF = 120
    for rho in range(2):
        A.e(f"ds_read_b128 {v(AF + 8*rho, 4)}, {v(TA)} offset:{LY + 2048*rho}")
        A.e(f"ds_read_b128 {v(AF + 8*rho + 4, 4)}, {v(TB)} offset:{LY + 2048*rho}")
    NY = 136
    A.e(f"s_lshl_b32 s22, s16, 3\nv_mov_b32 {v(T+2)}, s22")
    A.e(f"ds_read_b64 {v(NY,2)}, {v(T+2)} offset:{LN}")
    SG = 138
    A.e(f"v_and_b32 {v(SG)}, 1, v0\nv_cvt_f32_u32 {v(SG)}, {v(SG)}\nv_fma_f32 {v(SG)}, {v(SG)}, -2.0, 1.0")
    A.e(f"v_cmp_gt_u32 vcc, 32, v0\ns_nop 1\nv_cndmask_b32 {v(SG)}, 0, {v(SG)}, vcc")
    for rho in range(2):
        A.e(f"s_waitcnt lgkmcnt({3 - 2*rho})")
        for t in range(2):
            for im, Bf in ((0, BR), (1, BI)):
                d = DR + 32*rho + 16*im
                c = v(d, 16) if t else "0"
                A.e(f"{MF32} {v(d,16)}, {v(AF + 8*rho + 4*t, 4)}, {v(Bf + 4*t, 4)}, {c}")
    A.e("s_waitcnt lgkmcnt(0)")
    TP = 4
    TPr = [120, 4]
    W0 = 208
    for rho in range(2):
        if rho == 0: nop(A, 12)
        dre, dim = DR + 32*rho, DR + 32*rho + 16
        A.e(f"v_fma_f32 {v(dre)}, {v(SG)}, {v(NY + rho)}, {v(dre)}")
        for p in range(8):
            c, sn = TC + 2*p, TS + 2*p
            A.e(f"v_pk_mul_f32 {v(W0,2)}, {v(dre + 2*p,2)}, {v(c,2)}")
            A.e(f"v_pk_mul_f32 {v(W0+2,2)}, {v(dim + 2*p,2)}, {v(c,2)}")
            A.e(f"v_pk_fma_f32 {v(W0,2)}, {v(dim + 2*p,2)}, {v(sn,2)}, {v(W0,2)} neg_lo:[1,0,0] neg_hi:[1,0,0]")
            A.e(f"v_pk_fma_f32 {v(W0+2,2)}, {v(dre + 2*p,2)}, {v(sn,2)}, {v(W0+2,2)}")
            A.e(f"v_cvt_pk_bf16_f32 {v(TPr[rho] + p)}, {v(W0)}, {v(W0+1)}")
            A.e(f"v_cvt_pk_bf16_f32 {v(TPr[rho] + 8 + p)}, {v(W0+2)}, {v(W0+3)}")
    A.e("s_nop 1")
    for rho in range(2):
        d = DR + 32*rho
        tre, tim = TPr[rho], TPr[rho] + 8
        A.e(f"{MF32} {v(d,16)}, {v(tre,4)}, {v(CC,4)}, 0")
        A.e(f"{MF32} {v(d,16)}, {v(tre+4,4)}, {v(CC+4,4)}, {v(d,16)}")
        A.e(f"{MF32} {v(d,16)}, {v(tim,4)}, {v(CS,4)}, {v(d,16)}")
        A.e(f"{MF32} {v(d,16)}, {v(tim+4,4)}, {v(CS+4,4)}, {v(d,16)}")
    A.e("s_mov_b32 s26, 0xffff0000")
    A.e(f"s_mov_b32 s44, {hex(f2u(2.0**-20))}\ns_mov_b32 s45, {hex(f2u(2.0**-20))}")
    A.e("s_waitcnt vmcnt(0)")
    HF32 = [DR + 16, DR + 48]
    ST = 120
    HP = [4, 12]
    nop(A, 8)
    for rho in range(2):
        d, hf = DR + 32*rho, HF32[rho]
        if rho == 1: nop(A, 4)
        for n in range(8):
            xr = XR + 8*rho + n
            A.e(f"v_pk_mul_f32 {v(d + 2*n,2)}, {v(d + 2*n,2)}, s[44:45]")
            if mimic:
                A.e(f"v_cvt_pk_bf16_f32 {v(W0)}, {v(d + 2*n)}, {v(d + 2*n + 1)}")
                A.e(f"v_lshlrev_b32 {v(d + 2*n)}, 16, {v(W0)}\nv_and_b32 {v(d + 2*n + 1)}, s26, {v(W0)}")
            A.e(f"v_lshlrev_b32 {v(hf + 2*n)}, 16, {v(xr)}\nv_and_b32 {v(hf + 2*n + 1)}, s26, {v(xr)}")
            A.e(f"v_pk_add_f32 {v(hf + 2*n,2)}, {v(hf + 2*n,2)}, {v(d + 2*n,2)}")
            A.e(f"v_cvt_pk_bf16_f32 {v(HP[rho] + n)}, {v(hf + 2*n)}, {v(hf + 2*n + 1)}")
            A.e(f"v_lshlrev_b32 {v(hf + 2*n)}, 16, {v(HP[rho] + n)}\nv_and_b32 {v(hf + 2*n + 1)}, s26, {v(HP[rho] + n)}")
    for rho in range(2):
        sp, qp = ST + 4 + 4*rho, ST + 6 + 4*rho
        f = HF32[rho]
        A.e(f"v_pk_add_f32 {v(sp,2)}, {v(f,2)}, {v(f+2,2)}")
        A.e(f"v_pk_mul_f32 {v(qp,2)}, {v(f,2)}, {v(f,2)}")
        for n in range(1, 8):
            if n >= 2: A.e(f"v_pk_add_f32 {v(sp,2)}, {v(sp,2)}, {v(f+2*n,2)}")
            A.e(f"v_pk_fma_f32 {v(qp,2)}, {v(f+2*n,2)}, {v(f+2*n,2)}, {v(qp,2)}")
        A.e(f"v_add_f32 {v(ST + 2*rho)}, {v(sp)}, {v(sp+1)}")
        A.e(f"v_add_f32 {v(ST + 2*rho + 1)}, {v(qp)}, {v(qp+1)}")
    row_reduce(A, [ST + n for n in range(4)], ST + 12)
    for rho in range(2):
        ln_stats(A, ST + 2*rho, ST + 2*rho + 1, D)
    LP = [24, 32]
    for rho in range(2):
        m, r = ST + 2*rho, ST + 2*rho + 1
        A.e(f"v_sub_f32 {v(ST+4)}, 0, {v(m)}\nv_mov_b32 {v(ST+5)}, {v(ST+4)}\nv_mov_b32 {v(ST+6)}, {v(r)}\nv_mov_b32 {v(ST+7)}, {v(r)}")
        for n in range(8):
            f = HF32[rho] + 2*n
            A.e(f"v_pk_add_f32 {v(f,2)}, {v(f,2)}, {v(ST+4,2)}")
            if mimic:
                A.e(f"v_cvt_pk_bf16_f32 {v(W0)}, {v(f)}, {v(f+1)}")
                A.e(f"v_lshlrev_b32 {v(f)}, 16, {v(W0)}\nv_and_b32 {v(f+1)}, s26, {v(W0)}")
            A.e(f"v_pk_mul_f32 {v(f,2)}, {v(f,2)}, {v(ST+6,2)}")
            A.e(f"v_cvt_pk_bf16_f32 {v(LP[rho] + n)}, {v(f)}, {v(f+1)}")
    A.e(f"v_and_b32 v3, 31, v0\nv_lshlrev_b32 v3, 6, v3\nv_lshrrev_b32 {v(T)}, 5, v0\nv_lshl_add_u32 v3, {v(T)}, 4, v3")
    A.e("s_nop 1")
    for base, srd in ((HP, 12), (LP, 48)):
        for rho, so in ((0, 18), (1, 19)):
            for q in (0, 2):
                g0 = base[rho] + 2*q; g1 = g0 + 2
                A.e(f"v_permlane32_swap_b32 {v(g0)}, {v(g1)}")
                A.e(f"v_permlane32_swap_b32 {v(g0+1)}, {v(g1+1)}")
                A.e(f"buffer_store_dwordx4 {v(g0,4)}, v3, {s(srd,4)}, s{so} offen offset:{16*q}")
    if stamps:
        A.e("s_waitcnt vmcnt(0)")
        stamp_mid(A, 2)
        stamp_end(A, name, kidx, 30)
    A.label(done)
    A.e("s_endpgm")
    return lds, 216

if __name__ == "__main__":
    import sys, json
    which = sys.argv[1]
    kw = json.loads(sys.argv[3]) if len(sys.argv) > 3 else {}
    A = Asm()
    fn = globals()["gen_k" + which]
    nm = f"k{which}_kernel"
    lds, nv = fn(A, stamps=True, **kw)
    grid = 257 if which == "2" else 256
    t = file_text([(nm, grid, 256, lds)], [A.text()], [kernel_desc(nm, nv)])
    open(sys.argv[2], "w").write(t)
    print("vgprs", nv, "lds", lds)
```

```python
from asmlib import *
from gemm import *
from layout import *

def srd_from(A, dst, ptr_lo, off, nbytes):
    if off:
        A.e(f"s_add_u32 {s(dst)}, {s(ptr_lo)}, {off}")
        A.e(f"s_addc_u32 {s(dst+1)}, {s(ptr_lo+1)}, 0")
    else:
        A.e(f"s_mov_b32 {s(dst)}, {s(ptr_lo)}")
        A.e(f"s_mov_b32 {s(dst+1)}, {s(ptr_lo+1)}")
    A.e(f"s_mov_b32 {s(dst+2)}, {nbytes}")
    A.e(f"s_mov_b32 {s(dst+3)}, 0x20000")

def stamp_start(A):
    A.e("s_memrealtime s[60:61]")
    A.e("s_memtime s[68:69]")
def stamp_mid(A, n):
    A.e(f"s_memrealtime s[{72+2*n}:{73+2*n}]")
def stamp_end(A, name, kidx, wsptr, wave_sgpr=16):
    lab = A.newlabel(name + "_ts")
    A.e("s_memrealtime s[62:63]")
    A.e("s_memtime s[70:71]")
    A.e(f"s_cmp_lg_u32 s{wave_sgpr}, 0")
    A.e(f"s_cbranch_scc1 {lab}")
    srd_from(A, 64, wsptr, WS_TS + kidx * 65536, 65536)
    A.e("s_waitcnt lgkmcnt(0)")
    A.e("s_lshl_b32 s3, s2, 6")
    A.e("v_mov_b32 v4, s3")
    A.e("s_mov_b64 exec, 1")
    for n, b in enumerate([60, 68, 72, 76]):
        A.e(f"v_mov_b32 v0, s{b}\nv_mov_b32 v1, s{b+1}\nv_mov_b32 v2, s{b+2}\nv_mov_b32 v3, s{b+3}")
        A.e(f"buffer_store_dwordx4 v[0:3], v4, s[64:67], 0 offen offset:{16*n}")
        A.e("s_nop 1")
    A.label(lab)

def prologue_ids(A):
    A.e("v_lshrrev_b32 v1, 6, v0")
    A.e("v_and_b32 v0, 63, v0")
    A.e("s_nop 0")
    A.e("v_readfirstlane_b32 s16, v1")

def swap_store(A, G, pk, T, va, srd, rowstride, nI, nJ, soff=24, aux=""):
    A.e(f"v_lshrrev_b32 {v(T)}, 4, v0")
    odd = nI % 2
    if odd:
        A.e(f"v_mov_b32 {v(T+2)}, {v(va)}")
    A.e(f"v_lshlrev_b32 {v(T+1)}, 3, {v(T)}")
    A.e(f"v_sub_u32 {v(va)}, {v(va)}, {v(T+1)}")
    A.e(f"v_and_b32 {v(T+1)}, 1, {v(T)}\nv_lshlrev_b32 {v(T+1)}, 5, {v(T+1)}")
    A.e(f"v_lshrrev_b32 {v(T)}, 1, {v(T)}\nv_lshlrev_b32 {v(T)}, 4, {v(T)}")
    A.e(f"v_add3_u32 {v(va)}, {v(va)}, {v(T)}, {v(T+1)}")
    for j in range(nJ):
        A.e(f"s_mov_b32 s{soff}, {16 * j * rowstride}")
        for ip in range(nI // 2):
            z0 = pk(2 * ip, j); z1 = pk(2 * ip + 1, j)
            assert z1 == z0 + 2 and z0 % 2 == 0
            A.e("s_nop 1")
            A.e(f"v_permlane16_swap_b32 {v(z0)}, {v(z1)}")
            A.e(f"v_permlane16_swap_b32 {v(z0+1)}, {v(z1+1)}")
            A.e(f"buffer_store_dwordx4 {v(z0,4)}, {v(va)}, {s(srd,4)}, s{soff} offen offset:{64 * ip} {aux}")
        if odd:
            z0 = pk(nI - 1, j)
            A.e(f"buffer_store_dwordx2 {v(z0,2)}, {v(T+2)}, {s(srd,4)}, s{soff} offen offset:{32 * (nI - 1)} {aux}")

def lane_out_offset(A, va, tmp, y0, x0, swy, swx, TY, TX, rowstride):
    A.e(f"s_mul_i32 s23, s{swy}, {16 * TY}\ns_add_u32 s23, s23, s{y0}")
    A.e(f"v_and_b32 {v(va)}, 15, v0\nv_add_u32 {v(va)}, s23, {v(va)}")
    A.e(f"s_mov_b32 s24, {rowstride}")
    A.e(f"v_mul_lo_u32 {v(va)}, {v(va)}, s24")
    A.e(f"s_mul_i32 s23, s{swx}, {16 * TX}\ns_add_u32 s23, s23, s{x0}\ns_lshl_b32 s23, s23, 1")
    A.e(f"v_lshrrev_b32 {v(tmp)}, 4, v0\nv_lshlrev_b32 {v(tmp)}, 3, {v(tmp)}")
    A.e(f"v_add3_u32 {v(va)}, {v(va)}, {v(tmp)}, s23")

def gen_gemm2(A, name="k5_kernel", NS=4, stamps=False, kidx=0, **kw):
    kernel_header(A, name)
    done = name + "_done"
    if stamps: stamp_start(A)
    A.e("s_load_dwordx2 s[30:31], s[0:1], 80")
    A.e("s_load_dwordx4 s[32:35], s[0:1], 40")
    A.e(f"s_cmp_ge_u32 s2, 256\ns_cbranch_scc1 {done}")
    A.e("s_and_b32 s3, s2, 7\ns_lshr_b32 s29, s2, 3")
    A.e(f"s_cmp_ge_u32 s29, 28\ns_cbranch_scc1 {done}")
    A.e("s_and_b32 s18, s3, 3\ns_lshl_b32 s18, s18, 2\ns_and_b32 s23, s29, 3\ns_add_u32 s18, s18, s23\ns_lshl_b32 s18, s18, 7")
    A.e("s_lshr_b32 s17, s3, 2\ns_mul_i32 s17, s17, 7\ns_lshr_b32 s23, s29, 2\ns_add_u32 s17, s17, s23\ns_lshl_b32 s17, s17, 7")
    prologue_ids(A)
    A.e("s_waitcnt lgkmcnt(0)")
    srd_from(A, 4, 30, WS_Z2, S * FH * 2)
    srd_from(A, 8, 32, 0, S * S * 2)
    X = Op('ks', 128, FH * 2, 4); Y = Op('kc', 128, S * 2, 8)
    G = Gemm(A, name, S, NS, X, Y, 2, 2, **kw)
    cons = name + "_cons"
    A.e("s_nop 4")
    A.e(f"s_cmp_lt_u32 s16, 4\ns_cbranch_scc1 {cons}")
    A.e("s_sub_u32 s25, s16, 4")
    G.emit_producer(0, 1)
    A.e(f"s_branch {done}")
    A.label(cons)
    st = {}
    def pre_last():
        ZB = st['ZB'] = G.vend
        srd_from(A, 12, 30, WS_Z1, S * FH * 2)
        srd_from(A, 36, 34, 0, S * 2)
        va, vb_ = ZB + 36, ZB + 37
        A.e(f"s_lshl_b32 s23, s28, 6\ns_add_u32 s23, s23, s18")
        A.e(f"v_and_b32 {v(vb_)}, 15, v0\nv_add_u32 {v(vb_)}, s23, {v(vb_)}\nv_lshlrev_b32 {v(vb_)}, 1, {v(vb_)}")
        for j in range(4):
            A.e(f"buffer_load_ushort {v(ZB + 32 + j)}, {v(vb_)}, s[36:39], 0 offen offset:{32 * j}")
        lane_out_offset(A, va, vb_, 18, 17, 28, 27, 4, 4, FH * 2)
        for j in range(4):
            A.e(f"s_mov_b32 s24, {16 * j * FH * 2}")
            for i in range(4):
                A.e(f"buffer_load_dwordx2 {v(ZB + 2 * (4 * j + i), 2)}, {v(va)}, s[12:15], s24 offen offset:{32 * i}")
    G.stamp = (lambda n: stamp_mid(A, n)) if stamps else None
    G.emit_consumer(0, 1, pre_last)
    if stamps: stamp_mid(A, 2)
    ZB = st['ZB']; va = ZB + 36
    srd_from(A, 12, 30, WS_P, S * FH * 2)
    A.e("s_nop 7")
    A.e("s_waitcnt vmcnt(0)")
    T = ZB + 40
    A.e(f"s_mov_b32 s26, 0xffff0000")
    for j in range(4):
        A.e(f"v_lshlrev_b32 {v(ZB + 32 + j)}, 16, {v(ZB + 32 + j)}")
    for j in range(4):
        for i in range(4):
            a0 = G.accb + 4 * (i * 4 + j)
            z = ZB + 2 * (4 * j + i)
            bj = ZB + 32 + j
            for r in range(4):
                A.e(f"v_add_f32 {v(a0 + r)}, {v(a0 + r)}, {v(bj)}")
            A.e(f"v_lshlrev_b32 {v(T)}, 16, {v(z)}\nv_and_b32 {v(T+1)}, s26, {v(z)}")
            A.e(f"v_lshlrev_b32 {v(T+2)}, 16, {v(z+1)}\nv_and_b32 {v(T+3)}, s26, {v(z+1)}")
            A.e(f"v_pk_mul_f32 {v(a0,2)}, {v(a0,2)}, {v(T,2)}")
            A.e(f"v_pk_mul_f32 {v(a0+2,2)}, {v(a0+2,2)}, {v(T+2,2)}")
            A.e(f"v_cvt_pk_bf16_f32 {v(z)}, {v(a0)}, {v(a0+1)}")
            A.e(f"v_cvt_pk_bf16_f32 {v(z+1)}, {v(a0+2)}, {v(a0+3)}")
    swap_store(A, G, lambda i, j: ZB + 2 * (4 * j + i), T, va, 12, FH * 2, 4, 4)
    if stamps:
        A.e("s_waitcnt vmcnt(0)")
        stamp_end(A, name, kidx, 30)
    A.label(done)
    A.e("s_endpgm")
    return G, T + 8

def gen_gemm3(A, name="k6_kernel", NS=4, BN=128, WX=2, stamps=False, kidx=0, **kw):
    kernel_header(A, name)
    done = name + "_done"
    if stamps: stamp_start(A)
    A.e("s_load_dwordx2 s[30:31], s[0:1], 80")
    A.e("s_load_dwordx4 s[32:35], s[0:1], 56")
    A.e(f"s_cmp_ge_u32 s2, 256\ns_cbranch_scc1 {done}")
    A.e("s_and_b32 s3, s2, 7\ns_lshr_b32 s29, s2, 3")
    nd = 1024 // BN // 2
    A.e(f"s_cmp_ge_u32 s29, {4 * nd}\ns_cbranch_scc1 {done}")
    A.e("s_and_b32 s18, s3, 3\ns_lshl_b32 s18, s18, 2\ns_and_b32 s23, s29, 3\ns_add_u32 s18, s18, s23\ns_lshl_b32 s18, s18, 7")
    A.e(f"s_lshr_b32 s17, s3, 2\ns_mul_i32 s17, s17, {nd}\ns_lshr_b32 s23, s29, 2\ns_add_u32 s17, s17, s23\ns_mul_i32 s17, s17, {BN}")
    prologue_ids(A)
    A.e("s_waitcnt lgkmcnt(0)")
    srd_from(A, 4, 32, 0, FH * D * 2)
    srd_from(A, 8, 30, WS_P, S * FH * 2)
    X = Op('ks', BN, D * 2, 4); Y = Op('kc', 128, FH * 2, 8)
    WY = 4 // WX
    G = Gemm(A, name, FH, NS, X, Y, WX, WY, **kw)
    TX, TY = G.TX, G.TY
    cons = name + "_cons"
    A.e("s_nop 4")
    A.e(f"s_cmp_lt_u32 s16, 4\ns_cbranch_scc1 {cons}")
    A.e("s_sub_u32 s25, s16, 4")
    G.emit_producer(0, 1)
    A.e(f"s_branch {done}")
    A.label(cons)
    st = {}
    nq = TX * TY
    def pre_last():
        ZB = st['ZB'] = G.vend
        srd_from(A, 12, 30, WS_H, S * D * 2)
        va, vb_ = ZB + 2 * nq, ZB + 2 * nq + 1
        lane_out_offset(A, va, vb_, 18, 17, 28, 27, TY, TX, D * 2)
        for j in range(TY):
            A.e(f"s_mov_b32 s24, {16 * j * D * 2}")
            for i in range(TX):
                A.e(f"buffer_load_dwordx2 {v(ZB + 2 * (TX * j + i), 2)}, {v(va)}, s[12:15], s24 offen offset:{32 * i}")
    G.stamp = (lambda n: stamp_mid(A, n)) if stamps else None
    G.emit_consumer(0, 1, pre_last)
    if stamps: stamp_mid(A, 2)
    ZB = st['ZB']; va = ZB + 2 * nq
    srd_from(A, 12, 34, 0, S * D * 2)
    A.e("s_nop 7")
    A.e("s_waitcnt vmcnt(0)")
    T = (va + 2 + 1) // 2 * 2
    A.e(f"s_mov_b32 s26, 0xffff0000")
    for j in range(TY):
        for i in range(TX):
            a0 = G.accb + 4 * (i * TY + j)
            z = ZB + 2 * (TX * j + i)
            A.e(f"v_lshlrev_b32 {v(T)}, 16, {v(z)}\nv_and_b32 {v(T+1)}, s26, {v(z)}")
            A.e(f"v_lshlrev_b32 {v(T+2)}, 16, {v(z+1)}\nv_and_b32 {v(T+3)}, s26, {v(z+1)}")
            A.e(f"v_pk_add_f32 {v(a0,2)}, {v(a0,2)}, {v(T,2)}")
            A.e(f"v_pk_add_f32 {v(a0+2,2)}, {v(a0+2,2)}, {v(T+2,2)}")
            A.e(f"v_cvt_pk_bf16_f32 {v(z)}, {v(a0)}, {v(a0+1)}")
            A.e(f"v_cvt_pk_bf16_f32 {v(z+1)}, {v(a0+2)}, {v(a0+3)}")
    swap_store(A, G, lambda i, j: ZB + 2 * (TX * j + i), T, va, 12, D * 2, TX, TY)
    if stamps:
        A.e("s_waitcnt vmcnt(0)")
        stamp_end(A, name, kidx, 30)
    A.label(done)
    A.e("s_endpgm")
    return G, T + 8

GK1 = -2.0 * 1.4426950408889634 * 0.7978845608028654
GK2 = GK1 * 0.044715
import struct
def f2u(x): return struct.unpack("<I", struct.pack("<f", x))[0]

def bf16_round(A, reg):
    A.e(f"v_cvt_pk_bf16_f32 {v(reg)}, {v(reg)}, {v(reg)}")
    A.e(f"v_lshlrev_b32 {v(reg)}, 16, {v(reg)}")

def group_reduce(A, regs, tmp):
    for sw in ("v_permlane16_swap_b32", "v_permlane32_swap_b32"):
        for n, r in enumerate(regs):
            A.e(f"v_mov_b32 {v(tmp + n)}, {v(r)}")
        A.e("s_nop 1")
        for n, r in enumerate(regs):
            A.e(f"{sw} {v(r)}, {v(tmp + n)}")
        for n, r in enumerate(regs):
            A.e(f"v_add_f32 {v(r)}, {v(r)}, {v(tmp + n)}")

def gen_gemm1(A, name="k4_kernel", NS=3, stamps=False, kidx=0, **kw):
    kernel_header(A, name)
    done = name + "_done"
    if stamps: stamp_start(A)
    A.e("s_load_dwordx2 s[30:31], s[0:1], 80")
    A.e("s_load_dwordx2 s[32:33], s[0:1], 32")
    A.e(f"s_cmp_ge_u32 s2, 256\ns_cbranch_scc1 {done}")
    A.e("s_and_b32 s3, s2, 7\ns_lshr_b32 s29, s2, 3")
    A.e("s_and_b32 s18, s3, 1\ns_lshl_b32 s18, s18, 3\ns_and_b32 s23, s29, 7\ns_add_u32 s18, s18, s23\ns_mov_b32 s40, s18\ns_lshl_b32 s18, s18, 7")
    A.e("s_lshr_b32 s17, s3, 1\ns_lshl_b32 s17, s17, 1\ns_lshr_b32 s23, s29, 3\ns_add_u32 s17, s17, s23")
    A.e("s_cmp_ge_u32 s23, 2\ns_cselect_b32 s23, 6, 0\ns_add_u32 s17, s17, s23\ns_mov_b32 s41, s17\ns_mul_i32 s17, s17, 224")
    prologue_ids(A)
    A.e("s_waitcnt lgkmcnt(0)")
    srd_from(A, 4, 32, 0, D * F * 2)
    srd_from(A, 8, 30, WS_LN2, S * D * 2)
    X = Op('ks', 224, F * 2, 4); Y = Op('kc', 128, D * 2, 8)
    G = Gemm(A, name, D, NS, X, Y, 2, 2, **kw)
    TX, TY = G.TX, G.TY
    cons = name + "_cons"
    A.e("s_nop 4")
    A.e(f"s_cmp_lt_u32 s16, 4\ns_cbranch_scc1 {cons}")
    A.e("s_sub_u32 s25, s16, 4")
    G.emit_producer(0, 1)
    A.e(f"s_branch {done}")
    A.label(cons)
    G.stamp = (lambda n: stamp_mid(A, n)) if stamps else None
    G.emit_consumer(0, 1, None)
    if stamps: stamp_mid(A, 2)
    FR = G.set0
    T = FR
    A.e(f"s_mov_b32 s44, {f2u(GK1)}\ns_mov_b32 s45, {f2u(GK1)}\ns_mov_b32 s46, {f2u(GK2)}\ns_mov_b32 s47, {f2u(GK2)}")
    A.e(f"v_mov_b32 {v(T+8)}, s44\nv_mov_b32 {v(T+9)}, s45")
    A.e("s_nop 7")
    def accq(i, j): return G.accb + 4 * (i * TY + j)
    for i in range(TX):
        for j in range(TY):
            a0 = accq(i, j)
            for hh in (0, 2):
                A.e(f"v_pk_mul_f32 {v(T+hh,2)}, {v(a0+hh,2)}, {v(a0+hh,2)}")
            for hh in (0, 2):
                A.e(f"v_pk_fma_f32 {v(T+hh,2)}, {v(T+hh,2)}, s[46:47], {v(T+8,2)}")
            for hh in (0, 2):
                A.e(f"v_pk_mul_f32 {v(T+hh,2)}, {v(T+hh,2)}, {v(a0+hh,2)}")
            for r in range(4):
                A.e(f"v_exp_f32 {v(T+r)}, {v(T+r)}")
            A.e("s_nop 0")
            for hh in (0, 2):
                A.e(f"v_pk_add_f32 {v(T+hh,2)}, {v(T+hh,2)}, 1.0 op_sel_hi:[1,0]")
            for r in range(4):
                A.e(f"v_rcp_f32 {v(T+r)}, {v(T+r)}")
            A.e("s_nop 0")
            for hh in (0, 2):
                A.e(f"v_pk_mul_f32 {v(a0+hh,2)}, {v(a0+hh,2)}, {v(T+hh,2)}")
    PK = FR + 16
    def pk(i, j): return PK + 14 * j + 2 * i
    va = PK + 56; vt = va + 1
    z2l = name + "_z2"; st = name + "_store"
    A.e(f"s_cmp_ge_u32 s41, 8\ns_cbranch_scc1 {z2l}")
    srd_from(A, 12, 30, WS_Z1, S * FH * 2)
    A.e(f"s_branch {st}")
    A.label(z2l)
    SP = T
    for n in range(16): A.e(f"v_mov_b32 {v(SP + n)}, 0")
    for j in range(TY):
        for i in range(TX):
            a0 = accq(i, j)
            for hh in (0, 2):
                A.e(f"v_pk_add_f32 {v(SP + 2*j, 2)}, {v(SP + 2*j, 2)}, {v(a0+hh,2)}")
                A.e(f"v_pk_fma_f32 {v(SP + 8 + 2*j, 2)}, {v(a0+hh,2)}, {v(a0+hh,2)}, {v(SP + 8 + 2*j, 2)}")
    R = PK
    for j in range(TY):
        A.e(f"v_add_f32 {v(R + j)}, {v(SP + 2*j)}, {v(SP + 2*j + 1)}")
        A.e(f"v_add_f32 {v(R + 4 + j)}, {v(SP + 8 + 2*j)}, {v(SP + 8 + 2*j + 1)}")
    group_reduce(A, [R + n for n in range(8)], R + 8)
    A.e(f"v_lshrrev_b32 {v(vt)}, 4, v0")
    for j in range(1, 4):
        A.e(f"v_cmp_eq_u32 vcc, {j}, {v(vt)}")
        A.e("s_nop 1")
        A.e(f"v_cndmask_b32 {v(R)}, {v(R)}, {v(R + j)}, vcc")
        A.e(f"v_cndmask_b32 {v(R + 4)}, {v(R + 4)}, {v(R + 4 + j)}, vcc")
    A.e(f"v_mov_b32 {v(R + 1)}, {v(R + 4)}")
    srd_from(A, 36, 30, WS_ST, S * 128)
    A.e("s_lshl_b32 s23, s28, 6\ns_add_u32 s23, s23, s18")
    A.e(f"v_and_b32 {v(va)}, 15, v0\nv_lshl_add_u32 {v(vt)}, {v(vt)}, 4, {v(va)}")
    A.e(f"v_add_u32 {v(vt)}, s23, {v(vt)}\nv_lshlrev_b32 {v(vt)}, 7, {v(vt)}")
    A.e("s_sub_u32 s24, s41, 8\ns_lshl_b32 s24, s24, 1\ns_add_u32 s24, s24, s27\ns_lshl_b32 s24, s24, 3")
    A.e(f"buffer_store_dwordx2 {v(R,2)}, {v(vt)}, s[36:39], s24 offen sc1")
    A.e(f"v_add_u32 {v(vt)}, s23, {v(va)}\nv_lshlrev_b32 {v(vt)}, 7, {v(vt)}")
    A.e(f"v_lshrrev_b32 {v(va)}, 4, v0\nv_lshl_add_u32 {v(vt)}, {v(va)}, 5, {v(vt)}")
    Q = PK + 8
    pl = A.newlabel(name + "_poll"); pd = A.newlabel(name + "_polld")
    A.e("s_mov_b32 s42, 0x40000\ns_mov_b32 s43, 4096")
    A.label(pl)
    for j in range(TY):
        so = "s43" if j >= 2 else "0"
        A.e(f"buffer_load_dwordx4 {v(Q + 8*j, 4)}, {v(vt)}, s[36:39], {so} offen offset:{2048 * (j & 1)} sc1")
        A.e(f"buffer_load_dwordx4 {v(Q + 8*j + 4, 4)}, {v(vt)}, s[36:39], {so} offen offset:{2048 * (j & 1) + 16} sc1")
    A.e("s_waitcnt vmcnt(0)")
    A.e(f"v_mov_b32 {v(va)}, 0")
    A.e(f"v_max_u32 {v(va)}, {v(Q)}, {v(Q+1)}")
    for n in range(2, 32, 2):
        A.e(f"v_max3_u32 {v(va)}, {v(va)}, {v(Q+n)}, {v(Q+n+1)}")
    A.e(f"v_cmp_eq_u32 vcc, -1, {v(va)}")
    A.e("s_sub_u32 s42, s42, 1")
    A.e(f"s_cbranch_scc1 {pd}")
    A.e("s_nop 1")
    A.e("s_cmp_eq_u64 vcc, 0")
    A.e(f"s_cbranch_scc0 {pl}")
    A.label(pd)
    for j in range(TY):
        q = Q + 8 * j
        A.e(f"v_pk_add_f32 {v(q,2)}, {v(q,2)}, {v(q+2,2)}")
        A.e(f"v_pk_add_f32 {v(q+4,2)}, {v(q+4,2)}, {v(q+6,2)}")
        A.e(f"v_pk_add_f32 {v(q,2)}, {v(q,2)}, {v(q+4,2)}")
        A.e(f"v_mov_b32 {v(R + j)}, {v(q)}\nv_mov_b32 {v(R + 4 + j)}, {v(q+1)}")
    group_reduce(A, [R + n for n in range(8)], Q)
    A.e(f"s_mov_b32 s44, {f2u(1.0 / FH)}\ns_mov_b32 s45, {f2u(1e-5)}")
    for j in range(TY):
        m, q = R + j, R + 4 + j
        A.e(f"v_mul_f32 {v(m)}, s44, {v(m)}")
        A.e(f"v_mul_f32 {v(q)}, s44, {v(q)}")
        A.e(f"v_fma_f32 {v(q)}, -{v(m)}, {v(m)}, {v(q)}")
        A.e(f"v_max_f32 {v(q)}, 0, {v(q)}")
        bf16_round(A, m); bf16_round(A, q)
        A.e(f"v_add_f32 {v(q)}, s45, {v(q)}")
        bf16_round(A, q)
        A.e(f"v_sqrt_f32 {v(q)}, {v(q)}\ns_nop 0")
        bf16_round(A, q)
        A.e(f"v_rcp_f32 {v(q)}, {v(q)}\ns_nop 0")
        A.e(f"v_sub_f32 {v(SP + 2*j)}, 0, {v(m)}\nv_sub_f32 {v(SP + 2*j + 1)}, 0, {v(m)}")
        A.e(f"v_mov_b32 {v(SP + 8 + 2*j)}, {v(q)}\nv_mov_b32 {v(SP + 8 + 2*j + 1)}, {v(q)}")
    for i in range(TX):
        for j in range(TY):
            a0 = accq(i, j)
            for hh in (0, 2):
                A.e(f"v_pk_add_f32 {v(a0+hh,2)}, {v(a0+hh,2)}, {v(SP + 2*j, 2)}")
                A.e(f"v_pk_mul_f32 {v(a0+hh,2)}, {v(a0+hh,2)}, {v(SP + 8 + 2*j, 2)}")
    srd_from(A, 12, 30, WS_Z2, S * FH * 2)
    A.e(f"s_sub_u32 s17, s17, {FH}")
    A.label(st)
    for j in range(TY):
        for i in range(TX):
            a0 = accq(i, j)
            A.e(f"v_cvt_pk_bf16_f32 {v(pk(i,j))}, {v(a0)}, {v(a0+1)}")
            A.e(f"v_cvt_pk_bf16_f32 {v(pk(i,j)+1)}, {v(a0+2)}, {v(a0+3)}")
    lane_out_offset(A, va, vt, 18, 17, 28, 27, TY, TX, FH * 2)
    swap_store(A, G, pk, va + 2, va, 12, FH * 2, TX, TY)
    if stamps:
        A.e("s_waitcnt vmcnt(0)")
        stamp_end(A, name, kidx, 30)
    A.label(done)
    A.e("s_endpgm")
    assert va + 8 <= G.accb, (va, G.accb)
    return G, G.vend

if __name__ == "__main__":
    import sys, json
    which = sys.argv[1]
    kw = json.loads(sys.argv[3]) if len(sys.argv) > 3 else {}
    A = Asm()
    fn = {"1": gen_gemm1, "2": gen_gemm2, "3": gen_gemm3}[which]
    nm = {"1": "k4_kernel", "2": "k5_kernel", "3": "k6_kernel"}[which]
    G, nv = fn(A, stamps=True, **kw)
    lds = G.NS * G.slot
    t = file_text([(nm, 256, 512, lds)], [A.text()], [kernel_desc(nm, nv)])
    open(sys.argv[2], "w").write(t)
    print("vgprs", nv, "lds", lds)
```

```python
S, D, F, FH = 2048, 1024, 3584, 1792
MB = 1 << 20
WS_U    = 0 * MB
WS_WT   = 8 * MB
WS_Y    = 16 * MB
WS_H    = 24 * MB
WS_LN2  = 32 * MB
WS_Z1   = 40 * MB
WS_Z2   = 48 * MB
WS_P    = 56 * MB
WS_ST   = 64 * MB
WS_TS   = 72 * MB
ARG = dict(x=0, wr=8, wi=16, bx=24, win=32, wsp=40, bsp=48, wout=56, out=64, dbg=72, ws=80)
KP_STRIDE = 16384 + 256
```

```python
import sys, json
from asmlib import *
from layout import *
import kern_fft, kern_gemm

HEADER = """Spectral (GFNet) block + gMLP block, hand-written gfx950 kernels emitted by the author's own generator scripts.
Kernarg: 0 A_x, 8 A_w_r, 16 A_w_i, 24 B_x (unused by the reference), 32 B_w_in, 40 B_w_sp, 48 B_b_sp, 56 B_w_out, 64 out, 72 debug, 80 ws
k1: LayerNorm + 1024-pt real FFT per row (32x32 MFMA DFT stages) + radix-8 step of the 2048-pt column FFT; re-tiles W
k2: 256-pt column FFT (16x16), multiply by W, inverse 256-pt FFT
k3: inverse radix-8 step, inverse 1024-pt real FFT, residual, LayerNorm
k4: z = gelu(ln2 @ w_in); LayerNorm of the second half (row statistics exchanged between workgroups)
k5: P = z1 * (w_sp @ z2n + b_sp)
k6: out = h + P @ w_out"""

def build(stamps=False, extra_trivial=0, opts=None):
    opts = opts or {}
    launches, bodies, descs = [], [], []
    def add(name, grid, block, lds, nv, A):
        launches.append((name, grid, block, lds)); bodies.append(A.text()); descs.append(kernel_desc(name, nv))
    o = lambda k: dict(opts.get(k, {}))
    A = Asm(); lds, nv = kern_fft.gen_k1(A, "k1_kernel", stamps=stamps, kidx=0, **o("k1")); add("k1_kernel", 256, 256, lds, nv, A)
    A = Asm(); lds, nv = kern_fft.gen_k2(A, "k2_kernel", stamps=stamps, kidx=1, **o("k2")); add("k2_kernel", 257, 256, lds, nv, A)
    A = Asm(); lds, nv = kern_fft.gen_k3(A, "k3_kernel", stamps=stamps, kidx=2, **o("k3")); add("k3_kernel", 256, 256, lds, nv, A)
    A = Asm(); G, nv = kern_gemm.gen_gemm1(A, "k4_kernel", stamps=stamps, kidx=3, **o("k4")); add("k4_kernel", 256, 512, G.NS * G.slot, nv, A)
    A = Asm(); G, nv = kern_gemm.gen_gemm2(A, "k5_kernel", stamps=stamps, kidx=4, **o("k5")); add("k5_kernel", 256, 512, G.NS * G.slot, nv, A)
    kw = dict(BN=64, WX=2, NS=4); kw.update(o("k6"))
    A = Asm(); G, nv = kern_gemm.gen_gemm3(A, "k6_kernel", stamps=stamps, kidx=5, **kw); add("k6_kernel", 256, 512, G.NS * G.slot, nv, A)
    for i in range(extra_trivial):
        A = Asm(); nm = f"z{i}_kernel"; kernel_header(A, nm); A.e("s_endpgm"); add(nm, 256, 256, 0, 8, A)
    return file_text(launches, bodies, descs, HEADER)

if __name__ == "__main__":
    out = sys.argv[1]
    kw = json.loads(sys.argv[2]) if len(sys.argv) > 2 else {}
    t = build(**kw)
    open(out, "w").write(t)
    print("bytes", len(t))
```

```python
from asmlib import *
from banks import cycles

KS = 64

def sigma(RB, k):
    if RB in (256, 512): return (k & 3) | (((k >> 3) & 1) << 2)
    if RB == 448: return (k >> 3) & 1
    if RB == 128: return ((k >> 1) & 1) | (((k >> 3) & 1) << 1)
    raise ValueError(RB)

class Op:
    def __init__(self, kind, R, stride, srd):
        self.kind, self.R, self.stride, self.srd = kind, R, stride, srd
        self.bytes = R * KS * 2
        self.ndma = self.bytes // 1024
        self.RB = 2 * R if kind == 'ks' else 128
    def read_addr(self, lane, idx0, t, h, rd=0):
        if self.kind == 'kc':
            row = idx0 + 16 * t + (lane & 15)
            return row * 128 + (((4 * h + (lane >> 4)) ^ ((row >> 1) & 7)) * 16)
        G, r, c = lane >> 4, (lane >> 2) & 3, lane & 3
        k = 32 * h + 8 * G + 4 * rd + r
        u = idx0 // 16 + t
        return k * self.RB + ((2 * u + (c >> 1)) ^ (sigma(self.RB, k) << 1)) * 16 + (c & 1) * 8

def check_conflicts(op, origins, T):
    for idx0 in origins:
        for t in range(T):
            for h in range(2):
                if op.kind == 'kc':
                    a = [op.read_addr(l, idx0, t, h) for l in range(64)]
                    assert cycles(a, 'b128') == 4
                else:
                    for rd in range(2):
                        a = [op.read_addr(l, idx0, t, h, rd) for l in range(64)]
                        assert cycles(a, 'tr_b64') == 2, (op.RB, idx0, t, h, rd, cycles(a, 'tr_b64'))

class Gemm:
    def __init__(self, A, name, Ktot, NS, X, Y, WX, WY, mode='pc', no_mfma=False, no_dma=False, no_read=False, lds0=0):
        self.A, self.name, self.Ktot, self.NS, self.X, self.Y = A, name, Ktot, NS, X, Y
        self.WX, self.WY = WX, WY
        self.TX = X.R // 16 // WX
        self.TY = Y.R // 16 // WY
        self.nst = Ktot // KS
        self.slot = X.bytes + Y.bytes
        self.mode = mode
        self.lds0 = lds0
        self.no_mfma, self.no_dma, self.no_read = no_mfma, no_dma, no_read
        self.nd = X.ndma + Y.ndma
        assert self.nd % 4 == 0
        self.P = self.nd // 4
        check_conflicts(X, [16 * self.TX * w for w in range(WX)], self.TX)
        check_conflicts(Y, [16 * self.TY * w for w in range(WY)], self.TY)
        assert self.NS * self.slot <= 163840

    S_WAVE, S_X0, S_Y0, S_SOX, S_SOY, S_SLOT, S_CNT, S_T0, S_T1, S_LW = 16, 17, 18, 19, 20, 21, 22, 23, 24, 25

    def emit_dma_setup(self, vb, lane):
        A = self.A
        t0, t1, t2 = vb + self.P, vb + self.P + 1, vb + self.P + 2
        self.pieces = []
        X, Y = self.X, self.Y
        assert X.ndma % 4 == 0 and Y.ndma % 4 == 0
        n = 0
        for op in (X, Y):
            for jj in range(op.ndma // 4):
                dst = vb + n
                if getattr(op, 'tiled', False):
                    A.e(f"s_lshl_b32 {s(self.S_T0)}, {s(self.S_LW)}, 10")
                    A.e(f"s_add_u32 {s(self.S_T0)}, {s(self.S_T0)}, {4096 * jj}")
                    A.e(f"v_lshlrev_b32 {v(t0)}, 4, {v(lane)}")
                    A.e(f"v_add_u32 {v(dst)}, {s(self.S_T0)}, {v(t0)}")
                elif op.kind == 'kc':
                    A.e(f"s_and_b32 {s(self.S_T0)}, {s(self.S_LW)}, 1")
                    A.e(f"s_lshl_b32 {s(self.S_T0)}, {s(self.S_T0)}, 2")
                    A.e(f"v_lshrrev_b32 {v(t0)}, 4, {v(lane)}")
                    A.e(f"v_xor_b32 {v(t0)}, {s(self.S_T0)}, {v(t0)}")
                    A.e(f"v_and_b32 {v(t1)}, 7, {v(lane)}")
                    A.e(f"v_xor_b32 {v(t0)}, {v(t0)}, {v(t1)}")
                    A.e(f"v_lshlrev_b32 {v(t0)}, 4, {v(t0)}")
                    A.e(f"s_lshl_b32 {s(self.S_T0)}, {s(self.S_LW)}, 3")
                    A.e(f"s_add_u32 {s(self.S_T0)}, {s(self.S_T0)}, {32 * jj}")
                    A.e(f"v_lshrrev_b32 {v(t1)}, 3, {v(lane)}")
                    A.e(f"v_add_u32 {v(t1)}, {s(self.S_T0)}, {v(t1)}")
                    A.e(f"s_mov_b32 {s(self.S_T1)}, {op.stride}")
                    A.e(f"v_mul_lo_u32 {v(t1)}, {v(t1)}, {s(self.S_T1)}")
                    A.e(f"v_add_u32 {v(dst)}, {v(t0)}, {v(t1)}")
                else:
                    CPR = op.RB // 16
                    A.e(f"s_lshl_b32 {s(self.S_T0)}, {s(self.S_LW)}, 6")
                    A.e(f"s_add_u32 {s(self.S_T0)}, {s(self.S_T0)}, {256 * jj}")
                    A.e(f"v_add_u32 {v(t0)}, {s(self.S_T0)}, {v(lane)}")
                    if CPR & (CPR - 1) == 0:
                        sh = CPR.bit_length() - 1
                        A.e(f"v_lshrrev_b32 {v(t1)}, {sh}, {v(t0)}")
                        A.e(f"v_and_b32 {v(t0)}, {CPR - 1}, {v(t0)}")
                    else:
                        magic = (65536 + CPR - 1) // CPR
                        for p in range(64 * op.ndma):
                            assert (p * magic) >> 16 == p // CPR
                        A.e(f"v_mul_u32_u24 {v(t1)}, {magic}, {v(t0)}")
                        A.e(f"v_lshrrev_b32 {v(t1)}, 16, {v(t1)}")
                        A.e(f"v_mul_u32_u24 {v(t2)}, {CPR}, {v(t1)}")
                        A.e(f"v_sub_u32 {v(t0)}, {v(t0)}, {v(t2)}")
                    if op.RB in (256, 512):
                        A.e(f"v_and_b32 {v(t2)}, 3, {v(t1)}")
                        A.e(f"v_lshlrev_b32 {v(t2)}, 1, {v(t2)}")
                        A.e(f"v_xor_b32 {v(t0)}, {v(t0)}, {v(t2)}")
                        A.e(f"v_and_b32 {v(t2)}, 8, {v(t1)}")
                        A.e(f"v_xor_b32 {v(t0)}, {v(t0)}, {v(t2)}")
                    elif op.RB == 448:
                        A.e(f"v_lshrrev_b32 {v(t2)}, 2, {v(t1)}")
                        A.e(f"v_and_b32 {v(t2)}, 2, {v(t2)}")
                        A.e(f"v_xor_b32 {v(t0)}, {v(t0)}, {v(t2)}")
                    elif op.RB == 128:
                        A.e(f"v_and_b32 {v(t2)}, 2, {v(t1)}")
                        A.e(f"v_xor_b32 {v(t0)}, {v(t0)}, {v(t2)}")
                        A.e(f"v_lshrrev_b32 {v(t2)}, 1, {v(t1)}")
                        A.e(f"v_and_b32 {v(t2)}, 4, {v(t2)}")
                        A.e(f"v_xor_b32 {v(t0)}, {v(t0)}, {v(t2)}")
                    if getattr(op, 'segmap', None):
                        A.e(f"v_bfe_u32 {v(t2)}, {v(t0)}, 3, 1\nv_mul_u32_u24 {v(t2)}, {op.segmap}, {v(t2)}")
                        A.e(f"v_bfe_u32 {v(dst)}, {v(t0)}, 4, 1\nv_lshl_add_u32 {v(t2)}, {v(dst)}, 7, {v(t2)}")
                        A.e(f"v_and_b32 {v(t0)}, 7, {v(t0)}\nv_lshl_add_u32 {v(t0)}, {v(t0)}, 4, {v(t2)}")
                    else:
                        A.e(f"v_lshlrev_b32 {v(t0)}, 4, {v(t0)}")
                    A.e(f"s_mov_b32 {s(self.S_T1)}, {op.stride}")
                    A.e(f"v_mul_lo_u32 {v(t1)}, {v(t1)}, {s(self.S_T1)}")
                    A.e(f"v_add_u32 {v(dst)}, {v(t0)}, {v(t1)}")
                ldsoff = (0 if op is X else X.bytes) + 4096 * jj
                self.pieces.append((op, dst, ldsoff))
                n += 1

    def emit_dma_stage(self, sslot, only=None):
        groups = []
        for (op, vo, ldsoff) in self.pieces:
            if only is not None and op is not only: continue
            so = self.S_SOX if op is self.X else self.S_SOY
            aux = getattr(op, 'aux', '')
            g = [f"s_add_u32 m0, {s(sslot)}, {self.lds0 + ldsoff}", "s_nop 0",
                 f"buffer_load_dwordx4 {v(vo)}, {s(op.srd, 4)}, {s(so)} offen {aux} lds"]
            if self.no_dma: g = []
            groups.append(g)
        adv = []
        if only is None or only is self.X: adv.append(f"s_add_u32 {s(self.S_SOX)}, {s(self.S_SOX)}, {self.advX}")
        if only is None or only is self.Y: adv.append(f"s_add_u32 {s(self.S_SOY)}, {s(self.S_SOY)}, {self.advY}")
        return groups, adv

    def adv(self, op):
        if getattr(op, 'tiled', False): return op.bytes
        return 128 if op.kind == 'kc' else KS * op.stride
    @property
    def advX(self): return self.adv(self.X)
    @property
    def advY(self): return self.adv(self.Y)

    def emit_soff_init(self):
        A = self.A
        for op, so, o in ((self.X, self.S_SOX, self.S_X0), (self.Y, self.S_SOY, self.S_Y0)):
            if getattr(op, 'tiled', False):
                A.e(f"s_mul_i32 {s(so)}, {s(o)}, {self.nst * op.bytes // op.R}")
            elif op.kind == 'kc':
                A.e(f"s_mul_i32 {s(so)}, {s(o)}, {op.stride}")
            else:
                A.e(f"s_lshl_b32 {s(so)}, {s(o)}, 1")

    def slot_next(self, sreg):
        return [f"s_add_u32 {s(sreg)}, {s(sreg)}, {self.slot}",
                f"s_cmp_ge_u32 {s(sreg)}, {s(self.S_T1)}",
                f"s_cselect_b32 {s(self.S_T0)}, {self.NS * self.slot}, 0",
                f"s_sub_u32 {s(sreg)}, {s(sreg)}, {s(self.S_T0)}"]

    def emit_producer_setup(self, lane, vb):
        A = self.A
        self.emit_dma_setup(vb, lane)
        self.emit_soff_init()
        SL = self.S_SLOT
        A.e(f"s_lshl_b32 {s(SL)}, {s(self.S_LW)}, 10")
        A.e(f"s_add_u32 {s(26)}, {s(SL)}, {self.NS * self.slot}")

    def _pstage(self, only=None):
        A, SL = self.A, self.S_SLOT
        groups, adv = self.emit_dma_stage(SL, only)
        for g in groups:
            for ln in g: A.e(ln)
        for ln in adv: A.e(ln)
        A.e(f"s_add_u32 {s(SL)}, {s(SL)}, {self.slot}")
        A.e(f"s_cmp_ge_u32 {s(SL)}, {s(26)}")
        A.e(f"s_cselect_b32 {s(self.S_T0)}, {self.NS * self.slot}, 0")
        A.e(f"s_sub_u32 {s(SL)}, {s(SL)}, {s(self.S_T0)}")

    def emit_producer_run(self, early=None, gate=None):
        A, P, NS, nst = self.A, self.P, self.NS, self.nst
        npro = min(NS, nst)
        assert npro == NS
        if early is None:
            if gate: gate()
            for i in range(npro): self._pstage()
            PL = P
        else:
            late = self.Y if early is self.X else self.X
            for i in range(npro): self._pstage(early)
            if gate: gate()
            for i in range(npro): self._pstage(late)
            PL = late.ndma // 4
        if self.no_dma: PL = P = 0
        A.e(f"s_waitcnt vmcnt({(npro - 1) * PL})")
        A.e("s_barrier")
        nsteady = nst - NS
        peel = min(NS - 1, nsteady) if early is not None else 0
        for b in range(1, peel + 1):
            A.e(f"s_waitcnt vmcnt({(npro - 1 - b) * PL + (b - 1) * P})")
            A.e("s_barrier")
            self._pstage()
        if nsteady - peel > 0:
            lp = A.newlabel(self.name + "_pl")
            A.e(f"s_mov_b32 {s(self.S_CNT)}, {nsteady - peel}")
            A.label(lp)
            A.e(f"s_waitcnt vmcnt({(NS - 2) * P})")
            A.e("s_barrier")
            self._pstage()
            A.e(f"s_sub_u32 {s(self.S_CNT)}, {s(self.S_CNT)}, 1")
            A.e(f"s_cmp_lg_u32 {s(self.S_CNT)}, 0")
            A.e(f"s_cbranch_scc1 {lp}")
        for b in range(nsteady + 1, nst):
            left = nst - 1 - b
            A.e(f"s_waitcnt vmcnt({min(left, NS - 2) * P})")
            A.e("s_barrier")

    def emit_producer(self, lane, vb):
        self.emit_producer_setup(lane, vb)
        self.emit_producer_run()

    def emit_consumer_setup(self, lane, vb):
        A, X, Y = self.A, self.X, self.Y
        self.addr = {}
        self.abase = []
        SWX, SWY = 27, 28
        A.e(f"s_and_b32 {s(SWX)}, {s(self.S_WAVE)}, {self.WX - 1}")
        A.e(f"s_lshr_b32 {s(SWY)}, {s(self.S_WAVE)}, {self.WX.bit_length() - 1}")
        nxt = vb
        t0, t1, t2, t3 = 0, 0, 0, 0
        plan = []
        for nm, op, T, W in (('X', X, self.TX, self.WX), ('Y', Y, self.TY, self.WY)):
            origins = [16 * T * w for w in range(W)]
            keys = []
            for t in range(T):
                for h in range(2):
                    for rd in (range(2) if op.kind == 'ks' else [0]):
                        vec = [[op.read_addr(l, o, t, h, rd) for l in range(64)] for o in origins]
                        found = None
                        if getattr(op, 'xorfam', False) and t > 0:
                            r0, d0 = self.addr[(nm, 0, h, rd)]
                            v0_ = [[op.read_addr(l, o, 0, h, rd) for l in range(64)] for o in origins]
                            assert all(vec[w][l] == (v0_[w][l] ^ (t << 5)) for w in range(W) for l in range(64))
                            self.addr[(nm, t, h, rd)] = (('x', r0, t), d0)
                            continue
                        for (kv, reg) in keys:
                            d = vec[0][0] - kv[0][0]
                            if d >= 0 and all(vec[w][l] - kv[w][l] == d for w in range(W) for l in range(64)):
                                found = (reg, d); break
                        if found is None:
                            reg = len(plan)
                            plan.append((nm, op, t, h, rd))
                            keys.append((vec, reg))
                            found = (reg, 0)
                        self.addr[(nm, t, h, rd)] = found
        nreg = len(plan)
        base0 = vb; cur0 = vb + nreg
        self.xor = {}
        for key, (reg, d) in list(self.addr.items()):
            if isinstance(reg, tuple):
                if (reg[1], reg[2]) not in self.xor: self.xor[(reg[1], reg[2])] = nreg + len(self.xor)
                self.addr[key] = (self.xor[(reg[1], reg[2])], d)
        tmp = vb + 2 * nreg + len(self.xor)
        a, b, c = tmp, tmp + 1, tmp + 2
        for i, (nm, op, t, h, rd) in enumerate(plan):
            dst = base0 + i
            T = self.TX if nm == 'X' else self.TY
            sw = SWX if nm == 'X' else SWY
            opoff = 0 if nm == 'X' else X.bytes
            if op.kind == 'kc':
                A.e(f"v_and_b32 {v(a)}, 15, {v(lane)}")
                A.e(f"v_lshrrev_b32 {v(b)}, 1, {v(a)}")
                A.e(f"v_lshrrev_b32 {v(c)}, 4, {v(lane)}")
                A.e(f"v_xor_b32 {v(b)}, {v(b)}, {v(c)}")
                if h: A.e(f"v_xor_b32 {v(b)}, 4, {v(b)}")
                A.e(f"v_lshlrev_b32 {v(b)}, 4, {v(b)}")
                A.e(f"v_lshlrev_b32 {v(a)}, 7, {v(a)}")
                A.e(f"v_add_u32 {v(a)}, {v(a)}, {v(b)}")
                A.e(f"s_mul_i32 {s(self.S_T0)}, {s(sw)}, {16 * T * 128}")
                A.e(f"s_add_u32 {s(self.S_T0)}, {s(self.S_T0)}, {opoff + t * 2048}")
                A.e(f"v_add_u32 {v(dst)}, {s(self.S_T0)}, {v(a)}")
            else:
                RB = op.RB
                A.e(f"v_lshrrev_b32 {v(a)}, 4, {v(lane)}")
                A.e(f"v_bfe_u32 {v(b)}, {v(lane)}, 2, 2")
                if RB in (256, 512):
                    A.e(f"v_and_b32 {v(c)}, 1, {v(a)}")
                    A.e(f"v_lshlrev_b32 {v(c)}, 2, {v(c)}")
                    A.e(f"v_or_b32 {v(c)}, {v(c)}, {v(b)}")
                elif RB == 448:
                    A.e(f"v_and_b32 {v(c)}, 1, {v(a)}")
                elif RB == 128:
                    A.e(f"v_and_b32 {v(c)}, 1, {v(a)}")
                    A.e(f"v_lshlrev_b32 {v(c)}, 1, {v(c)}")
                    A.e(f"v_lshrrev_b32 {v(dst)}, 1, {v(b)}")
                    A.e(f"v_or_b32 {v(c)}, {v(c)}, {v(dst)}")
                A.e(f"v_lshl_add_u32 {v(a)}, {v(a)}, 3, {v(b)}")
                A.e(f"s_mov_b32 {s(self.S_T1)}, {RB}")
                A.e(f"v_mul_lo_u32 {v(a)}, {v(a)}, {s(self.S_T1)}")
                A.e(f"s_mul_i32 {s(self.S_T0)}, {s(sw)}, {T}")
                A.e(f"s_add_u32 {s(self.S_T0)}, {s(self.S_T0)}, {t}")
                A.e(f"v_xor_b32 {v(c)}, {s(self.S_T0)}, {v(c)}")
                A.e(f"v_lshlrev_b32 {v(c)}, 5, {v(c)}")
                A.e(f"v_add_u32 {v(a)}, {v(a)}, {v(c)}")
                A.e(f"v_and_b32 {v(b)}, 3, {v(lane)}")
                A.e(f"v_lshlrev_b32 {v(b)}, 3, {v(b)}")
                A.e(f"v_add_u32 {v(a)}, {v(a)}, {v(b)}")
                A.e(f"v_add_u32 {v(dst)}, {opoff + (32 * h + 4 * rd) * RB}, {v(a)}")
        self.nab = nreg; self.base0 = base0; self.cur0 = cur0
        return tmp

    def reads(self, setbase, h):
        out = []
        X, Y = self.X, self.Y
        def one(nm, op, t, dst):
            if op.kind == 'kc':
                reg, imm = self.addr[(nm, t, h, 0)]
                return [f"ds_read_b128 {v(dst, 4)}, {v(self.cur0 + reg)} offset:{imm}"]
            res = []
            for rd in range(2):
                reg, imm = self.addr[(nm, t, h, rd)]
                res.append(f"ds_read_b64_tr_b16 {v(dst + 2 * rd, 2)}, {v(self.cur0 + reg)} offset:{imm}")
            return res
        xs = [one('X', X, t, setbase + 4 * t) for t in range(self.TX)]
        ys = [one('Y', Y, t, setbase + 4 * self.TX + 4 * t) for t in range(self.TY)]
        order = []
        order += ys[0] + xs[0]
        rest = ys[1:]
        for y in rest: order += y
        for x in xs[1:]: order += x
        if self.no_read: return []
        return order

    def mfmas(self, setbase):
        out = []
        for i in range(self.TX):
            for j in range(self.TY):
                a0 = self.accb + 4 * (i * self.TY + j)
                out.append(f"v_mfma_f32_16x16x32_bf16 {v(a0,4)}, {v(setbase + 4*i, 4)}, {v(setbase + 4*self.TX + 4*j, 4)}, {v(a0,4)}")
        if self.no_mfma: return []
        return out

    def interleave(self, mf, other, per=1, start=0):
        A = self.A
        o = list(other)
        if not mf:
            for ln in o: A.e(ln)
            return
        for n, m in enumerate(mf):
            A.e(m)
            if n >= start:
                for _ in range(per):
                    if o: A.e(o.pop(0))
        for ln in o: A.e(ln)

    def cur_update(self):
        out = [f"v_add_u32 {v(self.cur0 + i)}, {s(self.S_SLOT)}, {v(self.base0 + i)}" for i in range(self.nab)]
        out += [f"v_xor_b32 {v(self.cur0 + x)}, {t << 5}, {v(self.cur0 + r)}" for (r, t), x in self.xor.items()]
        return out

    def emit_consumer_pre(self, lane, vb):
        A, NS = self.A, self.NS
        f = self.emit_consumer_setup(lane, vb)
        nfr = 4 * (self.TX + self.TY)
        set0 = (f + 3) // 4 * 4; set1 = set0 + nfr
        self.set0, self.set1 = set0, set1
        self.accb = set1 + nfr
        self.vend = self.accb + 4 * self.TX * self.TY
        for i in range(4 * self.TX * self.TY):
            A.e(f"v_mov_b32 {v(self.accb + i)}, 0")
        A.e(f"s_mov_b32 {s(self.S_SLOT)}, {self.lds0}")
        for ln in self.cur_update(): A.e(ln)

    def emit_consumer_run(self, pre_last=None):
        A, NS, nst = self.A, self.NS, self.nst
        set0, set1 = self.set0, self.set1
        SL = self.S_SLOT
        if getattr(self, 'stamp', None): self.stamp(0)
        A.e("s_barrier")
        if getattr(self, 'stamp', None): self.stamp(1)
        for ln in self.reads(set0, 0): A.e(ln)
        A.e("s_waitcnt lgkmcnt(0)")
        lim = self.lds0 + NS * self.slot
        def body(last):
            sl = [] if last else [f"s_add_u32 {s(SL)}, {s(SL)}, {self.slot}",
                  f"s_cmp_ge_u32 {s(SL)}, {lim}",
                  f"s_cselect_b32 {s(self.S_T0)}, {NS * self.slot}, 0",
                  f"s_sub_u32 {s(SL)}, {s(SL)}, {s(self.S_T0)}"]
            self.interleave(self.mfmas(set0), self.reads(set1, 1) + sl, per=2)
            A.e("s_waitcnt lgkmcnt(0)")
            if last:
                self.interleave(self.mfmas(set1), [])
                return
            for ln in self.cur_update(): A.e(ln)
            A.e("s_barrier")
            self.interleave(self.mfmas(set1), self.reads(set0, 0) + [f"s_sub_u32 {s(self.S_CNT)}, {s(self.S_CNT)}, 1"], per=2)
            A.e("s_waitcnt lgkmcnt(0)")
        lp = A.newlabel(self.name + "_cl")
        A.e(f"s_mov_b32 {s(self.S_CNT)}, {nst - 1}")
        A.label(lp)
        body(False)
        A.e(f"s_cmp_lg_u32 {s(self.S_CNT)}, 0")
        A.e(f"s_cbranch_scc1 {lp}")
        if pre_last: pre_last()
        body(True)

    def emit_consumer(self, lane, vb, pre_last=None):
        self.emit_consumer_pre(lane, vb)
        self.emit_consumer_run(pre_last)
```

```python
from asmlib import *
from layout import *
from kern_gemm import srd_from, stamp_start, stamp_mid, stamp_end, f2u, bf16_round, group_reduce

def nop(A, n):
    while n > 0:
        k = min(n, 16); A.e(f"s_nop {k-1}"); n -= k

def fconst(A, x):
    inl = {0.0: "0", 0.5: "0.5", 1.0: "1.0", 2.0: "2.0", 4.0: "4.0", -0.5: "-0.5", -1.0: "-1.0", -2.0: "-2.0", -4.0: "-4.0"}
    return inl.get(float(x), hex(f2u(x)))

def affine(A, dst, P, c, Q):
    if c == 0: A.e(f"v_mov_b32 {v(dst)}, {v(Q)}")
    else: A.e(f"v_fmamk_f32 {v(dst)}, {v(P)}, {hex(f2u(c))}, {v(Q)}")

def cos_frag(A, dst, P, Q, coefs, offs, tmp):
    for j in range(8):
        affine(A, tmp + j, P, coefs[j], Q)
    for j in range(8):
        if offs[j] != 0: A.e(f"v_add_f32 {v(tmp+j)}, {fconst(A, offs[j])}, {v(tmp+j)}")
    for j in range(8):
        A.e(f"v_cos_f32 {v(tmp+j)}, {v(tmp+j)}")
    A.e("s_nop 0")
    for jj in range(4):
        A.e(f"v_cvt_pk_bf16_f32 {v(dst+jj)}, {v(tmp+2*jj)}, {v(tmp+2*jj+1)}")

def wg_index(A, dst):
    A.e(f"s_and_b32 s{dst}, s2, 7\ns_lshl_b32 s{dst}, s{dst}, 1\ns_bfe_u32 s3, s2, 0x10003\ns_or_b32 s{dst}, s{dst}, s3\ns_and_b32 s3, s2, 0xf0\ns_or_b32 s{dst}, s{dst}, s3")

def row_reduce(A, regs, tmp):
    for sh in (8, 4, 2, 1):
        for r in regs:
            A.e(f"v_add_f32_dpp {v(r)}, {v(r)}, {v(r)} row_ror:{sh} row_mask:0xf bank_mask:0xf")
        if len(regs) < 3: A.e("s_nop 1")
    group_reduce(A, regs, tmp)

def ln_stats(A, m, q, n, stmp=44):
    A.e(f"v_mul_f32 {v(m)}, {fconst(A, 1.0/n)}, {v(m)}")
    A.e(f"v_mul_f32 {v(q)}, {fconst(A, 1.0/n)}, {v(q)}")
    A.e(f"v_fma_f32 {v(q)}, -{v(m)}, {v(m)}, {v(q)}")
    A.e(f"v_max_f32 {v(q)}, 0, {v(q)}")
    bf16_round(A, m); bf16_round(A, q)
    A.e(f"v_add_f32 {v(q)}, {hex(f2u(1e-5))}, {v(q)}")
    bf16_round(A, q)
    A.e(f"v_sqrt_f32 {v(q)}, {v(q)}\ns_nop 0")
    bf16_round(A, q)
    A.e(f"v_rcp_f32 {v(q)}, {v(q)}\ns_nop 0")

def twiddle_table(A, TC, TS, P, Q, tmp):
    for r in range(16):
        affine(A, TS + r, P, 8 * (r >> 2) + (r & 3), Q)
    for r in range(16):
        A.e(f"v_cos_f32 {v(TC + r)}, {v(TS + r)}")
    for r in range(16):
        A.e(f"v_sin_f32 {v(TS + r)}, {v(TS + r)}")

def prefetch(A, srd, ptr_arg_off, nbytes, nthreads_log2, tidreg, vtmp, wg_sgpr="s2", nwg=256, stmp=56):
    per = (nbytes + nwg - 1) // nwg
    nth = 1 << nthreads_log2
    n = (per + nth * 16 - 1) // (nth * 16)
    A.e(f"s_load_dwordx2 s[{stmp}:{stmp+1}], s[0:1], {ptr_arg_off}\ns_waitcnt lgkmcnt(0)")
    srd_from(A, srd, stmp, 0, nbytes)
    A.e(f"v_lshlrev_b32 {v(vtmp)}, 4, {v(tidreg)}\ns_mul_i32 s{stmp}, {wg_sgpr}, {per}")
    for i in range(n):
        A.e(f"buffer_load_dwordx4 {v(vtmp + 2, 4)}, {v(vtmp)}, {s(srd,4)}, s{stmp} offen")
        if i + 1 < n: A.e(f"s_add_u32 s{stmp}, s{stmp}, {nth * 16}")
    return n

MF32 = "v_mfma_f32_32x32x16_bf16"
MF16 = "v_mfma_f32_16x16x32_bf16"

def gen_k1(A, name="k1_kernel", stamps=False, kidx=0, pf=True):
    LU, LX, LW = 0, 16384, 16384 + 17408
    lds = LW + 2 * 9216
    kernel_header(A, name)
    done = name + "_done"
    if stamps: stamp_start(A)
    A.e("s_load_dwordx2 s[40:41], s[0:1], 0\ns_load_dwordx4 s[44:47], s[0:1], 8\ns_load_dwordx2 s[30:31], s[0:1], 80")
    A.e(f"s_cmp_ge_u32 s2, 256\ns_cbranch_scc1 {done}")
    wg_index(A, 17)
    A.e("v_mov_b32 v1, v0")
    A.e("v_lshrrev_b32 v2, 6, v0\nv_and_b32 v0, 63, v0\ns_nop 0\nv_readfirstlane_b32 s16, v2")
    A.e("s_waitcnt lgkmcnt(0)")
    srd_from(A, 4, 40, 0, S * D * 2)
    srd_from(A, 8, 44, 0, S * 513 * 2)
    srd_from(A, 12, 46, 0, S * 513 * 2)
    XR = 4
    A.e("v_lshlrev_b32 v2, 4, v0")
    A.e("s_lshl_b32 s18, s16, 9\ns_add_u32 s18, s18, s17\ns_lshl_b32 s18, s18, 11")
    A.e(f"s_add_u32 s19, s18, {256 * 2048}")
    for rho, so in ((0, 18), (1, 19)):
        A.e(f"buffer_load_dwordx4 {v(XR + 8*rho, 4)}, v2, s[4:7], s{so} offen")
        A.e(f"buffer_load_dwordx4 {v(XR + 8*rho + 4, 4)}, v2, s[4:7], s{so} offen offset:1024")
    A.e("s_mul_i32 s20, s17, 8208")
    A.e("s_lshl_b32 s21, s16, 10\nv_add_u32 v3, s21, v2")
    for arr, srd in ((0, 8), (1, 12)):
        for q in (0, 4):
            A.e(f"s_add_u32 m0, s21, {LW + arr * 9216 + q * 1024}")
            A.e(f"s_add_u32 s22, s20, {q * 1024}")
            A.e(f"buffer_load_dwordx4 v3, {s(srd,4)}, s22 offen lds")
    lw = A.newlabel("k1_w8")
    A.e(f"s_cmp_ge_u32 s16, 2\ns_cbranch_scc1 {lw}")
    A.e(f"s_mul_i32 s22, s16, 9216\ns_add_u32 m0, s22, {LW + 8192}\ns_add_u32 s22, s20, 8192")
    l0 = A.newlabel("k1_w8a")
    A.e(f"s_cmp_eq_u32 s16, 0\ns_cbranch_scc0 {l0}")
    A.e("buffer_load_dwordx4 v2, s[8:11], s22 offen lds")
    A.e(f"s_branch {lw}")
    A.label(l0)
    A.e("buffer_load_dwordx4 v2, s[12:15], s22 offen lds")
    A.label(lw)
    srd_from(A, 36, 30, WS_ST, S * 128)
    A.e("v_lshlrev_b32 v3, 2, v1\ns_lshl_b32 s22, s2, 10\nv_mov_b32 v20, -1")
    A.e("buffer_store_dword v20, v3, s[36:39], s22 offen")
    BC, BS = 20, 28
    TC, TS = 36, 52
    FA, FB = 68, 76
    FN = 84
    A8 = 88
    P, Q, T = 92, 93, 96
    K1F, HF = 94, 95
    A.e(f"v_and_b32 {v(K1F)}, 31, v0\nv_cvt_f32_u32 {v(K1F)}, {v(K1F)}")
    A.e(f"v_lshrrev_b32 {v(HF)}, 5, v0\nv_cvt_f32_u32 {v(HF)}, {v(HF)}")
    A.e(f"v_mul_f32 {v(P)}, {fconst(A, 1/32)}, {v(K1F)}")
    A.e(f"v_mul_f32 {v(Q)}, {fconst(A, 8.0)}, {v(HF)}\nv_mul_f32 {v(Q)}, {v(Q)}, {v(P)}")
    for t in range(2):
        cos_frag(A, BC + 4*t, P, Q, [16*t + j for j in range(8)], [0]*8, T)
        cos_frag(A, BS + 4*t, P, Q, [16*t + j for j in range(8)], [0.25]*8, T)
    A.e(f"v_mul_f32 {v(P)}, {fconst(A, 1/1024)}, {v(K1F)}")
    A.e(f"v_mul_f32 {v(Q)}, 4.0, {v(HF)}\nv_mul_f32 {v(Q)}, {v(Q)}, {v(P)}")
    twiddle_table(A, TC, TS, P, Q, T)
    A.e(f"v_bfe_u32 {v(P)}, v0, 1, 4\nv_cvt_f32_u32 {v(P)}, {v(P)}\nv_mul_f32 {v(P)}, {fconst(A, 1/32)}, {v(P)}")
    A.e(f"v_and_b32 {v(T)}, 1, v0\nv_cvt_f32_u32 {v(T)}, {v(T)}\nv_mul_f32 {v(T)}, {fconst(A, 0.25)}, {v(T)}")
    A.e(f"v_mul_f32 {v(Q)}, 4.0, {v(HF)}\nv_fma_f32 {v(Q)}, {v(Q)}, {v(P)}, {v(T)}")
    for t in range(2):
        co = [16*t + 8*(j >> 2) + (j & 3) for j in range(8)]
        cos_frag(A, FA + 4*t, P, Q, co, [0]*8, T)
        cos_frag(A, FB + 4*t, P, Q, co, [-0.25]*8, T)
    for n in range(4): A.e(f"v_mov_b32 {v(FN + n)}, 0xbf803f80")
    A.e(f"v_bfe_u32 {v(T)}, v0, 2, 1\nv_lshlrev_b32 {v(T)}, 2, {v(T)}")
    A.e(f"v_bfe_u32 {v(T+1)}, v0, 3, 1\nv_lshl_add_u32 {v(T)}, {v(T+1)}, 1, {v(T)}")
    A.e(f"v_bfe_u32 {v(T+1)}, v0, 1, 1\nv_add_u32 {v(T)}, {v(T)}, {v(T+1)}\nv_cvt_f32_u32 {v(T)}, {v(T)}")
    A.e(f"v_mul_f32 {v(P)}, {fconst(A, 0.125)}, {v(T)}")
    A.e(f"v_cvt_f32_u32 {v(T+1)}, s17\nv_mul_f32 {v(T+1)}, {fconst(A, 1/2048)}, {v(T+1)}\nv_mul_f32 {v(Q)}, {v(T)}, {v(T+1)}")
    A.e(f"v_and_b32 {v(T+1)}, 1, v0\nv_cvt_f32_u32 {v(T+1)}, {v(T+1)}\nv_fmamk_f32 {v(Q)}, {v(T+1)}, {hex(f2u(0.25))}, {v(Q)}")
    A.e(f"v_mul_f32 {v(T+1)}, 4.0, {v(HF)}\nv_fma_f32 {v(Q)}, {v(T+1)}, {v(P)}, {v(Q)}")
    cos_frag(A, A8, P, Q, [j >> 1 for j in range(8)], [-0.25 * (j & 1) for j in range(8)], T)
    if stamps: stamp_mid(A, 0)
    FX = 104
    ST = 136
    A.e("s_mov_b32 s26, 0xffff0000")
    nw = 4 + 1
    A.e("s_waitcnt vmcnt(5)")
    npf = prefetch(A, 56, 32, D * F * 2, 8, 1, 216, stmp=54) if pf else 0
    for rho in range(2):
        for n in range(8):
            A.e(f"v_lshlrev_b32 {v(FX + 16*rho + 2*n)}, 16, {v(XR + 8*rho + n)}")
            A.e(f"v_and_b32 {v(FX + 16*rho + 2*n + 1)}, s26, {v(XR + 8*rho + n)}")
    for rho in range(2):
        sp, qp = ST + 4 + 4*rho, ST + 6 + 4*rho
        f = FX + 16*rho
        A.e(f"v_pk_add_f32 {v(sp,2)}, {v(f,2)}, {v(f+2,2)}")
        A.e(f"v_pk_mul_f32 {v(qp,2)}, {v(f,2)}, {v(f,2)}")
        for n in range(1, 8):
            if n >= 2: A.e(f"v_pk_add_f32 {v(sp,2)}, {v(sp,2)}, {v(f+2*n,2)}")
            A.e(f"v_pk_fma_f32 {v(qp,2)}, {v(f+2*n,2)}, {v(f+2*n,2)}, {v(qp,2)}")
        A.e(f"v_add_f32 {v(ST + 2*rho)}, {v(sp)}, {v(sp+1)}")
        A.e(f"v_add_f32 {v(ST + 2*rho + 1)}, {v(qp)}, {v(qp+1)}")
    row_reduce(A, [ST + n for n in range(4)], ST + 12)
    for rho in range(2):
        ln_stats(A, ST + 2*rho, ST + 2*rho + 1, D)
    U = XR
    for rho in range(2):
        m, r = ST + 2*rho, ST + 2*rho + 1
        A.e(f"v_sub_f32 {v(ST+4)}, 0, {v(m)}\nv_mov_b32 {v(ST+5)}, {v(ST+4)}\nv_mov_b32 {v(ST+6)}, {v(r)}\nv_mov_b32 {v(ST+7)}, {v(r)}")
        for n in range(8):
            f = FX + 16*rho + 2*n
            A.e(f"v_pk_add_f32 {v(f,2)}, {v(f,2)}, {v(ST+4,2)}")
            A.e(f"v_pk_mul_f32 {v(f,2)}, {v(f,2)}, {v(ST+6,2)}")
            A.e(f"v_cvt_pk_bf16_f32 {v(U + 8*rho + n)}, {v(f)}, {v(f+1)}")
    AD = 212
    A.e(f"s_lshl_b32 s22, s16, 12\nv_lshlrev_b32 {v(AD)}, 4, v0\nv_add_u32 {v(AD)}, s22, {v(AD)}")
    for rho in range(2):
        A.e(f"ds_write_b128 {v(AD)}, {v(U + 8*rho, 4)} offset:{LU + 2048*rho}")
        A.e(f"ds_write_b128 {v(AD)}, {v(U + 8*rho + 4, 4)} offset:{LU + 2048*rho + 1024}")
    A.e(f"v_lshrrev_b32 {v(T)}, 5, v0\nv_lshlrev_b32 {v(T)}, 3, {v(T)}\nv_bfe_u32 {v(T+1)}, v0, 2, 2\nv_add_u32 {v(T)}, {v(T)}, {v(T+1)}\nv_lshlrev_b32 {v(T)}, 6, {v(T)}")
    A.e(f"v_bfe_u32 {v(T+1)}, v0, 4, 1\nv_lshl_add_u32 {v(T)}, {v(T+1)}, 5, {v(T)}\nv_and_b32 {v(T+1)}, 3, v0\nv_lshl_add_u32 {v(T)}, {v(T+1)}, 3, {v(T)}")
    A.e(f"v_add_u32 {v(AD)}, s22, {v(T)}")
    AF = FX
    for rho in range(2):
        for t in range(2):
            for rd in range(2):
                A.e(f"ds_read_b64_tr_b16 {v(AF + 8*rho + 4*t + 2*rd, 2)}, {v(AD)} offset:{LU + 2048*rho + 1024*t + 256*rd}")
    DR = 144
    for rho in range(2):
        A.e(f"s_waitcnt lgkmcnt({4 * (1 - rho)})")
        for t in range(2):
            for im, Bf in ((0, BC), (1, BS)):
                d = DR + 32*rho + 16*im
                c = v(d, 16) if t else "0"
                A.e(f"{MF32} {v(d,16)}, {v(AF + 8*rho + 4*t, 4)}, {v(Bf + 4*t, 4)}, {c}")
    TP = FX
    W0 = 208
    for rho in range(2):
        if rho == 0: nop(A, 12)
        dre, dim = DR + 32*rho, DR + 32*rho + 16
        for p in range(8):
            c, sn = TC + 2*p, TS + 2*p
            A.e(f"v_pk_mul_f32 {v(W0,2)}, {v(dre + 2*p,2)}, {v(c,2)}")
            A.e(f"v_pk_mul_f32 {v(W0+2,2)}, {v(dim + 2*p,2)}, {v(c,2)}")
            A.e(f"v_pk_fma_f32 {v(W0,2)}, {v(dim + 2*p,2)}, {v(sn,2)}, {v(W0,2)}")
            A.e(f"v_pk_fma_f32 {v(W0+2,2)}, {v(dre + 2*p,2)}, {v(sn,2)}, {v(W0+2,2)} neg_lo:[1,0,0] neg_hi:[1,0,0]")
            A.e(f"v_cvt_pk_bf16_f32 {v(TP + 16*rho + p)}, {v(W0)}, {v(W0+1)}")
            A.e(f"v_cvt_pk_bf16_f32 {v(TP + 16*rho + 8 + p)}, {v(W0+2)}, {v(W0+3)}")
    A.e("s_nop 1")
    for rho in range(2):
        d, dn = DR + 32*rho, DR + 32*rho + 16
        tre, tim = TP + 16*rho, TP + 16*rho + 8
        A.e(f"{MF32} {v(d,16)}, {v(FA,4)}, {v(tre,4)}, 0")
        A.e(f"{MF32} {v(dn,16)}, {v(FN,4)}, {v(tre,4)}, 0")
        A.e(f"{MF32} {v(d,16)}, {v(FA+4,4)}, {v(tre+4,4)}, {v(d,16)}")
        A.e(f"{MF32} {v(dn,16)}, {v(FN,4)}, {v(tre+4,4)}, {v(dn,16)}")
        A.e(f"{MF32} {v(d,16)}, {v(FB,4)}, {v(tim,4)}, {v(d,16)}")
        A.e(f"{MF32} {v(d,16)}, {v(FB+4,4)}, {v(tim+4,4)}, {v(d,16)}")
    A.e(f"v_and_b32 {v(T)}, 31, v0\nv_lshlrev_b32 {v(AD)}, 5, {v(T)}")
    A.e(f"v_lshrrev_b32 {v(T+1)}, 5, v0\nv_lshl_add_u32 {v(AD)}, {v(T+1)}, 11, {v(AD)}")
    A.e(f"s_lshr_b32 s22, s16, 1\nv_bfe_u32 {v(T+1)}, v0, 3, 1\nv_xor_b32 {v(T+1)}, s22, {v(T+1)}\nv_lshl_add_u32 {v(AD)}, {v(T+1)}, 4, {v(AD)}")
    A.e(f"s_and_b32 s22, s16, 1\ns_lshl_b32 s22, s22, 3\nv_add_u32 {v(AD)}, s22, {v(AD)}")
    OV = 4
    nop(A, 4)
    for rho in range(2):
        d = DR + 32*rho
        if rho == 1: nop(A, 12)
        for e in range(8):
            A.e(f"v_cvt_pk_bf16_f32 {v(OV + 2*e + rho)}, {v(d + 2*e)}, {v(d + 2*e + 1)}")
    for e in range(8):
        A.e(f"ds_write_b64 {v(AD)}, {v(OV + 2*e, 2)} offset:{LX + (4*(e >> 1) + (e & 1)) * 1024}")
    A.e(f"v_cvt_pk_bf16_f32 {v(W0)}, {v(DR + 16)}, 0\nv_cvt_pk_bf16_f32 {v(W0+1)}, {v(DR + 48)}, 0")
    A.e(f"s_lshl_b32 s22, s16, 3\nv_mov_b32 {v(W0+2)}, s22")
    A.e("s_mov_b64 exec, 1")
    A.e(f"ds_write_b64 {v(W0+2)}, {v(W0,2)} offset:{LX + 512*32}")
    A.e("s_mov_b64 exec, -1")
    if stamps: stamp_mid(A, 1)
    A.e(f"s_waitcnt vmcnt({npf}) lgkmcnt(0)\ns_barrier")
    srd_from(A, 48, 30, WS_U, 257 * KP_STRIDE)
    srd_from(A, 52, 30, WS_WT, 257 * KP_STRIDE)
    A.e(f"v_and_b32 {v(T)}, 31, v0\nv_lshlrev_b32 {v(AD)}, 5, {v(T)}\nv_lshrrev_b32 {v(T+1)}, 5, v0\nv_bfe_u32 {v(T+2)}, v0, 3, 1\nv_xor_b32 {v(T+1)}, {v(T+1)}, {v(T+2)}\nv_lshl_add_u32 {v(AD)}, {v(T+1)}, 4, {v(AD)}")
    A.e(f"s_lshl_b32 s22, s16, 12\nv_add_u32 {v(AD)}, s22, {v(AD)}")
    RB = FX
    for b in range(4):
        A.e(f"ds_read_b128 {v(RB + 4*b, 4)}, {v(AD)} offset:{LX + 1024*b}")
    lny = A.newlabel("k1_ny")
    SA = AD + 1
    A.e(f"v_bfe_u32 {v(T)}, v0, 1, 4\ns_mov_b32 s22, {KP_STRIDE}\nv_mul_lo_u32 {v(SA)}, {v(T)}, s22")
    A.e(f"v_and_b32 {v(T)}, 1, v0\nv_lshl_add_u32 {v(SA)}, {v(T)}, 5, {v(SA)}\nv_lshrrev_b32 {v(T)}, 5, v0\nv_lshl_add_u32 {v(SA)}, {v(T)}, 4, {v(SA)}")
    A.e(f"s_mul_i32 s22, s16, {64 * KP_STRIDE}\ns_lshl_b32 s23, s17, 6\ns_add_u32 s22, s22, s23")
    for b in range(4):
        A.e(f"s_waitcnt lgkmcnt({3 - b})")
        A.e(f"{MF32} {v(DR + 16*b, 16)}, {v(A8,4)}, {v(RB + 4*b, 4)}, 0")
    for b in range(4):
        nop(A, 12 if b == 0 else 1)
        for n in range(4):
            A.e(f"v_cvt_pk_bf16_f32 {v(OV + 4*b + n)}, {v(DR + 16*b + 2*n)}, {v(DR + 16*b + 2*n + 1)}")
        A.e(f"buffer_store_dwordx4 {v(OV + 4*b, 4)}, {v(SA)}, s[48:51], s22 offen")
        A.e(f"s_add_u32 s22, s22, {16 * KP_STRIDE}")
    A.e(f"s_cmp_lg_u32 s16, 0\ns_cbranch_scc1 {lny}")
    A.e(f"ds_read_b128 {v(RB, 4)}, {v(AD)} offset:{LX + 16384}")
    A.e("s_waitcnt lgkmcnt(0)")
    A.e(f"{MF32} {v(DR, 16)}, {v(A8,4)}, {v(RB, 4)}, 0")
    nop(A, 12)
    for n in range(4):
        A.e(f"v_cvt_pk_bf16_f32 {v(OV + n)}, {v(DR + 2*n)}, {v(DR + 2*n + 1)}")
    A.e(f"s_lshl_b32 s23, s17, 6\ns_add_u32 s22, s23, {256 * KP_STRIDE}")
    A.e("s_mov_b32 exec_lo, 1\ns_mov_b32 exec_hi, 1")
    A.e(f"buffer_store_dwordx4 {v(OV, 4)}, {v(SA)}, s[48:51], s22 offen")
    A.e("s_mov_b64 exec, -1")
    A.label(lny)
    WA, WS_ = AD, AD + 1
    A.e(f"v_and_b32 {v(T)}, 1, v1\nv_mul_u32_u24 {v(WA)}, 4104, {v(T)}")
    A.e(f"v_lshrrev_b32 {v(T)}, 2, v1\nv_lshl_add_u32 {v(WA)}, {v(T)}, 2, {v(WA)}")
    A.e(f"v_bfe_u32 {v(T+1)}, v1, 1, 1\nv_lshl_add_u32 {v(WA)}, {v(T+1)}, 1, {v(WA)}")
    A.e(f"s_mov_b32 s22, {KP_STRIDE}\nv_mul_lo_u32 {v(WS_)}, {v(T)}, s22\nv_and_b32 {v(T)}, 3, v1\nv_lshl_add_u32 {v(WS_)}, {v(T)}, 4, {v(WS_)}")
    A.e("s_lshl_b32 s22, s17, 6")
    WO = FX; WI = DR
    for n in range(4):
        if n: A.e("s_waitcnt lgkmcnt(7)")
        for nn in range(4):
            A.e(f"ds_read_u16 {v(WO + 4*n + nn)}, {v(WA)} offset:{LW + 256*n + 1026*nn}")
            A.e(f"ds_read_u16 {v(WI + 4*n + nn)}, {v(WA)} offset:{LW + 9216 + 256*n + 1026*nn}")
    A.e("s_waitcnt lgkmcnt(0)")
    for n in range(16):
        A.e(f"v_lshl_or_b32 {v(WO + n)}, {v(WI + n)}, 16, {v(WO + n)}")
    for n in range(4):
        A.e(f"buffer_store_dwordx4 {v(WO + 4*n, 4)}, {v(WS_)}, s[52:55], s22 offen")
        A.e(f"s_add_u32 s22, s22, {64 * KP_STRIDE}")
    lwe = A.newlabel("k1_we")
    A.e(f"s_cmp_lg_u32 s16, 0\ns_cbranch_scc1 {lwe}")
    A.e("s_mov_b64 exec, 3")
    WO2 = WO + 16
    for nn in range(4):
        A.e(f"ds_read_u16 {v(WO2 + nn)}, {v(WA)} offset:{LW + 1024 + 1026*nn}")
        A.e(f"ds_read_u16 {v(WI + nn)}, {v(WA)} offset:{LW + 9216 + 1024 + 1026*nn}")
    A.e("s_waitcnt lgkmcnt(0)")
    for nn in range(4):
        A.e(f"v_lshl_or_b32 {v(WO2 + nn)}, {v(WI + nn)}, 16, {v(WO2 + nn)}")
    A.e(f"buffer_store_dwordx4 {v(WO2, 4)}, {v(WS_)}, s[52:55], s22 offen")
    A.e("s_mov_b64 exec, -1")
    A.label(lwe)
    if stamps:
        A.e("s_waitcnt vmcnt(0)")
        stamp_mid(A, 2)
        stamp_end(A, name, kidx, 30)
    A.label(done)
    A.e("s_endpgm")
    return lds, 224

def gen_k2(A, name="k2_kernel", stamps=False, kidx=0, pf=True):
    kernel_header(A, name)
    done = name + "_done"
    if stamps: stamp_start(A)
    A.e("s_load_dwordx2 s[30:31], s[0:1], 80")
    A.e(f"s_cmp_ge_u32 s2, 257\ns_cbranch_scc1 {done}")
    A.e("v_and_b32 v1, 255, v0\nv_lshrrev_b32 v2, 6, v0\nv_and_b32 v0, 63, v0\ns_nop 0\nv_readfirstlane_b32 s16, v2")
    A.e("s_nop 3")
    if pf:
        lpf = name + "_main"
        A.e(f"s_cmp_lt_u32 s16, 4\ns_cbranch_scc1 {lpf}")
        A.e(f"s_cmp_ge_u32 s2, 256\ns_cbranch_scc1 {done}")
        prefetch(A, 56, 40, S * S * 2, 8, 1, 4, stmp=54)
        A.e(f"s_branch {done}")
        A.label(lpf)
    A.e("s_lshr_b32 s3, s16, 1\ns_lshr_b32 s17, s2, 8\ns_and_b32 s3, s3, s17")
    A.e(f"s_cmp_lg_u32 s3, 0\ns_cbranch_scc1 {done}")
    A.e("s_waitcnt lgkmcnt(0)")
    srd_from(A, 4, 30, WS_U, 257 * KP_STRIDE)
    srd_from(A, 8, 30, WS_WT, 257 * KP_STRIDE)
    srd_from(A, 12, 30, WS_Y, 257 * KP_STRIDE)
    A.e(f"s_mul_i32 s18, s2, {KP_STRIDE}\ns_add_u32 s19, s18, 8192\ns_lshl_b32 s20, s16, 4")
    R0, WT = 4, 20
    VA, VB = 2, 3
    A.e("v_and_b32 v36, 15, v0\nv_lshrrev_b32 v37, 4, v0")
    A.e(f"v_lshl_add_u32 {v(VA)}, v37, 6, v36\nv_lshlrev_b32 {v(VA)}, 6, {v(VA)}\nv_add_u32 {v(VA)}, s20, {v(VA)}")
    A.e(f"v_lshl_add_u32 {v(VB)}, v37, 5, v36\nv_lshlrev_b32 {v(VB)}, 6, {v(VB)}\nv_add_u32 {v(VB)}, s20, {v(VB)}")
    for i in range(4):
        A.e(f"buffer_load_dwordx4 {v(R0 + 4*i, 4)}, {v(VA)}, s[4:7], s18 offen offset:{1024*i}")
    for e in range(4):
        A.e(f"buffer_load_dwordx4 {v(WT + 4*e, 4)}, {v(VB)}, s[8:11], s{18 + (e >> 1)} offen offset:{1024*(e & 1)}")
    CA, CB, CI, CJ = 40, 48, 56, 64
    TC, TS = 72, 76
    P, Q, T = 80, 81, 84
    LF, GF = 82, 83
    A.e(f"v_cvt_f32_u32 {v(LF)}, v36\nv_cvt_f32_u32 {v(GF)}, v37")
    A.e(f"v_mul_f32 {v(P)}, {fconst(A, 1/16)}, {v(LF)}\nv_mul_f32 {v(Q)}, 4.0, {v(GF)}\nv_mul_f32 {v(Q)}, {v(Q)}, {v(P)}")
    co = [j >> 1 for j in range(8)]
    cos_frag(A, CA, P, Q, co, [-0.25*(j & 1) for j in range(8)], T)
    cos_frag(A, CA + 4, P, Q, co, [0.25*(1 - (j & 1)) for j in range(8)], T)
    A.e(f"v_add_f32 {v(Q)}, {v(GF)}, {v(GF)}\nv_mul_f32 {v(Q)}, {v(Q)}, {v(P)}")
    ci = [((j >> 1) & 1) + 8*(j >> 2) for j in range(8)]
    cos_frag(A, CI, P, Q, ci, [0.25*(j & 1) for j in range(8)], T)
    cos_frag(A, CI + 4, P, Q, ci, [-0.25*(1 - (j & 1)) for j in range(8)], T)
    A.e(f"v_mul_f32 {v(P)}, {fconst(A, 1/256)}, {v(LF)}\nv_mul_f32 {v(Q)}, 4.0, {v(GF)}\nv_mul_f32 {v(Q)}, {v(Q)}, {v(P)}")
    for r in range(4): affine(A, TS + r, P, r, Q)
    for r in range(4): A.e(f"v_cos_f32 {v(TC + r)}, {v(TS + r)}")
    for r in range(4): A.e(f"v_sin_f32 {v(TS + r)}, {v(TS + r)}")
    RO = 92
    A.e(f"v_and_b32 {v(RO)}, 1, v0\nv_cvt_f32_u32 {v(RO)}, {v(RO)}\nv_mul_f32 {v(RO)}, {fconst(A, 0.25)}, {v(RO)}")
    for t in range(2):
        A.e(f"v_bfe_u32 {v(P)}, v0, 1, 3\nv_add_u32 {v(P)}, {8*t}, {v(P)}\nv_cvt_f32_u32 {v(P)}, {v(P)}\nv_mul_f32 {v(P)}, {fconst(A, 1/16)}, {v(P)}")
        A.e(f"v_mul_f32 {v(93)}, 4.0, {v(GF)}\nv_mul_f32 {v(93)}, {v(93)}, {v(P)}")
        A.e(f"v_add_f32 {v(Q)}, {v(93)}, {v(RO)}")
        cos_frag(A, CB + 4*t, P, Q, co, [-0.25*(j & 1) for j in range(8)], T)
        A.e(f"v_sub_f32 {v(Q)}, {v(93)}, {v(RO)}")
        cos_frag(A, CJ + 4*t, P, Q, co, [0.25*(j & 1) for j in range(8)], T)
    if stamps: stamp_mid(A, 0)
    A.e("s_waitcnt vmcnt(4)")
    for i in range(4):
        for tau in range(i + 1, 4):
            A.e(f"v_swap_b32 {v(R0 + 4*i + tau)}, {v(R0 + 4*tau + i)}")
    A.e("s_nop 1")
    DD = 96
    W0 = 128
    OP = R0
    def twiddle(conj):
        for tau in range(4):
            re, im = DD + 8*tau, DD + 8*tau + 4
            for hh in (0, 2):
                A.e(f"v_pk_mul_f32 {v(W0+hh,2)}, {v(re+hh,2)}, {v(TC+hh,2)}")
                A.e(f"v_pk_mul_f32 {v(W0+4+hh,2)}, {v(im+hh,2)}, {v(TC+hh,2)}")
            for hh in (0, 2):
                n1 = " neg_lo:[1,0,0] neg_hi:[1,0,0]"
                A.e(f"v_pk_fma_f32 {v(W0+hh,2)}, {v(im+hh,2)}, {v(TS+hh,2)}, {v(W0+hh,2)}" + (n1 if conj else ""))
                A.e(f"v_pk_fma_f32 {v(W0+4+hh,2)}, {v(re+hh,2)}, {v(TS+hh,2)}, {v(W0+4+hh,2)}" + ("" if conj else n1))
            for r in range(4):
                A.e(f"v_cvt_pk_bf16_f32 {v(OP + 4*tau + r)}, {v(W0 + r)}, {v(W0 + 4 + r)}")
        A.e("s_nop 1")
    for tau in range(4):
        A.e(f"{MF16} {v(DD + 8*tau, 4)}, {v(R0 + 4*tau, 4)}, {v(CA, 4)}, 0")
        A.e(f"{MF16} {v(DD + 8*tau + 4, 4)}, {v(R0 + 4*tau, 4)}, {v(CA + 4, 4)}, 0")
    nop(A, 4)
    twiddle(False)
    for tau in range(4):
        for t in range(2):
            A.e(f"{MF16} {v(DD + 8*tau + 4*t, 4)}, {v(CB + 4*t, 4)}, {v(OP + 4*tau, 4)}, 0")
    A.e("s_mov_b32 s26, 0xffff0000")
    A.e("s_waitcnt vmcnt(0)")
    nop(A, 3)
    for tau in range(4):
        for e in range(4):
            vv = DD + 8*tau + 2*e
            w = WT + 4*e + tau
            A.e(f"v_lshlrev_b32 {v(W0)}, 16, {v(w)}\nv_and_b32 {v(W0+1)}, s26, {v(w)}")
            A.e(f"v_pk_mul_f32 {v(W0+2,2)}, {v(vv,2)}, {v(W0,2)} op_sel:[0,0] op_sel_hi:[1,0]")
            A.e(f"v_pk_fma_f32 {v(W0+2,2)}, {v(vv,2)}, {v(W0,2)}, {v(W0+2,2)} op_sel:[1,1,0] op_sel_hi:[0,1,1] neg_lo:[1,0,0]")
            A.e(f"v_cvt_pk_bf16_f32 {v(OP + 4*tau + e)}, {v(W0+2)}, {v(W0+3)}")
    A.e("s_nop 1")
    if stamps: stamp_mid(A, 1)
    for tau in range(4):
        A.e(f"{MF16} {v(DD + 8*tau, 4)}, {v(OP + 4*tau, 4)}, {v(CI, 4)}, 0")
        A.e(f"{MF16} {v(DD + 8*tau + 4, 4)}, {v(OP + 4*tau, 4)}, {v(CI + 4, 4)}, 0")
    nop(A, 4)
    twiddle(True)
    for tau in range(4):
        for t in range(2):
            A.e(f"{MF16} {v(DD + 8*tau + 4*t, 4)}, {v(CJ + 4*t, 4)}, {v(OP + 4*tau, 4)}, 0")
    nop(A, 8)
    for e in range(4):
        for tau in range(4):
            vv = DD + 8*tau + 2*e
            A.e(f"v_cvt_pk_bf16_f32 {v(WT + 4*e + tau)}, {v(vv)}, {v(vv+1)}")
        A.e(f"buffer_store_dwordx4 {v(WT + 4*e, 4)}, {v(VB)}, s[12:15], s{18 + (e >> 1)} offen offset:{1024*(e & 1)}")
    if stamps:
        A.e("s_waitcnt vmcnt(0)")
        stamp_mid(A, 2)
        stamp_end(A, name, kidx, 30)
    A.label(done)
    A.e("s_endpgm")
    return 0, 136

def gen_k3(A, name="k3_kernel", stamps=False, kidx=0, mimic=True, pf=True):
    LY = 0
    LN = 16384
    lds = LN + 64
    kernel_header(A, name)
    done = name + "_done"
    if stamps: stamp_start(A)
    A.e("s_load_dwordx2 s[40:41], s[0:1], 0\ns_load_dwordx2 s[30:31], s[0:1], 80")
    A.e(f"s_cmp_ge_u32 s2, 256\ns_cbranch_scc1 {done}")
    wg_index(A, 17)
    A.e("v_mov_b32 v1, v0\nv_lshrrev_b32 v2, 6, v0\nv_and_b32 v0, 63, v0\ns_nop 0\nv_readfirstlane_b32 s16, v2")
    A.e("s_waitcnt lgkmcnt(0)")
    srd_from(A, 4, 40, 0, S * D * 2)
    srd_from(A, 8, 30, WS_Y, 257 * KP_STRIDE)
    srd_from(A, 12, 30, WS_H, S * D * 2)
    srd_from(A, 48, 30, WS_LN2, S * D * 2)
    T = 96
    RB = 4
    SA = 2
    A.e(f"v_bfe_u32 {v(T)}, v0, 1, 4\ns_mov_b32 s22, {KP_STRIDE}\nv_mul_lo_u32 {v(SA)}, {v(T)}, s22")
    A.e(f"v_and_b32 {v(T)}, 1, v0\nv_lshl_add_u32 {v(SA)}, {v(T)}, 5, {v(SA)}\nv_lshrrev_b32 {v(T)}, 5, v0\nv_lshl_add_u32 {v(SA)}, {v(T)}, 4, {v(SA)}")
    A.e(f"s_mul_i32 s22, s16, {64 * KP_STRIDE}\ns_lshl_b32 s23, s17, 6\ns_add_u32 s22, s22, s23")
    for b in range(4):
        A.e(f"buffer_load_dwordx4 {v(RB + 4*b, 4)}, {v(SA)}, s[8:11], s22 offen")
        A.e(f"s_add_u32 s22, s22, {16 * KP_STRIDE}")
    A.e(f"s_add_u32 s22, s23, {256 * KP_STRIDE}\nv_lshrrev_b32 {v(T)}, 5, v0\nv_lshlrev_b32 {v(T)}, 4, {v(T)}")
    A.e(f"buffer_load_dwordx4 {v(20, 4)}, {v(T)}, s[8:11], s22 offen")
    XR = 24
    A.e("v_and_b32 v3, 31, v0\nv_lshlrev_b32 v3, 6, v3\nv_lshrrev_b32 v40, 5, v0\nv_lshl_add_u32 v3, v40, 3, v3")
    A.e("s_lshl_b32 s18, s16, 9\ns_add_u32 s18, s18, s17\ns_lshl_b32 s18, s18, 11")
    A.e(f"s_add_u32 s19, s18, {256 * 2048}")
    for rho, so in ((0, 18), (1, 19)):
        for q in range(4):
            A.e(f"buffer_load_dwordx2 {v(XR + 8*rho + 2*q, 2)}, v3, s[4:7], s{so} offen offset:{16*q}")
    A8 = 40
    BR, BI = 44, 52
    TC, TS = 60, 76
    P, Q = 92, 93
    K1F, HF = 94, 95
    CC, CS = 104, 112
    A.e(f"v_and_b32 {v(K1F)}, 31, v0\nv_cvt_f32_u32 {v(K1F)}, {v(K1F)}")
    A.e(f"v_lshrrev_b32 {v(HF)}, 5, v0\nv_cvt_f32_u32 {v(HF)}, {v(HF)}")
    A.e(f"v_bfe_u32 {v(T)}, v0, 2, 1\nv_lshlrev_b32 {v(T)}, 2, {v(T)}")
    A.e(f"v_bfe_u32 {v(T+1)}, v0, 3, 1\nv_lshl_add_u32 {v(T)}, {v(T+1)}, 1, {v(T)}")
    A.e(f"v_bfe_u32 {v(T+1)}, v0, 1, 1\nv_add_u32 {v(T)}, {v(T)}, {v(T+1)}\nv_cvt_f32_u32 {v(T)}, {v(T)}")
    A.e(f"v_cvt_f32_u32 {v(T+1)}, s17\nv_mul_f32 {v(T+1)}, {fconst(A, 1/2048)}, {v(T+1)}")
    A.e(f"v_fmamk_f32 {v(P)}, {v(T)}, {hex(f2u(0.125))}, {v(T+1)}")
    A.e(f"v_and_b32 {v(T+1)}, 1, v0\nv_cvt_f32_u32 {v(T+1)}, {v(T+1)}\nv_mul_f32 {v(T+1)}, {fconst(A, -0.25)}, {v(T+1)}")
    A.e(f"v_mul_f32 {v(Q)}, 4.0, {v(HF)}\nv_fma_f32 {v(Q)}, {v(Q)}, {v(P)}, {v(T+1)}")
    cos_frag(A, A8, P, Q, [j >> 1 for j in range(8)], [0.25 * (j & 1) for j in range(8)], T)
    A.e(f"v_mul_f32 {v(P)}, {fconst(A, 1/32)}, {v(K1F)}")
    A.e(f"v_mul_f32 {v(Q)}, 4.0, {v(HF)}\nv_mul_f32 {v(Q)}, {v(Q)}, {v(P)}")
    for t in range(2):
        co = [8*t + (j >> 1) for j in range(8)]
        cos_frag(A, BR + 4*t, P, Q, co, [0.25*(j & 1) for j in range(8)], T)
        cos_frag(A, BI + 4*t, P, Q, co, [-0.25*(1 - (j & 1)) for j in range(8)], T)
    for t in range(2):
        co = [16*t + 8*(j >> 2) + (j & 3) for j in range(8)]
        cos_frag(A, CC + 4*t, P, Q, co, [0]*8, T)
        cos_frag(A, CS + 4*t, P, Q, co, [0.25]*8, T)
    A.e(f"v_mul_f32 {v(P)}, {fconst(A, 1/1024)}, {v(K1F)}")
    A.e(f"v_mul_f32 {v(Q)}, 4.0, {v(HF)}\nv_mul_f32 {v(Q)}, {v(Q)}, {v(P)}")
    twiddle_table(A, TC, TS, P, Q, T)
    if stamps: stamp_mid(A, 0)
    DR = 144
    AD = 212
    OV = 120
    A.e("s_waitcnt vmcnt(9)")
    for b in range(4):
        A.e(f"{MF32} {v(DR + 16*b, 16)}, {v(A8,4)}, {v(RB + 4*b, 4)}, 0")
    A.e(f"v_lshrrev_b32 {v(T)}, 5, v0\nv_lshlrev_b32 {v(AD)}, 13, {v(T)}")
    A.e(f"v_and_b32 {v(T)}, 31, v0\nv_lshl_add_u32 {v(AD)}, {v(T)}, 6, {v(AD)}")
    A.e(f"v_bfe_u32 {v(T)}, v0, 2, 2\nv_xor_b32 {v(T)}, s16, {v(T)}\nv_lshl_add_u32 {v(AD)}, {v(T)}, 4, {v(AD)}")
    nop(A, 4)
    for b in range(4):
        for n in range(4):
            A.e(f"v_cvt_pk_bf16_f32 {v(OV + 4*b + n)}, {v(DR + 16*b + 2*n)}, {v(DR + 16*b + 2*n + 1)}")
        if b == 0:
            pass
    l0 = A.newlabel("k3_dc")
    A.e(f"s_cmp_lg_u32 s16, 0\ns_cbranch_scc1 {l0}")
    A.e("s_mov_b32 exec_lo, 1\ns_mov_b32 exec_hi, 1")
    for n in range(4):
        A.e(f"v_mul_f32 {v(T)}, 0.5, {v(DR + 2*n)}\nv_cvt_pk_bf16_f32 {v(OV + n)}, {v(T)}, 0")
    A.e("s_mov_b64 exec, -1")
    A.e("s_waitcnt vmcnt(8)")
    A.e(f"{MF32} {v(DR, 16)}, {v(A8,4)}, {v(20, 4)}, 0")
    A.e(f"v_lshrrev_b32 {v(T+1)}, 5, v0\nv_lshlrev_b32 {v(T+1)}, 4, {v(T+1)}")
    nop(A, 12)
    for n in range(4):
        A.e(f"v_mul_f32 {v(T+2+n)}, 0.5, {v(DR + 2*n)}")
    A.e("s_mov_b32 exec_lo, 1\ns_mov_b32 exec_hi, 1")
    A.e(f"ds_write_b128 {v(T+1)}, {v(T+2, 4)} offset:{LN}")
    A.e("s_mov_b64 exec, -1")
    A.label(l0)
    for b in range(4):
        for n in range(4):
            A.e(f"ds_write_b32 {v(AD)}, {v(OV + 4*b + n)} offset:{LY + 2048*n + 4*b}")
    A.e("s_waitcnt vmcnt(0) lgkmcnt(0)\ns_barrier")
    if pf: prefetch(A, 56, 56, FH * D * 2, 8, 1, 216, stmp=54)
    if stamps: stamp_mid(A, 1)
    TA, TB = T, T + 1
    A.e(f"v_and_b32 {v(T+2)}, 31, v0\nv_lshlrev_b32 {v(TA)}, 6, {v(T+2)}\ns_lshl_b32 s22, s16, 12\nv_add_u32 {v(TA)}, s22, {v(TA)}")
    A.e(f"v_lshrrev_b32 {v(T+2)}, 5, v0\nv_bfe_u32 {v(T+3)}, v0, 2, 2\nv_xor_b32 {v(T+2)}, {v(T+2)}, {v(T+3)}")
    A.e(f"v_xor_b32 {v(T+3)}, 2, {v(T+2)}")
    A.e(f"v_lshl_add_u32 {v(TB)}, {v(T+3)}, 4, {v(TA)}\nv_lshl_add_u32 {v(TA)}, {v(T+2)}, 4, {v(TA)}")
    AF = 120
    for rho in range(2):
        A.e(f"ds_read_b128 {v(AF + 8*rho, 4)}, {v(TA)} offset:{LY + 2048*rho}")
        A.e(f"ds_read_b128 {v(AF + 8*rho + 4, 4)}, {v(TB)} offset:{LY + 2048*rho}")
    NY = 136
    A.e(f"s_lshl_b32 s22, s16, 3\nv_mov_b32 {v(T+2)}, s22")
    A.e(f"ds_read_b64 {v(NY,2)}, {v(T+2)} offset:{LN}")
    SG = 138
    A.e(f"v_and_b32 {v(SG)}, 1, v0\nv_cvt_f32_u32 {v(SG)}, {v(SG)}\nv_fma_f32 {v(SG)}, {v(SG)}, -2.0, 1.0")
    A.e(f"v_cmp_gt_u32 vcc, 32, v0\ns_nop 1\nv_cndmask_b32 {v(SG)}, 0, {v(SG)}, vcc")
    for rho in range(2):
        A.e(f"s_waitcnt lgkmcnt({3 - 2*rho})")
        for t in range(2):
            for im, Bf in ((0, BR), (1, BI)):
                d = DR + 32*rho + 16*im
                c = v(d, 16) if t else "0"
                A.e(f"{MF32} {v(d,16)}, {v(AF + 8*rho + 4*t, 4)}, {v(Bf + 4*t, 4)}, {c}")
    A.e("s_waitcnt lgkmcnt(0)")
    TP = 4
    TPr = [120, 4]
    W0 = 208
    for rho in range(2):
        if rho == 0: nop(A, 12)
        dre, dim = DR + 32*rho, DR + 32*rho + 16
        A.e(f"v_fma_f32 {v(dre)}, {v(SG)}, {v(NY + rho)}, {v(dre)}")
        for p in range(8):
            c, sn = TC + 2*p, TS + 2*p
            A.e(f"v_pk_mul_f32 {v(W0,2)}, {v(dre + 2*p,2)}, {v(c,2)}")
            A.e(f"v_pk_mul_f32 {v(W0+2,2)}, {v(dim + 2*p,2)}, {v(c,2)}")
            A.e(f"v_pk_fma_f32 {v(W0,2)}, {v(dim + 2*p,2)}, {v(sn,2)}, {v(W0,2)} neg_lo:[1,0,0] neg_hi:[1,0,0]")
            A.e(f"v_pk_fma_f32 {v(W0+2,2)}, {v(dre + 2*p,2)}, {v(sn,2)}, {v(W0+2,2)}")
            A.e(f"v_cvt_pk_bf16_f32 {v(TPr[rho] + p)}, {v(W0)}, {v(W0+1)}")
            A.e(f"v_cvt_pk_bf16_f32 {v(TPr[rho] + 8 + p)}, {v(W0+2)}, {v(W0+3)}")
    A.e("s_nop 1")
    for rho in range(2):
        d = DR + 32*rho
        tre, tim = TPr[rho], TPr[rho] + 8
        A.e(f"{MF32} {v(d,16)}, {v(tre,4)}, {v(CC,4)}, 0")
        A.e(f"{MF32} {v(d,16)}, {v(tre+4,4)}, {v(CC+4,4)}, {v(d,16)}")
        A.e(f"{MF32} {v(d,16)}, {v(tim,4)}, {v(CS,4)}, {v(d,16)}")
        A.e(f"{MF32} {v(d,16)}, {v(tim+4,4)}, {v(CS+4,4)}, {v(d,16)}")
    A.e("s_mov_b32 s26, 0xffff0000")
    A.e(f"s_mov_b32 s44, {hex(f2u(2.0**-20))}\ns_mov_b32 s45, {hex(f2u(2.0**-20))}")
    HF32 = [DR + 16, DR + 48]
    ST = 120
    HP = [4, 12]
    nop(A, 8)
    for rho in range(2):
        d, hf = DR + 32*rho, HF32[rho]
        if rho == 1: nop(A, 4)
        for n in range(8):
            xr = XR + 8*rho + n
            A.e(f"v_pk_mul_f32 {v(d + 2*n,2)}, {v(d + 2*n,2)}, s[44:45]")
            if mimic:
                A.e(f"v_cvt_pk_bf16_f32 {v(W0)}, {v(d + 2*n)}, {v(d + 2*n + 1)}")
                A.e(f"v_lshlrev_b32 {v(d + 2*n)}, 16, {v(W0)}\nv_and_b32 {v(d + 2*n + 1)}, s26, {v(W0)}")
            A.e(f"v_lshlrev_b32 {v(hf + 2*n)}, 16, {v(xr)}\nv_and_b32 {v(hf + 2*n + 1)}, s26, {v(xr)}")
            A.e(f"v_pk_add_f32 {v(hf + 2*n,2)}, {v(hf + 2*n,2)}, {v(d + 2*n,2)}")
            A.e(f"v_cvt_pk_bf16_f32 {v(HP[rho] + n)}, {v(hf + 2*n)}, {v(hf + 2*n + 1)}")
            A.e(f"v_lshlrev_b32 {v(hf + 2*n)}, 16, {v(HP[rho] + n)}\nv_and_b32 {v(hf + 2*n + 1)}, s26, {v(HP[rho] + n)}")
    for rho in range(2):
        sp, qp = ST + 4 + 4*rho, ST + 6 + 4*rho
        f = HF32[rho]
        A.e(f"v_pk_add_f32 {v(sp,2)}, {v(f,2)}, {v(f+2,2)}")
        A.e(f"v_pk_mul_f32 {v(qp,2)}, {v(f,2)}, {v(f,2)}")
        for n in range(1, 8):
            if n >= 2: A.e(f"v_pk_add_f32 {v(sp,2)}, {v(sp,2)}, {v(f+2*n,2)}")
            A.e(f"v_pk_fma_f32 {v(qp,2)}, {v(f+2*n,2)}, {v(f+2*n,2)}, {v(qp,2)}")
        A.e(f"v_add_f32 {v(ST + 2*rho)}, {v(sp)}, {v(sp+1)}")
        A.e(f"v_add_f32 {v(ST + 2*rho + 1)}, {v(qp)}, {v(qp+1)}")
    row_reduce(A, [ST + n for n in range(4)], ST + 12)
    for rho in range(2):
        ln_stats(A, ST + 2*rho, ST + 2*rho + 1, D)
    LP = [24, 32]
    for rho in range(2):
        m, r = ST + 2*rho, ST + 2*rho + 1
        A.e(f"v_sub_f32 {v(ST+4)}, 0, {v(m)}\nv_mov_b32 {v(ST+5)}, {v(ST+4)}\nv_mov_b32 {v(ST+6)}, {v(r)}\nv_mov_b32 {v(ST+7)}, {v(r)}")
        for n in range(8):
            f = HF32[rho] + 2*n
            A.e(f"v_pk_add_f32 {v(f,2)}, {v(f,2)}, {v(ST+4,2)}")
            if mimic:
                A.e(f"v_cvt_pk_bf16_f32 {v(W0)}, {v(f)}, {v(f+1)}")
                A.e(f"v_lshlrev_b32 {v(f)}, 16, {v(W0)}\nv_and_b32 {v(f+1)}, s26, {v(W0)}")
            A.e(f"v_pk_mul_f32 {v(f,2)}, {v(f,2)}, {v(ST+6,2)}")
            A.e(f"v_cvt_pk_bf16_f32 {v(LP[rho] + n)}, {v(f)}, {v(f+1)}")
    A.e(f"v_and_b32 v3, 31, v0\nv_lshlrev_b32 v3, 6, v3\nv_lshrrev_b32 {v(T)}, 5, v0\nv_lshl_add_u32 v3, {v(T)}, 4, v3")
    A.e("s_nop 1")
    for base, srd in ((HP, 12), (LP, 48)):
        for rho, so in ((0, 18), (1, 19)):
            for q in (0, 2):
                g0 = base[rho] + 2*q; g1 = g0 + 2
                A.e(f"v_permlane32_swap_b32 {v(g0)}, {v(g1)}")
                A.e(f"v_permlane32_swap_b32 {v(g0+1)}, {v(g1+1)}")
                A.e(f"buffer_store_dwordx4 {v(g0,4)}, v3, {s(srd,4)}, s{so} offen offset:{16*q}")
    if stamps:
        A.e("s_waitcnt vmcnt(0)")
        stamp_mid(A, 2)
        stamp_end(A, name, kidx, 30)
    A.label(done)
    A.e("s_endpgm")
    return lds, 224

if __name__ == "__main__":
    import sys, json
    which = sys.argv[1]
    kw = json.loads(sys.argv[3]) if len(sys.argv) > 3 else {}
    A = Asm()
    fn = globals()["gen_k" + which]
    nm = f"k{which}_kernel"
    lds, nv = fn(A, stamps=True, **kw)
    grid = 257 if which == "2" else 256
    t = file_text([(nm, grid, 512 if which == "2" else 256, lds)], [A.text()], [kernel_desc(nm, nv)])
    open(sys.argv[2], "w").write(t)
    print("vgprs", nv, "lds", lds)
```

```python
from asmlib import *
from gemm import *
from layout import *

def srd_from(A, dst, ptr_lo, off, nbytes):
    if off:
        A.e(f"s_add_u32 {s(dst)}, {s(ptr_lo)}, {off}")
        A.e(f"s_addc_u32 {s(dst+1)}, {s(ptr_lo+1)}, 0")
    else:
        A.e(f"s_mov_b32 {s(dst)}, {s(ptr_lo)}")
        A.e(f"s_mov_b32 {s(dst+1)}, {s(ptr_lo+1)}")
    A.e(f"s_mov_b32 {s(dst+2)}, {nbytes}")
    A.e(f"s_mov_b32 {s(dst+3)}, 0x20000")

def stamp_start(A):
    A.e("s_memrealtime s[60:61]")
    A.e("s_memtime s[68:69]")
def stamp_mid(A, n):
    A.e(f"s_memrealtime s[{72+2*n}:{73+2*n}]")
def stamp_end(A, name, kidx, wsptr, wave_sgpr=16):
    lab = A.newlabel(name + "_ts")
    A.e("s_memrealtime s[62:63]")
    A.e("s_memtime s[70:71]")
    A.e(f"s_cmp_lg_u32 s{wave_sgpr}, 0")
    A.e(f"s_cbranch_scc1 {lab}")
    srd_from(A, 64, wsptr, WS_TS + kidx * 65536, 65536)
    A.e("s_waitcnt lgkmcnt(0)")
    A.e("s_lshl_b32 s3, s2, 7")
    A.e("v_mov_b32 v4, s3")
    A.e("s_mov_b64 exec, 1")
    for n, b in enumerate([60, 68, 72, 76, 80, 84, 88]):
        A.e(f"v_mov_b32 v0, s{b}\nv_mov_b32 v1, s{b+1}\nv_mov_b32 v2, s{b+2}\nv_mov_b32 v3, s{b+3}")
        A.e(f"buffer_store_dwordx4 v[0:3], v4, s[64:67], 0 offen offset:{16*n}")
        A.e("s_nop 1")
    A.label(lab)

def prologue_ids(A):
    A.e("v_lshrrev_b32 v1, 6, v0")
    A.e("v_and_b32 v0, 63, v0")
    A.e("s_nop 0")
    A.e("v_readfirstlane_b32 s16, v1")

def swap_store(A, G, pk, T, va, srd, rowstride, nI, nJ, soff=24, aux=""):
    A.e(f"v_lshrrev_b32 {v(T)}, 4, v0")
    odd = nI % 2
    if odd:
        A.e(f"v_mov_b32 {v(T+2)}, {v(va)}")
    A.e(f"v_lshlrev_b32 {v(T+1)}, 3, {v(T)}")
    A.e(f"v_sub_u32 {v(va)}, {v(va)}, {v(T+1)}")
    A.e(f"v_and_b32 {v(T+1)}, 1, {v(T)}\nv_lshlrev_b32 {v(T+1)}, 5, {v(T+1)}")
    A.e(f"v_lshrrev_b32 {v(T)}, 1, {v(T)}\nv_lshlrev_b32 {v(T)}, 4, {v(T)}")
    A.e(f"v_add3_u32 {v(va)}, {v(va)}, {v(T)}, {v(T+1)}")
    for j in range(nJ):
        A.e(f"s_mov_b32 s{soff}, {16 * j * rowstride}")
        for ip in range(nI // 2):
            z0 = pk(2 * ip, j); z1 = pk(2 * ip + 1, j)
            assert z1 == z0 + 2 and z0 % 2 == 0
            A.e("s_nop 1")
            A.e(f"v_permlane16_swap_b32 {v(z0)}, {v(z1)}")
            A.e(f"v_permlane16_swap_b32 {v(z0+1)}, {v(z1+1)}")
            A.e(f"buffer_store_dwordx4 {v(z0,4)}, {v(va)}, {s(srd,4)}, s{soff} offen offset:{64 * ip} {aux}")
        if odd:
            z0 = pk(nI - 1, j)
            A.e(f"buffer_store_dwordx2 {v(z0,2)}, {v(T+2)}, {s(srd,4)}, s{soff} offen offset:{32 * (nI - 1)} {aux}")

def lane_out_offset(A, va, tmp, y0, x0, swy, swx, TY, TX, rowstride):
    A.e(f"s_mul_i32 s23, s{swy}, {16 * TY}\ns_add_u32 s23, s23, s{y0}")
    A.e(f"v_and_b32 {v(va)}, 15, v0\nv_add_u32 {v(va)}, s23, {v(va)}")
    A.e(f"s_mov_b32 s24, {rowstride}")
    A.e(f"v_mul_lo_u32 {v(va)}, {v(va)}, s24")
    A.e(f"s_mul_i32 s23, s{swx}, {16 * TX}\ns_add_u32 s23, s23, s{x0}\ns_lshl_b32 s23, s23, 1")
    A.e(f"v_lshrrev_b32 {v(tmp)}, 4, v0\nv_lshlrev_b32 {v(tmp)}, 3, {v(tmp)}")
    A.e(f"v_add3_u32 {v(va)}, {v(va)}, {v(tmp)}, s23")

def gen_gemm2(A, name="k5_kernel", NS=4, stamps=False, kidx=0, **kw):
    kernel_header(A, name)
    done = name + "_done"
    if stamps: stamp_start(A)
    A.e("s_load_dwordx2 s[30:31], s[0:1], 80")
    A.e("s_load_dwordx4 s[32:35], s[0:1], 40")
    A.e(f"s_cmp_ge_u32 s2, 256\ns_cbranch_scc1 {done}")
    A.e("s_and_b32 s3, s2, 7\ns_lshr_b32 s29, s2, 3")
    A.e(f"s_cmp_ge_u32 s29, 28\ns_cbranch_scc1 {done}")
    A.e("s_and_b32 s18, s3, 3\ns_lshl_b32 s18, s18, 2\ns_and_b32 s23, s29, 3\ns_add_u32 s18, s18, s23\ns_lshl_b32 s18, s18, 7")
    A.e("s_lshr_b32 s17, s3, 2\ns_mul_i32 s17, s17, 7\ns_lshr_b32 s23, s29, 2\ns_add_u32 s17, s17, s23\ns_lshl_b32 s17, s17, 7")
    prologue_ids(A)
    A.e("s_waitcnt lgkmcnt(0)")
    srd_from(A, 4, 30, WS_Z2, S * FH * 2)
    srd_from(A, 8, 32, 0, S * S * 2)
    X = Op('ks', 128, FH * 2, 4); Y = Op('kc', 128, S * 2, 8)
    G = Gemm(A, name, S, NS, X, Y, 2, 2, **kw)
    cons = name + "_cons"
    A.e("s_nop 4")
    A.e(f"s_cmp_lt_u32 s16, 4\ns_cbranch_scc1 {cons}")
    A.e("s_sub_u32 s25, s16, 4")
    G.emit_producer(0, 1)
    A.e(f"s_branch {done}")
    A.label(cons)
    st = {}
    def pre_last():
        ZB = st['ZB'] = G.vend
        srd_from(A, 12, 30, WS_Z1, S * FH * 2)
        srd_from(A, 36, 34, 0, S * 2)
        va, vb_ = ZB + 36, ZB + 37
        A.e(f"s_lshl_b32 s23, s28, 6\ns_add_u32 s23, s23, s18")
        A.e(f"v_and_b32 {v(vb_)}, 15, v0\nv_add_u32 {v(vb_)}, s23, {v(vb_)}\nv_lshlrev_b32 {v(vb_)}, 1, {v(vb_)}")
        for j in range(4):
            A.e(f"buffer_load_ushort {v(ZB + 32 + j)}, {v(vb_)}, s[36:39], 0 offen offset:{32 * j}")
        lane_out_offset(A, va, vb_, 18, 17, 28, 27, 4, 4, FH * 2)
        for j in range(4):
            A.e(f"s_mov_b32 s24, {16 * j * FH * 2}")
            for i in range(4):
                A.e(f"buffer_load_dwordx2 {v(ZB + 2 * (4 * j + i), 2)}, {v(va)}, s[12:15], s24 offen offset:{32 * i}")
    G.stamp = (lambda n: stamp_mid(A, n)) if stamps else None
    G.emit_consumer(0, 1, pre_last)
    if stamps: stamp_mid(A, 2)
    ZB = st['ZB']; va = ZB + 36
    srd_from(A, 12, 30, WS_P, S * FH * 2)
    A.e("s_nop 7")
    A.e("s_waitcnt vmcnt(0)")
    T = ZB + 40
    A.e(f"s_mov_b32 s26, 0xffff0000")
    for j in range(4):
        A.e(f"v_lshlrev_b32 {v(ZB + 32 + j)}, 16, {v(ZB + 32 + j)}")
    for j in range(4):
        for i in range(4):
            a0 = G.accb + 4 * (i * 4 + j)
            z = ZB + 2 * (4 * j + i)
            bj = ZB + 32 + j
            for r in range(4):
                A.e(f"v_add_f32 {v(a0 + r)}, {v(a0 + r)}, {v(bj)}")
            A.e(f"v_lshlrev_b32 {v(T)}, 16, {v(z)}\nv_and_b32 {v(T+1)}, s26, {v(z)}")
            A.e(f"v_lshlrev_b32 {v(T+2)}, 16, {v(z+1)}\nv_and_b32 {v(T+3)}, s26, {v(z+1)}")
            A.e(f"v_pk_mul_f32 {v(a0,2)}, {v(a0,2)}, {v(T,2)}")
            A.e(f"v_pk_mul_f32 {v(a0+2,2)}, {v(a0+2,2)}, {v(T+2,2)}")
            A.e(f"v_cvt_pk_bf16_f32 {v(z)}, {v(a0)}, {v(a0+1)}")
            A.e(f"v_cvt_pk_bf16_f32 {v(z+1)}, {v(a0+2)}, {v(a0+3)}")
    swap_store(A, G, lambda i, j: ZB + 2 * (4 * j + i), T, va, 12, FH * 2, 4, 4)
    if stamps:
        A.e("s_waitcnt vmcnt(0)")
        stamp_end(A, name, kidx, 30)
    A.label(done)
    A.e("s_endpgm")
    return G, T + 8

def gen_gemm3(A, name="k6_kernel", NS=4, BN=128, WX=2, stamps=False, kidx=0, **kw):
    kernel_header(A, name)
    done = name + "_done"
    if stamps: stamp_start(A)
    A.e("s_load_dwordx2 s[30:31], s[0:1], 80")
    A.e("s_load_dwordx4 s[32:35], s[0:1], 56")
    A.e(f"s_cmp_ge_u32 s2, 256\ns_cbranch_scc1 {done}")
    A.e("s_and_b32 s3, s2, 7\ns_lshr_b32 s29, s2, 3")
    nd = 1024 // BN // 2
    A.e(f"s_cmp_ge_u32 s29, {4 * nd}\ns_cbranch_scc1 {done}")
    A.e("s_and_b32 s18, s3, 3\ns_lshl_b32 s18, s18, 2\ns_and_b32 s23, s29, 3\ns_add_u32 s18, s18, s23\ns_lshl_b32 s18, s18, 7")
    A.e(f"s_lshr_b32 s17, s3, 2\ns_mul_i32 s17, s17, {nd}\ns_lshr_b32 s23, s29, 2\ns_add_u32 s17, s17, s23\ns_mul_i32 s17, s17, {BN}")
    prologue_ids(A)
    A.e("s_waitcnt lgkmcnt(0)")
    srd_from(A, 4, 32, 0, FH * D * 2)
    srd_from(A, 8, 30, WS_P, S * FH * 2)
    X = Op('ks', BN, D * 2, 4); Y = Op('kc', 128, FH * 2, 8)
    WY = 4 // WX
    G = Gemm(A, name, FH, NS, X, Y, WX, WY, **kw)
    TX, TY = G.TX, G.TY
    cons = name + "_cons"
    A.e("s_nop 4")
    A.e(f"s_cmp_lt_u32 s16, 4\ns_cbranch_scc1 {cons}")
    A.e("s_sub_u32 s25, s16, 4")
    G.emit_producer(0, 1)
    A.e(f"s_branch {done}")
    A.label(cons)
    st = {}
    nq = TX * TY
    def pre_last():
        ZB = st['ZB'] = G.vend
        srd_from(A, 12, 30, WS_H, S * D * 2)
        va, vb_ = ZB + 2 * nq, ZB + 2 * nq + 1
        lane_out_offset(A, va, vb_, 18, 17, 28, 27, TY, TX, D * 2)
        for j in range(TY):
            A.e(f"s_mov_b32 s24, {16 * j * D * 2}")
            for i in range(TX):
                A.e(f"buffer_load_dwordx2 {v(ZB + 2 * (TX * j + i), 2)}, {v(va)}, s[12:15], s24 offen offset:{32 * i}")
    G.stamp = (lambda n: stamp_mid(A, n)) if stamps else None
    G.emit_consumer(0, 1, pre_last)
    if stamps: stamp_mid(A, 2)
    ZB = st['ZB']; va = ZB + 2 * nq
    srd_from(A, 12, 34, 0, S * D * 2)
    A.e("s_nop 7")
    A.e("s_waitcnt vmcnt(0)")
    T = (va + 2 + 1) // 2 * 2
    A.e(f"s_mov_b32 s26, 0xffff0000")
    for j in range(TY):
        for i in range(TX):
            a0 = G.accb + 4 * (i * TY + j)
            z = ZB + 2 * (TX * j + i)
            A.e(f"v_lshlrev_b32 {v(T)}, 16, {v(z)}\nv_and_b32 {v(T+1)}, s26, {v(z)}")
            A.e(f"v_lshlrev_b32 {v(T+2)}, 16, {v(z+1)}\nv_and_b32 {v(T+3)}, s26, {v(z+1)}")
            A.e(f"v_pk_add_f32 {v(a0,2)}, {v(a0,2)}, {v(T,2)}")
            A.e(f"v_pk_add_f32 {v(a0+2,2)}, {v(a0+2,2)}, {v(T+2,2)}")
            A.e(f"v_cvt_pk_bf16_f32 {v(z)}, {v(a0)}, {v(a0+1)}")
            A.e(f"v_cvt_pk_bf16_f32 {v(z+1)}, {v(a0+2)}, {v(a0+3)}")
    swap_store(A, G, lambda i, j: ZB + 2 * (TX * j + i), T, va, 12, D * 2, TX, TY)
    if stamps:
        A.e("s_waitcnt vmcnt(0)")
        stamp_end(A, name, kidx, 30)
    A.label(done)
    A.e("s_endpgm")
    return G, T + 8

GK1 = -2.0 * 1.4426950408889634 * 0.7978845608028654
GK2 = GK1 * 0.044715
import struct
def f2u(x): return struct.unpack("<I", struct.pack("<f", x))[0]

def bf16_round(A, reg):
    A.e(f"v_cvt_pk_bf16_f32 {v(reg)}, {v(reg)}, {v(reg)}")
    A.e(f"v_lshlrev_b32 {v(reg)}, 16, {v(reg)}")

def group_reduce(A, regs, tmp):
    for sw in ("v_permlane16_swap_b32", "v_permlane32_swap_b32"):
        for n, r in enumerate(regs):
            A.e(f"v_mov_b32 {v(tmp + n)}, {v(r)}")
        A.e("s_nop 1")
        for n, r in enumerate(regs):
            A.e(f"{sw} {v(r)}, {v(tmp + n)}")
        for n, r in enumerate(regs):
            A.e(f"v_add_f32 {v(r)}, {v(r)}, {v(tmp + n)}")

def gen_gemm1(A, name="k4_kernel", NS=3, stamps=False, kidx=0, **kw):
    kernel_header(A, name)
    done = name + "_done"
    if stamps: stamp_start(A)
    A.e("s_load_dwordx2 s[30:31], s[0:1], 80")
    A.e("s_load_dwordx2 s[32:33], s[0:1], 32")
    A.e(f"s_cmp_ge_u32 s2, 256\ns_cbranch_scc1 {done}")
    A.e("s_and_b32 s3, s2, 7\ns_lshr_b32 s29, s2, 3")
    A.e("s_and_b32 s18, s3, 1\ns_lshl_b32 s18, s18, 3\ns_and_b32 s23, s29, 7\ns_add_u32 s18, s18, s23\ns_mov_b32 s40, s18\ns_lshl_b32 s18, s18, 7")
    A.e("s_lshr_b32 s17, s3, 1\ns_lshl_b32 s17, s17, 1\ns_lshr_b32 s23, s29, 3\ns_add_u32 s17, s17, s23")
    A.e("s_cmp_ge_u32 s23, 2\ns_cselect_b32 s23, 6, 0\ns_add_u32 s17, s17, s23\ns_mov_b32 s41, s17\ns_mul_i32 s17, s17, 224")
    prologue_ids(A)
    A.e("s_waitcnt lgkmcnt(0)")
    srd_from(A, 4, 32, 0, D * F * 2)
    srd_from(A, 8, 30, WS_LN2, S * D * 2)
    X = Op('ks', 224, F * 2, 4); Y = Op('kc', 128, D * 2, 8)
    G = Gemm(A, name, D, NS, X, Y, 2, 2, **kw)
    TX, TY = G.TX, G.TY
    cons = name + "_cons"
    A.e("s_nop 4")
    A.e(f"s_cmp_lt_u32 s16, 4\ns_cbranch_scc1 {cons}")
    A.e("s_sub_u32 s25, s16, 4")
    G.emit_producer(0, 1)
    A.e(f"s_branch {done}")
    A.label(cons)
    G.stamp = (lambda n: stamp_mid(A, n)) if stamps else None
    G.emit_consumer(0, 1, None)
    if stamps: stamp_mid(A, 2)
    FR = G.set0
    T = FR
    A.e(f"s_mov_b32 s44, {f2u(GK1)}\ns_mov_b32 s45, {f2u(GK1)}\ns_mov_b32 s46, {f2u(GK2)}\ns_mov_b32 s47, {f2u(GK2)}")
    A.e(f"v_mov_b32 {v(T+8)}, s44\nv_mov_b32 {v(T+9)}, s45")
    A.e("s_nop 7")
    def accq(i, j): return G.accb + 4 * (i * TY + j)
    for i in range(TX):
        for j in range(TY):
            a0 = accq(i, j)
            for hh in (0, 2):
                A.e(f"v_pk_mul_f32 {v(T+hh,2)}, {v(a0+hh,2)}, {v(a0+hh,2)}")
            for hh in (0, 2):
                A.e(f"v_pk_fma_f32 {v(T+hh,2)}, {v(T+hh,2)}, s[46:47], {v(T+8,2)}")
            for hh in (0, 2):
                A.e(f"v_pk_mul_f32 {v(T+hh,2)}, {v(T+hh,2)}, {v(a0+hh,2)}")
            for r in range(4):
                A.e(f"v_exp_f32 {v(T+r)}, {v(T+r)}")
            A.e("s_nop 0")
            for hh in (0, 2):
                A.e(f"v_pk_add_f32 {v(T+hh,2)}, {v(T+hh,2)}, 1.0 op_sel_hi:[1,0]")
            for r in range(4):
                A.e(f"v_rcp_f32 {v(T+r)}, {v(T+r)}")
            A.e("s_nop 0")
            for hh in (0, 2):
                A.e(f"v_pk_mul_f32 {v(a0+hh,2)}, {v(a0+hh,2)}, {v(T+hh,2)}")
    if stamps: stamp_mid(A, 3)
    PK = FR + 16
    def pk(i, j): return PK + 14 * j + 2 * i
    va = PK + 56; vt = va + 1
    z2l = name + "_z2"; st = name + "_store"
    A.e(f"s_cmp_ge_u32 s41, 8\ns_cbranch_scc1 {z2l}")
    srd_from(A, 12, 30, WS_Z1, S * FH * 2)
    A.e(f"s_branch {st}")
    A.label(z2l)
    SP = T
    for n in range(16): A.e(f"v_mov_b32 {v(SP + n)}, 0")
    for j in range(TY):
        for i in range(TX):
            a0 = accq(i, j)
            for hh in (0, 2):
                A.e(f"v_pk_add_f32 {v(SP + 2*j, 2)}, {v(SP + 2*j, 2)}, {v(a0+hh,2)}")
                A.e(f"v_pk_fma_f32 {v(SP + 8 + 2*j, 2)}, {v(a0+hh,2)}, {v(a0+hh,2)}, {v(SP + 8 + 2*j, 2)}")
    R = PK
    for j in range(TY):
        A.e(f"v_add_f32 {v(R + j)}, {v(SP + 2*j)}, {v(SP + 2*j + 1)}")
        A.e(f"v_add_f32 {v(R + 4 + j)}, {v(SP + 8 + 2*j)}, {v(SP + 8 + 2*j + 1)}")
    group_reduce(A, [R + n for n in range(8)], R + 8)
    A.e(f"v_lshrrev_b32 {v(vt)}, 4, v0")
    for j in range(1, 4):
        A.e(f"v_cmp_eq_u32 vcc, {j}, {v(vt)}")
        A.e("s_nop 1")
        A.e(f"v_cndmask_b32 {v(R)}, {v(R)}, {v(R + j)}, vcc")
        A.e(f"v_cndmask_b32 {v(R + 4)}, {v(R + 4)}, {v(R + 4 + j)}, vcc")
    A.e(f"v_mov_b32 {v(R + 1)}, {v(R + 4)}")
    srd_from(A, 36, 30, WS_ST, S * 128)
    A.e("s_lshl_b32 s23, s40, 1\ns_add_u32 s23, s23, s28\ns_lshl_b32 s23, s23, 13")
    A.e("s_sub_u32 s24, s41, 8\ns_lshl_b32 s24, s24, 1\ns_add_u32 s24, s24, s27\ns_lshl_b32 s24, s24, 9\ns_add_u32 s24, s24, s23")
    A.e(f"v_lshlrev_b32 {v(vt)}, 3, v0")
    A.e(f"buffer_store_dwordx2 {v(R,2)}, {v(vt)}, s[36:39], s24 offen sc1")
    if stamps: stamp_mid(A, 4)
    A.e(f"v_and_b32 {v(va)}, 15, v0\nv_lshlrev_b32 {v(va)}, 9, {v(va)}")
    Q = PK + 8
    pl = A.newlabel(name + "_poll"); pd = A.newlabel(name + "_polld"); pf = A.newlabel(name + "_fetch")
    A.e("s_mov_b32 s42, 0x40000\ns_add_u32 s43, s23, 4096")
    A.label(pl)
    A.e(f"buffer_load_dword {v(Q)}, {v(va)}, s[36:39], s23 offen offset:504 sc1")
    A.e("s_waitcnt vmcnt(0)")
    A.e(f"v_cmp_eq_u32 vcc, -1, {v(Q)}")
    A.e("s_sub_u32 s42, s42, 1")
    A.e(f"s_cbranch_scc1 {pf}")
    A.e("s_cmp_eq_u64 vcc, 0")
    A.e(f"s_cbranch_scc1 {pf}")
    A.e(f"s_sleep 2\ns_branch {pl}")
    A.label(pf)
    for p in range(16):
        A.e(f"buffer_load_dwordx2 {v(Q + 2*p, 2)}, {v(vt)}, s[36:39], {'s43' if p >= 8 else 's23'} offen offset:{512 * (p & 7)} sc1")
    A.e("s_waitcnt vmcnt(0)")
    A.e(f"v_max_u32 {v(va+2)}, {v(Q)}, {v(Q+1)}")
    for n in range(2, 32, 2):
        A.e(f"v_max3_u32 {v(va+2)}, {v(va+2)}, {v(Q+n)}, {v(Q+n+1)}")
    A.e(f"v_cmp_eq_u32 vcc, -1, {v(va+2)}")
    A.e("s_sub_u32 s42, s42, 1")
    A.e(f"s_cbranch_scc1 {pd}")
    A.e("s_cmp_eq_u64 vcc, 0")
    A.e(f"s_cbranch_scc0 {pl}")
    A.label(pd)
    if stamps: stamp_mid(A, 5)
    for st_ in (8, 4, 2, 1):
        for p in range(st_):
            A.e(f"v_pk_add_f32 {v(Q + 2*p, 2)}, {v(Q + 2*p, 2)}, {v(Q + 2*(p + st_), 2)}")
    A.e(f"v_mov_b32 {v(R)}, {v(Q)}\nv_mov_b32 {v(R + 4)}, {v(Q + 1)}")
    A.e(f"s_mov_b32 s44, {f2u(1.0 / FH)}\ns_mov_b32 s45, {f2u(1e-5)}")
    m, q = R, R + 4
    A.e(f"v_mul_f32 {v(m)}, s44, {v(m)}")
    A.e(f"v_mul_f32 {v(q)}, s44, {v(q)}")
    A.e(f"v_fma_f32 {v(q)}, -{v(m)}, {v(m)}, {v(q)}")
    A.e(f"v_max_f32 {v(q)}, 0, {v(q)}")
    bf16_round(A, m); bf16_round(A, q)
    A.e(f"v_add_f32 {v(q)}, s45, {v(q)}")
    bf16_round(A, q)
    A.e(f"v_sqrt_f32 {v(q)}, {v(q)}\ns_nop 0")
    bf16_round(A, q)
    A.e(f"v_rcp_f32 {v(q)}, {v(q)}\ns_nop 0")
    A.e(f"v_sub_f32 {v(m)}, 0, {v(m)}")
    for (src, dstb) in ((m, SP), (q, SP + 8)):
        a, b, a2, b2 = dstb, dstb + 2, dstb + 4, dstb + 6
        A.e(f"v_mov_b32 {v(a)}, {v(src)}\nv_mov_b32 {v(b)}, {v(src)}\ns_nop 1")
        A.e(f"v_permlane16_swap_b32 {v(a)}, {v(b)}")
        A.e(f"v_mov_b32 {v(a2)}, {v(a)}\nv_mov_b32 {v(b2)}, {v(b)}\ns_nop 1")
        A.e(f"v_permlane32_swap_b32 {v(a)}, {v(a2)}\nv_permlane32_swap_b32 {v(b)}, {v(b2)}")
        for x in (a, b, a2, b2):
            A.e(f"v_mov_b32 {v(x + 1)}, {v(x)}")
    for i in range(TX):
        for j in range(TY):
            a0 = accq(i, j)
            for hh in (0, 2):
                A.e(f"v_pk_add_f32 {v(a0+hh,2)}, {v(a0+hh,2)}, {v(SP + 2*j, 2)}")
                A.e(f"v_pk_mul_f32 {v(a0+hh,2)}, {v(a0+hh,2)}, {v(SP + 8 + 2*j, 2)}")
    srd_from(A, 12, 30, WS_Z2, S * FH * 2)
    A.e(f"s_sub_u32 s17, s17, {FH}")
    A.label(st)
    if stamps: stamp_mid(A, 6)
    for j in range(TY):
        for i in range(TX):
            a0 = accq(i, j)
            A.e(f"v_cvt_pk_bf16_f32 {v(pk(i,j))}, {v(a0)}, {v(a0+1)}")
            A.e(f"v_cvt_pk_bf16_f32 {v(pk(i,j)+1)}, {v(a0+2)}, {v(a0+3)}")
    lane_out_offset(A, va, vt, 18, 17, 28, 27, TY, TX, FH * 2)
    swap_store(A, G, pk, va + 2, va, 12, FH * 2, TX, TY)
    if stamps:
        A.e("s_waitcnt vmcnt(0)")
        stamp_end(A, name, kidx, 30)
    A.label(done)
    A.e("s_endpgm")
    assert va + 8 <= G.accb, (va, G.accb)
    return G, G.vend

if __name__ == "__main__":
    import sys, json
    which = sys.argv[1]
    kw = json.loads(sys.argv[3]) if len(sys.argv) > 3 else {}
    A = Asm()
    fn = {"1": gen_gemm1, "2": gen_gemm2, "3": gen_gemm3}[which]
    nm = {"1": "k4_kernel", "2": "k5_kernel", "3": "k6_kernel"}[which]
    G, nv = fn(A, stamps=True, **kw)
    lds = G.NS * G.slot
    t = file_text([(nm, 256, 512, lds)], [A.text()], [kernel_desc(nm, nv)])
    open(sys.argv[2], "w").write(t)
    print("vgprs", nv, "lds", lds)
```

```python
import sys, json
from asmlib import *
from layout import *
from gemm import *
from kern_gemm import (srd_from, swap_store, lane_out_offset, group_reduce, bf16_round, f2u, GK1, GK2)
from kern_fft import (nop, fconst, affine, cos_frag, row_reduce, ln_stats, twiddle_table, MF32, MF16)

PX, PWR, PWI, PWIN, PWSP, PBSP, PWOUT, POUT, PDBG, PWS = 80, 82, 84, 88, 90, 92, 94, 96, 98, 30
SW = 16
WS_CNT = 68 * MB
SC = "sc1"

class Mega:
    def __init__(self, opts):
        self.o = opts
        self.A = Asm()
        self.stamps = opts.get("stamps", False)
        self.nstamp = 0
        self.stamp_names = []

    def stamp(self, name):
        if not self.stamps: return
        A = self.A
        A.e("s_memrealtime s[100:101]\ns_waitcnt lgkmcnt(0)")
        A.e(f"v_writelane_b32 v255, s100, {self.nstamp}")
        self.stamp_names.append(name); self.nstamp += 1
        assert self.nstamp <= 64

    def stamp_flush(self):
        if not self.stamps: return
        A = self.A
        lab = A.newlabel("tsf")
        A.e(f"s_cmp_lg_u32 s{SW}, 0\ns_cbranch_scc1 {lab}")
        srd_from(A, 64, PWS, WS_TS, 65536)
        A.e("v_mbcnt_lo_u32_b32 v0, -1, 0\nv_mbcnt_hi_u32_b32 v0, -1, v0\nv_lshlrev_b32 v0, 2, v0\ns_lshl_b32 s3, s2, 8")
        A.e("buffer_store_dword v255, v0, s[64:67], s3 offen")
        A.label(lab)

    def cnt_srd(self, b, dst):
        A = self.A
        srd_from(A, dst, PWS, WS_CNT + (b - 1) * 4096, 4096)
    def cnt_stride(self, b): return 256

    def arrive(self, b, nowait_ge=None):
        A = self.A
        if nowait_ge is not None:
            lw = A.newlabel("nw")
            A.e(f"s_cmp_ge_u32 s{SW}, {nowait_ge}\ns_cbranch_scc1 {lw}")
            A.e("s_waitcnt vmcnt(0)")
            A.label(lw)
            A.e("s_waitcnt lgkmcnt(0)\ns_barrier")
        else:
            A.e("s_waitcnt vmcnt(0) lgkmcnt(0)\ns_barrier")
        lab = A.newlabel("arr")
        A.e(f"s_cmp_lg_u32 s{SW}, 0\ns_cbranch_scc1 {lab}")
        if b == 1:
            g0 = A.newlabel("b0p"); g1 = A.newlabel("b0d")
            srd_from(A, 64, PDBG, 0, 256)
            A.e("s_mov_b32 s3, 0x20000\nv_mov_b32 v250, 0")
            A.label(g0)
            A.e("v_cmp_le_u32 vcc, 16, v252\ns_sub_u32 s3, s3, 1")
            A.e(f"s_cbranch_scc1 {g1}\ns_cmp_lg_u64 vcc, 0\ns_cbranch_scc1 {g1}")
            A.e(f"buffer_load_dword v252, v250, s[64:67], 0 offen {SC}\ns_waitcnt vmcnt(0)\ns_branch {g0}")
            A.label(g1)
        self.cnt_srd(b, 64)
        A.e(f"s_and_b32 s3, s2, 15\ns_mul_i32 s3, s3, {self.cnt_stride(b)}")
        A.e("v_mov_b32 v250, s3\nv_mov_b32 v251, 1\ns_mov_b64 exec, 1")
        A.e(f"buffer_atomic_add v251, v250, s[64:67], 0 offen {SC}")
        A.e("s_mov_b64 exec, -1")
        A.label(lab)

    def poll(self, b, vt=250):
        A = self.A
        lab = A.newlabel("pw"); lp = A.newlabel("pl"); ld = A.newlabel("pd")
        A.e(f"s_cmp_lg_u32 s{SW}, 0\ns_cbranch_scc1 {lab}")
        self.cnt_srd(b, 64)
        A.e(f"v_and_b32 {v(vt)}, 15, v0\nv_mul_u32_u24 {v(vt)}, {self.cnt_stride(b)}, {v(vt)}")
        A.e("s_mov_b32 s3, 0x20000")
        A.label(lp)
        A.e(f"buffer_load_dword {v(vt+1)}, {v(vt)}, s[64:67], 0 offen {SC}\ns_waitcnt vmcnt(0)")
        A.e(f"v_cmp_gt_u32 vcc, 16, {v(vt+1)}")
        A.e(f"s_sub_u32 s3, s3, 1\ns_cbranch_scc1 {ld}")
        A.e(f"s_cmp_eq_u64 vcc, 0\ns_cbranch_scc1 {ld}")
        A.e(f"s_sleep {self.o.get('sleep', 1)}\ns_branch {lp}")
        A.label(ld)
        A.label(lab)

    def wait(self, b, vt=250):
        self.poll(b, vt)
        self.A.e("s_barrier")

    def prefetch(self, ptr, nbytes, tidreg, nth, vtmp, who="s2", nwg=256, base="0"):
        A = self.A
        per = (nbytes + nwg - 1) // nwg
        n = (per + nth * 16 - 1) // (nth * 16)
        srd_from(A, 56, ptr, 0, nbytes)
        A.e(f"v_lshlrev_b32 {v(vtmp)}, 4, {v(tidreg)}\ns_mul_i32 s54, {who}, {per}")
        for i in range(n):
            A.e(f"buffer_load_dwordx4 {v(vtmp + 2, 4)}, {v(vtmp)}, s[56:59], s54 offen")
            if i + 1 < n: A.e(f"s_add_u32 s54, s54, {nth * 16}")
        return n

    def wg_index(self, dst):
        A = self.A
        A.e(f"s_and_b32 s{dst}, s2, 7\ns_lshl_b32 s{dst}, s{dst}, 1\ns_bfe_u32 s3, s2, 0x10003\ns_or_b32 s{dst}, s{dst}, s3\ns_and_b32 s3, s2, 0xf0\ns_or_b32 s{dst}, s{dst}, s3")

    def p1(self):
        A = self.A
        LU, LX, LW = 0, 16384, 16384 + 17408
        self.wg_index(17)
        srd_from(A, 4, PX, 0, S * D * 2)
        srd_from(A, 8, PWR, 0, S * 513 * 2)
        srd_from(A, 12, PWI, 0, S * 513 * 2)
        XR = 4
        srd_from(A, 36, PWS, WS_CNT, 80 * 256)
        A.e("s_lshl_b32 s22, s2, 8\nv_mov_b32 v21, 0\nv_mov_b32 v3, 0\ns_mov_b64 exec, 1")
        A.e(f"buffer_store_dword v21, v3, s[36:39], s22 offen {SC}")
        A.e("s_mov_b64 exec, -1")
        A.e("v_lshlrev_b32 v2, 4, v0")
        A.e(f"s_lshl_b32 s18, s{SW}, 8\ns_add_u32 s18, s18, s17\ns_lshl_b32 s18, s18, 11")
        A.e(f"buffer_load_dwordx4 {v(XR, 4)}, v2, s[4:7], s18 offen")
        A.e(f"buffer_load_dwordx4 {v(XR + 4, 4)}, v2, s[4:7], s18 offen offset:1024")
        A.e(f"s_mul_i32 s20, s17, 8208\ns_lshl_b32 s21, s{SW}, 10\ns_add_u32 s22, s20, s21")
        for arr, srd in ((0, 8), (1, 12)):
            A.e(f"s_add_u32 m0, s21, {LW + arr * 9216}\ns_nop 0")
            A.e(f"buffer_load_dwordx4 v2, {s(srd,4)}, s22 offen lds")
        lw = A.newlabel("p1w8"); l0 = A.newlabel("p1w8a")
        A.e(f"s_cmp_ge_u32 s{SW}, 2\ns_cbranch_scc1 {lw}")
        A.e(f"s_mul_i32 s22, s{SW}, 9216\ns_add_u32 m0, s22, {LW + 8192}\ns_add_u32 s22, s20, 8192")
        A.e(f"s_cmp_eq_u32 s{SW}, 0\ns_cbranch_scc0 {l0}")
        A.e(f"buffer_load_dwordx4 v2, s[8:11], s22 offen lds\ns_branch {lw}")
        A.label(l0)
        A.e("buffer_load_dwordx4 v2, s[12:15], s22 offen lds")
        A.label(lw)
        srd_from(A, 36, PWS, WS_ST, 524288)
        A.e("v_lshlrev_b32 v3, 2, v1\ns_lshl_b32 s22, s2, 11\nv_mov_b32 v20, -1")
        A.e(f"buffer_store_dword v20, v3, s[36:39], s22 offen {SC}")
        BC, BS, TC, TS, FA, FB, FN, A8 = 20, 28, 36, 52, 68, 76, 84, 88
        P, Q, K1F, HF, T = 92, 93, 94, 95, 96
        A.e(f"v_and_b32 {v(K1F)}, 31, v0\nv_cvt_f32_u32 {v(K1F)}, {v(K1F)}")
        A.e(f"v_lshrrev_b32 {v(HF)}, 5, v0\nv_cvt_f32_u32 {v(HF)}, {v(HF)}")
        A.e(f"v_mul_f32 {v(P)}, {fconst(A, 1/32)}, {v(K1F)}")
        A.e(f"v_mul_f32 {v(Q)}, {fconst(A, 8.0)}, {v(HF)}\nv_mul_f32 {v(Q)}, {v(Q)}, {v(P)}")
        for t in range(2):
            cos_frag(A, BC + 4*t, P, Q, [16*t + j for j in range(8)], [0]*8, T)
            cos_frag(A, BS + 4*t, P, Q, [16*t + j for j in range(8)], [0.25]*8, T)
        A.e(f"v_mul_f32 {v(P)}, {fconst(A, 1/1024)}, {v(K1F)}")
        A.e(f"v_mul_f32 {v(Q)}, 4.0, {v(HF)}\nv_mul_f32 {v(Q)}, {v(Q)}, {v(P)}")
        twiddle_table(A, TC, TS, P, Q, T)
        A.e(f"v_bfe_u32 {v(P)}, v0, 1, 4\nv_cvt_f32_u32 {v(P)}, {v(P)}\nv_mul_f32 {v(P)}, {fconst(A, 1/32)}, {v(P)}")
        A.e(f"v_and_b32 {v(T)}, 1, v0\nv_cvt_f32_u32 {v(T)}, {v(T)}\nv_mul_f32 {v(T)}, {fconst(A, 0.25)}, {v(T)}")
        A.e(f"v_mul_f32 {v(Q)}, 4.0, {v(HF)}\nv_fma_f32 {v(Q)}, {v(Q)}, {v(P)}, {v(T)}")
        for t in range(2):
            co = [16*t + 8*(j >> 2) + (j & 3) for j in range(8)]
            cos_frag(A, FA + 4*t, P, Q, co, [0]*8, T)
            cos_frag(A, FB + 4*t, P, Q, co, [-0.25]*8, T)
        for n in range(4): A.e(f"v_mov_b32 {v(FN + n)}, 0xbf803f80")
        A.e(f"v_bfe_u32 {v(T)}, v0, 2, 1\nv_lshlrev_b32 {v(T)}, 2, {v(T)}")
        A.e(f"v_bfe_u32 {v(T+1)}, v0, 3, 1\nv_lshl_add_u32 {v(T)}, {v(T+1)}, 1, {v(T)}")
        A.e(f"v_bfe_u32 {v(T+1)}, v0, 1, 1\nv_add_u32 {v(T)}, {v(T)}, {v(T+1)}\nv_cvt_f32_u32 {v(T)}, {v(T)}")
        A.e(f"v_mul_f32 {v(P)}, {fconst(A, 0.125)}, {v(T)}")
        A.e(f"v_cvt_f32_u32 {v(T+1)}, s17\nv_mul_f32 {v(T+1)}, {fconst(A, 1/2048)}, {v(T+1)}\nv_mul_f32 {v(Q)}, {v(T)}, {v(T+1)}")
        A.e(f"v_and_b32 {v(T+1)}, 1, v0\nv_cvt_f32_u32 {v(T+1)}, {v(T+1)}\nv_fmamk_f32 {v(Q)}, {v(T+1)}, {hex(f2u(0.25))}, {v(Q)}")
        A.e(f"v_mul_f32 {v(T+1)}, 4.0, {v(HF)}\nv_fma_f32 {v(Q)}, {v(T+1)}, {v(P)}, {v(Q)}")
        cos_frag(A, A8, P, Q, [j >> 1 for j in range(8)], [-0.25 * (j & 1) for j in range(8)], T)
        self.stamp("p1.const")
        FX, ST, DR, W0, AD = 104, 136, 144, 208, 212
        A.e("s_mov_b32 s26, 0xffff0000")
        A.e("s_waitcnt vmcnt(3)")
        lg = A.newlabel("p1b0")
        A.e(f"s_cmp_ge_u32 s2, 16\ns_cbranch_scc1 {lg}\ns_cmp_lg_u32 s{SW}, 0\ns_cbranch_scc1 {lg}")
        srd_from(A, 64, PDBG, 0, 256)
        A.e(f"v_mov_b32 v250, 0\nv_mov_b32 v251, 1\ns_mov_b64 exec, 1")
        A.e(f"buffer_atomic_add v251, v250, s[64:67], 0 offen {SC}")
        A.e("s_mov_b64 exec, -1")
        A.label(lg)
        npf = 0
        if self.o.get("pf", True):
            srd_from(A, 56, PWIN, 0, D * F * 2)
            A.e("v_lshlrev_b32 v216, 4, v1\ns_mul_i32 s54, s2, 28672")
            A.e("buffer_load_dwordx4 v[218:221], v216, s[56:59], s54 offen\ns_add_u32 s54, s54, 8192")
            A.e("buffer_load_dwordx4 v[218:221], v216, s[56:59], s54 offen")
            npf = 2
        for n in range(8):
            A.e(f"v_lshlrev_b32 {v(FX + 2*n)}, 16, {v(XR + n)}\nv_and_b32 {v(FX + 2*n + 1)}, s26, {v(XR + n)}")
        sp, qp = ST + 4, ST + 6
        A.e(f"v_pk_add_f32 {v(sp,2)}, {v(FX,2)}, {v(FX+2,2)}\nv_pk_mul_f32 {v(qp,2)}, {v(FX,2)}, {v(FX,2)}")
        for n in range(1, 8):
            if n >= 2: A.e(f"v_pk_add_f32 {v(sp,2)}, {v(sp,2)}, {v(FX+2*n,2)}")
            A.e(f"v_pk_fma_f32 {v(qp,2)}, {v(FX+2*n,2)}, {v(FX+2*n,2)}, {v(qp,2)}")
        A.e(f"v_add_f32 {v(ST)}, {v(sp)}, {v(sp+1)}\nv_add_f32 {v(ST+1)}, {v(qp)}, {v(qp+1)}\ns_nop 1")
        row_reduce(A, [ST, ST + 1], ST + 12)
        ln_stats(A, ST, ST + 1, D)
        A.e(f"v_sub_f32 {v(ST+4)}, 0, {v(ST)}\nv_mov_b32 {v(ST+5)}, {v(ST+4)}\nv_mov_b32 {v(ST+6)}, {v(ST+1)}\nv_mov_b32 {v(ST+7)}, {v(ST+1)}")
        for n in range(8):
            f = FX + 2*n
            A.e(f"v_pk_add_f32 {v(f,2)}, {v(f,2)}, {v(ST+4,2)}\nv_pk_mul_f32 {v(f,2)}, {v(f,2)}, {v(ST+6,2)}")
            A.e(f"v_cvt_pk_bf16_f32 {v(XR + n)}, {v(f)}, {v(f+1)}")
        A.e(f"s_lshl_b32 s22, s{SW}, 11\nv_add_u32 {v(AD)}, s22, v2")
        A.e(f"ds_write_b128 {v(AD)}, {v(XR, 4)} offset:{LU}\nds_write_b128 {v(AD)}, {v(XR + 4, 4)} offset:{LU + 1024}")
        A.e(f"v_lshrrev_b32 {v(T)}, 5, v0\nv_lshlrev_b32 {v(T)}, 3, {v(T)}\nv_bfe_u32 {v(T+1)}, v0, 2, 2\nv_add_u32 {v(T)}, {v(T)}, {v(T+1)}\nv_lshlrev_b32 {v(T)}, 6, {v(T)}")
        A.e(f"v_bfe_u32 {v(T+1)}, v0, 4, 1\nv_lshl_add_u32 {v(T)}, {v(T+1)}, 5, {v(T)}\nv_and_b32 {v(T+1)}, 3, v0\nv_lshl_add_u32 {v(T)}, {v(T+1)}, 3, {v(T)}")
        A.e(f"v_add_u32 {v(AD)}, s22, {v(T)}")
        AF = FX
        for t in range(2):
            for rd in range(2):
                A.e(f"ds_read_b64_tr_b16 {v(AF + 4*t + 2*rd, 2)}, {v(AD)} offset:{LU + 1024*t + 256*rd}")
        for t in range(2):
            A.e(f"s_waitcnt lgkmcnt({2 * (1 - t)})")
            for im, Bf in ((0, BC), (1, BS)):
                d = DR + 16*im
                A.e(f"{MF32} {v(d,16)}, {v(AF + 4*t, 4)}, {v(Bf + 4*t, 4)}, {v(d,16) if t else '0'}")
        TP = FX
        A.e(f"v_and_b32 {v(T)}, 31, v0\nv_lshlrev_b32 {v(AD)}, 5, {v(T)}")
        A.e(f"v_lshrrev_b32 {v(T+1)}, 5, v0\nv_lshl_add_u32 {v(AD)}, {v(T+1)}, 11, {v(AD)}")
        A.e(f"s_lshr_b32 s22, s{SW}, 2\nv_bfe_u32 {v(T+1)}, v0, 3, 1\nv_xor_b32 {v(T+1)}, s22, {v(T+1)}\nv_lshl_add_u32 {v(AD)}, {v(T+1)}, 4, {v(AD)}")
        A.e(f"s_and_b32 s22, s{SW}, 3\ns_lshl_b32 s22, s22, 2\nv_add_u32 {v(AD)}, s22, {v(AD)}")
        nop(A, 4)
        dre, dim = DR, DR + 16
        for p in range(8):
            c, sn = TC + 2*p, TS + 2*p
            A.e(f"v_pk_mul_f32 {v(W0,2)}, {v(dre + 2*p,2)}, {v(c,2)}")
            A.e(f"v_pk_mul_f32 {v(W0+2,2)}, {v(dim + 2*p,2)}, {v(c,2)}")
            A.e(f"v_pk_fma_f32 {v(W0,2)}, {v(dim + 2*p,2)}, {v(sn,2)}, {v(W0,2)}")
            A.e(f"v_pk_fma_f32 {v(W0+2,2)}, {v(dre + 2*p,2)}, {v(sn,2)}, {v(W0+2,2)} neg_lo:[1,0,0] neg_hi:[1,0,0]")
            A.e(f"v_cvt_pk_bf16_f32 {v(TP + p)}, {v(W0)}, {v(W0+1)}")
            A.e(f"v_cvt_pk_bf16_f32 {v(TP + 8 + p)}, {v(W0+2)}, {v(W0+3)}")
        A.e("s_nop 1")
        d, dn, tre, tim = DR, DR + 16, TP, TP + 8
        A.e(f"{MF32} {v(d,16)}, {v(FA,4)}, {v(tre,4)}, 0")
        A.e(f"{MF32} {v(dn,16)}, {v(FN,4)}, {v(tre,4)}, 0")
        A.e(f"{MF32} {v(d,16)}, {v(FA+4,4)}, {v(tre+4,4)}, {v(d,16)}")
        A.e(f"{MF32} {v(dn,16)}, {v(FN,4)}, {v(tre+4,4)}, {v(dn,16)}")
        A.e(f"{MF32} {v(d,16)}, {v(FB,4)}, {v(tim,4)}, {v(d,16)}")
        A.e(f"{MF32} {v(d,16)}, {v(FB+4,4)}, {v(tim+4,4)}, {v(d,16)}")
        OV = 4
        nop(A, 12)
        for e in range(8):
            A.e(f"v_cvt_pk_bf16_f32 {v(OV + e)}, {v(d + 2*e)}, {v(d + 2*e + 1)}")
        for e in range(8):
            A.e(f"ds_write_b32 {v(AD)}, {v(OV + e)} offset:{LX + (4*(e >> 1) + (e & 1)) * 1024}")
        A.e(f"v_cvt_pk_bf16_f32 {v(W0)}, {v(dn)}, 0\ns_lshl_b32 s22, s{SW}, 2\nv_mov_b32 {v(W0+2)}, s22")
        A.e(f"s_mov_b64 exec, 1\nds_write_b32 {v(W0+2)}, {v(W0)} offset:{LX + 512*32}\ns_mov_b64 exec, -1")
        A.e(f"s_waitcnt vmcnt({npf}) lgkmcnt(0)\ns_barrier")
        srd_from(A, 64, PDBG, 0, 256)
        A.e(f"v_mov_b32 v250, 0\nbuffer_load_dword v252, v250, s[64:67], 0 offen {SC}")
        self.stamp("p1.rowfft")
        srd_from(A, 48, PWS, WS_U, 257 * KP_STRIDE)
        srd_from(A, 52, PWS, WS_WT, 257 * KP_STRIDE)
        A.e(f"v_and_b32 {v(T)}, 31, v0\nv_lshlrev_b32 {v(AD)}, 5, {v(T)}\nv_lshrrev_b32 {v(T+1)}, 5, v0\nv_bfe_u32 {v(T+2)}, v0, 3, 1\nv_xor_b32 {v(T+1)}, {v(T+1)}, {v(T+2)}\nv_lshl_add_u32 {v(AD)}, {v(T+1)}, 4, {v(AD)}")
        A.e(f"v_mov_b32 {v(AD+2)}, {v(AD)}\ns_lshl_b32 s22, s{SW}, 11\nv_add_u32 {v(AD)}, s22, {v(AD)}")
        RB = FX
        for b in range(2):
            A.e(f"ds_read_b128 {v(RB + 4*b, 4)}, {v(AD)} offset:{LX + 1024*b}")
        A.e(f"ds_read_b128 {v(RB + 8, 4)}, {v(AD+2)} offset:{LX + 16384}")
        SA = AD + 1
        A.e(f"v_bfe_u32 {v(T)}, v0, 1, 4\ns_mov_b32 s22, {KP_STRIDE}\nv_mul_lo_u32 {v(SA)}, {v(T)}, s22")
        A.e(f"v_and_b32 {v(T)}, 1, v0\nv_lshl_add_u32 {v(SA)}, {v(T)}, 5, {v(SA)}\nv_lshrrev_b32 {v(T)}, 5, v0\nv_lshl_add_u32 {v(SA)}, {v(T)}, 4, {v(SA)}")
        A.e(f"s_mul_i32 s22, s{SW}, {32 * KP_STRIDE}\ns_lshl_b32 s23, s17, 6\ns_add_u32 s22, s22, s23")
        for b in range(3):
            A.e(f"s_waitcnt lgkmcnt({2 - b})")
            A.e(f"{MF32} {v(DR + 16*b, 16)}, {v(A8,4)}, {v(RB + 4*b, 4)}, 0")
        WA, WS_ = 214, 215
        A.e(f"v_and_b32 {v(T)}, 1, v1\nv_mul_u32_u24 {v(WA)}, 4104, {v(T)}")
        A.e(f"v_lshrrev_b32 {v(T)}, 2, v1\nv_lshl_add_u32 {v(WA)}, {v(T)}, 2, {v(WA)}")
        A.e(f"v_bfe_u32 {v(T+1)}, v1, 1, 1\nv_lshl_add_u32 {v(WA)}, {v(T+1)}, 1, {v(WA)}")
        A.e(f"s_mov_b32 s24, {KP_STRIDE}\nv_mul_lo_u32 {v(WS_)}, {v(T)}, s24\nv_and_b32 {v(T)}, 3, v1\nv_lshl_add_u32 {v(WS_)}, {v(T)}, 4, {v(WS_)}")
        WO, WI = 120, 128
        for n in range(2):
            if n: A.e("s_waitcnt lgkmcnt(7)")
            for nn in range(4):
                A.e(f"ds_read_u16 {v(WO + 4*n + nn)}, {v(WA)} offset:{LW + 512*n + 1026*nn}")
                A.e(f"ds_read_u16 {v(WI + 4*n + nn)}, {v(WA)} offset:{LW + 9216 + 512*n + 1026*nn}")
        for b in range(2):
            for n in range(4):
                A.e(f"v_cvt_pk_bf16_f32 {v(OV + 4*b + n)}, {v(DR + 16*b + 2*n)}, {v(DR + 16*b + 2*n + 1)}")
            A.e(f"buffer_store_dwordx4 {v(OV + 4*b, 4)}, {v(SA)}, s[48:51], s22 offen {SC}")
            A.e(f"s_add_u32 s22, s22, {16 * KP_STRIDE}")
        lny = A.newlabel("p1ny")
        A.e(f"s_cmp_lg_u32 s{SW}, 7\ns_cbranch_scc1 {lny}")
        for n in range(4):
            A.e(f"v_cvt_pk_bf16_f32 {v(OV + 8 + n)}, {v(DR + 32 + 2*n)}, {v(DR + 32 + 2*n + 1)}")
        A.e(f"s_add_u32 s22, s23, {256 * KP_STRIDE}")
        A.e("s_mov_b32 exec_lo, 1\ns_mov_b32 exec_hi, 1")
        A.e(f"buffer_store_dwordx4 {v(OV + 8, 4)}, {v(SA)}, s[48:51], s22 offen {SC}")
        A.e("s_mov_b64 exec, -1")
        A.label(lny)
        A.e("s_waitcnt lgkmcnt(0)")
        for n in range(8):
            A.e(f"v_lshl_or_b32 {v(WO + n)}, {v(WI + n)}, 16, {v(WO + n)}")
        A.e("s_lshl_b32 s22, s17, 6")
        for n in range(2):
            A.e(f"buffer_store_dwordx4 {v(WO + 4*n, 4)}, {v(WS_)}, s[52:55], s22 offen {SC}")
            A.e(f"s_add_u32 s22, s22, {128 * KP_STRIDE}")
        lwe = A.newlabel("p1we")
        A.e(f"s_cmp_lg_u32 s{SW}, 0\ns_cbranch_scc1 {lwe}")
        A.e("s_mov_b64 exec, 3")
        WO2 = FX
        for nn in range(4):
            A.e(f"ds_read_u16 {v(WO2 + nn)}, {v(WA)} offset:{LW + 1024 + 1026*nn}")
            A.e(f"ds_read_u16 {v(WO2 + 4 + nn)}, {v(WA)} offset:{LW + 9216 + 1024 + 1026*nn}")
        A.e("s_waitcnt lgkmcnt(0)")
        for nn in range(4):
            A.e(f"v_lshl_or_b32 {v(WO2 + nn)}, {v(WO2 + 4 + nn)}, 16, {v(WO2 + nn)}")
        A.e(f"buffer_store_dwordx4 {v(WO2, 4)}, {v(WS_)}, s[52:55], s22 offen {SC}")
        A.e("s_mov_b64 exec, -1")
        A.label(lwe)

    def p2_pre(self):
        A = self.A
        self.p2_skip = A.newlabel("p2skip")
        A.e(f"s_mov_b32 s17, s2\ns_and_b32 s20, s{SW}, 3\ns_cmp_lt_u32 s{SW}, 4\ns_cselect_b32 s19, 1, 0")
        lab = A.newlabel("p2ny")
        A.e(f"s_cmp_lg_u32 s2, 0\ns_cbranch_scc1 {lab}")
        A.e(f"s_lshr_b32 s3, s{SW}, 1\ns_cmp_eq_u32 s3, 2\ns_cbranch_scc0 {lab}")
        A.e("s_mov_b32 s19, 1\ns_mov_b32 s17, 256")
        A.label(lab)
        self.p2_notask = A.newlabel("p2nt")
        A.e(f"s_cmp_eq_u32 s19, 0\ns_cbranch_scc1 {self.p2_notask}")
        CA, CB, CI, CJ, TC, TS, P, Q, T, LF, GF = 40, 48, 56, 64, 72, 76, 80, 81, 84, 82, 83
        A.e("v_and_b32 v36, 15, v0\nv_lshrrev_b32 v37, 4, v0")
        A.e(f"v_cvt_f32_u32 {v(LF)}, v36\nv_cvt_f32_u32 {v(GF)}, v37")
        A.e(f"v_mul_f32 {v(P)}, {fconst(A, 1/16)}, {v(LF)}\nv_mul_f32 {v(Q)}, 4.0, {v(GF)}\nv_mul_f32 {v(Q)}, {v(Q)}, {v(P)}")
        co = [j >> 1 for j in range(8)]
        cos_frag(A, CA, P, Q, co, [-0.25*(j & 1) for j in range(8)], T)
        cos_frag(A, CA + 4, P, Q, co, [0.25*(1 - (j & 1)) for j in range(8)], T)
        A.e(f"v_add_f32 {v(Q)}, {v(GF)}, {v(GF)}\nv_mul_f32 {v(Q)}, {v(Q)}, {v(P)}")
        ci = [((j >> 1) & 1) + 8*(j >> 2) for j in range(8)]
        cos_frag(A, CI, P, Q, ci, [0.25*(j & 1) for j in range(8)], T)
        cos_frag(A, CI + 4, P, Q, ci, [-0.25*(1 - (j & 1)) for j in range(8)], T)
        A.e(f"v_mul_f32 {v(P)}, {fconst(A, 1/256)}, {v(LF)}\nv_mul_f32 {v(Q)}, 4.0, {v(GF)}\nv_mul_f32 {v(Q)}, {v(Q)}, {v(P)}")
        for r in range(4): affine(A, TS + r, P, r, Q)
        for r in range(4): A.e(f"v_cos_f32 {v(TC + r)}, {v(TS + r)}")
        for r in range(4): A.e(f"v_sin_f32 {v(TS + r)}, {v(TS + r)}")
        RO = 92
        A.e(f"v_and_b32 {v(RO)}, 1, v0\nv_cvt_f32_u32 {v(RO)}, {v(RO)}\nv_mul_f32 {v(RO)}, {fconst(A, 0.25)}, {v(RO)}")
        for t in range(2):
            A.e(f"v_bfe_u32 {v(P)}, v0, 1, 3\nv_add_u32 {v(P)}, {8*t}, {v(P)}\nv_cvt_f32_u32 {v(P)}, {v(P)}\nv_mul_f32 {v(P)}, {fconst(A, 1/16)}, {v(P)}")
            A.e(f"v_mul_f32 {v(93)}, 4.0, {v(GF)}\nv_mul_f32 {v(93)}, {v(93)}, {v(P)}")
            A.e(f"v_add_f32 {v(Q)}, {v(93)}, {v(RO)}")
            cos_frag(A, CB + 4*t, P, Q, co, [-0.25*(j & 1) for j in range(8)], T)
            A.e(f"v_sub_f32 {v(Q)}, {v(93)}, {v(RO)}")
            cos_frag(A, CJ + 4*t, P, Q, co, [0.25*(j & 1) for j in range(8)], T)
        srd_from(A, 4, PWS, WS_U, 257 * KP_STRIDE)
        srd_from(A, 8, PWS, WS_WT, 257 * KP_STRIDE)
        srd_from(A, 12, PWS, WS_Y, 257 * KP_STRIDE)
        A.e(f"s_mul_i32 s18, s17, {KP_STRIDE}\ns_add_u32 s21, s18, 8192\ns_lshl_b32 s20, s20, 4")
        A.e(f"v_lshl_add_u32 v34, v37, 6, v36\nv_lshlrev_b32 v34, 6, v34\nv_add_u32 v34, s20, v34")
        A.e(f"v_lshl_add_u32 v35, v37, 5, v36\nv_lshlrev_b32 v35, 6, v35\nv_add_u32 v35, s20, v35")
        A.e(f"v_lshrrev_b32 v38, 2, v36\nv_xor_b32 v38, s{SW}, v38\nv_lshlrev_b32 v38, 4, v38")
        A.e(f"v_lshl_add_u32 v32, v37, 6, v36\nv_lshl_add_u32 v32, v32, 6, v38")
        A.e(f"v_lshl_add_u32 v33, v37, 5, v36\nv_lshl_add_u32 v33, v33, 6, v38")
        A.e("v_and_b32 v38, 3, v0\nv_xor_b32 v38, v38, v37\nv_lshrrev_b32 v39, 2, v0\nv_lshlrev_b32 v39, 6, v39\nv_lshl_add_u32 v31, v38, 4, v39")
        A.label(self.p2_notask)

    def p2(self):
        A = self.A
        nt = A.newlabel("p2idle"); end = A.newlabel("p2end"); ny = A.newlabel("p2nyl"); go = A.newlabel("p2go")
        LUI, LWI, LOU = 0, 16384, 32768
        R0, WT, VA, VB = 4, 96, 34, 35
        CA, CB, CI, CJ, TC, TS = 40, 48, 56, 64, 72, 76
        A.e(f"s_cmp_ge_u32 s{SW}, 4\ns_cbranch_scc1 {ny}")
        A.e(f"s_lshl_b32 s22, s{SW}, 12\ns_add_u32 s23, s22, s18")
        for arr, srd, base in ((0, 4, LUI), (1, 8, LWI)):
            for j in range(4):
                A.e(f"s_add_u32 m0, s22, {base + 1024 * j}\ns_add_u32 s24, s23, {1024 * j}")
                A.e(f"buffer_load_dwordx4 v31, {s(srd,4)}, s24 offen {SC} lds")
        A.e("s_waitcnt vmcnt(0)\ns_barrier")
        for i in range(4):
            A.e(f"ds_read_b128 {v(R0 + 4*i, 4)}, v32 offset:{LUI + 1024*i}")
        for e in range(4):
            A.e(f"ds_read_b128 {v(WT + 4*e, 4)}, v33 offset:{LWI + 1024*(e & 1) + 8192*(e >> 1)}")
        A.e("s_waitcnt lgkmcnt(4)")
        A.e(f"s_branch {go}")
        A.label(ny)
        A.e(f"s_cmp_eq_u32 s19, 0\ns_cbranch_scc1 {nt}")
        for i in range(4):
            A.e(f"buffer_load_dwordx4 {v(R0 + 4*i, 4)}, {v(VA)}, s[4:7], s18 offen offset:{1024*i} {SC}")
        for e in range(4):
            A.e(f"buffer_load_dwordx4 {v(WT + 4*e, 4)}, {v(VB)}, s[8:11], s{18 if e < 2 else 21} offen offset:{1024*(e & 1)} {SC}")
        A.e("s_barrier\ns_waitcnt vmcnt(0)")
        A.label(go)
        for i in range(4):
            for tau in range(i + 1, 4):
                A.e(f"v_swap_b32 {v(R0 + 4*i + tau)}, {v(R0 + 4*tau + i)}")
        A.e("s_nop 1")
        DD, W0, OP = 112, 144, R0
        def twiddle(conj):
            for tau in range(4):
                re, im = DD + 8*tau, DD + 8*tau + 4
                for hh in (0, 2):
                    A.e(f"v_pk_mul_f32 {v(W0+hh,2)}, {v(re+hh,2)}, {v(TC+hh,2)}")
                    A.e(f"v_pk_mul_f32 {v(W0+4+hh,2)}, {v(im+hh,2)}, {v(TC+hh,2)}")
                for hh in (0, 2):
                    n1 = " neg_lo:[1,0,0] neg_hi:[1,0,0]"
                    A.e(f"v_pk_fma_f32 {v(W0+hh,2)}, {v(im+hh,2)}, {v(TS+hh,2)}, {v(W0+hh,2)}" + (n1 if conj else ""))
                    A.e(f"v_pk_fma_f32 {v(W0+4+hh,2)}, {v(re+hh,2)}, {v(TS+hh,2)}, {v(W0+4+hh,2)}" + ("" if conj else n1))
                for r in range(4):
                    A.e(f"v_cvt_pk_bf16_f32 {v(OP + 4*tau + r)}, {v(W0 + r)}, {v(W0 + 4 + r)}")
            A.e("s_nop 1")
        for tau in range(4):
            A.e(f"{MF16} {v(DD + 8*tau, 4)}, {v(R0 + 4*tau, 4)}, {v(CA, 4)}, 0")
            A.e(f"{MF16} {v(DD + 8*tau + 4, 4)}, {v(R0 + 4*tau, 4)}, {v(CA + 4, 4)}, 0")
        nop(A, 4)
        twiddle(False)
        for tau in range(4):
            for t in range(2):
                A.e(f"{MF16} {v(DD + 8*tau + 4*t, 4)}, {v(CB + 4*t, 4)}, {v(OP + 4*tau, 4)}, 0")
        A.e("s_mov_b32 s26, 0xffff0000\ns_waitcnt lgkmcnt(0)")
        nop(A, 3)
        for tau in range(4):
            for e in range(4):
                vv = DD + 8*tau + 2*e
                w = WT + 4*e + tau
                A.e(f"v_lshlrev_b32 {v(W0)}, 16, {v(w)}\nv_and_b32 {v(W0+1)}, s26, {v(w)}")
                A.e(f"v_pk_mul_f32 {v(W0+2,2)}, {v(vv,2)}, {v(W0,2)} op_sel:[0,0] op_sel_hi:[1,0]")
                A.e(f"v_pk_fma_f32 {v(W0+2,2)}, {v(vv,2)}, {v(W0,2)}, {v(W0+2,2)} op_sel:[1,1,0] op_sel_hi:[0,1,1] neg_lo:[1,0,0]")
                A.e(f"v_cvt_pk_bf16_f32 {v(OP + 4*tau + e)}, {v(W0+2)}, {v(W0+3)}")
        A.e("s_nop 1")
        for tau in range(4):
            A.e(f"{MF16} {v(DD + 8*tau, 4)}, {v(OP + 4*tau, 4)}, {v(CI, 4)}, 0")
            A.e(f"{MF16} {v(DD + 8*tau + 4, 4)}, {v(OP + 4*tau, 4)}, {v(CI + 4, 4)}, 0")
        nop(A, 4)
        twiddle(True)
        for tau in range(4):
            for t in range(2):
                A.e(f"{MF16} {v(DD + 8*tau + 4*t, 4)}, {v(CJ + 4*t, 4)}, {v(OP + 4*tau, 4)}, 0")
        nop(A, 8)
        for e in range(4):
            for tau in range(4):
                vv = DD + 8*tau + 2*e
                A.e(f"v_cvt_pk_bf16_f32 {v(WT + 4*e + tau)}, {v(vv)}, {v(vv+1)}")
        ny2 = A.newlabel("p2ny2")
        A.e(f"s_cmp_ge_u32 s{SW}, 4\ns_cbranch_scc1 {ny2}")
        for e in range(4):
            A.e(f"ds_write_b128 v33, {v(WT + 4*e, 4)} offset:{LOU + 1024*(e & 1) + 8192*(e >> 1)}")
        A.e("s_waitcnt lgkmcnt(0)\ns_barrier")
        A.e(f"s_lshl_b32 s22, s{SW}, 12\nv_lshlrev_b32 v30, 4, v0\nv_add_u32 v30, s22, v30\ns_add_u32 s23, s22, s18")
        for j in range(4):
            A.e(f"ds_read_b128 {v(R0 + 4*j, 4)}, v30 offset:{LOU + 1024*j}")
        for j in range(4):
            A.e(f"s_waitcnt lgkmcnt({3 - j})")
            A.e(f"buffer_store_dwordx4 {v(R0 + 4*j, 4)}, v31, s[12:15], s23 offen offset:{1024*j} {SC}")
        A.e(f"s_branch {end}")
        A.label(ny2)
        for e in range(4):
            A.e(f"buffer_store_dwordx4 {v(WT + 4*e, 4)}, {v(VB)}, s[12:15], s{18 if e < 2 else 21} offen offset:{1024*(e & 1)} {SC}")
        A.e(f"s_barrier\ns_branch {end}")
        A.label(nt)
        A.e("s_barrier")
        if self.o.get("pf", True):
            lpf = A.newlabel("p2pf")
            A.e(f"s_cmp_lt_u32 s{SW}, 6\ns_cbranch_scc1 {lpf}")
            srd_from(A, 56, PWIN, 0, D * F * 2)
            A.e("v_and_b32 v222, 127, v1\nv_lshlrev_b32 v222, 4, v222\ns_mul_i32 s54, s2, 28672\ns_add_u32 s54, s54, 16384")
            for n in range(6):
                A.e("buffer_load_dwordx4 v[224:227], v222, s[56:59], s54 offen\ns_add_u32 s54, s54, 2048")
            A.label(lpf)
        A.e("s_barrier")
        A.label(end)

    def p3_pre(self):
        A = self.A
        self.wg_index(17)
        srd_from(A, 4, PX, 0, S * D * 2)
        srd_from(A, 8, PWS, WS_Y, 257 * KP_STRIDE)
        srd_from(A, 12, PWS, WS_H, S * D * 2)
        srd_from(A, 48, PWS, WS_LN2, S * D * 2)
        T = 96
        XR = 24
        A.e("v_and_b32 v3, 31, v0\nv_lshlrev_b32 v3, 6, v3\nv_lshrrev_b32 v40, 5, v0\nv_lshl_add_u32 v3, v40, 3, v3")
        A.e(f"s_lshl_b32 s18, s{SW}, 8\ns_add_u32 s18, s18, s17\ns_lshl_b32 s18, s18, 11")
        for q in range(4):
            A.e(f"buffer_load_dwordx2 {v(XR + 2*q, 2)}, v3, s[4:7], s18 offen offset:{16*q}")
        A8, BR, BI, TC, TS, P, Q, K1F, HF, CC, CS = 40, 44, 52, 60, 76, 92, 93, 94, 95, 104, 112
        A.e(f"v_and_b32 {v(K1F)}, 31, v0\nv_cvt_f32_u32 {v(K1F)}, {v(K1F)}")
        A.e(f"v_lshrrev_b32 {v(HF)}, 5, v0\nv_cvt_f32_u32 {v(HF)}, {v(HF)}")
        A.e(f"v_bfe_u32 {v(T)}, v0, 2, 1\nv_lshlrev_b32 {v(T)}, 2, {v(T)}")
        A.e(f"v_bfe_u32 {v(T+1)}, v0, 3, 1\nv_lshl_add_u32 {v(T)}, {v(T+1)}, 1, {v(T)}")
        A.e(f"v_bfe_u32 {v(T+1)}, v0, 1, 1\nv_add_u32 {v(T)}, {v(T)}, {v(T+1)}\nv_cvt_f32_u32 {v(T)}, {v(T)}")
        A.e(f"v_cvt_f32_u32 {v(T+1)}, s17\nv_mul_f32 {v(T+1)}, {fconst(A, 1/2048)}, {v(T+1)}")
        A.e(f"v_fmamk_f32 {v(P)}, {v(T)}, {hex(f2u(0.125))}, {v(T+1)}")
        A.e(f"v_and_b32 {v(T+1)}, 1, v0\nv_cvt_f32_u32 {v(T+1)}, {v(T+1)}\nv_mul_f32 {v(T+1)}, {fconst(A, -0.25)}, {v(T+1)}")
        A.e(f"v_mul_f32 {v(Q)}, 4.0, {v(HF)}\nv_fma_f32 {v(Q)}, {v(Q)}, {v(P)}, {v(T+1)}")
        cos_frag(A, A8, P, Q, [j >> 1 for j in range(8)], [0.25 * (j & 1) for j in range(8)], T)
        A.e(f"v_mul_f32 {v(P)}, {fconst(A, 1/32)}, {v(K1F)}")
        A.e(f"v_mul_f32 {v(Q)}, 4.0, {v(HF)}\nv_mul_f32 {v(Q)}, {v(Q)}, {v(P)}")
        for t in range(2):
            co = [8*t + (j >> 1) for j in range(8)]
            cos_frag(A, BR + 4*t, P, Q, co, [0.25*(j & 1) for j in range(8)], T)
            cos_frag(A, BI + 4*t, P, Q, co, [-0.25*(1 - (j & 1)) for j in range(8)], T)
        for t in range(2):
            co = [16*t + 8*(j >> 2) + (j & 3) for j in range(8)]
            cos_frag(A, CC + 4*t, P, Q, co, [0]*8, T)
            cos_frag(A, CS + 4*t, P, Q, co, [0.25]*8, T)
        A.e(f"v_mul_f32 {v(P)}, {fconst(A, 1/1024)}, {v(K1F)}")
        A.e(f"v_mul_f32 {v(Q)}, 4.0, {v(HF)}\nv_mul_f32 {v(Q)}, {v(Q)}, {v(P)}")
        twiddle_table(A, TC, TS, P, Q, T)
        A.e(f"v_bfe_u32 {v(T)}, v0, 1, 4\ns_mov_b32 s22, {KP_STRIDE}\nv_mul_lo_u32 v2, {v(T)}, s22")
        A.e(f"v_and_b32 {v(T)}, 1, v0\nv_lshl_add_u32 v2, {v(T)}, 5, v2\nv_lshrrev_b32 {v(T)}, 5, v0\nv_lshl_add_u32 v2, {v(T)}, 4, v2")
        A.e(f"v_lshlrev_b32 v23, 4, {v(T)}")
        A.e(f"s_mul_i32 s22, s{SW}, {32 * KP_STRIDE}\ns_lshl_b32 s23, s17, 6\ns_add_u32 s22, s22, s23")

    def p3(self):
        A = self.A
        LY = self.o.get("p3_lds", 139264); LN = LY + 16384
        mimic = self.o.get("mimic", True)
        T, XR = 96, 24
        A8, BR, BI, TC, TS, CC, CS = 40, 44, 52, 60, 76, 104, 112
        RB = 4
        for b in range(2):
            A.e(f"buffer_load_dwordx4 {v(RB + 4*b, 4)}, v2, s[8:11], s22 offen {SC}")
            A.e(f"s_add_u32 s22, s22, {16 * KP_STRIDE}")
        A.e(f"s_add_u32 s22, s23, {256 * KP_STRIDE}")
        A.e(f"buffer_load_dwordx4 {v(12, 4)}, v23, s[8:11], s22 offen {SC}")
        DR, AD, OV = 144, 212, 120
        A.e(f"v_lshrrev_b32 {v(T)}, 5, v0\nv_lshlrev_b32 {v(AD)}, 13, {v(T)}")
        A.e(f"v_and_b32 {v(T)}, 31, v0\nv_lshl_add_u32 {v(AD)}, {v(T)}, 6, {v(AD)}")
        A.e(f"s_lshr_b32 s24, s{SW}, 1\nv_bfe_u32 {v(T)}, v0, 2, 2\nv_xor_b32 {v(T)}, s24, {v(T)}\nv_lshl_add_u32 {v(AD)}, {v(T)}, 4, {v(AD)}")
        A.e(f"s_and_b32 s24, s{SW}, 1\ns_lshl_b32 s24, s24, 3\ns_add_u32 s24, s24, {LY}\nv_add_u32 {v(AD)}, s24, {v(AD)}")
        for b in range(3):
            A.e(f"s_waitcnt vmcnt({2 - b})")
            A.e(f"{MF32} {v(DR + 16*b, 16)}, {v(A8,4)}, {v(RB + 4*b, 4)}, 0")
        nop(A, 12)
        for b in range(2):
            for n in range(4):
                A.e(f"v_cvt_pk_bf16_f32 {v(OV + 4*b + n)}, {v(DR + 16*b + 2*n)}, {v(DR + 16*b + 2*n + 1)}")
        l0 = A.newlabel("p3dc"); l1 = A.newlabel("p3ny")
        A.e(f"s_cmp_lg_u32 s{SW}, 0\ns_cbranch_scc1 {l0}")
        A.e("s_mov_b32 exec_lo, 1\ns_mov_b32 exec_hi, 1")
        for n in range(4):
            A.e(f"v_mul_f32 {v(T)}, 0.5, {v(DR + 2*n)}\nv_cvt_pk_bf16_f32 {v(OV + n)}, {v(T)}, 0")
        A.e("s_mov_b64 exec, -1")
        A.label(l0)
        A.e(f"s_cmp_lg_u32 s{SW}, 7\ns_cbranch_scc1 {l1}")
        for n in range(4):
            A.e(f"v_mul_f32 {v(T+2+n)}, 0.5, {v(DR + 32 + 2*n)}")
        A.e(f"v_add_u32 {v(T+1)}, {LN}, v23")
        A.e("s_mov_b32 exec_lo, 1\ns_mov_b32 exec_hi, 1")
        A.e(f"ds_write_b128 {v(T+1)}, {v(T+2, 4)}")
        A.e("s_mov_b64 exec, -1")
        A.label(l1)
        for b in range(2):
            for n in range(4):
                A.e(f"ds_write_b32 {v(AD)}, {v(OV + 4*b + n)} offset:{2048*n + 4*b}")
        A.e("s_waitcnt lgkmcnt(0)\ns_barrier")
        self.stamp("p3.radix8")
        TA, TB = T, T + 1
        A.e(f"v_and_b32 {v(T+2)}, 31, v0\nv_lshlrev_b32 {v(TA)}, 6, {v(T+2)}\ns_lshl_b32 s22, s{SW}, 11\ns_add_u32 s22, s22, {LY}\nv_add_u32 {v(TA)}, s22, {v(TA)}")
        A.e(f"v_lshrrev_b32 {v(T+2)}, 5, v0\nv_bfe_u32 {v(T+3)}, v0, 2, 2\nv_xor_b32 {v(T+2)}, {v(T+2)}, {v(T+3)}")
        A.e(f"v_xor_b32 {v(T+3)}, 2, {v(T+2)}")
        A.e(f"v_lshl_add_u32 {v(TB)}, {v(T+3)}, 4, {v(TA)}\nv_lshl_add_u32 {v(TA)}, {v(T+2)}, 4, {v(TA)}")
        AF, NY, SG = 120, 136, 138
        A.e(f"ds_read_b128 {v(AF, 4)}, {v(TA)}\nds_read_b128 {v(AF + 4, 4)}, {v(TB)}")
        A.e(f"s_lshl_b32 s22, s{SW}, 2\ns_add_u32 s22, s22, {LN}\nv_mov_b32 {v(T+2)}, s22")
        A.e(f"ds_read_b32 {v(NY)}, {v(T+2)}")
        A.e(f"v_and_b32 {v(SG)}, 1, v0\nv_cvt_f32_u32 {v(SG)}, {v(SG)}\nv_fma_f32 {v(SG)}, {v(SG)}, -2.0, 1.0")
        A.e(f"v_cmp_gt_u32 vcc, 32, v0\ns_nop 1\nv_cndmask_b32 {v(SG)}, 0, {v(SG)}, vcc")
        for t in range(2):
            A.e(f"s_waitcnt lgkmcnt({2 - t})")
            for im, Bf in ((0, BR), (1, BI)):
                d = DR + 16*im
                A.e(f"{MF32} {v(d,16)}, {v(AF + 4*t, 4)}, {v(Bf + 4*t, 4)}, {v(d,16) if t else '0'}")
        A.e("s_waitcnt lgkmcnt(0)")
        TP, W0 = 4, 208
        nop(A, 11)
        dre, dim = DR, DR + 16
        A.e(f"v_fma_f32 {v(dre)}, {v(SG)}, {v(NY)}, {v(dre)}")
        for p in range(8):
            c, sn = TC + 2*p, TS + 2*p
            A.e(f"v_pk_mul_f32 {v(W0,2)}, {v(dre + 2*p,2)}, {v(c,2)}")
            A.e(f"v_pk_mul_f32 {v(W0+2,2)}, {v(dim + 2*p,2)}, {v(c,2)}")
            A.e(f"v_pk_fma_f32 {v(W0,2)}, {v(dim + 2*p,2)}, {v(sn,2)}, {v(W0,2)} neg_lo:[1,0,0] neg_hi:[1,0,0]")
            A.e(f"v_pk_fma_f32 {v(W0+2,2)}, {v(dre + 2*p,2)}, {v(sn,2)}, {v(W0+2,2)}")
            A.e(f"v_cvt_pk_bf16_f32 {v(TP + p)}, {v(W0)}, {v(W0+1)}")
            A.e(f"v_cvt_pk_bf16_f32 {v(TP + 8 + p)}, {v(W0+2)}, {v(W0+3)}")
        A.e("s_nop 1")
        d, tre, tim = DR, TP, TP + 8
        A.e(f"{MF32} {v(d,16)}, {v(tre,4)}, {v(CC,4)}, 0")
        A.e(f"{MF32} {v(d,16)}, {v(tre+4,4)}, {v(CC+4,4)}, {v(d,16)}")
        A.e(f"{MF32} {v(d,16)}, {v(tim,4)}, {v(CS,4)}, {v(d,16)}")
        A.e(f"{MF32} {v(d,16)}, {v(tim+4,4)}, {v(CS+4,4)}, {v(d,16)}")
        A.e("s_mov_b32 s26, 0xffff0000")
        A.e(f"s_mov_b32 s44, {hex(f2u(2.0**-20))}\ns_mov_b32 s45, {hex(f2u(2.0**-20))}")
        hf, ST, HP, LP = DR + 16, 120, 4, 32
        for n in range(8):
            A.e(f"v_lshlrev_b32 {v(hf + 2*n)}, 16, {v(XR + n)}\nv_and_b32 {v(hf + 2*n + 1)}, s26, {v(XR + n)}")
        for n in range(8):
            A.e(f"v_pk_mul_f32 {v(d + 2*n,2)}, {v(d + 2*n,2)}, s[44:45]")
            if mimic:
                A.e(f"v_cvt_pk_bf16_f32 {v(W0)}, {v(d + 2*n)}, {v(d + 2*n + 1)}")
                A.e(f"v_lshlrev_b32 {v(d + 2*n)}, 16, {v(W0)}\nv_and_b32 {v(d + 2*n + 1)}, s26, {v(W0)}")
            A.e(f"v_pk_add_f32 {v(hf + 2*n,2)}, {v(hf + 2*n,2)}, {v(d + 2*n,2)}")
            A.e(f"v_cvt_pk_bf16_f32 {v(HP + n)}, {v(hf + 2*n)}, {v(hf + 2*n + 1)}")
            A.e(f"v_lshlrev_b32 {v(hf + 2*n)}, 16, {v(HP + n)}\nv_and_b32 {v(hf + 2*n + 1)}, s26, {v(HP + n)}")
        sp, qp = ST + 4, ST + 6
        A.e(f"v_pk_add_f32 {v(sp,2)}, {v(hf,2)}, {v(hf+2,2)}\nv_pk_mul_f32 {v(qp,2)}, {v(hf,2)}, {v(hf,2)}")
        for n in range(1, 8):
            if n >= 2: A.e(f"v_pk_add_f32 {v(sp,2)}, {v(sp,2)}, {v(hf+2*n,2)}")
            A.e(f"v_pk_fma_f32 {v(qp,2)}, {v(hf+2*n,2)}, {v(hf+2*n,2)}, {v(qp,2)}")
        A.e(f"v_add_f32 {v(ST)}, {v(sp)}, {v(sp+1)}\nv_add_f32 {v(ST+1)}, {v(qp)}, {v(qp+1)}")
        WA_, RA_, GA_ = 212, 216, 217
        A.e(f"s_lshl_b32 s22, s{SW}, 11\ns_add_u32 s22, s22, {LY}")
        A.e(f"v_and_b32 {v(T)}, 31, v0\nv_lshlrev_b32 {v(T+1)}, 6, {v(T)}\nv_lshrrev_b32 {v(T+2)}, 5, v0\nv_lshl_add_u32 {v(T+1)}, {v(T+2)}, 3, {v(T+1)}\nv_add_u32 {v(T+1)}, s22, {v(T+1)}")
        A.e(f"v_bfe_u32 {v(T)}, v0, 1, 2")
        for q in range(4):
            A.e(f"v_xor_b32 {v(T+2)}, {q}, {v(T)}\nv_lshl_add_u32 {v(WA_ + q)}, {v(T+2)}, 4, {v(T+1)}")
        A.e(f"v_lshrrev_b32 {v(T)}, 2, v0\nv_lshlrev_b32 {v(RA_)}, 6, {v(T)}\nv_bfe_u32 {v(T)}, v0, 3, 2\nv_and_b32 {v(T+1)}, 3, v0\nv_xor_b32 {v(T)}, {v(T)}, {v(T+1)}\nv_lshl_add_u32 {v(RA_)}, {v(T)}, 4, {v(RA_)}\nv_add_u32 {v(RA_)}, s22, {v(RA_)}")
        A.e(f"v_lshlrev_b32 {v(GA_)}, 4, v0")
        def row_store(src, srd, tmp):
            for q in range(4):
                A.e(f"ds_write_b64 {v(WA_ + q)}, {v(src + 2*q, 2)}")
            for n in range(2):
                A.e(f"ds_read_b128 {v(tmp + 4*n, 4)}, {v(RA_)} offset:{1024*n}")
            for n in range(2):
                A.e(f"s_waitcnt lgkmcnt({1 - n})")
                A.e(f"buffer_store_dwordx4 {v(tmp + 4*n, 4)}, {v(GA_)}, {s(srd,4)}, s18 offen offset:{1024*n} {SC}")
        row_store(HP, 12, 12)
        row_reduce(A, [ST, ST + 1], ST + 12)
        ln_stats(A, ST, ST + 1, D)
        A.e(f"v_sub_f32 {v(ST+4)}, 0, {v(ST)}\nv_mov_b32 {v(ST+5)}, {v(ST+4)}\nv_mov_b32 {v(ST+6)}, {v(ST+1)}\nv_mov_b32 {v(ST+7)}, {v(ST+1)}")
        for n in range(8):
            f = hf + 2*n
            A.e(f"v_pk_add_f32 {v(f,2)}, {v(f,2)}, {v(ST+4,2)}")
            if mimic:
                A.e(f"v_cvt_pk_bf16_f32 {v(W0)}, {v(f)}, {v(f+1)}")
                A.e(f"v_lshlrev_b32 {v(f)}, 16, {v(W0)}\nv_and_b32 {v(f+1)}, s26, {v(W0)}")
            A.e(f"v_pk_mul_f32 {v(f,2)}, {v(f,2)}, {v(ST+6,2)}")
            A.e(f"v_cvt_pk_bf16_f32 {v(LP + n)}, {v(f)}, {v(f+1)}")
        row_store(LP, 48, 12)

    def gemm_phase(self, G, b, tilemap, early, pre_last, epilogue, vb=1, ptail=None, cvb=3, idle=None):
        A = self.A
        skip = A.newlabel(G.name + "_skip"); cons = A.newlabel(G.name + "_cons"); end = A.newlabel(G.name + "_end")
        tilemap(skip)
        A.e(f"s_cmp_lt_u32 s{SW}, 4\ns_cbranch_scc1 {cons}")
        A.e(f"s_sub_u32 s25, s{SW}, 4")
        G.emit_producer_setup(0, vb)
        G.emit_producer_run(early=early if self.o.get("early", True) else None, gate=lambda: A.e("s_barrier"))
        if ptail: ptail()
        A.e(f"s_branch {end}")
        A.label(cons)
        G.emit_consumer_pre(0, cvb)
        self.poll(b)
        A.e("s_barrier")
        self.stamp(G.name + ".start")
        G.emit_consumer_run(pre_last)
        self.stamp(G.name + ".loop")
        epilogue()
        A.e(f"s_branch {end}")
        A.label(skip)
        if idle: idle()
        A.label(end)

    def tilemap_16x14(self, skip):
        A = self.A
        A.e("s_and_b32 s3, s2, 7\ns_lshr_b32 s29, s2, 3")
        A.e(f"s_cmp_ge_u32 s29, 28\ns_cbranch_scc1 {skip}")
        A.e("s_and_b32 s18, s3, 3\ns_lshl_b32 s18, s18, 2\ns_and_b32 s23, s29, 3\ns_add_u32 s18, s18, s23\ns_mov_b32 s40, s18\ns_lshl_b32 s18, s18, 7")
        A.e("s_lshr_b32 s17, s3, 2\ns_mul_i32 s17, s17, 7\ns_lshr_b32 s23, s29, 2\ns_add_u32 s17, s17, s23\ns_mov_b32 s41, s17\ns_lshl_b32 s17, s17, 7")

    ZP = 16

    def p4(self):
        A = self.A
        NS = self.o.get("NS1", 3)
        X = Op('ks', 256, F * 2, 4); X.segmap = FH * 2; X.xorfam = True
        Y = Op('kc', 128, D * 2, 8); Y.aux = SC
        G = Gemm(A, "g1", D, NS, X, Y, 2, 2)
        def tilemap(skip):
            self.tilemap_16x14(skip)
            srd_from(A, 4, PWIN, 0, D * F * 2)
            srd_from(A, 8, PWS, WS_LN2, S * D * 2)
        def idle():
            if not self.o.get("pf", True): return
            A.e("s_sub_u32 s23, s29, 28\ns_lshl_b32 s24, s3, 2\ns_add_u32 s23, s23, s24")
            A.e(f"v_lshl_add_u32 v4, s{SW}, 6, v0\nv_lshlrev_b32 v4, 4, v4")
            for ptr, nbytes in ((PWSP, S * S * 2), (PWOUT, FH * D * 2)):
                per = nbytes // 32; n = (per + 8191) // 8192
                srd_from(A, 56, ptr, 0, nbytes)
                lp = A.newlabel("pfl")
                A.e(f"s_mul_i32 s54, s23, {per}\ns_mov_b32 s55, {n}")
                A.label(lp)
                A.e(f"buffer_load_dwordx4 v[8:11], v4, s[56:59], s54 offen\ns_add_u32 s54, s54, 8192")
                A.e(f"s_waitcnt vmcnt({self.o.get('pfq', 6)})\ns_sub_u32 s55, s55, 1\ns_cmp_lg_u32 s55, 0\ns_cbranch_scc1 {lp}")
        def epi():
            TX, TY = G.TX, G.TY
            assert G.set0 == 16 and G.accb == 112, (G.set0, G.accb)
            ZP = self.ZP; T = 48
            A.e(f"s_mov_b32 s44, {f2u(GK1)}\ns_mov_b32 s45, {f2u(GK1)}\ns_mov_b32 s46, {f2u(GK2)}\ns_mov_b32 s47, {f2u(GK2)}")
            A.e(f"v_mov_b32 {v(T+8)}, s44\nv_mov_b32 {v(T+9)}, s45")
            SP = 64
            for n in range(16): A.e(f"v_mov_b32 {v(SP + n)}, 0")
            A.e("s_nop 3")
            def accq(i, j): return G.accb + 4 * (i * TY + j)
            def gelu(i, j):
                a0 = accq(i, j)
                for hh in (0, 2): A.e(f"v_pk_mul_f32 {v(T+hh,2)}, {v(a0+hh,2)}, {v(a0+hh,2)}")
                for hh in (0, 2): A.e(f"v_pk_fma_f32 {v(T+hh,2)}, {v(T+hh,2)}, s[46:47], {v(T+8,2)}")
                for hh in (0, 2): A.e(f"v_pk_mul_f32 {v(T+hh,2)}, {v(T+hh,2)}, {v(a0+hh,2)}")
                for r in range(4): A.e(f"v_exp_f32 {v(T+r)}, {v(T+r)}")
                A.e("s_nop 0")
                for hh in (0, 2): A.e(f"v_pk_add_f32 {v(T+hh,2)}, {v(T+hh,2)}, 1.0 op_sel_hi:[1,0]")
                for r in range(4): A.e(f"v_rcp_f32 {v(T+r)}, {v(T+r)}")
                A.e("s_nop 0")
                for hh in (0, 2): A.e(f"v_pk_mul_f32 {v(a0+hh,2)}, {v(a0+hh,2)}, {v(T+hh,2)}")
            for j in range(TY):
                for i in range(4, 8):
                    gelu(i, j)
                    a0 = accq(i, j)
                    for hh in (0, 2):
                        A.e(f"v_pk_add_f32 {v(SP + 2*j, 2)}, {v(SP + 2*j, 2)}, {v(a0+hh,2)}")
                        A.e(f"v_pk_fma_f32 {v(SP + 8 + 2*j, 2)}, {v(a0+hh,2)}, {v(a0+hh,2)}, {v(SP + 8 + 2*j, 2)}")
            R = 80; vt, va = 96, 97
            for j in range(TY):
                A.e(f"v_add_f32 {v(R + j)}, {v(SP + 2*j)}, {v(SP + 2*j + 1)}")
                A.e(f"v_add_f32 {v(R + 4 + j)}, {v(SP + 8 + 2*j)}, {v(SP + 8 + 2*j + 1)}")
            group_reduce(A, [R + n for n in range(8)], R + 8)
            A.e(f"v_lshrrev_b32 {v(vt)}, 4, v0")
            for j in range(1, 4):
                A.e(f"v_cmp_eq_u32 vcc, {j}, {v(vt)}\ns_nop 1")
                A.e(f"v_cndmask_b32 {v(R)}, {v(R)}, {v(R + j)}, vcc")
                A.e(f"v_cndmask_b32 {v(R + 4)}, {v(R + 4)}, {v(R + 4 + j)}, vcc")
            A.e(f"v_mov_b32 {v(R + 1)}, {v(R + 4)}")
            srd_from(A, 36, PWS, WS_ST, 524288)
            A.e(f"s_lshl_b32 s23, s40, 1\ns_add_u32 s23, s23, s28\ns_mul_i32 s23, s23, {28 * 512}")
            A.e("s_lshl_b32 s24, s41, 1\ns_add_u32 s24, s24, s27\ns_lshl_b32 s24, s24, 9\ns_add_u32 s24, s24, s23")
            VL = 1
            A.e(f"v_lshlrev_b32 v1, 3, v0")
            A.e(f"buffer_store_dwordx2 {v(R,2)}, v1, s[36:39], s24 offen {SC}")
            self.stamp("g1.z2")
            for j in range(TY):
                for i in range(4):
                    gelu(i, j)
                    a0 = accq(i, j); z = ZP + 2 * (4 * j + i)
                    A.e(f"v_cvt_pk_bf16_f32 {v(z)}, {v(a0)}, {v(a0+1)}\nv_cvt_pk_bf16_f32 {v(z+1)}, {v(a0+2)}, {v(a0+3)}")
            self.stamp("g1.z1")
            A.e("v_and_b32 v2, 31, v0\nv_min_u32 v2, 27, v2\nv_lshlrev_b32 v2, 9, v2")
            Q = 56
            pl = A.newlabel("g1poll"); pd = A.newlabel("g1polld"); pf = A.newlabel("g1fetch")
            A.e("s_mov_b32 s42, 0x20000\ns_add_u32 s48, s23, 4096\ns_add_u32 s49, s23, 8192\ns_add_u32 s50, s23, 12288")
            A.label(pl)
            A.e(f"buffer_load_dword {v(Q)}, v2, s[36:39], s23 offen offset:504 {SC}\ns_waitcnt vmcnt(0)")
            A.e(f"v_cmp_eq_u32 vcc, -1, {v(Q)}")
            A.e(f"s_sub_u32 s42, s42, 1\ns_cbranch_scc1 {pf}")
            A.e(f"s_cmp_eq_u64 vcc, 0\ns_cbranch_scc1 {pf}")
            A.e(f"s_sleep 1\ns_branch {pl}")
            A.label(pf)
            for p in range(28):
                so = ("s23", "s48", "s49", "s50")[p >> 3]
                A.e(f"buffer_load_dwordx2 {v(Q + 2*p, 2)}, v1, s[36:39], {so} offen offset:{512 * (p & 7)} {SC}")
            A.e("s_waitcnt vmcnt(0)")
            A.e(f"v_max_u32 v3, {v(Q)}, {v(Q+1)}")
            for n in range(2, 56, 2):
                A.e(f"v_max3_u32 v3, v3, {v(Q+n)}, {v(Q+n+1)}")
            A.e(f"v_cmp_eq_u32 vcc, -1, v3")
            A.e(f"s_sub_u32 s42, s42, 1\ns_cbranch_scc1 {pd}")
            A.e(f"s_cmp_eq_u64 vcc, 0\ns_cbranch_scc0 {pl}")
            A.label(pd)
            self.stamp("g1.xchg")
            n = 28
            while n > 1:
                hi = n // 2
                for p in range(hi):
                    A.e(f"v_pk_add_f32 {v(Q + 2*p, 2)}, {v(Q + 2*p, 2)}, {v(Q + 2*(n - 1 - p), 2)}")
                n -= hi
            m, q = Q, Q + 1
            A.e(f"s_mov_b32 s44, {f2u(1.0 / FH)}\ns_mov_b32 s45, {f2u(1e-5)}")
            A.e(f"v_mul_f32 {v(m)}, s44, {v(m)}\nv_mul_f32 {v(q)}, s44, {v(q)}")
            A.e(f"v_fma_f32 {v(q)}, -{v(m)}, {v(m)}, {v(q)}\nv_max_f32 {v(q)}, 0, {v(q)}")
            bf16_round(A, m); bf16_round(A, q)
            A.e(f"v_add_f32 {v(q)}, s45, {v(q)}")
            bf16_round(A, q)
            A.e(f"v_sqrt_f32 {v(q)}, {v(q)}\ns_nop 0")
            bf16_round(A, q)
            A.e(f"v_rcp_f32 {v(q)}, {v(q)}\ns_nop 0")
            A.e(f"v_sub_f32 {v(m)}, 0, {v(m)}")
            SP2 = 64
            for (src, dstb) in ((m, SP2), (q, SP2 + 8)):
                a, b_, a2, b2 = dstb, dstb + 2, dstb + 4, dstb + 6
                A.e(f"v_mov_b32 {v(a)}, {v(src)}\nv_mov_b32 {v(b_)}, {v(src)}\ns_nop 1")
                A.e(f"v_permlane16_swap_b32 {v(a)}, {v(b_)}")
                A.e(f"v_mov_b32 {v(a2)}, {v(a)}\nv_mov_b32 {v(b2)}, {v(b_)}\ns_nop 1")
                A.e(f"v_permlane32_swap_b32 {v(a)}, {v(a2)}\nv_permlane32_swap_b32 {v(b_)}, {v(b2)}")
                for x in (a, b_, a2, b2): A.e(f"v_mov_b32 {v(x + 1)}, {v(x)}")
            PK = 80
            def pk(i, j): return PK + 2 * (4 * j + i)
            srd_from(A, 12, PWS, WS_Z2, S * FH * 2)
            va2, T2 = 4, 6
            lane_out_offset(A, va2, va2 + 1, 18, 17, 28, 27, TY, 4, FH * 2)
            for j in range(TY):
                for i in range(4):
                    a0 = accq(i + 4, j)
                    for hh in (0, 2):
                        A.e(f"v_pk_add_f32 {v(a0+hh,2)}, {v(a0+hh,2)}, {v(SP2 + 2*j, 2)}")
                        A.e(f"v_pk_mul_f32 {v(a0+hh,2)}, {v(a0+hh,2)}, {v(SP2 + 8 + 2*j, 2)}")
                    A.e(f"v_cvt_pk_bf16_f32 {v(pk(i,j))}, {v(a0)}, {v(a0+1)}\nv_cvt_pk_bf16_f32 {v(pk(i,j)+1)}, {v(a0+2)}, {v(a0+3)}")
            swap_store(A, G, pk, T2, va2, 12, FH * 2, 4, TY, aux=SC)
        self.gemm_phase(G, 3, tilemap, X, None, epi, idle=idle)

    def p5(self):
        A = self.A
        NS = self.o.get("NS2", 4)
        X = Op('ks', 128, FH * 2, 4); Y = Op('kc', 128, S * 2, 8); X.aux = SC
        G = Gemm(A, "g2", S, NS, X, Y, 2, 2)
        st = {}
        def tilemap(skip):
            self.tilemap_16x14(skip)
            srd_from(A, 4, PWS, WS_Z2, S * FH * 2)
            srd_from(A, 8, PWSP, 0, S * S * 2)
        def pre_last():
            ZB = G.vend
            srd_from(A, 36, PBSP, 0, S * 2)
            vb_ = ZB + 5
            A.e(f"s_lshl_b32 s23, s28, 6\ns_add_u32 s23, s23, s18")
            A.e(f"v_and_b32 {v(vb_)}, 15, v0\nv_add_u32 {v(vb_)}, s23, {v(vb_)}\nv_lshlrev_b32 {v(vb_)}, 1, {v(vb_)}")
            for j in range(4):
                A.e(f"buffer_load_ushort {v(ZB + j)}, {v(vb_)}, s[36:39], 0 offen offset:{32 * j}")
        def epi():
            ZB = G.vend; va = ZB + 4; T = ZB + 8; ZP = self.ZP
            srd_from(A, 12, PWS, WS_P, S * FH * 2)
            lane_out_offset(A, va, va + 1, 18, 17, 28, 27, 4, 4, FH * 2)
            A.e("s_waitcnt vmcnt(0)\ns_mov_b32 s26, 0xffff0000")
            for j in range(4): A.e(f"v_lshlrev_b32 {v(ZB + j)}, 16, {v(ZB + j)}")
            for j in range(4):
                for i in range(4):
                    a0 = G.accb + 4 * (i * 4 + j); z = ZP + 2 * (4 * j + i); bj = ZB + j
                    for r in range(4): A.e(f"v_add_f32 {v(a0 + r)}, {v(a0 + r)}, {v(bj)}")
                    A.e(f"v_lshlrev_b32 {v(T)}, 16, {v(z)}\nv_and_b32 {v(T+1)}, s26, {v(z)}")
                    A.e(f"v_lshlrev_b32 {v(T+2)}, 16, {v(z+1)}\nv_and_b32 {v(T+3)}, s26, {v(z+1)}")
                    A.e(f"v_pk_mul_f32 {v(a0,2)}, {v(a0,2)}, {v(T,2)}\nv_pk_mul_f32 {v(a0+2,2)}, {v(a0+2,2)}, {v(T+2,2)}")
                    A.e(f"v_cvt_pk_bf16_f32 {v(z)}, {v(a0)}, {v(a0+1)}\nv_cvt_pk_bf16_f32 {v(z+1)}, {v(a0+2)}, {v(a0+3)}")
            swap_store(A, G, lambda i, j: ZP + 2 * (4 * j + i), T, va, 12, FH * 2, 4, 4, aux=SC)
        self.gemm_phase(G, 4, tilemap, Y, pre_last, epi, cvb=48)

    def p6(self):
        A = self.A
        NS = self.o.get("NS3", 4); BN = 64
        X = Op('ks', BN, D * 2, 4); Y = Op('kc', 128, FH * 2, 8); Y.aux = SC
        G = Gemm(A, "g3", FH, NS, X, Y, 2, 2)
        TX, TY = G.TX, G.TY
        st = {}; nq = TX * TY
        def tilemap(skip):
            A.e("s_and_b32 s3, s2, 7\ns_lshr_b32 s29, s2, 3")
            A.e("s_and_b32 s18, s3, 3\ns_lshl_b32 s18, s18, 2\ns_and_b32 s23, s29, 3\ns_add_u32 s18, s18, s23\ns_lshl_b32 s18, s18, 7")
            A.e(f"s_lshr_b32 s17, s3, 2\ns_mul_i32 s17, s17, 8\ns_lshr_b32 s23, s29, 2\ns_add_u32 s17, s17, s23\ns_mul_i32 s17, s17, {BN}")
            srd_from(A, 4, PWOUT, 0, FH * D * 2)
            srd_from(A, 8, PWS, WS_P, S * FH * 2)
        def pre_last():
            ZB = st['ZB'] = G.vend
            srd_from(A, 12, PWS, WS_H, S * D * 2)
            va, vb_ = ZB + 2 * nq, ZB + 2 * nq + 1
            lane_out_offset(A, va, vb_, 18, 17, 28, 27, TY, TX, D * 2)
            for j in range(TY):
                A.e(f"s_mov_b32 s24, {16 * j * D * 2}")
                for i in range(TX):
                    A.e(f"buffer_load_dwordx2 {v(ZB + 2 * (TX * j + i), 2)}, {v(va)}, s[12:15], s24 offen offset:{32 * i} {SC}")
        def epi():
            ZB = st['ZB']; va = ZB + 2 * nq
            srd_from(A, 12, POUT, 0, S * D * 2)
            A.e("s_nop 7\ns_waitcnt vmcnt(0)\ns_mov_b32 s26, 0xffff0000")
            T = (va + 2 + 1) // 2 * 2
            for j in range(TY):
                for i in range(TX):
                    a0 = G.accb + 4 * (i * TY + j); z = ZB + 2 * (TX * j + i)
                    A.e(f"v_lshlrev_b32 {v(T)}, 16, {v(z)}\nv_and_b32 {v(T+1)}, s26, {v(z)}")
                    A.e(f"v_lshlrev_b32 {v(T+2)}, 16, {v(z+1)}\nv_and_b32 {v(T+3)}, s26, {v(z+1)}")
                    A.e(f"v_pk_add_f32 {v(a0,2)}, {v(a0,2)}, {v(T,2)}\nv_pk_add_f32 {v(a0+2,2)}, {v(a0+2,2)}, {v(T+2,2)}")
                    A.e(f"v_cvt_pk_bf16_f32 {v(z)}, {v(a0)}, {v(a0+1)}\nv_cvt_pk_bf16_f32 {v(z+1)}, {v(a0+2)}, {v(a0+3)}")
            swap_store(A, G, lambda i, j: ZB + 2 * (TX * j + i), T, va, 12, D * 2, TX, TY)
        self.gemm_phase(G, 5, tilemap, X, pre_last, epi)

    def build(self, name):
        A = self.A
        kernel_header(A, name)
        done = "L_done"
        A.e("s_load_dwordx4 s[80:83], s[0:1], 0\ns_load_dwordx2 s[84:85], s[0:1], 16\ns_load_dwordx8 s[88:95], s[0:1], 32")
        A.e("s_load_dwordx4 s[96:99], s[0:1], 64\ns_load_dwordx2 s[30:31], s[0:1], 80")
        A.e(f"s_cmp_ge_u32 s2, 256\ns_cbranch_scc1 {done}")
        A.e(f"v_mov_b32 v1, v0\nv_lshrrev_b32 v2, 6, v0\nv_and_b32 v0, 63, v0\ns_nop 0\nv_readfirstlane_b32 s{SW}, v2")
        if self.stamps: A.e("v_mov_b32 v255, 0")
        A.e("s_waitcnt lgkmcnt(0)")
        self.stamp("start")
        self.p1(); self.stamp("p1.end")
        self.arrive(1); self.stamp("p1.arrived")
        self.p2_pre(); self.stamp("p2.pre"); self.wait(1); self.stamp("b1")
        self.p2(); self.stamp("p2.end")
        self.arrive(2, nowait_ge=6); self.stamp("p2.arrived")
        self.p3_pre(); self.stamp("p3.pre"); self.wait(2); self.stamp("b2")
        self.p3(); self.stamp("p3.end")
        self.arrive(3); self.stamp("p3.arrived")
        self.p4(); self.stamp("p4.end")
        self.arrive(4); self.stamp("p4.arrived")
        self.p5(); self.stamp("p5.end")
        self.arrive(5); self.stamp("p5.arrived")
        self.p6()
        if self.stamps: A.e("s_waitcnt vmcnt(0)")
        self.stamp("p6.end")
        self.stamp_flush()
        A.label(done)
        A.e("s_endpgm")

HEADER = """Spectral (GFNet) block + gMLP block: one persistent gfx950 kernel (256 workgroups, one per CU), text emitted by the author's own generator scripts.
Kernarg: 0 A_x, 8 A_w_r, 16 A_w_i, 24 B_x (unused by the reference), 32 B_w_in, 40 B_w_sp, 48 B_b_sp, 56 B_w_out, 64 out, 72 debug, 80 ws
phase 1: LayerNorm + 1024-pt real FFT per row (32x32 MFMA DFT stages) + radix-8 step of the 2048-pt column FFT; re-tiles W
phase 2: 256-pt column FFT (16x16), multiply by W, inverse 256-pt FFT
phase 3: inverse radix-8 step, inverse 1024-pt real FFT, residual, LayerNorm
phase 4: z = gelu(ln2 @ w_in); LayerNorm of the second half (row statistics exchanged between workgroups)
phase 5: P = z1 * (w_sp @ z2n + b_sp)
phase 6: out = h + P @ w_out
Phases are separated by grid barriers (arrival counters: debug buffer for the first, workspace lines cleared in phase 1 for the others)."""
NAME = "sequential_preLN__spectral_gfnet__mixer_gmlp__prompt_kernel"

def build(opts=None):
    opts = opts or {}
    m = Mega(opts)
    m.build(NAME)
    lds = 163840
    out = ["; " + l for l in HEADER.split("\n")]
    out.append(f"; @launch grid=(256,1,1) block=(512,1,1) lds={lds}")
    out.append('.amdgcn_target "amdgcn-amd-amdhsa--gfx950"')
    out.append(".text")
    t = "\n".join(out) + "\n" + m.A.text() + '.section .rodata,"a"\n' + kernel_desc(NAME, 256)
    return t, m.stamp_names

if __name__ == "__main__":
    opts = json.loads(sys.argv[2]) if len(sys.argv) > 2 else {}
    t, names = build(opts)
    open(sys.argv[1], "w").write(t)
    print("bytes", len(t), "stamps", names)
```

```python
from asmlib import *
from banks import cycles

KS = 64

def sigma(RB, k):
    if RB in (256, 512): return (k & 3) | (((k >> 3) & 1) << 2)
    if RB == 448: return (k >> 3) & 1
    if RB == 128: return ((k >> 1) & 1) | (((k >> 3) & 1) << 1)
    raise ValueError(RB)

class Op:
    def __init__(self, kind, R, stride, srd):
        self.kind, self.R, self.stride, self.srd = kind, R, stride, srd
        self.bytes = R * KS * 2
        self.ndma = self.bytes // 1024
        self.RB = 2 * R if kind == 'ks' else 128
    def read_addr(self, lane, idx0, t, h, rd=0):
        if self.kind == 'kc':
            row = idx0 + 16 * t + (lane & 15)
            return row * 128 + (((4 * h + (lane >> 4)) ^ ((row >> 1) & 7)) * 16)
        G, r, c = lane >> 4, (lane >> 2) & 3, lane & 3
        k = 32 * h + 8 * G + 4 * rd + r
        u = idx0 // 16 + t
        return k * self.RB + ((2 * u + (c >> 1)) ^ (sigma(self.RB, k) << 1)) * 16 + (c & 1) * 8

def check_conflicts(op, origins, T):
    for idx0 in origins:
        for t in range(T):
            for h in range(2):
                if op.kind == 'kc':
                    a = [op.read_addr(l, idx0, t, h) for l in range(64)]
                    assert cycles(a, 'b128') == 4
                else:
                    for rd in range(2):
                        a = [op.read_addr(l, idx0, t, h, rd) for l in range(64)]
                        assert cycles(a, 'tr_b64') == 2, (op.RB, idx0, t, h, rd, cycles(a, 'tr_b64'))

class Gemm:
    def __init__(self, A, name, Ktot, NS, X, Y, WX, WY, mode='pc', no_mfma=False, no_dma=False, no_read=False, lds0=0, shadow=True, prio=0):
        self.A, self.name, self.Ktot, self.NS, self.X, self.Y = A, name, Ktot, NS, X, Y
        self.WX, self.WY = WX, WY
        self.TX = X.R // 16 // WX
        self.TY = Y.R // 16 // WY
        self.nst = Ktot // KS
        self.slot = X.bytes + Y.bytes
        self.mode = mode
        self.lds0 = lds0
        self.shadow = shadow
        self.prio = prio
        self.no_mfma, self.no_dma, self.no_read = no_mfma, no_dma, no_read
        self.nd = X.ndma + Y.ndma
        assert self.nd % 4 == 0
        self.P = self.nd // 4
        check_conflicts(X, [16 * self.TX * w for w in range(WX)], self.TX)
        check_conflicts(Y, [16 * self.TY * w for w in range(WY)], self.TY)
        assert self.NS * self.slot <= 163840

    S_WAVE, S_X0, S_Y0, S_SOX, S_SOY, S_SLOT, S_CNT, S_T0, S_T1, S_LW = 16, 17, 18, 19, 20, 21, 22, 23, 24, 25

    def emit_dma_setup(self, vb, lane):
        A = self.A
        t0, t1, t2 = vb + self.P, vb + self.P + 1, vb + self.P + 2
        self.pieces = []
        X, Y = self.X, self.Y
        assert X.ndma % 4 == 0 and Y.ndma % 4 == 0
        n = 0
        for op in (X, Y):
            for jj in range(op.ndma // 4):
                dst = vb + n
                if getattr(op, 'tiled', False):
                    A.e(f"s_lshl_b32 {s(self.S_T0)}, {s(self.S_LW)}, 10")
                    A.e(f"s_add_u32 {s(self.S_T0)}, {s(self.S_T0)}, {4096 * jj}")
                    A.e(f"v_lshlrev_b32 {v(t0)}, 4, {v(lane)}")
                    A.e(f"v_add_u32 {v(dst)}, {s(self.S_T0)}, {v(t0)}")
                elif op.kind == 'kc':
                    A.e(f"s_and_b32 {s(self.S_T0)}, {s(self.S_LW)}, 1")
                    A.e(f"s_lshl_b32 {s(self.S_T0)}, {s(self.S_T0)}, 2")
                    A.e(f"v_lshrrev_b32 {v(t0)}, 4, {v(lane)}")
                    A.e(f"v_xor_b32 {v(t0)}, {s(self.S_T0)}, {v(t0)}")
                    A.e(f"v_and_b32 {v(t1)}, 7, {v(lane)}")
                    A.e(f"v_xor_b32 {v(t0)}, {v(t0)}, {v(t1)}")
                    A.e(f"v_lshlrev_b32 {v(t0)}, 4, {v(t0)}")
                    A.e(f"s_lshl_b32 {s(self.S_T0)}, {s(self.S_LW)}, 3")
                    A.e(f"s_add_u32 {s(self.S_T0)}, {s(self.S_T0)}, {32 * jj}")
                    A.e(f"v_lshrrev_b32 {v(t1)}, 3, {v(lane)}")
                    A.e(f"v_add_u32 {v(t1)}, {s(self.S_T0)}, {v(t1)}")
                    A.e(f"s_mov_b32 {s(self.S_T1)}, {op.stride}")
                    A.e(f"v_mul_lo_u32 {v(t1)}, {v(t1)}, {s(self.S_T1)}")
                    A.e(f"v_add_u32 {v(dst)}, {v(t0)}, {v(t1)}")
                else:
                    CPR = op.RB // 16
                    A.e(f"s_lshl_b32 {s(self.S_T0)}, {s(self.S_LW)}, 6")
                    A.e(f"s_add_u32 {s(self.S_T0)}, {s(self.S_T0)}, {256 * jj}")
                    A.e(f"v_add_u32 {v(t0)}, {s(self.S_T0)}, {v(lane)}")
                    if CPR & (CPR - 1) == 0:
                        sh = CPR.bit_length() - 1
                        A.e(f"v_lshrrev_b32 {v(t1)}, {sh}, {v(t0)}")
                        A.e(f"v_and_b32 {v(t0)}, {CPR - 1}, {v(t0)}")
                    else:
                        magic = (65536 + CPR - 1) // CPR
                        for p in range(64 * op.ndma):
                            assert (p * magic) >> 16 == p // CPR
                        A.e(f"v_mul_u32_u24 {v(t1)}, {magic}, {v(t0)}")
                        A.e(f"v_lshrrev_b32 {v(t1)}, 16, {v(t1)}")
                        A.e(f"v_mul_u32_u24 {v(t2)}, {CPR}, {v(t1)}")
                        A.e(f"v_sub_u32 {v(t0)}, {v(t0)}, {v(t2)}")
                    if op.RB in (256, 512):
                        A.e(f"v_and_b32 {v(t2)}, 3, {v(t1)}")
                        A.e(f"v_lshlrev_b32 {v(t2)}, 1, {v(t2)}")
                        A.e(f"v_xor_b32 {v(t0)}, {v(t0)}, {v(t2)}")
                        A.e(f"v_and_b32 {v(t2)}, 8, {v(t1)}")
                        A.e(f"v_xor_b32 {v(t0)}, {v(t0)}, {v(t2)}")
                    elif op.RB == 448:
                        A.e(f"v_lshrrev_b32 {v(t2)}, 2, {v(t1)}")
                        A.e(f"v_and_b32 {v(t2)}, 2, {v(t2)}")
                        A.e(f"v_xor_b32 {v(t0)}, {v(t0)}, {v(t2)}")
                    elif op.RB == 128:
                        A.e(f"v_and_b32 {v(t2)}, 2, {v(t1)}")
                        A.e(f"v_xor_b32 {v(t0)}, {v(t0)}, {v(t2)}")
                        A.e(f"v_lshrrev_b32 {v(t2)}, 1, {v(t1)}")
                        A.e(f"v_and_b32 {v(t2)}, 4, {v(t2)}")
                        A.e(f"v_xor_b32 {v(t0)}, {v(t0)}, {v(t2)}")
                    if getattr(op, 'segmap', None):
                        A.e(f"v_bfe_u32 {v(t2)}, {v(t0)}, 3, 1\nv_mul_u32_u24 {v(t2)}, {op.segmap}, {v(t2)}")
                        A.e(f"v_bfe_u32 {v(dst)}, {v(t0)}, 4, 1\nv_lshl_add_u32 {v(t2)}, {v(dst)}, 7, {v(t2)}")
                        A.e(f"v_and_b32 {v(t0)}, 7, {v(t0)}\nv_lshl_add_u32 {v(t0)}, {v(t0)}, 4, {v(t2)}")
                    else:
                        A.e(f"v_lshlrev_b32 {v(t0)}, 4, {v(t0)}")
                    A.e(f"s_mov_b32 {s(self.S_T1)}, {op.stride}")
                    A.e(f"v_mul_lo_u32 {v(t1)}, {v(t1)}, {s(self.S_T1)}")
                    A.e(f"v_add_u32 {v(dst)}, {v(t0)}, {v(t1)}")
                ldsoff = (0 if op is X else X.bytes) + 4096 * jj
                self.pieces.append((op, dst, ldsoff))
                n += 1

    def emit_dma_stage(self, sslot, only=None):
        groups = []
        for (op, vo, ldsoff) in self.pieces:
            if only is not None and op is not only: continue
            so = self.S_SOX if op is self.X else self.S_SOY
            aux = getattr(op, 'aux', '')
            g = [f"s_add_u32 m0, {s(sslot)}, {self.lds0 + ldsoff}", "s_nop 0",
                 f"buffer_load_dwordx4 {v(vo)}, {s(op.srd, 4)}, {s(so)} offen {aux} lds"]
            if self.no_dma: g = []
            groups.append(g)
        adv = []
        if only is None or only is self.X: adv.append(f"s_add_u32 {s(self.S_SOX)}, {s(self.S_SOX)}, {self.advX}")
        if only is None or only is self.Y: adv.append(f"s_add_u32 {s(self.S_SOY)}, {s(self.S_SOY)}, {self.advY}")
        return groups, adv

    def adv(self, op):
        if getattr(op, 'tiled', False): return op.bytes
        return 128 if op.kind == 'kc' else KS * op.stride
    @property
    def advX(self): return self.adv(self.X)
    @property
    def advY(self): return self.adv(self.Y)

    def emit_soff_init(self):
        A = self.A
        for op, so, o in ((self.X, self.S_SOX, self.S_X0), (self.Y, self.S_SOY, self.S_Y0)):
            if getattr(op, 'tiled', False):
                A.e(f"s_mul_i32 {s(so)}, {s(o)}, {self.nst * op.bytes // op.R}")
            elif op.kind == 'kc':
                A.e(f"s_mul_i32 {s(so)}, {s(o)}, {op.stride}")
            else:
                A.e(f"s_lshl_b32 {s(so)}, {s(o)}, 1")

    def slot_next(self, sreg):
        return [f"s_add_u32 {s(sreg)}, {s(sreg)}, {self.slot}",
                f"s_cmp_ge_u32 {s(sreg)}, {s(self.S_T1)}",
                f"s_cselect_b32 {s(self.S_T0)}, {self.NS * self.slot}, 0",
                f"s_sub_u32 {s(sreg)}, {s(sreg)}, {s(self.S_T0)}"]

    def emit_producer_setup(self, lane, vb):
        A = self.A
        self.emit_dma_setup(vb, lane)
        self.emit_soff_init()
        SL = self.S_SLOT
        A.e(f"s_lshl_b32 {s(SL)}, {s(self.S_LW)}, 10")
        A.e(f"s_add_u32 {s(26)}, {s(SL)}, {self.NS * self.slot}")

    def _pstage(self, only=None):
        A, SL = self.A, self.S_SLOT
        groups, adv = self.emit_dma_stage(SL, only)
        for g in groups:
            for ln in g: A.e(ln)
        for ln in adv: A.e(ln)
        A.e(f"s_add_u32 {s(SL)}, {s(SL)}, {self.slot}")
        A.e(f"s_cmp_ge_u32 {s(SL)}, {s(26)}")
        A.e(f"s_cselect_b32 {s(self.S_T0)}, {self.NS * self.slot}, 0")
        A.e(f"s_sub_u32 {s(SL)}, {s(SL)}, {s(self.S_T0)}")

    def emit_producer_run(self, early=None, gate=None):
        A, P, NS, nst = self.A, self.P, self.NS, self.nst
        npro = min(NS, nst)
        assert npro == NS
        if early is None:
            if gate: gate()
            for i in range(npro): self._pstage()
            PL = P
        else:
            late = self.Y if early is self.X else self.X
            for i in range(npro): self._pstage(early)
            if gate: gate()
            for i in range(npro): self._pstage(late)
            PL = late.ndma // 4
        if self.no_dma: PL = P = 0
        A.e(f"s_waitcnt vmcnt({(npro - 1) * PL})")
        A.e("s_barrier")
        nsteady = nst - NS
        peel = min(NS - 1, nsteady) if early is not None else 0
        for b in range(1, peel + 1):
            A.e(f"s_waitcnt vmcnt({(npro - 1 - b) * PL + (b - 1) * P})")
            A.e("s_barrier")
            self._pstage()
        if nsteady - peel > 0:
            lp = A.newlabel(self.name + "_pl")
            A.e(f"s_mov_b32 {s(self.S_CNT)}, {nsteady - peel}")
            A.label(lp)
            A.e(f"s_waitcnt vmcnt({(NS - 2) * P})")
            A.e("s_barrier")
            self._pstage()
            A.e(f"s_sub_u32 {s(self.S_CNT)}, {s(self.S_CNT)}, 1")
            A.e(f"s_cmp_lg_u32 {s(self.S_CNT)}, 0")
            A.e(f"s_cbranch_scc1 {lp}")
        for b in range(nsteady + 1, nst):
            left = nst - 1 - b
            A.e(f"s_waitcnt vmcnt({min(left, NS - 2) * P})")
            A.e("s_barrier")

    def emit_producer(self, lane, vb):
        self.emit_producer_setup(lane, vb)
        self.emit_producer_run()

    def emit_consumer_setup(self, lane, vb):
        A, X, Y = self.A, self.X, self.Y
        self.addr = {}
        self.abase = []
        SWX, SWY = 27, 28
        A.e(f"s_and_b32 {s(SWX)}, {s(self.S_WAVE)}, {self.WX - 1}")
        A.e(f"s_lshr_b32 {s(SWY)}, {s(self.S_WAVE)}, {self.WX.bit_length() - 1}")
        nxt = vb
        t0, t1, t2, t3 = 0, 0, 0, 0
        plan = []
        for nm, op, T, W in (('X', X, self.TX, self.WX), ('Y', Y, self.TY, self.WY)):
            origins = [16 * T * w for w in range(W)]
            keys = []
            for t in range(T):
                for h in range(2):
                    for rd in (range(2) if op.kind == 'ks' else [0]):
                        vec = [[op.read_addr(l, o, t, h, rd) for l in range(64)] for o in origins]
                        found = None
                        if getattr(op, 'xorfam', False) and t > 0:
                            r0, d0 = self.addr[(nm, 0, h, rd)]
                            v0_ = [[op.read_addr(l, o, 0, h, rd) for l in range(64)] for o in origins]
                            assert all(vec[w][l] == (v0_[w][l] ^ (t << 5)) for w in range(W) for l in range(64))
                            self.addr[(nm, t, h, rd)] = (('x', r0, t), d0)
                            continue
                        for (kv, reg) in keys:
                            d = vec[0][0] - kv[0][0]
                            if d >= 0 and all(vec[w][l] - kv[w][l] == d for w in range(W) for l in range(64)):
                                found = (reg, d); break
                        if found is None:
                            reg = len(plan)
                            plan.append((nm, op, t, h, rd))
                            keys.append((vec, reg))
                            found = (reg, 0)
                        self.addr[(nm, t, h, rd)] = found
        nreg = len(plan)
        base0 = vb; cur0 = vb + nreg
        self.xor = {}
        for key, (reg, d) in list(self.addr.items()):
            if isinstance(reg, tuple):
                if (reg[1], reg[2]) not in self.xor: self.xor[(reg[1], reg[2])] = nreg + len(self.xor)
                self.addr[key] = (self.xor[(reg[1], reg[2])], d)
        tmp = vb + 2 * nreg + len(self.xor)
        a, b, c = tmp, tmp + 1, tmp + 2
        for i, (nm, op, t, h, rd) in enumerate(plan):
            dst = base0 + i
            T = self.TX if nm == 'X' else self.TY
            sw = SWX if nm == 'X' else SWY
            opoff = 0 if nm == 'X' else X.bytes
            if op.kind == 'kc':
                A.e(f"v_and_b32 {v(a)}, 15, {v(lane)}")
                A.e(f"v_lshrrev_b32 {v(b)}, 1, {v(a)}")
                A.e(f"v_lshrrev_b32 {v(c)}, 4, {v(lane)}")
                A.e(f"v_xor_b32 {v(b)}, {v(b)}, {v(c)}")
                if h: A.e(f"v_xor_b32 {v(b)}, 4, {v(b)}")
                A.e(f"v_lshlrev_b32 {v(b)}, 4, {v(b)}")
                A.e(f"v_lshlrev_b32 {v(a)}, 7, {v(a)}")
                A.e(f"v_add_u32 {v(a)}, {v(a)}, {v(b)}")
                A.e(f"s_mul_i32 {s(self.S_T0)}, {s(sw)}, {16 * T * 128}")
                A.e(f"s_add_u32 {s(self.S_T0)}, {s(self.S_T0)}, {opoff + t * 2048}")
                A.e(f"v_add_u32 {v(dst)}, {s(self.S_T0)}, {v(a)}")
            else:
                RB = op.RB
                A.e(f"v_lshrrev_b32 {v(a)}, 4, {v(lane)}")
                A.e(f"v_bfe_u32 {v(b)}, {v(lane)}, 2, 2")
                if RB in (256, 512):
                    A.e(f"v_and_b32 {v(c)}, 1, {v(a)}")
                    A.e(f"v_lshlrev_b32 {v(c)}, 2, {v(c)}")
                    A.e(f"v_or_b32 {v(c)}, {v(c)}, {v(b)}")
                elif RB == 448:
                    A.e(f"v_and_b32 {v(c)}, 1, {v(a)}")
                elif RB == 128:
                    A.e(f"v_and_b32 {v(c)}, 1, {v(a)}")
                    A.e(f"v_lshlrev_b32 {v(c)}, 1, {v(c)}")
                    A.e(f"v_lshrrev_b32 {v(dst)}, 1, {v(b)}")
                    A.e(f"v_or_b32 {v(c)}, {v(c)}, {v(dst)}")
                A.e(f"v_lshl_add_u32 {v(a)}, {v(a)}, 3, {v(b)}")
                A.e(f"s_mov_b32 {s(self.S_T1)}, {RB}")
                A.e(f"v_mul_lo_u32 {v(a)}, {v(a)}, {s(self.S_T1)}")
                A.e(f"s_mul_i32 {s(self.S_T0)}, {s(sw)}, {T}")
                A.e(f"s_add_u32 {s(self.S_T0)}, {s(self.S_T0)}, {t}")
                A.e(f"v_xor_b32 {v(c)}, {s(self.S_T0)}, {v(c)}")
                A.e(f"v_lshlrev_b32 {v(c)}, 5, {v(c)}")
                A.e(f"v_add_u32 {v(a)}, {v(a)}, {v(c)}")
                A.e(f"v_and_b32 {v(b)}, 3, {v(lane)}")
                A.e(f"v_lshlrev_b32 {v(b)}, 3, {v(b)}")
                A.e(f"v_add_u32 {v(a)}, {v(a)}, {v(b)}")
                A.e(f"v_add_u32 {v(dst)}, {opoff + (32 * h + 4 * rd) * RB}, {v(a)}")
        self.nab = nreg; self.base0 = base0; self.cur0 = cur0
        return tmp

    def reads(self, setbase, h):
        out = []
        X, Y = self.X, self.Y
        def one(nm, op, t, dst):
            if op.kind == 'kc':
                reg, imm = self.addr[(nm, t, h, 0)]
                return [f"ds_read_b128 {v(dst, 4)}, {v(self.cur0 + reg)} offset:{imm}"]
            res = []
            for rd in range(2):
                reg, imm = self.addr[(nm, t, h, rd)]
                res.append(f"ds_read_b64_tr_b16 {v(dst + 2 * rd, 2)}, {v(self.cur0 + reg)} offset:{imm}")
            return res
        xs = [one('X', X, t, setbase + 4 * t) for t in range(self.TX)]
        ys = [one('Y', Y, t, setbase + 4 * self.TX + 4 * t) for t in range(self.TY)]
        order = []
        order += ys[0] + xs[0]
        rest = ys[1:]
        for y in rest: order += y
        for x in xs[1:]: order += x
        if self.no_read: return []
        return order

    def mfmas(self, setbase):
        out = []
        for i in range(self.TX):
            for j in range(self.TY):
                a0 = self.accb + 4 * (i * self.TY + j)
                out.append(f"v_mfma_f32_16x16x32_bf16 {v(a0,4)}, {v(setbase + 4*i, 4)}, {v(setbase + 4*self.TX + 4*j, 4)}, {v(a0,4)}")
        if self.no_mfma: return []
        return out

    def interleave(self, mf, other, per=1, start=0):
        A = self.A
        o = list(other)
        if not mf:
            for ln in o: A.e(ln)
            return
        for n, m in enumerate(mf):
            A.e(m)
            if n >= start:
                for _ in range(per):
                    if o: A.e(o.pop(0))
        for ln in o: A.e(ln)

    def cur_update(self):
        out = [f"v_add_u32 {v(self.cur0 + i)}, {s(self.S_SLOT)}, {v(self.base0 + i)}" for i in range(self.nab)]
        out += [f"v_xor_b32 {v(self.cur0 + x)}, {t << 5}, {v(self.cur0 + r)}" for (r, t), x in self.xor.items()]
        return out

    def emit_consumer_pre(self, lane, vb):
        A, NS = self.A, self.NS
        f = self.emit_consumer_setup(lane, vb)
        nfr = 4 * (self.TX + self.TY)
        set0 = (f + 3) // 4 * 4; set1 = set0 + nfr
        self.set0, self.set1 = set0, set1
        self.accb = set1 + nfr
        self.vend = self.accb + 4 * self.TX * self.TY
        for i in range(4 * self.TX * self.TY):
            A.e(f"v_mov_b32 {v(self.accb + i)}, 0")
        A.e(f"s_mov_b32 {s(self.S_SLOT)}, {self.lds0}")
        for ln in self.cur_update(): A.e(ln)

    def emit_consumer_run(self, pre_last=None):
        A, NS, nst = self.A, self.NS, self.nst
        set0, set1 = self.set0, self.set1
        SL = self.S_SLOT
        if self.prio: A.e(f"s_setprio {self.prio}")
        if getattr(self, 'stamp', None): self.stamp(0)
        A.e("s_barrier")
        if getattr(self, 'stamp', None): self.stamp(1)
        for ln in self.reads(set0, 0): A.e(ln)
        A.e("s_waitcnt lgkmcnt(0)")
        lim = self.lds0 + NS * self.slot
        def body(last):
            sl = [] if last else [f"s_add_u32 {s(SL)}, {s(SL)}, {self.slot}",
                  f"s_cmp_ge_u32 {s(SL)}, {lim}",
                  f"s_cselect_b32 {s(self.S_T0)}, {NS * self.slot}, 0",
                  f"s_sub_u32 {s(SL)}, {s(SL)}, {s(self.S_T0)}"]
            shadow = self.shadow
            self.interleave(self.mfmas(set0), self.reads(set1, 1) + sl + (self.cur_update() if (shadow and not last) else []), per=2)
            A.e("s_waitcnt lgkmcnt(0)")
            if last:
                self.interleave(self.mfmas(set1), [])
                return
            if not shadow:
                for ln in self.cur_update(): A.e(ln)
            A.e("s_barrier")
            self.interleave(self.mfmas(set1), self.reads(set0, 0) + [f"s_sub_u32 {s(self.S_CNT)}, {s(self.S_CNT)}, 1"], per=2)
            A.e("s_waitcnt lgkmcnt(0)")
        lp = A.newlabel(self.name + "_cl")
        A.e(f"s_mov_b32 {s(self.S_CNT)}, {nst - 1}")
        A.label(lp)
        body(False)
        A.e(f"s_cmp_lg_u32 {s(self.S_CNT)}, 0")
        A.e(f"s_cbranch_scc1 {lp}")
        if pre_last: pre_last()
        body(True)
        if self.prio: A.e("s_setprio 0")

    def emit_consumer(self, lane, vb, pre_last=None):
        self.emit_consumer_pre(lane, vb)
        self.emit_consumer_run(pre_last)
```

```python
import sys, json
from asmlib import *
from layout import *
from gemm import *
from kern_gemm import (srd_from, swap_store, lane_out_offset, group_reduce, bf16_round, f2u, GK1, GK2)
from kern_fft import (nop, fconst, affine, cos_frag, row_reduce, ln_stats, twiddle_table, MF32, MF16)

PX, PWR, PWI, PWIN, PWSP, PBSP, PWOUT, POUT, PDBG, PWS = 80, 82, 84, 88, 90, 92, 94, 96, 98, 30
SW = 16
WS_CNT = 68 * MB
SC = "sc1"

class Mega:
    def __init__(self, opts):
        self.o = opts
        self.A = Asm()
        self.stamps = opts.get("stamps", False)
        self.nstamp = 0
        self.stamp_names = []

    def stamp(self, name):
        if not self.stamps: return
        A = self.A
        A.e("s_memrealtime s[100:101]\ns_waitcnt lgkmcnt(0)")
        A.e(f"v_writelane_b32 v255, s100, {self.nstamp}")
        self.stamp_names.append(name); self.nstamp += 1
        assert self.nstamp <= 64

    def stamp_flush(self):
        if not self.stamps: return
        A = self.A
        lab = A.newlabel("tsf")
        A.e(f"s_cmp_lg_u32 s{SW}, {self.o.get('stamp_wave', 0)}\ns_cbranch_scc1 {lab}")
        srd_from(A, 64, PWS, WS_TS, 65536)
        A.e("v_mbcnt_lo_u32_b32 v0, -1, 0\nv_mbcnt_hi_u32_b32 v0, -1, v0\nv_lshlrev_b32 v0, 2, v0\ns_lshl_b32 s3, s2, 8")
        A.e("buffer_store_dword v255, v0, s[64:67], s3 offen")
        A.label(lab)

    def cnt_srd(self, b, dst):
        A = self.A
        srd_from(A, dst, PWS, WS_CNT + (b - 1) * 32768, 32768)
    def cnt_stride(self, b): return 256

    def arrive(self, b, nowait_ge=None, keep=0):
        A = self.A
        if nowait_ge is not None:
            lw = A.newlabel("nw")
            A.e(f"s_cmp_eq_u32 s19, 0\ns_cbranch_scc1 {lw}")
            A.e("s_waitcnt vmcnt(0)")
            A.label(lw)
            A.e("s_waitcnt lgkmcnt(0)\ns_barrier")
        else:
            A.e(f"s_waitcnt vmcnt({keep}) lgkmcnt(0)\ns_barrier")
        lab = A.newlabel("arr")
        A.e(f"s_cmp_lg_u32 s{SW}, 0\ns_cbranch_scc1 {lab}")
        if b == 1:
            g0 = A.newlabel("b0p"); g1 = A.newlabel("b0d")
            srd_from(A, 64, PDBG, 0, 256)
            A.e("s_mov_b32 s3, 0x20000\nv_mov_b32 v250, 0")
            A.label(g0)
            A.e("v_cmp_le_u32 vcc, 16, v252\ns_sub_u32 s3, s3, 1")
            A.e(f"s_cbranch_scc1 {g1}\ns_cmp_lg_u64 vcc, 0\ns_cbranch_scc1 {g1}")
            A.e(f"buffer_load_dword v252, v250, s[64:67], 0 offen {SC}\ns_waitcnt vmcnt(0)\ns_branch {g0}")
            A.label(g1)
        self.cnt_srd(b, 64)
        A.e(f"s_and_b32 s3, s2, 15\ns_lshl_b32 s3, s3, 8")
        A.e("v_lshlrev_b32 v250, 12, v0\nv_add_u32 v250, s3, v250\nv_mov_b32 v251, 1\ns_mov_b64 exec, 0xff")
        A.e(f"buffer_atomic_add v251, v250, s[64:67], 0 offen {SC}")
        A.e("s_mov_b64 exec, -1")
        A.label(lab)

    def poll(self, b, vt=250):
        A = self.A
        lab = A.newlabel("pw"); lp = A.newlabel("pl"); ld = A.newlabel("pd")
        A.e(f"s_cmp_lg_u32 s{SW}, 0\ns_cbranch_scc1 {lab}")
        self.cnt_srd(b, 64)
        A.e(f"s_bfe_u32 s3, s2, 0x30004\ns_lshl_b32 s3, s3, 12\nv_and_b32 {v(vt)}, 15, v0\nv_lshlrev_b32 {v(vt)}, 8, {v(vt)}\nv_add_u32 {v(vt)}, s3, {v(vt)}")
        A.e("s_mov_b32 s3, 0x20000")
        A.label(lp)
        A.e(f"buffer_load_dword {v(vt+1)}, {v(vt)}, s[64:67], 0 offen {SC}\ns_waitcnt vmcnt(0)")
        A.e(f"v_cmp_gt_u32 vcc, 16, {v(vt+1)}")
        A.e(f"s_sub_u32 s3, s3, 1\ns_cbranch_scc1 {ld}")
        A.e(f"s_cmp_eq_u64 vcc, 0\ns_cbranch_scc1 {ld}")
        A.e(f"s_sleep {self.o.get('sleep', 1)}\ns_branch {lp}")
        A.label(ld)
        A.label(lab)

    def wait(self, b, vt=250):
        self.poll(b, vt)
        self.A.e("s_barrier")

    def prefetch(self, ptr, nbytes, tidreg, nth, vtmp, who="s2", nwg=256, base="0"):
        A = self.A
        per = (nbytes + nwg - 1) // nwg
        n = (per + nth * 16 - 1) // (nth * 16)
        srd_from(A, 56, ptr, 0, nbytes)
        A.e(f"v_lshlrev_b32 {v(vtmp)}, 4, {v(tidreg)}\ns_mul_i32 s54, {who}, {per}")
        for i in range(n):
            A.e(f"buffer_load_dwordx4 {v(vtmp + 2, 4)}, {v(vtmp)}, s[56:59], s54 offen")
            if i + 1 < n: A.e(f"s_add_u32 s54, s54, {nth * 16}")
        return n

    def wg_index(self, dst):
        A = self.A
        A.e(f"s_and_b32 s{dst}, s2, 7\ns_lshl_b32 s{dst}, s{dst}, 1\ns_bfe_u32 s3, s2, 0x10003\ns_or_b32 s{dst}, s{dst}, s3\ns_and_b32 s3, s2, 0xf0\ns_or_b32 s{dst}, s{dst}, s3")

    TBL = 98304

    def gen_tables(self):
        A = self.A
        P, Q, K1F, HF, T, DQ, VT, LF, GF, RO = 92, 93, 94, 95, 96, 104, 108, 109, 110, 111
        A.e(f"v_lshlrev_b32 {v(VT)}, 4, v0\nv_add_u32 {v(VT)}, {self.TBL}, {v(VT)}")
        A.e(f"v_and_b32 {v(K1F)}, 31, v0\nv_cvt_f32_u32 {v(K1F)}, {v(K1F)}\nv_lshrrev_b32 {v(HF)}, 5, v0\nv_cvt_f32_u32 {v(HF)}, {v(HF)}")
        A.e(f"v_and_b32 {v(LF)}, 15, v0\nv_cvt_f32_u32 {v(LF)}, {v(LF)}\nv_lshrrev_b32 {v(GF)}, 4, v0\nv_cvt_f32_u32 {v(GF)}, {v(GF)}")
        par = [0]
        def put(q, reg): A.e(f"ds_write_b128 {v(VT)}, {v(reg, 4)} offset:{q * 1024}")
        def frag(q, co, of):
            d = DQ + 8 + 4 * (par[0] & 1); par[0] += 1
            cos_frag(A, d, P, Q, co, of, T); put(q, d)
        def fam(pexpr, qmul, src=K1F, hsrc=HF):
            A.e(f"v_mul_f32 {v(P)}, {fconst(A, pexpr)}, {v(src)}\nv_mul_f32 {v(Q)}, {fconst(A, qmul)}, {v(hsrc)}\nv_mul_f32 {v(Q)}, {v(Q)}, {v(P)}")
        def F3():
            A.e(f"v_bfe_u32 {v(P)}, v0, 1, 4\nv_cvt_f32_u32 {v(P)}, {v(P)}\nv_mul_f32 {v(P)}, {fconst(A, 1/32)}, {v(P)}")
            A.e(f"v_and_b32 {v(T)}, 1, v0\nv_cvt_f32_u32 {v(T)}, {v(T)}\nv_mul_f32 {v(T)}, {fconst(A, 0.25)}, {v(T)}")
            A.e(f"v_mul_f32 {v(Q)}, 4.0, {v(HF)}\nv_fma_f32 {v(Q)}, {v(Q)}, {v(P)}, {v(T)}")
        def idx8():
            A.e(f"v_bfe_u32 {v(T)}, v0, 2, 1\nv_lshlrev_b32 {v(T)}, 2, {v(T)}")
            A.e(f"v_bfe_u32 {v(T+1)}, v0, 3, 1\nv_lshl_add_u32 {v(T)}, {v(T+1)}, 1, {v(T)}")
            A.e(f"v_bfe_u32 {v(T+1)}, v0, 1, 1\nv_add_u32 {v(T)}, {v(T)}, {v(T+1)}\nv_cvt_f32_u32 {v(T)}, {v(T)}")
        def F4():
            idx8()
            A.e(f"v_mul_f32 {v(P)}, {fconst(A, 0.125)}, {v(T)}")
            A.e(f"v_cvt_f32_u32 {v(T+1)}, s17\nv_mul_f32 {v(T+1)}, {fconst(A, 1/2048)}, {v(T+1)}\nv_mul_f32 {v(Q)}, {v(T)}, {v(T+1)}")
            A.e(f"v_and_b32 {v(T+1)}, 1, v0\nv_cvt_f32_u32 {v(T+1)}, {v(T+1)}\nv_fmamk_f32 {v(Q)}, {v(T+1)}, {hex(f2u(0.25))}, {v(Q)}")
            A.e(f"v_mul_f32 {v(T+1)}, 4.0, {v(HF)}\nv_fma_f32 {v(Q)}, {v(T+1)}, {v(P)}, {v(Q)}")
        def F8():
            idx8()
            A.e(f"v_cvt_f32_u32 {v(T+1)}, s17\nv_mul_f32 {v(T+1)}, {fconst(A, 1/2048)}, {v(T+1)}")
            A.e(f"v_fmamk_f32 {v(P)}, {v(T)}, {hex(f2u(0.125))}, {v(T+1)}")
            A.e(f"v_and_b32 {v(T+1)}, 1, v0\nv_cvt_f32_u32 {v(T+1)}, {v(T+1)}\nv_mul_f32 {v(T+1)}, {fconst(A, -0.25)}, {v(T+1)}")
            A.e(f"v_mul_f32 {v(Q)}, 4.0, {v(HF)}\nv_fma_f32 {v(Q)}, {v(Q)}, {v(P)}, {v(T+1)}")
        def F7(t):
            A.e(f"v_and_b32 {v(RO)}, 1, v0\nv_cvt_f32_u32 {v(RO)}, {v(RO)}\nv_mul_f32 {v(RO)}, {fconst(A, 0.25)}, {v(RO)}")
            A.e(f"v_bfe_u32 {v(P)}, v0, 1, 3\nv_add_u32 {v(P)}, {8*t}, {v(P)}\nv_cvt_f32_u32 {v(P)}, {v(P)}\nv_mul_f32 {v(P)}, {fconst(A, 1/16)}, {v(P)}")
            A.e(f"v_mul_f32 {v(DQ)}, 4.0, {v(GF)}\nv_mul_f32 {v(DQ)}, {v(DQ)}, {v(P)}")
        def twid(qc, qs, coefs):
            d = DQ + 8 + 4 * (par[0] & 1); par[0] += 1
            for r in range(4): affine(A, T + r, P, coefs[r], Q)
            for r in range(4): A.e(f"v_cos_f32 {v(d + r)}, {v(T + r)}")
            for r in range(4): A.e(f"v_sin_f32 {v(T + 4 + r)}, {v(T + r)}")
            A.e("s_nop 0"); put(qc, d); put(qs, T + 4)
        j8 = list(range(8)); co2 = [j >> 1 for j in j8]
        perm = lambda t: [16*t + 8*(j >> 2) + (j & 3) for j in j8]
        alt = lambda x: [x * (j & 1) for j in j8]; nalt = lambda x: [x * (1 - (j & 1)) for j in j8]
        def w0():
            fam(1/32, 8.0)
            frag(0, [j for j in j8], [0]*8); frag(1, [16 + j for j in j8], [0]*8); frag(2, [j for j in j8], [0.25]*8)
        def w1():
            fam(1/32, 8.0); frag(3, [16 + j for j in j8], [0.25]*8)
            F3(); frag(12, perm(0), [0]*8); frag(13, perm(1), [0]*8)
        def w2():
            F3(); frag(14, perm(0), [-0.25]*8); frag(15, perm(1), [-0.25]*8)
            F4(); frag(16, co2, alt(-0.25))
        def w3():
            fam(1/1024, 4.0)
            for a in range(4): twid(4 + a, 8 + a, [8*a + r for r in range(4)])
            fam(1/256, 4.0, LF, GF); twid(21, 22, [0, 1, 2, 3])
            F8(); frag(27, co2, alt(0.25))
        def w4():
            fam(1/16, 4.0, LF, GF); frag(17, co2, alt(-0.25)); frag(18, co2, nalt(0.25))
            fam(1/16, 2.0, LF, GF)
            ci = [((j >> 1) & 1) + 8*(j >> 2) for j in j8]
            frag(19, ci, alt(0.25)); frag(20, ci, nalt(-0.25))
        def w5():
            for t in range(2):
                F7(t)
                A.e(f"v_add_f32 {v(Q)}, {v(DQ)}, {v(RO)}"); frag(23 + 2*t, co2, alt(-0.25))
                A.e(f"v_sub_f32 {v(Q)}, {v(DQ)}, {v(RO)}"); frag(24 + 2*t, co2, alt(0.25))
        def w6():
            fam(1/32, 4.0)
            for t in range(2): frag(28 + t, [8*t + (j >> 1) for j in j8], alt(0.25))
            for t in range(2): frag(30 + t, [8*t + (j >> 1) for j in j8], nalt(-0.25))
        def w7():
            fam(1/32, 4.0)
            for t in range(2): frag(32 + t, perm(t), [0]*8)
            for t in range(2): frag(34 + t, perm(t), [0.25]*8)
        end = A.newlabel("tblend")
        jobs = [w0, w1, w2, w3, w4, w5, w6, w7]
        labs = [A.newlabel("tblw") for _ in jobs]
        for n in range(7):
            A.e(f"s_cmp_eq_u32 s{SW}, {n}\ns_cbranch_scc1 {labs[n]}")
        A.e(f"s_branch {labs[7]}")
        for n, job in enumerate(jobs):
            A.label(labs[n]); job(); A.e(f"s_branch {end}")
        A.label(end)
        A.e("s_waitcnt lgkmcnt(0)\ns_barrier")

    def load_tables(self, pairs, vt):
        A = self.A
        A.e(f"v_lshlrev_b32 {v(vt)}, 4, v0\nv_add_u32 {v(vt)}, {self.TBL}, {v(vt)}")
        for n, (q, reg) in enumerate(pairs):
            if n == 12: A.e("s_waitcnt lgkmcnt(4)")
            A.e(f"ds_read_b128 {v(reg, 4)}, {v(vt)} offset:{q * 1024}")

    def p1(self):
        A = self.A
        LU, LX, LW = 0, 16384, 16384 + 17408
        self.wg_index(17)
        srd_from(A, 4, PX, 0, S * D * 2)
        srd_from(A, 8, PWR, 0, S * 513 * 2)
        srd_from(A, 12, PWI, 0, S * 513 * 2)
        XR = 4
        srd_from(A, 36, PWS, WS_CNT, 5 * 32768)
        A.e("s_lshr_b32 s22, s2, 4\ns_lshl_b32 s22, s22, 15\ns_and_b32 s23, s2, 15\ns_lshl_b32 s23, s23, 8\ns_add_u32 s22, s22, s23")
        lcl = A.newlabel("p1clr")
        A.e(f"v_mov_b32 v21, 0\nv_lshlrev_b32 v3, 12, v0\ns_cmp_lg_u32 s{SW}, 0\ns_cbranch_scc1 {lcl}\ns_mov_b64 exec, 0xff")
        A.e(f"buffer_store_dword v21, v3, s[36:39], s22 offen {SC}")
        A.e("s_mov_b64 exec, -1")
        A.label(lcl)
        A.e("v_lshlrev_b32 v2, 4, v0")
        A.e(f"s_lshl_b32 s18, s{SW}, 8\ns_add_u32 s18, s18, s17\ns_lshl_b32 s18, s18, 11")
        A.e(f"buffer_load_dwordx4 {v(XR, 4)}, v2, s[4:7], s18 offen")
        A.e(f"buffer_load_dwordx4 {v(XR + 4, 4)}, v2, s[4:7], s18 offen offset:1024")
        srd_from(A, 36, PWS, WS_ST, 524288)
        A.e(f"s_lshl_b32 s22, s2, 11\ns_lshl_b32 s23, s{SW}, 10\ns_add_u32 s22, s22, s23\ns_cmp_lt_u32 s{SW}, 2\ns_cselect_b32 s22, s22, 0x100000")
        A.e("v_mov_b32 v20, -1\nv_mov_b32 v21, -1\nv_mov_b32 v22, -1\nv_mov_b32 v23, -1")
        A.e(f"buffer_store_dwordx4 v[20:23], v2, s[36:39], s22 offen {SC}")
        BC, BS, TC, TS, FA, FB, FN, A8 = 20, 28, 36, 52, 68, 76, 84, 88
        P, Q, K1F, HF, T = 92, 93, 94, 95, 96
        self.gen_tables()
        self.load_tables([(0, BC), (1, BC + 4), (2, BS), (3, BS + 4), (12, FA), (13, FA + 4), (14, FB), (15, FB + 4), (16, A8)]
                         + [(4 + a, TC + 4*a) for a in range(4)] + [(8 + a, TS + 4*a) for a in range(4)], 92)
        for n in range(4): A.e(f"v_mov_b32 {v(FN + n)}, 0xbf803f80")
        self.stamp("p1.const")
        FX, ST, DR, W0, AD = 104, 136, 144, 208, 212
        A.e("s_mov_b32 s26, 0xffff0000")
        A.e("s_waitcnt vmcnt(1)")
        self.stamp("p1.x")
        A.e(f"s_mul_i32 s20, s17, 8208\ns_lshl_b32 s21, s{SW}, 10\ns_add_u32 s22, s20, s21")
        for arr, srd in ((0, 8), (1, 12)):
            A.e(f"s_add_u32 m0, s21, {LW + arr * 9216}\ns_nop 0")
            A.e(f"buffer_load_dwordx4 v2, {s(srd,4)}, s22 offen lds")
        lw = A.newlabel("p1w8"); l0 = A.newlabel("p1w8a")
        A.e(f"s_cmp_ge_u32 s{SW}, 2\ns_cbranch_scc1 {lw}")
        A.e(f"s_mul_i32 s22, s{SW}, 9216\ns_add_u32 m0, s22, {LW + 8192}\ns_add_u32 s22, s20, 8192")
        A.e(f"s_cmp_eq_u32 s{SW}, 0\ns_cbranch_scc0 {l0}")
        A.e(f"buffer_load_dwordx4 v2, s[8:11], s22 offen lds\ns_branch {lw}")
        A.label(l0)
        A.e("buffer_load_dwordx4 v2, s[12:15], s22 offen lds")
        A.label(lw)
        if self.o.get("diag1"):
            A.e("s_waitcnt vmcnt(3)"); self.stamp("p1.sent"); A.e("s_waitcnt vmcnt(0)"); self.stamp("p1.wdma")
        lg = A.newlabel("p1b0")
        A.e(f"s_cmp_ge_u32 s2, 16\ns_cbranch_scc1 {lg}\ns_cmp_lg_u32 s{SW}, 0\ns_cbranch_scc1 {lg}")
        srd_from(A, 64, PDBG, 0, 256)
        A.e(f"v_mov_b32 v250, 0\nv_mov_b32 v251, 1\ns_mov_b64 exec, 1")
        A.e(f"buffer_atomic_add v251, v250, s[64:67], 0 offen {SC}")
        A.e("s_mov_b64 exec, -1")
        A.label(lg)
        npf = 0
        for n in range(8):
            A.e(f"v_lshlrev_b32 {v(FX + 2*n)}, 16, {v(XR + n)}\nv_and_b32 {v(FX + 2*n + 1)}, s26, {v(XR + n)}")
        sp, qp = ST + 4, ST + 6
        A.e(f"v_pk_add_f32 {v(sp,2)}, {v(FX,2)}, {v(FX+2,2)}\nv_pk_mul_f32 {v(qp,2)}, {v(FX,2)}, {v(FX,2)}")
        for n in range(1, 8):
            if n >= 2: A.e(f"v_pk_add_f32 {v(sp,2)}, {v(sp,2)}, {v(FX+2*n,2)}")
            A.e(f"v_pk_fma_f32 {v(qp,2)}, {v(FX+2*n,2)}, {v(FX+2*n,2)}, {v(qp,2)}")
        A.e(f"v_add_f32 {v(ST)}, {v(sp)}, {v(sp+1)}\nv_add_f32 {v(ST+1)}, {v(qp)}, {v(qp+1)}\ns_nop 1")
        row_reduce(A, [ST, ST + 1], ST + 12)
        ln_stats(A, ST, ST + 1, D)
        A.e(f"v_sub_f32 {v(ST+4)}, 0, {v(ST)}\nv_mov_b32 {v(ST+5)}, {v(ST+4)}\nv_mov_b32 {v(ST+6)}, {v(ST+1)}\nv_mov_b32 {v(ST+7)}, {v(ST+1)}")
        for n in range(8):
            f = FX + 2*n
            A.e(f"v_pk_add_f32 {v(f,2)}, {v(f,2)}, {v(ST+4,2)}\nv_pk_mul_f32 {v(f,2)}, {v(f,2)}, {v(ST+6,2)}")
            A.e(f"v_cvt_pk_bf16_f32 {v(XR + n)}, {v(f)}, {v(f+1)}")
        A.e(f"s_lshl_b32 s22, s{SW}, 11\nv_add_u32 {v(AD)}, s22, v2")
        A.e(f"ds_write_b128 {v(AD)}, {v(XR, 4)} offset:{LU}\nds_write_b128 {v(AD)}, {v(XR + 4, 4)} offset:{LU + 1024}")
        A.e(f"v_lshrrev_b32 {v(T)}, 5, v0\nv_lshlrev_b32 {v(T)}, 3, {v(T)}\nv_bfe_u32 {v(T+1)}, v0, 2, 2\nv_add_u32 {v(T)}, {v(T)}, {v(T+1)}\nv_lshlrev_b32 {v(T)}, 6, {v(T)}")
        A.e(f"v_bfe_u32 {v(T+1)}, v0, 4, 1\nv_lshl_add_u32 {v(T)}, {v(T+1)}, 5, {v(T)}\nv_and_b32 {v(T+1)}, 3, v0\nv_lshl_add_u32 {v(T)}, {v(T+1)}, 3, {v(T)}")
        A.e(f"v_add_u32 {v(AD)}, s22, {v(T)}")
        AF = FX
        for t in range(2):
            for rd in range(2):
                A.e(f"ds_read_b64_tr_b16 {v(AF + 4*t + 2*rd, 2)}, {v(AD)} offset:{LU + 1024*t + 256*rd}")
        for t in range(2):
            A.e(f"s_waitcnt lgkmcnt({2 * (1 - t)})")
            for im, Bf in ((0, BC), (1, BS)):
                d = DR + 16*im
                A.e(f"{MF32} {v(d,16)}, {v(AF + 4*t, 4)}, {v(Bf + 4*t, 4)}, {v(d,16) if t else '0'}")
        TP = FX
        A.e(f"v_and_b32 {v(T)}, 31, v0\nv_lshlrev_b32 {v(AD)}, 5, {v(T)}")
        A.e(f"v_lshrrev_b32 {v(T+1)}, 5, v0\nv_lshl_add_u32 {v(AD)}, {v(T+1)}, 11, {v(AD)}")
        A.e(f"s_lshr_b32 s22, s{SW}, 2\nv_bfe_u32 {v(T+1)}, v0, 3, 1\nv_xor_b32 {v(T+1)}, s22, {v(T+1)}\nv_lshl_add_u32 {v(AD)}, {v(T+1)}, 4, {v(AD)}")
        A.e(f"s_and_b32 s22, s{SW}, 3\ns_lshl_b32 s22, s22, 2\nv_add_u32 {v(AD)}, s22, {v(AD)}")
        nop(A, 4)
        dre, dim = DR, DR + 16
        for p in range(8):
            c, sn = TC + 2*p, TS + 2*p
            A.e(f"v_pk_mul_f32 {v(W0,2)}, {v(dre + 2*p,2)}, {v(c,2)}")
            A.e(f"v_pk_mul_f32 {v(W0+2,2)}, {v(dim + 2*p,2)}, {v(c,2)}")
            A.e(f"v_pk_fma_f32 {v(W0,2)}, {v(dim + 2*p,2)}, {v(sn,2)}, {v(W0,2)}")
            A.e(f"v_pk_fma_f32 {v(W0+2,2)}, {v(dre + 2*p,2)}, {v(sn,2)}, {v(W0+2,2)} neg_lo:[1,0,0] neg_hi:[1,0,0]")
            A.e(f"v_cvt_pk_bf16_f32 {v(TP + p)}, {v(W0)}, {v(W0+1)}")
            A.e(f"v_cvt_pk_bf16_f32 {v(TP + 8 + p)}, {v(W0+2)}, {v(W0+3)}")
        A.e("s_nop 1")
        d, dn, tre, tim = DR, DR + 16, TP, TP + 8
        A.e(f"{MF32} {v(d,16)}, {v(FA,4)}, {v(tre,4)}, 0")
        A.e(f"{MF32} {v(dn,16)}, {v(FN,4)}, {v(tre,4)}, 0")
        A.e(f"{MF32} {v(d,16)}, {v(FA+4,4)}, {v(tre+4,4)}, {v(d,16)}")
        A.e(f"{MF32} {v(dn,16)}, {v(FN,4)}, {v(tre+4,4)}, {v(dn,16)}")
        A.e(f"{MF32} {v(d,16)}, {v(FB,4)}, {v(tim,4)}, {v(d,16)}")
        A.e(f"{MF32} {v(d,16)}, {v(FB+4,4)}, {v(tim+4,4)}, {v(d,16)}")
        OV = 4
        nop(A, 12)
        for e in range(8):
            A.e(f"v_cvt_pk_bf16_f32 {v(OV + e)}, {v(d + 2*e)}, {v(d + 2*e + 1)}")
        for e in range(8):
            A.e(f"ds_write_b32 {v(AD)}, {v(OV + e)} offset:{LX + (4*(e >> 1) + (e & 1)) * 1024}")
        A.e(f"v_cvt_pk_bf16_f32 {v(W0)}, {v(dn)}, 0\ns_lshl_b32 s22, s{SW}, 2\nv_mov_b32 {v(W0+2)}, s22")
        A.e(f"s_mov_b64 exec, 1\nds_write_b32 {v(W0+2)}, {v(W0)} offset:{LX + 512*32}\ns_mov_b64 exec, -1")
        self.stamp("p1.fft")
        A.e("s_waitcnt lgkmcnt(0)\ns_barrier")
        srd_from(A, 64, PDBG, 0, 256)
        A.e(f"v_mov_b32 v250, 0\nbuffer_load_dword v252, v250, s[64:67], 0 offen {SC}")
        self.stamp("p1.rowfft")
        srd_from(A, 48, PWS, WS_U, 257 * KP_STRIDE)
        srd_from(A, 52, PWS, WS_WT, 257 * KP_STRIDE)
        A.e(f"v_and_b32 {v(T)}, 31, v0\nv_lshlrev_b32 {v(AD)}, 5, {v(T)}\nv_lshrrev_b32 {v(T+1)}, 5, v0\nv_bfe_u32 {v(T+2)}, v0, 3, 1\nv_xor_b32 {v(T+1)}, {v(T+1)}, {v(T+2)}\nv_lshl_add_u32 {v(AD)}, {v(T+1)}, 4, {v(AD)}")
        A.e(f"v_mov_b32 {v(AD+2)}, {v(AD)}\ns_lshl_b32 s22, s{SW}, 11\nv_add_u32 {v(AD)}, s22, {v(AD)}")
        RB = FX
        for b in range(2):
            A.e(f"ds_read_b128 {v(RB + 4*b, 4)}, {v(AD)} offset:{LX + 1024*b}")
        A.e(f"ds_read_b128 {v(RB + 8, 4)}, {v(AD+2)} offset:{LX + 16384}")
        SA = AD + 1
        A.e(f"v_bfe_u32 {v(T)}, v0, 1, 4\ns_mov_b32 s22, {KP_STRIDE}\nv_mul_lo_u32 {v(SA)}, {v(T)}, s22")
        A.e(f"v_and_b32 {v(T)}, 1, v0\nv_lshl_add_u32 {v(SA)}, {v(T)}, 5, {v(SA)}\nv_lshrrev_b32 {v(T)}, 5, v0\nv_lshl_add_u32 {v(SA)}, {v(T)}, 4, {v(SA)}")
        A.e(f"s_mul_i32 s22, s{SW}, {32 * KP_STRIDE}\ns_lshl_b32 s23, s17, 6\ns_add_u32 s22, s22, s23")
        for b in range(3):
            A.e(f"s_waitcnt lgkmcnt({2 - b})")
            A.e(f"{MF32} {v(DR + 16*b, 16)}, {v(A8,4)}, {v(RB + 4*b, 4)}, 0")
        WA, WS_ = 214, 215
        A.e(f"v_and_b32 {v(T)}, 1, v1\nv_mul_u32_u24 {v(WA)}, 4104, {v(T)}")
        A.e(f"v_lshrrev_b32 {v(T)}, 2, v1\nv_lshl_add_u32 {v(WA)}, {v(T)}, 2, {v(WA)}")
        A.e(f"v_bfe_u32 {v(T+1)}, v1, 1, 1\nv_lshl_add_u32 {v(WA)}, {v(T+1)}, 1, {v(WA)}")
        A.e(f"s_mov_b32 s24, {KP_STRIDE}\nv_mul_lo_u32 {v(WS_)}, {v(T)}, s24\nv_and_b32 {v(T)}, 3, v1\nv_lshl_add_u32 {v(WS_)}, {v(T)}, 4, {v(WS_)}")
        WO, WI = 120, 128
        nop(A, 2)
        for b in range(2):
            for n in range(4):
                A.e(f"v_cvt_pk_bf16_f32 {v(OV + 4*b + n)}, {v(DR + 16*b + 2*n)}, {v(DR + 16*b + 2*n + 1)}")
            A.e(f"buffer_store_dwordx4 {v(OV + 4*b, 4)}, {v(SA)}, s[48:51], s22 offen {SC}")
            A.e(f"s_add_u32 s22, s22, {16 * KP_STRIDE}")
        A.e(f"s_waitcnt vmcnt({npf + 3})\ns_barrier")
        lny = A.newlabel("p1ny")
        A.e(f"s_cmp_lg_u32 s{SW}, 7\ns_cbranch_scc1 {lny}")
        for n in range(4):
            A.e(f"v_cvt_pk_bf16_f32 {v(OV + 8 + n)}, {v(DR + 32 + 2*n)}, {v(DR + 32 + 2*n + 1)}")
        A.e(f"s_lshl_b32 s22, s17, 5\ns_add_u32 s22, s22, {256 * KP_STRIDE}\nv_lshrrev_b32 {v(T)}, 5, v0\nv_lshlrev_b32 {v(T)}, 4, {v(T)}")
        A.e("s_mov_b32 exec_lo, 1\ns_mov_b32 exec_hi, 1")
        A.e(f"buffer_store_dwordx4 {v(OV + 8, 4)}, {v(T)}, s[48:51], s22 offen {SC}")
        A.e("s_mov_b64 exec, -1")
        A.label(lny)
        for n in range(2):
            if n: A.e("s_waitcnt lgkmcnt(7)")
            for nn in range(4):
                A.e(f"ds_read_u16 {v(WO + 4*n + nn)}, {v(WA)} offset:{LW + 512*n + 1026*nn}")
                A.e(f"ds_read_u16 {v(WI + 4*n + nn)}, {v(WA)} offset:{LW + 9216 + 512*n + 1026*nn}")
        A.e("s_waitcnt lgkmcnt(0)")
        for n in range(8):
            A.e(f"v_lshl_or_b32 {v(WO + n)}, {v(WI + n)}, 16, {v(WO + n)}")
        A.e("s_lshl_b32 s22, s17, 6")
        for n in range(2):
            A.e(f"buffer_store_dwordx4 {v(WO + 4*n, 4)}, {v(WS_)}, s[52:55], s22 offen {SC}")
            A.e(f"s_add_u32 s22, s22, {128 * KP_STRIDE}")
        lwe = A.newlabel("p1we")
        A.e(f"s_cmp_lg_u32 s{SW}, 0\ns_cbranch_scc1 {lwe}")
        A.e("s_mov_b64 exec, 3")
        WO2 = FX
        for nn in range(4):
            A.e(f"ds_read_u16 {v(WO2 + nn)}, {v(WA)} offset:{LW + 1024 + 1026*nn}")
            A.e(f"ds_read_u16 {v(WO2 + 4 + nn)}, {v(WA)} offset:{LW + 9216 + 1024 + 1026*nn}")
        A.e("s_waitcnt lgkmcnt(0)")
        for nn in range(4):
            A.e(f"v_lshl_or_b32 {v(WO2 + nn)}, {v(WO2 + 4 + nn)}, 16, {v(WO2 + nn)}")
        A.e(f"s_lshl_b32 s22, s17, 5\ns_add_u32 s22, s22, {256 * KP_STRIDE}\nv_lshlrev_b32 {v(T)}, 4, v0")
        A.e(f"buffer_store_dwordx4 {v(WO2, 4)}, {v(T)}, s[52:55], s22 offen {SC}")
        A.e("s_mov_b64 exec, -1")
        A.label(lwe)

    def pf_point(self, name):
        if not self.o.get("pf", True): return
        sched = {"A": 0, "B": 0, "C": 4, "D": 0, "E": 0, "F": 3}
        sched.update(self.o.get("pfs", {}))
        n = sched[name]
        if n == 0: return
        k0 = getattr(self, "_pfk", 0); self._pfk = k0 + n
        A = self.A
        lab = A.newlabel("pfp")
        srd_from(A, 56, PWIN, 0, D * F * 2)
        A.e(f"s_and_b32 s54, s{SW}, 3\nv_lshl_add_u32 v222, s54, 6, v0\nv_lshlrev_b32 v222, 4, v222")
        A.e(f"s_cmp_lt_u32 s{SW}, 4\ns_cbranch_scc1 {lab}")
        for k in range(k0, k0 + n):
            A.e(f"s_mul_i32 s54, s2, 28672\ns_add_u32 s54, s54, {4096 * k}")
            A.e("buffer_load_dwordx4 v[224:227], v222, s[56:59], s54 offen")
        A.label(lab)

    def p2_pre(self):
        A = self.A
        A.e(f"s_and_b32 s20, s{SW}, 3\ns_cmp_lt_u32 s{SW}, 4\ns_cselect_b32 s19, 1, 0")
        lab = A.newlabel("p2ny")
        A.e(f"s_cmp_lg_u32 s2, 0\ns_cbranch_scc1 {lab}\ns_cmp_lt_u32 s{SW}, 4\ns_cbranch_scc1 {lab}")
        A.e("s_mov_b32 s19, 2")
        A.label(lab)
        self.p2_notask = A.newlabel("p2nt")
        A.e(f"s_cmp_eq_u32 s19, 0\ns_cbranch_scc1 {self.p2_notask}")
        CA, CB, CI, CJ, TC, TS = 40, 48, 56, 64, 72, 76
        A.e("v_and_b32 v36, 15, v0\nv_lshrrev_b32 v37, 4, v0")
        self.load_tables([(17, CA), (18, CA + 4), (19, CI), (20, CI + 4), (21, TC), (22, TS), (23, CB), (25, CB + 4), (24, CJ), (26, CJ + 4)], 80)
        srd_from(A, 4, PWS, WS_U, 257 * KP_STRIDE)
        srd_from(A, 8, PWS, WS_WT, 257 * KP_STRIDE)
        srd_from(A, 12, PWS, WS_Y, 257 * KP_STRIDE)
        A.e(f"s_mul_i32 s18, s2, {KP_STRIDE}")
        A.e(f"v_lshrrev_b32 v38, 2, v36\nv_xor_b32 v38, s20, v38\nv_lshlrev_b32 v38, 4, v38")
        A.e(f"v_lshl_add_u32 v32, v37, 6, v36\nv_lshl_add_u32 v32, v32, 6, v38")
        A.e(f"v_lshl_add_u32 v33, v37, 5, v36\nv_lshl_add_u32 v33, v33, 6, v38")
        A.e("v_and_b32 v38, 3, v0\nv_xor_b32 v38, v38, v37\nv_lshrrev_b32 v39, 2, v0\nv_lshlrev_b32 v39, 6, v39\nv_lshl_add_u32 v31, v38, 4, v39")
        A.e(f"v_lshl_add_u32 v34, v37, 6, v36\nv_lshlrev_b32 v34, 5, v34\ns_lshl_b32 s21, s20, 3\ns_add_u32 s21, s21, 49152\nv_add_u32 v34, s21, v34")
        A.e(f"v_lshl_add_u32 v35, v37, 5, v36\nv_lshlrev_b32 v35, 5, v35\nv_add_u32 v35, s21, v35")
        A.label(self.p2_notask)

    def p2_compute(self, NT, R0, WT, wwait):
        A = self.A
        CA, CB, CI, CJ, TC, TS = 40, 48, 56, 64, 72, 76
        DD, W0, OP = 112, 144, R0
        gap = {4: 4, 2: 6, 1: 8}[NT]
        def twiddle(conj):
            for tau in range(NT):
                re, im = DD + 8*tau, DD + 8*tau + 4
                for hh in (0, 2):
                    A.e(f"v_pk_mul_f32 {v(W0+hh,2)}, {v(re+hh,2)}, {v(TC+hh,2)}")
                    A.e(f"v_pk_mul_f32 {v(W0+4+hh,2)}, {v(im+hh,2)}, {v(TC+hh,2)}")
                for hh in (0, 2):
                    n1 = " neg_lo:[1,0,0] neg_hi:[1,0,0]"
                    A.e(f"v_pk_fma_f32 {v(W0+hh,2)}, {v(im+hh,2)}, {v(TS+hh,2)}, {v(W0+hh,2)}" + (n1 if conj else ""))
                    A.e(f"v_pk_fma_f32 {v(W0+4+hh,2)}, {v(re+hh,2)}, {v(TS+hh,2)}, {v(W0+4+hh,2)}" + ("" if conj else n1))
                for r in range(4):
                    A.e(f"v_cvt_pk_bf16_f32 {v(OP + 4*tau + r)}, {v(W0 + r)}, {v(W0 + 4 + r)}")
            A.e("s_nop 1")
        for tau in range(NT):
            A.e(f"{MF16} {v(DD + 8*tau, 4)}, {v(R0 + 4*tau, 4)}, {v(CA, 4)}, 0")
            A.e(f"{MF16} {v(DD + 8*tau + 4, 4)}, {v(R0 + 4*tau, 4)}, {v(CA + 4, 4)}, 0")
        nop(A, gap)
        twiddle(False)
        for tau in range(NT):
            for t in range(2):
                A.e(f"{MF16} {v(DD + 8*tau + 4*t, 4)}, {v(CB + 4*t, 4)}, {v(OP + 4*tau, 4)}, 0")
        A.e("s_mov_b32 s26, 0xffff0000\n" + wwait)
        nop(A, gap - 1)
        for tau in range(NT):
            for e in range(4):
                vv = DD + 8*tau + 2*e
                w = WT + NT*e + tau
                A.e(f"v_lshlrev_b32 {v(W0)}, 16, {v(w)}\nv_and_b32 {v(W0+1)}, s26, {v(w)}")
                A.e(f"v_pk_mul_f32 {v(W0+2,2)}, {v(vv,2)}, {v(W0,2)} op_sel:[0,0] op_sel_hi:[1,0]")
                A.e(f"v_pk_fma_f32 {v(W0+2,2)}, {v(vv,2)}, {v(W0,2)}, {v(W0+2,2)} op_sel:[1,1,0] op_sel_hi:[0,1,1] neg_lo:[1,0,0]")
                A.e(f"v_cvt_pk_bf16_f32 {v(OP + 4*tau + e)}, {v(W0+2)}, {v(W0+3)}")
        A.e("s_nop 1")
        for tau in range(NT):
            A.e(f"{MF16} {v(DD + 8*tau, 4)}, {v(OP + 4*tau, 4)}, {v(CI, 4)}, 0")
            A.e(f"{MF16} {v(DD + 8*tau + 4, 4)}, {v(OP + 4*tau, 4)}, {v(CI + 4, 4)}, 0")
        nop(A, gap)
        twiddle(True)
        for tau in range(NT):
            for t in range(2):
                A.e(f"{MF16} {v(DD + 8*tau + 4*t, 4)}, {v(CJ + 4*t, 4)}, {v(OP + 4*tau, 4)}, 0")
        nop(A, 8)
        for e in range(4):
            for tau in range(NT):
                vv = DD + 8*tau + 2*e
                A.e(f"v_cvt_pk_bf16_f32 {v(WT + NT*e + tau)}, {v(vv)}, {v(vv+1)}")

    def p2(self):
        A = self.A
        nt = A.newlabel("p2idle"); end = A.newlabel("p2end"); ny = A.newlabel("p2nyq")
        LUI, LWI, LOU = 0, 16384, 32768
        R0, WT, VA, VB = 4, 96, 34, 35
        A.e(f"s_cmp_eq_u32 s19, 0\ns_cbranch_scc1 {nt}\ns_cmp_eq_u32 s19, 2\ns_cbranch_scc1 {ny}")
        A.e(f"s_lshl_b32 s22, s20, 12\ns_add_u32 s23, s22, s18")
        for arr, srd, base in ((0, 4, LUI), (1, 8, LWI)):
            for j in range(4):
                A.e(f"s_add_u32 m0, s22, {base + 1024 * j}\ns_add_u32 s24, s23, {1024 * j}")
                A.e(f"buffer_load_dwordx4 v31, {s(srd,4)}, s24 offen {SC} lds")
        A.e("s_waitcnt vmcnt(0)\ns_barrier")
        self.stamp("p2.dma")
        for i in range(4):
            A.e(f"ds_read_b128 {v(R0 + 4*i, 4)}, v32 offset:{LUI + 1024*i}")
        for e in range(4):
            A.e(f"ds_read_b128 {v(WT + 4*e, 4)}, v33 offset:{LWI + 1024*(e & 1) + 8192*(e >> 1)}")
        A.e("s_waitcnt lgkmcnt(4)")
        for i in range(4):
            for tau in range(i + 1, 4):
                A.e(f"v_swap_b32 {v(R0 + 4*i + tau)}, {v(R0 + 4*tau + i)}")
        A.e("s_nop 1")
        self.p2_compute(4, R0, WT, "s_waitcnt lgkmcnt(0)")
        self.stamp("p2.fft")
        for e in range(4):
            A.e(f"ds_write_b128 v33, {v(WT + 4*e, 4)} offset:{LOU + 1024*(e & 1) + 8192*(e >> 1)}")
        A.e("s_waitcnt lgkmcnt(0)\ns_barrier")
        A.e(f"v_lshlrev_b32 v30, 4, v0\nv_add_u32 v30, s22, v30")
        for j in range(4):
            A.e(f"ds_read_b128 {v(R0 + 4*j, 4)}, v30 offset:{LOU + 1024*j}")
        for j in range(4):
            A.e(f"s_waitcnt lgkmcnt({3 - j})")
            A.e(f"buffer_store_dwordx4 {v(R0 + 4*j, 4)}, v31, s[12:15], s23 offen offset:{1024*j} {SC}")
        A.e(f"s_branch {end}")
        A.label(ny)
        LN0 = 49152
        A.e(f"s_lshl_b32 s22, s20, 11\ns_add_u32 s23, s22, {256 * KP_STRIDE}\nv_lshlrev_b32 v30, 4, v0")
        for srd, base in ((4, LN0), (8, LN0 + 8192)):
            for j in range(2):
                A.e(f"s_add_u32 m0, s22, {base + 1024 * j}\ns_add_u32 s24, s23, {1024 * j}")
                A.e(f"buffer_load_dwordx4 v30, {s(srd,4)}, s24 offen {SC} lds")
        A.e("s_waitcnt vmcnt(0)")
        self.stamp("ny.dma")
        A.e("s_barrier")
        self.stamp("ny.bar1")
        for tau in range(2):
            for i in range(4):
                A.e(f"ds_read_b32 {v(R0 + 4*tau + i)}, {v(VA)} offset:{512*i + 4*tau}")
        A.e("s_waitcnt lgkmcnt(7)")
        for e in range(4):
            for tau in range(2):
                A.e(f"ds_read_b32 {v(WT + 2*e + tau)}, {v(VB)} offset:{8192 + 512*(e & 1) + 4096*(e >> 1) + 4*tau}")
        A.e("s_waitcnt lgkmcnt(8)\ns_nop 1")
        self.p2_compute(2, R0, WT, "s_waitcnt lgkmcnt(0)")
        self.stamp("ny.fft")
        for e in range(4):
            A.e(f"ds_write_b64 {v(VB)}, {v(WT + 2*e, 2)} offset:{16384 + 512*(e & 1) + 4096*(e >> 1)}")
        A.e("s_waitcnt lgkmcnt(0)\ns_barrier")
        A.e(f"s_add_u32 s24, s22, {LN0 + 16384}\nv_add_u32 v29, s24, v30")
        for j in range(2):
            A.e(f"ds_read_b128 {v(R0 + 4*j, 4)}, v29 offset:{1024*j}")
        for j in range(2):
            A.e(f"s_waitcnt lgkmcnt({1 - j})")
            A.e(f"buffer_store_dwordx4 {v(R0 + 4*j, 4)}, v30, s[12:15], s23 offen offset:{1024*j} {SC}")
        A.e(f"s_branch {end}")
        A.label(nt)
        A.e("s_barrier")
        self.pf_point("C")
        A.e("s_barrier")
        self.pf_point("D")
        A.label(end)

    def p3_pre(self):
        A = self.A
        self.wg_index(17)
        srd_from(A, 4, PX, 0, S * D * 2)
        srd_from(A, 8, PWS, WS_Y, 257 * KP_STRIDE)
        srd_from(A, 12, PWS, WS_H, S * D * 2)
        srd_from(A, 48, PWS, WS_LN2, S * D * 2)
        T = 96
        XR = 24
        A.e("v_and_b32 v3, 31, v0\nv_lshlrev_b32 v3, 6, v3\nv_lshrrev_b32 v40, 5, v0\nv_lshl_add_u32 v3, v40, 3, v3")
        A.e(f"s_lshl_b32 s18, s{SW}, 8\ns_add_u32 s18, s18, s17\ns_lshl_b32 s18, s18, 11")
        for q in range(4):
            A.e(f"buffer_load_dwordx2 {v(XR + 2*q, 2)}, v3, s[4:7], s18 offen offset:{16*q}")
        A8, BR, BI, TC, TS, CC, CS = 40, 44, 52, 60, 76, 104, 112
        self.load_tables([(27, A8), (28, BR), (29, BR + 4), (30, BI), (31, BI + 4), (32, CC), (33, CC + 4), (34, CS), (35, CS + 4)]
                         + [(4 + a, TC + 4*a) for a in range(4)] + [(8 + a, TS + 4*a) for a in range(4)], 92)
        A.e(f"v_bfe_u32 {v(T)}, v0, 1, 4\ns_mov_b32 s22, {KP_STRIDE}\nv_mul_lo_u32 v2, {v(T)}, s22")
        A.e(f"v_and_b32 {v(T)}, 1, v0\nv_lshl_add_u32 v2, {v(T)}, 5, v2\nv_lshrrev_b32 {v(T)}, 5, v0\nv_lshl_add_u32 v2, {v(T)}, 4, v2")
        A.e(f"v_lshlrev_b32 v23, 4, {v(T)}")
        A.e(f"s_mul_i32 s22, s{SW}, {32 * KP_STRIDE}\ns_lshl_b32 s23, s17, 6\ns_add_u32 s22, s22, s23")
        A.e("s_waitcnt lgkmcnt(0)")

    def p3(self):
        A = self.A
        LY = self.o.get("p3_lds", 139264); LN = LY + 16384
        mimic = self.o.get("mimic", True)
        T, XR = 96, 24
        A8, BR, BI, TC, TS, CC, CS = 40, 44, 52, 60, 76, 104, 112
        RB = 4
        for b in range(2):
            A.e(f"buffer_load_dwordx4 {v(RB + 4*b, 4)}, v2, s[8:11], s22 offen {SC}")
            A.e(f"s_add_u32 s22, s22, {16 * KP_STRIDE}")
        A.e(f"s_lshl_b32 s22, s17, 5\ns_add_u32 s22, s22, {256 * KP_STRIDE}")
        A.e(f"buffer_load_dwordx4 {v(12, 4)}, v23, s[8:11], s22 offen {SC}")
        DR, AD, OV = 144, 212, 120
        A.e(f"v_lshrrev_b32 {v(T)}, 5, v0\nv_lshlrev_b32 {v(AD)}, 13, {v(T)}")
        A.e(f"v_and_b32 {v(T)}, 31, v0\nv_lshl_add_u32 {v(AD)}, {v(T)}, 6, {v(AD)}")
        A.e(f"s_lshr_b32 s24, s{SW}, 1\nv_bfe_u32 {v(T)}, v0, 2, 2\nv_xor_b32 {v(T)}, s24, {v(T)}\nv_lshl_add_u32 {v(AD)}, {v(T)}, 4, {v(AD)}")
        A.e(f"s_and_b32 s24, s{SW}, 1\ns_lshl_b32 s24, s24, 3\ns_add_u32 s24, s24, {LY}\nv_add_u32 {v(AD)}, s24, {v(AD)}")
        for b in range(3):
            A.e(f"s_waitcnt vmcnt({2 - b})")
            A.e(f"{MF32} {v(DR + 16*b, 16)}, {v(A8,4)}, {v(RB + 4*b, 4)}, 0")
        self.pf_point("F")
        nop(A, 12)
        for b in range(2):
            for n in range(4):
                A.e(f"v_cvt_pk_bf16_f32 {v(OV + 4*b + n)}, {v(DR + 16*b + 2*n)}, {v(DR + 16*b + 2*n + 1)}")
        l0 = A.newlabel("p3dc"); l1 = A.newlabel("p3ny")
        A.e(f"s_cmp_lg_u32 s{SW}, 0\ns_cbranch_scc1 {l0}")
        A.e("s_mov_b32 exec_lo, 1\ns_mov_b32 exec_hi, 1")
        for n in range(4):
            A.e(f"v_mul_f32 {v(T)}, 0.5, {v(DR + 2*n)}\nv_cvt_pk_bf16_f32 {v(OV + n)}, {v(T)}, 0")
        A.e("s_mov_b64 exec, -1")
        A.label(l0)
        A.e(f"s_cmp_lg_u32 s{SW}, 7\ns_cbranch_scc1 {l1}")
        for n in range(4):
            A.e(f"v_mul_f32 {v(T+2+n)}, 0.5, {v(DR + 32 + 2*n)}")
        A.e(f"v_add_u32 {v(T+1)}, {LN}, v23")
        A.e("s_mov_b32 exec_lo, 1\ns_mov_b32 exec_hi, 1")
        A.e(f"ds_write_b128 {v(T+1)}, {v(T+2, 4)}")
        A.e("s_mov_b64 exec, -1")
        A.label(l1)
        for b in range(2):
            for n in range(4):
                A.e(f"ds_write_b32 {v(AD)}, {v(OV + 4*b + n)} offset:{2048*n + 4*b}")
        A.e("s_waitcnt lgkmcnt(0)\ns_barrier")
        self.stamp("p3.radix8")
        TA, TB = T, T + 1
        A.e(f"v_and_b32 {v(T+2)}, 31, v0\nv_lshlrev_b32 {v(TA)}, 6, {v(T+2)}\ns_lshl_b32 s22, s{SW}, 11\ns_add_u32 s22, s22, {LY}\nv_add_u32 {v(TA)}, s22, {v(TA)}")
        A.e(f"v_lshrrev_b32 {v(T+2)}, 5, v0\nv_bfe_u32 {v(T+3)}, v0, 2, 2\nv_xor_b32 {v(T+2)}, {v(T+2)}, {v(T+3)}")
        A.e(f"v_xor_b32 {v(T+3)}, 2, {v(T+2)}")
        A.e(f"v_lshl_add_u32 {v(TB)}, {v(T+3)}, 4, {v(TA)}\nv_lshl_add_u32 {v(TA)}, {v(T+2)}, 4, {v(TA)}")
        AF, NY, SG = 120, 136, 138
        A.e(f"ds_read_b128 {v(AF, 4)}, {v(TA)}\nds_read_b128 {v(AF + 4, 4)}, {v(TB)}")
        A.e(f"s_lshl_b32 s22, s{SW}, 2\ns_add_u32 s22, s22, {LN}\nv_mov_b32 {v(T+2)}, s22")
        A.e(f"ds_read_b32 {v(NY)}, {v(T+2)}")
        A.e(f"v_and_b32 {v(SG)}, 1, v0\nv_cvt_f32_u32 {v(SG)}, {v(SG)}\nv_fma_f32 {v(SG)}, {v(SG)}, -2.0, 1.0")
        A.e(f"v_cmp_gt_u32 vcc, 32, v0\ns_nop 1\nv_cndmask_b32 {v(SG)}, 0, {v(SG)}, vcc")
        for t in range(2):
            A.e(f"s_waitcnt lgkmcnt({2 - t})")
            for im, Bf in ((0, BR), (1, BI)):
                d = DR + 16*im
                A.e(f"{MF32} {v(d,16)}, {v(AF + 4*t, 4)}, {v(Bf + 4*t, 4)}, {v(d,16) if t else '0'}")
        A.e("s_waitcnt lgkmcnt(0)")
        TP, W0 = 4, 208
        nop(A, 11)
        dre, dim = DR, DR + 16
        A.e(f"v_fma_f32 {v(dre)}, {v(SG)}, {v(NY)}, {v(dre)}")
        for p in range(8):
            c, sn = TC + 2*p, TS + 2*p
            A.e(f"v_pk_mul_f32 {v(W0,2)}, {v(dre + 2*p,2)}, {v(c,2)}")
            A.e(f"v_pk_mul_f32 {v(W0+2,2)}, {v(dim + 2*p,2)}, {v(c,2)}")
            A.e(f"v_pk_fma_f32 {v(W0,2)}, {v(dim + 2*p,2)}, {v(sn,2)}, {v(W0,2)} neg_lo:[1,0,0] neg_hi:[1,0,0]")
            A.e(f"v_pk_fma_f32 {v(W0+2,2)}, {v(dre + 2*p,2)}, {v(sn,2)}, {v(W0+2,2)}")
            A.e(f"v_cvt_pk_bf16_f32 {v(TP + p)}, {v(W0)}, {v(W0+1)}")
            A.e(f"v_cvt_pk_bf16_f32 {v(TP + 8 + p)}, {v(W0+2)}, {v(W0+3)}")
        A.e("s_nop 1")
        d, tre, tim = DR, TP, TP + 8
        A.e(f"{MF32} {v(d,16)}, {v(tre,4)}, {v(CC,4)}, 0")
        A.e(f"{MF32} {v(d,16)}, {v(tre+4,4)}, {v(CC+4,4)}, {v(d,16)}")
        A.e(f"{MF32} {v(d,16)}, {v(tim,4)}, {v(CS,4)}, {v(d,16)}")
        A.e(f"{MF32} {v(d,16)}, {v(tim+4,4)}, {v(CS+4,4)}, {v(d,16)}")
        A.e("s_mov_b32 s26, 0xffff0000")
        A.e(f"s_mov_b32 s44, {hex(f2u(2.0**-20))}\ns_mov_b32 s45, {hex(f2u(2.0**-20))}")
        hf, ST, HP, LP = DR + 16, 120, 4, 32
        for n in range(8):
            A.e(f"v_lshlrev_b32 {v(hf + 2*n)}, 16, {v(XR + n)}\nv_and_b32 {v(hf + 2*n + 1)}, s26, {v(XR + n)}")
        for n in range(8):
            A.e(f"v_pk_mul_f32 {v(d + 2*n,2)}, {v(d + 2*n,2)}, s[44:45]")
            if mimic:
                A.e(f"v_cvt_pk_bf16_f32 {v(W0)}, {v(d + 2*n)}, {v(d + 2*n + 1)}")
                A.e(f"v_lshlrev_b32 {v(d + 2*n)}, 16, {v(W0)}\nv_and_b32 {v(d + 2*n + 1)}, s26, {v(W0)}")
            A.e(f"v_pk_add_f32 {v(hf + 2*n,2)}, {v(hf + 2*n,2)}, {v(d + 2*n,2)}")
            A.e(f"v_cvt_pk_bf16_f32 {v(HP + n)}, {v(hf + 2*n)}, {v(hf + 2*n + 1)}")
            A.e(f"v_lshlrev_b32 {v(hf + 2*n)}, 16, {v(HP + n)}\nv_and_b32 {v(hf + 2*n + 1)}, s26, {v(HP + n)}")
        sp, qp = ST + 4, ST + 6
        A.e(f"v_pk_add_f32 {v(sp,2)}, {v(hf,2)}, {v(hf+2,2)}\nv_pk_mul_f32 {v(qp,2)}, {v(hf,2)}, {v(hf,2)}")
        for n in range(1, 8):
            if n >= 2: A.e(f"v_pk_add_f32 {v(sp,2)}, {v(sp,2)}, {v(hf+2*n,2)}")
            A.e(f"v_pk_fma_f32 {v(qp,2)}, {v(hf+2*n,2)}, {v(hf+2*n,2)}, {v(qp,2)}")
        A.e(f"v_add_f32 {v(ST)}, {v(sp)}, {v(sp+1)}\nv_add_f32 {v(ST+1)}, {v(qp)}, {v(qp+1)}")
        WA_, RA_, GA_ = 212, 216, 217
        A.e(f"s_lshl_b32 s22, s{SW}, 11\ns_add_u32 s22, s22, {LY}")
        A.e(f"v_and_b32 {v(T)}, 31, v0\nv_lshlrev_b32 {v(T+1)}, 6, {v(T)}\nv_lshrrev_b32 {v(T+2)}, 5, v0\nv_lshl_add_u32 {v(T+1)}, {v(T+2)}, 3, {v(T+1)}\nv_add_u32 {v(T+1)}, s22, {v(T+1)}")
        A.e(f"v_bfe_u32 {v(T)}, v0, 1, 2")
        for q in range(4):
            A.e(f"v_xor_b32 {v(T+2)}, {q}, {v(T)}\nv_lshl_add_u32 {v(WA_ + q)}, {v(T+2)}, 4, {v(T+1)}")
        A.e(f"v_lshrrev_b32 {v(T)}, 2, v0\nv_lshlrev_b32 {v(RA_)}, 6, {v(T)}\nv_bfe_u32 {v(T)}, v0, 3, 2\nv_and_b32 {v(T+1)}, 3, v0\nv_xor_b32 {v(T)}, {v(T)}, {v(T+1)}\nv_lshl_add_u32 {v(RA_)}, {v(T)}, 4, {v(RA_)}\nv_add_u32 {v(RA_)}, s22, {v(RA_)}")
        A.e(f"v_lshlrev_b32 {v(GA_)}, 4, v0")
        def row_store(src, srd, tmp):
            for q in range(4):
                A.e(f"ds_write_b64 {v(WA_ + q)}, {v(src + 2*q, 2)}")
            for n in range(2):
                A.e(f"ds_read_b128 {v(tmp + 4*n, 4)}, {v(RA_)} offset:{1024*n}")
            for n in range(2):
                A.e(f"s_waitcnt lgkmcnt({1 - n})")
                A.e(f"buffer_store_dwordx4 {v(tmp + 4*n, 4)}, {v(GA_)}, {s(srd,4)}, s18 offen offset:{1024*n} {SC}")
        row_reduce(A, [ST, ST + 1], ST + 12)
        ln_stats(A, ST, ST + 1, D)
        A.e(f"v_sub_f32 {v(ST+4)}, 0, {v(ST)}\nv_mov_b32 {v(ST+5)}, {v(ST+4)}\nv_mov_b32 {v(ST+6)}, {v(ST+1)}\nv_mov_b32 {v(ST+7)}, {v(ST+1)}")
        for n in range(8):
            f = hf + 2*n
            A.e(f"v_pk_add_f32 {v(f,2)}, {v(f,2)}, {v(ST+4,2)}")
            if mimic:
                A.e(f"v_cvt_pk_bf16_f32 {v(W0)}, {v(f)}, {v(f+1)}")
                A.e(f"v_lshlrev_b32 {v(f)}, 16, {v(W0)}\nv_and_b32 {v(f+1)}, s26, {v(W0)}")
            A.e(f"v_pk_mul_f32 {v(f,2)}, {v(f,2)}, {v(ST+6,2)}")
            A.e(f"v_cvt_pk_bf16_f32 {v(LP + n)}, {v(f)}, {v(f+1)}")
        row_store(LP, 48, 12)
        row_store(HP, 12, 20 if False else 120)

    def gemm_phase(self, G, b, tilemap, early, pre_last, epilogue, vb=1, ptail=None, cvb=3, idle=None):
        A = self.A
        skip = A.newlabel(G.name + "_skip"); cons = A.newlabel(G.name + "_cons"); end = A.newlabel(G.name + "_end")
        tilemap(skip)
        A.e(f"s_cmp_lt_u32 s{SW}, 4\ns_cbranch_scc1 {cons}")
        A.e(f"s_sub_u32 s25, s{SW}, 4")
        G.emit_producer_setup(0, vb)
        G.emit_producer_run(early=early if self.o.get("early", True) else None, gate=lambda: A.e("s_barrier"))
        if ptail: ptail()
        A.e(f"s_branch {end}")
        A.label(cons)
        G.emit_consumer_pre(0, cvb)
        self.poll(b)
        A.e("s_barrier")
        self.stamp(G.name + ".start")
        G.emit_consumer_run(pre_last)
        self.stamp(G.name + ".loop")
        epilogue()
        A.e(f"s_branch {end}")
        A.label(skip)
        if idle: idle()
        A.label(end)

    def tilemap_16x14(self, skip):
        A = self.A
        A.e("s_and_b32 s3, s2, 7\ns_lshr_b32 s29, s2, 3")
        A.e(f"s_cmp_ge_u32 s29, 28\ns_cbranch_scc1 {skip}")
        A.e("s_and_b32 s18, s3, 3\ns_lshl_b32 s18, s18, 2\ns_and_b32 s23, s29, 3\ns_add_u32 s18, s18, s23\ns_mov_b32 s40, s18\ns_lshl_b32 s18, s18, 7")
        A.e("s_lshr_b32 s17, s3, 2\ns_mul_i32 s17, s17, 7\ns_lshr_b32 s23, s29, 2\ns_add_u32 s17, s17, s23\ns_mov_b32 s41, s17\ns_lshl_b32 s17, s17, 7")

    ZP = 16

    def p4(self):
        A = self.A
        NS = self.o.get("NS1", 3)
        X = Op('ks', 256, F * 2, 4); X.segmap = FH * 2; X.xorfam = True
        Y = Op('kc', 128, D * 2, 8); Y.aux = SC
        G = Gemm(A, "g1", D, NS, X, Y, 2, 2, **self.o.get("g1", {}))
        def tilemap(skip):
            self.tilemap_16x14(skip)
            srd_from(A, 4, PWIN, 0, D * F * 2)
            srd_from(A, 8, PWS, WS_LN2, S * D * 2)
        def idle():
            if not self.o.get("pf", True): return
            A.e("s_sub_u32 s23, s29, 28\ns_lshl_b32 s24, s3, 2\ns_add_u32 s23, s23, s24")
            A.e(f"v_lshl_add_u32 v4, s{SW}, 6, v0\nv_lshlrev_b32 v4, 4, v4")
            for ptr, nbytes in ((PWSP, S * S * 2), (PWOUT, FH * D * 2)):
                per = nbytes // 32; n = (per + 8191) // 8192
                srd_from(A, 56, ptr, 0, nbytes)
                lp = A.newlabel("pfl")
                A.e(f"s_mul_i32 s54, s23, {per}\ns_mov_b32 s55, {n}")
                A.label(lp)
                A.e(f"buffer_load_dwordx4 v[8:11], v4, s[56:59], s54 offen\ns_add_u32 s54, s54, 8192")
                A.e(f"s_waitcnt vmcnt({self.o.get('pfq', 6)})\ns_sub_u32 s55, s55, 1\ns_cmp_lg_u32 s55, 0\ns_cbranch_scc1 {lp}")
        def epi():
            TX, TY = G.TX, G.TY
            assert G.set0 == 16 and G.accb == 112, (G.set0, G.accb)
            ZP = self.ZP; T = 48
            A.e(f"s_mov_b32 s44, {f2u(GK1)}\ns_mov_b32 s45, {f2u(GK1)}\ns_mov_b32 s46, {f2u(GK2)}\ns_mov_b32 s47, {f2u(GK2)}")
            A.e(f"v_mov_b32 {v(T+8)}, s44\nv_mov_b32 {v(T+9)}, s45")
            SP = 64
            for n in range(16): A.e(f"v_mov_b32 {v(SP + n)}, 0")
            A.e("s_nop 3")
            def accq(i, j): return G.accb + 4 * (i * TY + j)
            def gelu(i, j):
                a0 = accq(i, j)
                for hh in (0, 2): A.e(f"v_pk_mul_f32 {v(T+hh,2)}, {v(a0+hh,2)}, {v(a0+hh,2)}")
                for hh in (0, 2): A.e(f"v_pk_fma_f32 {v(T+hh,2)}, {v(T+hh,2)}, s[46:47], {v(T+8,2)}")
                for hh in (0, 2): A.e(f"v_pk_mul_f32 {v(T+hh,2)}, {v(T+hh,2)}, {v(a0+hh,2)}")
                for r in range(4): A.e(f"v_exp_f32 {v(T+r)}, {v(T+r)}")
                A.e("s_nop 0")
                for hh in (0, 2): A.e(f"v_pk_add_f32 {v(T+hh,2)}, {v(T+hh,2)}, 1.0 op_sel_hi:[1,0]")
                for r in range(4): A.e(f"v_rcp_f32 {v(T+r)}, {v(T+r)}")
                A.e("s_nop 0")
                for hh in (0, 2): A.e(f"v_pk_mul_f32 {v(a0+hh,2)}, {v(a0+hh,2)}, {v(T+hh,2)}")
            for j in range(TY):
                for i in range(4, 8):
                    gelu(i, j)
                    a0 = accq(i, j)
                    for hh in (0, 2):
                        A.e(f"v_pk_add_f32 {v(SP + 2*j, 2)}, {v(SP + 2*j, 2)}, {v(a0+hh,2)}")
                        A.e(f"v_pk_fma_f32 {v(SP + 8 + 2*j, 2)}, {v(a0+hh,2)}, {v(a0+hh,2)}, {v(SP + 8 + 2*j, 2)}")
            R = 80; vt, va = 96, 97
            for j in range(TY):
                A.e(f"v_add_f32 {v(R + j)}, {v(SP + 2*j)}, {v(SP + 2*j + 1)}")
                A.e(f"v_add_f32 {v(R + 4 + j)}, {v(SP + 8 + 2*j)}, {v(SP + 8 + 2*j + 1)}")
            group_reduce(A, [R + n for n in range(8)], R + 8)
            A.e(f"v_cmp_le_u32 vcc, 16, v0\ns_nop 1")
            P4 = R + 8
            A.e(f"v_cndmask_b32 {v(P4)}, {v(R)}, {v(R + 2)}, vcc\nv_cndmask_b32 {v(P4 + 1)}, {v(R + 4)}, {v(R + 6)}, vcc")
            A.e(f"v_cndmask_b32 {v(P4 + 2)}, {v(R + 1)}, {v(R + 3)}, vcc\nv_cndmask_b32 {v(P4 + 3)}, {v(R + 5)}, {v(R + 7)}, vcc")
            srd_from(A, 36, PWS, WS_ST, 524288)
            A.e(f"s_lshl_b32 s23, s40, 1\ns_add_u32 s23, s23, s28\ns_mul_i32 s23, s23, {28 * 512}")
            A.e("s_lshl_b32 s24, s41, 1\ns_add_u32 s24, s24, s27\ns_lshl_b32 s24, s24, 9\ns_add_u32 s24, s24, s23")
            A.e(f"v_lshlrev_b32 v1, 4, v0\ns_mov_b32 exec_hi, 0")
            A.e(f"buffer_store_dwordx4 {v(P4,4)}, v1, s[36:39], s24 offen {SC}")
            A.e("s_mov_b32 exec_hi, -1")
            A.e("v_and_b32 v1, 15, v0\nv_lshlrev_b32 v1, 4, v1\nv_bfe_u32 v2, v0, 4, 1\nv_lshl_add_u32 v1, v2, 3, v1\nv_lshrrev_b32 v2, 5, v0\nv_lshl_add_u32 v1, v2, 8, v1")
            self.stamp("g1.z2")
            for j in range(TY):
                for i in range(4):
                    gelu(i, j)
                    a0 = accq(i, j); z = ZP + 2 * (4 * j + i)
                    A.e(f"v_cvt_pk_bf16_f32 {v(z)}, {v(a0)}, {v(a0+1)}\nv_cvt_pk_bf16_f32 {v(z+1)}, {v(a0+2)}, {v(a0+3)}")
            self.stamp("g1.z1")
            A.e("v_and_b32 v2, 31, v0\nv_min_u32 v2, 27, v2\nv_lshlrev_b32 v2, 9, v2")
            Q = 56
            pl = A.newlabel("g1poll"); pd = A.newlabel("g1polld"); pf = A.newlabel("g1fetch")
            A.e("s_mov_b32 s42, 0x20000\ns_add_u32 s48, s23, 4096\ns_add_u32 s49, s23, 8192\ns_add_u32 s50, s23, 12288")
            A.e(f"s_branch {pf}")
            A.label(pl)
            A.e(f"buffer_load_dword {v(Q)}, v2, s[36:39], s23 offen offset:504 {SC}\ns_waitcnt vmcnt(0)")
            A.e(f"v_cmp_eq_u32 vcc, -1, {v(Q)}")
            A.e(f"s_sub_u32 s42, s42, 1\ns_cbranch_scc1 {pf}")
            A.e(f"s_cmp_eq_u64 vcc, 0\ns_cbranch_scc1 {pf}")
            A.e(f"s_sleep 1\ns_branch {pl}")
            A.label(pf)
            for p in range(28):
                so = ("s23", "s48", "s49", "s50")[p >> 3]
                A.e(f"buffer_load_dwordx2 {v(Q + 2*p, 2)}, v1, s[36:39], {so} offen offset:{512 * (p & 7)} {SC}")
            A.e("s_waitcnt vmcnt(0)")
            A.e(f"v_max_u32 v3, {v(Q)}, {v(Q+1)}")
            for n in range(2, 56, 2):
                A.e(f"v_max3_u32 v3, v3, {v(Q+n)}, {v(Q+n+1)}")
            A.e(f"v_cmp_eq_u32 vcc, -1, v3")
            A.e(f"s_sub_u32 s42, s42, 1\ns_cbranch_scc1 {pd}")
            A.e(f"s_cmp_eq_u64 vcc, 0\ns_cbranch_scc0 {pl}")
            A.label(pd)
            self.stamp("g1.xchg")
            n = 28
            while n > 1:
                hi = n // 2
                for p in range(hi):
                    A.e(f"v_pk_add_f32 {v(Q + 2*p, 2)}, {v(Q + 2*p, 2)}, {v(Q + 2*(n - 1 - p), 2)}")
                n -= hi
            m, q = Q, Q + 1
            A.e(f"s_mov_b32 s44, {f2u(1.0 / FH)}\ns_mov_b32 s45, {f2u(1e-5)}")
            A.e(f"v_mul_f32 {v(m)}, s44, {v(m)}\nv_mul_f32 {v(q)}, s44, {v(q)}")
            A.e(f"v_fma_f32 {v(q)}, -{v(m)}, {v(m)}, {v(q)}\nv_max_f32 {v(q)}, 0, {v(q)}")
            bf16_round(A, m); bf16_round(A, q)
            A.e(f"v_add_f32 {v(q)}, s45, {v(q)}")
            bf16_round(A, q)
            A.e(f"v_sqrt_f32 {v(q)}, {v(q)}\ns_nop 0")
            bf16_round(A, q)
            A.e(f"v_rcp_f32 {v(q)}, {v(q)}\ns_nop 0")
            A.e(f"v_sub_f32 {v(m)}, 0, {v(m)}")
            SP2 = 64
            for (src, dstb) in ((m, SP2), (q, SP2 + 8)):
                a, b_, a2, b2 = dstb, dstb + 2, dstb + 4, dstb + 6
                A.e(f"v_mov_b32 {v(a)}, {v(src)}\nv_mov_b32 {v(b_)}, {v(src)}\ns_nop 1")
                A.e(f"v_permlane16_swap_b32 {v(a)}, {v(b_)}")
                A.e(f"v_mov_b32 {v(a2)}, {v(a)}\nv_mov_b32 {v(b2)}, {v(b_)}\ns_nop 1")
                A.e(f"v_permlane32_swap_b32 {v(a)}, {v(a2)}\nv_permlane32_swap_b32 {v(b_)}, {v(b2)}")
                for x in (a, b_, a2, b2): A.e(f"v_mov_b32 {v(x + 1)}, {v(x)}")
            PK = 80
            def pk(i, j): return PK + 2 * (4 * j + i)
            srd_from(A, 12, PWS, WS_Z2, S * FH * 2)
            va2, T2 = 4, 6
            lane_out_offset(A, va2, va2 + 1, 18, 17, 28, 27, TY, 4, FH * 2)
            for j in range(TY):
                for i in range(4):
                    a0 = accq(i + 4, j)
                    for hh in (0, 2):
                        A.e(f"v_pk_add_f32 {v(a0+hh,2)}, {v(a0+hh,2)}, {v(SP2 + 2*j, 2)}")
                        A.e(f"v_pk_mul_f32 {v(a0+hh,2)}, {v(a0+hh,2)}, {v(SP2 + 8 + 2*j, 2)}")
                    A.e(f"v_cvt_pk_bf16_f32 {v(pk(i,j))}, {v(a0)}, {v(a0+1)}\nv_cvt_pk_bf16_f32 {v(pk(i,j)+1)}, {v(a0+2)}, {v(a0+3)}")
            swap_store(A, G, pk, T2, va2, 12, FH * 2, 4, TY, aux=SC)
        self.gemm_phase(G, 3, tilemap, X, None, epi, idle=idle)

    def p5(self):
        A = self.A
        NS = self.o.get("NS2", 4)
        X = Op('ks', 128, FH * 2, 4); Y = Op('kc', 128, S * 2, 8); X.aux = SC
        G = Gemm(A, "g2", S, NS, X, Y, 2, 2, **self.o.get("g2", {}))
        st = {}
        def tilemap(skip):
            self.tilemap_16x14(skip)
            srd_from(A, 4, PWS, WS_Z2, S * FH * 2)
            srd_from(A, 8, PWSP, 0, S * S * 2)
        def pre_last():
            ZB = G.vend
            srd_from(A, 36, PBSP, 0, S * 2)
            vb_ = ZB + 5
            A.e(f"s_lshl_b32 s23, s28, 6\ns_add_u32 s23, s23, s18")
            A.e(f"v_and_b32 {v(vb_)}, 15, v0\nv_add_u32 {v(vb_)}, s23, {v(vb_)}\nv_lshlrev_b32 {v(vb_)}, 1, {v(vb_)}")
            for j in range(4):
                A.e(f"buffer_load_ushort {v(ZB + j)}, {v(vb_)}, s[36:39], 0 offen offset:{32 * j}")
        def epi():
            ZB = G.vend; va = ZB + 4; T = ZB + 8; ZP = self.ZP
            srd_from(A, 12, PWS, WS_P, S * FH * 2)
            lane_out_offset(A, va, va + 1, 18, 17, 28, 27, 4, 4, FH * 2)
            A.e("s_waitcnt vmcnt(0)\ns_mov_b32 s26, 0xffff0000")
            for j in range(4): A.e(f"v_lshlrev_b32 {v(ZB + j)}, 16, {v(ZB + j)}")
            for j in range(4):
                for i in range(4):
                    a0 = G.accb + 4 * (i * 4 + j); z = ZP + 2 * (4 * j + i); bj = ZB + j
                    for r in range(4): A.e(f"v_add_f32 {v(a0 + r)}, {v(a0 + r)}, {v(bj)}")
                    A.e(f"v_lshlrev_b32 {v(T)}, 16, {v(z)}\nv_and_b32 {v(T+1)}, s26, {v(z)}")
                    A.e(f"v_lshlrev_b32 {v(T+2)}, 16, {v(z+1)}\nv_and_b32 {v(T+3)}, s26, {v(z+1)}")
                    A.e(f"v_pk_mul_f32 {v(a0,2)}, {v(a0,2)}, {v(T,2)}\nv_pk_mul_f32 {v(a0+2,2)}, {v(a0+2,2)}, {v(T+2,2)}")
                    A.e(f"v_cvt_pk_bf16_f32 {v(z)}, {v(a0)}, {v(a0+1)}\nv_cvt_pk_bf16_f32 {v(z+1)}, {v(a0+2)}, {v(a0+3)}")
            swap_store(A, G, lambda i, j: ZP + 2 * (4 * j + i), T, va, 12, FH * 2, 4, 4, aux=SC)
        self.gemm_phase(G, 4, tilemap, Y, pre_last, epi, cvb=48)

    def p6(self):
        A = self.A
        NS = self.o.get("NS3", 4); BN = 64
        X = Op('ks', BN, D * 2, 4); Y = Op('kc', 128, FH * 2, 8); Y.aux = SC
        G = Gemm(A, "g3", FH, NS, X, Y, 2, 2, **self.o.get("g3", {}))
        TX, TY = G.TX, G.TY
        st = {}; nq = TX * TY
        def tilemap(skip):
            A.e("s_and_b32 s3, s2, 7\ns_lshr_b32 s29, s2, 3")
            A.e("s_and_b32 s18, s3, 3\ns_lshl_b32 s18, s18, 2\ns_and_b32 s23, s29, 3\ns_add_u32 s18, s18, s23\ns_lshl_b32 s18, s18, 7")
            A.e(f"s_lshr_b32 s17, s3, 2\ns_mul_i32 s17, s17, 8\ns_lshr_b32 s23, s29, 2\ns_add_u32 s17, s17, s23\ns_mul_i32 s17, s17, {BN}")
            srd_from(A, 4, PWOUT, 0, FH * D * 2)
            srd_from(A, 8, PWS, WS_P, S * FH * 2)
        def pre_last():
            ZB = st['ZB'] = G.vend
            srd_from(A, 12, PWS, WS_H, S * D * 2)
            va, vb_ = ZB + 2 * nq, ZB + 2 * nq + 1
            lane_out_offset(A, va, vb_, 18, 17, 28, 27, TY, TX, D * 2)
            for j in range(TY):
                A.e(f"s_mov_b32 s24, {16 * j * D * 2}")
                for i in range(TX):
                    A.e(f"buffer_load_dwordx2 {v(ZB + 2 * (TX * j + i), 2)}, {v(va)}, s[12:15], s24 offen offset:{32 * i} {SC}")
        def epi():
            ZB = st['ZB']; va = ZB + 2 * nq
            srd_from(A, 12, POUT, 0, S * D * 2)
            A.e("s_nop 7\ns_waitcnt vmcnt(0)\ns_mov_b32 s26, 0xffff0000")
            T = (va + 2 + 1) // 2 * 2
            for j in range(TY):
                for i in range(TX):
                    a0 = G.accb + 4 * (i * TY + j); z = ZB + 2 * (TX * j + i)
                    A.e(f"v_lshlrev_b32 {v(T)}, 16, {v(z)}\nv_and_b32 {v(T+1)}, s26, {v(z)}")
                    A.e(f"v_lshlrev_b32 {v(T+2)}, 16, {v(z+1)}\nv_and_b32 {v(T+3)}, s26, {v(z+1)}")
                    A.e(f"v_pk_add_f32 {v(a0,2)}, {v(a0,2)}, {v(T,2)}\nv_pk_add_f32 {v(a0+2,2)}, {v(a0+2,2)}, {v(T+2,2)}")
                    A.e(f"v_cvt_pk_bf16_f32 {v(z)}, {v(a0)}, {v(a0+1)}\nv_cvt_pk_bf16_f32 {v(z+1)}, {v(a0+2)}, {v(a0+3)}")
            swap_store(A, G, lambda i, j: ZB + 2 * (TX * j + i), T, va, 12, D * 2, TX, TY)
        self.gemm_phase(G, 5, tilemap, X, pre_last, epi)

    def build(self, name):
        A = self.A
        kernel_header(A, name)
        done = "L_done"
        A.e("s_load_dwordx4 s[80:83], s[0:1], 0\ns_load_dwordx2 s[84:85], s[0:1], 16\ns_load_dwordx8 s[88:95], s[0:1], 32")
        A.e("s_load_dwordx4 s[96:99], s[0:1], 64\ns_load_dwordx2 s[30:31], s[0:1], 80")
        A.e(f"s_cmp_ge_u32 s2, 256\ns_cbranch_scc1 {done}")
        if self.o.get("scramble"):
            A.e("s_and_b32 s3, s2, 7\ns_lshl_b32 s3, s3, 5\ns_lshr_b32 s2, s2, 3\ns_or_b32 s2, s2, s3")
        A.e(f"v_mov_b32 v1, v0\nv_lshrrev_b32 v2, 6, v0\nv_and_b32 v0, 63, v0\ns_nop 0\nv_readfirstlane_b32 s{SW}, v2")
        if self.stamps: A.e("v_mov_b32 v255, 0")
        if self.o.get("codepf", True):
            A.e("s_getpc_b64 s[52:53]")
            A.label("L_pc")
            A.e(f"s_lshr_b32 s3, s2, 3\ns_lshl_b32 s3, s3, 3\ns_add_u32 s3, s3, s{SW}")
            A.e("s_mov_b32 s54, (L_done - L_pc) / 1024")
            lab = A.newlabel("cpf")
            A.e(f"s_cmp_ge_u32 s3, s54\ns_cbranch_scc1 {lab}")
            A.e("s_lshl_b32 s3, s3, 10\nv_lshl_add_u32 v2, v0, 4, s3")
            A.e("global_load_dwordx4 v[228:231], v2, s[52:53]")
            A.label(lab)
        A.e("s_waitcnt lgkmcnt(0)")
        self.stamp("start")
        self.p1(); self.stamp("p1.end")
        self.arrive(1); self.stamp("p1.arrived")
        self.pf_point("A")
        self.p2_pre(); self.stamp("p2.pre"); self.wait(1); self.stamp("b1")
        lb = A.newlabel("pfb"); A.e(f"s_cmp_eq_u32 s19, 2\ns_cbranch_scc1 {lb}"); self.pf_point("B"); A.label(lb)
        self.p2(); self.stamp("p2.end")
        self.arrive(2, nowait_ge=6); self.stamp("p2.arrived")
        self.pf_point("E")
        self.p3_pre(); self.stamp("p3.pre"); self.wait(2); self.stamp("b2")
        self.p3(); self.stamp("p3.end")
        self.arrive(3, keep=2); self.stamp("p3.arrived")
        self.p4(); self.stamp("p4.end")
        self.arrive(4); self.stamp("p4.arrived")
        self.p5(); self.stamp("p5.end")
        self.arrive(5); self.stamp("p5.arrived")
        self.p6()
        if self.stamps: A.e("s_waitcnt vmcnt(0)")
        self.stamp("p6.end")
        self.stamp_flush()
        A.label(done)
        A.e("s_endpgm")

HEADER = """Spectral (GFNet) block + gMLP block: one persistent gfx950 kernel (256 workgroups, one per CU), text emitted by the author's own generator scripts.
Kernarg: 0 A_x, 8 A_w_r, 16 A_w_i, 24 B_x (unused by the reference), 32 B_w_in, 40 B_w_sp, 48 B_b_sp, 56 B_w_out, 64 out, 72 debug, 80 ws
phase 1: LayerNorm + 1024-pt real FFT per row (32x32 MFMA DFT stages) + radix-8 step of the 2048-pt column FFT; re-tiles W
phase 2: 256-pt column FFT (16x16), multiply by W, inverse 256-pt FFT
phase 3: inverse radix-8 step, inverse 1024-pt real FFT, residual, LayerNorm
phase 4: z = gelu(ln2 @ w_in); LayerNorm of the second half (row statistics exchanged between workgroups)
phase 5: P = z1 * (w_sp @ z2n + b_sp)
phase 6: out = h + P @ w_out
Phases are separated by grid barriers (arrival counters: debug buffer for the first, workspace lines cleared in phase 1 for the others)."""
NAME = "sequential_preLN__spectral_gfnet__mixer_gmlp__prompt_kernel"

def build(opts=None):
    opts = opts or {}
    m = Mega(opts)
    m.build(NAME)
    lds = 163840
    out = ["; " + l for l in HEADER.split("\n")]
    out.append(f"; @launch grid=(256,1,1) block=(512,1,1) lds={lds}")
    out.append('.amdgcn_target "amdgcn-amd-amdhsa--gfx950"')
    out.append(".text")
    t = "\n".join(out) + "\n" + m.A.text() + '.section .rodata,"a"\n' + kernel_desc(NAME, 256)
    return t, m.stamp_names

if __name__ == "__main__":
    opts = json.loads(sys.argv[2]) if len(sys.argv) > 2 else {}
    t, names = build(opts)
    open(sys.argv[1], "w").write(t)
    print("bytes", len(t), "stamps", names)
```

```python
from asmlib import *
from banks import cycles

KS = 64

def sigma(RB, k):
    if RB in (256, 512): return (k & 3) | (((k >> 3) & 1) << 2)
    if RB == 448: return (k >> 3) & 1
    if RB == 128: return ((k >> 1) & 1) | (((k >> 3) & 1) << 1)
    raise ValueError(RB)

class Op:
    def __init__(self, kind, R, stride, srd):
        self.kind, self.R, self.stride, self.srd = kind, R, stride, srd
        self.bytes = R * KS * 2
        self.ndma = self.bytes // 1024
        self.RB = 2 * R if kind == 'ks' else 128
    def read_addr(self, lane, idx0, t, h, rd=0):
        if self.kind == 'kc':
            row = idx0 + 16 * t + (lane & 15)
            return row * 128 + (((4 * h + (lane >> 4)) ^ ((row >> 1) & 7)) * 16)
        G, r, c = lane >> 4, (lane >> 2) & 3, lane & 3
        k = 32 * h + 8 * G + 4 * rd + r
        u = idx0 // 16 + t
        return k * self.RB + ((2 * u + (c >> 1)) ^ (sigma(self.RB, k) << 1)) * 16 + (c & 1) * 8

def check_conflicts(op, origins, T):
    for idx0 in origins:
        for t in range(T):
            for h in range(2):
                if op.kind == 'kc':
                    a = [op.read_addr(l, idx0, t, h) for l in range(64)]
                    assert cycles(a, 'b128') == 4
                else:
                    for rd in range(2):
                        a = [op.read_addr(l, idx0, t, h, rd) for l in range(64)]
                        assert cycles(a, 'tr_b64') == 2, (op.RB, idx0, t, h, rd, cycles(a, 'tr_b64'))

class Gemm:
    def __init__(self, A, name, Ktot, NS, X, Y, WX, WY, mode='pc', no_mfma=False, no_dma=False, no_read=False, lds0=0, shadow=True, prio=0, rot=None, nobar=False, unroll=1):
        self.A, self.name, self.Ktot, self.NS, self.X, self.Y = A, name, Ktot, NS, X, Y
        self.WX, self.WY = WX, WY
        self.TX = X.R // 16 // WX
        self.TY = Y.R // 16 // WY
        self.nst = Ktot // KS
        self.slot = X.bytes + Y.bytes
        self.mode = mode
        self.lds0 = lds0
        self.shadow = shadow
        self.prio = prio
        self.rot = rot
        self.nobar = nobar
        self.unroll = unroll
        self.no_mfma, self.no_dma, self.no_read = no_mfma, no_dma, no_read
        self.nd = X.ndma + Y.ndma
        assert self.nd % 4 == 0
        self.P = self.nd // 4
        check_conflicts(X, [16 * self.TX * w for w in range(WX)], self.TX)
        check_conflicts(Y, [16 * self.TY * w for w in range(WY)], self.TY)
        assert self.NS * self.slot <= 163840

    S_WAVE, S_X0, S_Y0, S_SOX, S_SOY, S_SLOT, S_CNT, S_T0, S_T1, S_LW = 16, 17, 18, 19, 20, 21, 22, 23, 24, 25
    S_KX, S_KY = 42, 43

    def emit_dma_setup(self, vb, lane):
        A = self.A
        t0, t1, t2 = vb + self.P, vb + self.P + 1, vb + self.P + 2
        self.pieces = []
        X, Y = self.X, self.Y
        assert X.ndma % 4 == 0 and Y.ndma % 4 == 0
        n = 0
        for op in (X, Y):
            for jj in range(op.ndma // 4):
                dst = vb + n
                if getattr(op, 'tiled', False):
                    A.e(f"s_lshl_b32 {s(self.S_T0)}, {s(self.S_LW)}, 10")
                    A.e(f"s_add_u32 {s(self.S_T0)}, {s(self.S_T0)}, {4096 * jj}")
                    A.e(f"v_lshlrev_b32 {v(t0)}, 4, {v(lane)}")
                    A.e(f"v_add_u32 {v(dst)}, {s(self.S_T0)}, {v(t0)}")
                elif op.kind == 'kc':
                    A.e(f"s_and_b32 {s(self.S_T0)}, {s(self.S_LW)}, 1")
                    A.e(f"s_lshl_b32 {s(self.S_T0)}, {s(self.S_T0)}, 2")
                    A.e(f"v_lshrrev_b32 {v(t0)}, 4, {v(lane)}")
                    A.e(f"v_xor_b32 {v(t0)}, {s(self.S_T0)}, {v(t0)}")
                    A.e(f"v_and_b32 {v(t1)}, 7, {v(lane)}")
                    A.e(f"v_xor_b32 {v(t0)}, {v(t0)}, {v(t1)}")
                    A.e(f"v_lshlrev_b32 {v(t0)}, 4, {v(t0)}")
                    A.e(f"s_lshl_b32 {s(self.S_T0)}, {s(self.S_LW)}, 3")
                    A.e(f"s_add_u32 {s(self.S_T0)}, {s(self.S_T0)}, {32 * jj}")
                    A.e(f"v_lshrrev_b32 {v(t1)}, 3, {v(lane)}")
                    A.e(f"v_add_u32 {v(t1)}, {s(self.S_T0)}, {v(t1)}")
                    A.e(f"s_mov_b32 {s(self.S_T1)}, {op.stride}")
                    A.e(f"v_mul_lo_u32 {v(t1)}, {v(t1)}, {s(self.S_T1)}")
                    A.e(f"v_add_u32 {v(dst)}, {v(t0)}, {v(t1)}")
                else:
                    CPR = op.RB // 16
                    A.e(f"s_lshl_b32 {s(self.S_T0)}, {s(self.S_LW)}, 6")
                    A.e(f"s_add_u32 {s(self.S_T0)}, {s(self.S_T0)}, {256 * jj}")
                    A.e(f"v_add_u32 {v(t0)}, {s(self.S_T0)}, {v(lane)}")
                    if CPR & (CPR - 1) == 0:
                        sh = CPR.bit_length() - 1
                        A.e(f"v_lshrrev_b32 {v(t1)}, {sh}, {v(t0)}")
                        A.e(f"v_and_b32 {v(t0)}, {CPR - 1}, {v(t0)}")
                    else:
                        magic = (65536 + CPR - 1) // CPR
                        for p in range(64 * op.ndma):
                            assert (p * magic) >> 16 == p // CPR
                        A.e(f"v_mul_u32_u24 {v(t1)}, {magic}, {v(t0)}")
                        A.e(f"v_lshrrev_b32 {v(t1)}, 16, {v(t1)}")
                        A.e(f"v_mul_u32_u24 {v(t2)}, {CPR}, {v(t1)}")
                        A.e(f"v_sub_u32 {v(t0)}, {v(t0)}, {v(t2)}")
                    if op.RB in (256, 512):
                        A.e(f"v_and_b32 {v(t2)}, 3, {v(t1)}")
                        A.e(f"v_lshlrev_b32 {v(t2)}, 1, {v(t2)}")
                        A.e(f"v_xor_b32 {v(t0)}, {v(t0)}, {v(t2)}")
                        A.e(f"v_and_b32 {v(t2)}, 8, {v(t1)}")
                        A.e(f"v_xor_b32 {v(t0)}, {v(t0)}, {v(t2)}")
                    elif op.RB == 448:
                        A.e(f"v_lshrrev_b32 {v(t2)}, 2, {v(t1)}")
                        A.e(f"v_and_b32 {v(t2)}, 2, {v(t2)}")
                        A.e(f"v_xor_b32 {v(t0)}, {v(t0)}, {v(t2)}")
                    elif op.RB == 128:
                        A.e(f"v_and_b32 {v(t2)}, 2, {v(t1)}")
                        A.e(f"v_xor_b32 {v(t0)}, {v(t0)}, {v(t2)}")
                        A.e(f"v_lshrrev_b32 {v(t2)}, 1, {v(t1)}")
                        A.e(f"v_and_b32 {v(t2)}, 4, {v(t2)}")
                        A.e(f"v_xor_b32 {v(t0)}, {v(t0)}, {v(t2)}")
                    if getattr(op, 'segmap', None):
                        A.e(f"v_bfe_u32 {v(t2)}, {v(t0)}, 3, 1\nv_mul_u32_u24 {v(t2)}, {op.segmap}, {v(t2)}")
                        A.e(f"v_bfe_u32 {v(dst)}, {v(t0)}, 4, 1\nv_lshl_add_u32 {v(t2)}, {v(dst)}, 7, {v(t2)}")
                        A.e(f"v_and_b32 {v(t0)}, 7, {v(t0)}\nv_lshl_add_u32 {v(t0)}, {v(t0)}, 4, {v(t2)}")
                    else:
                        A.e(f"v_lshlrev_b32 {v(t0)}, 4, {v(t0)}")
                    A.e(f"s_mov_b32 {s(self.S_T1)}, {op.stride}")
                    A.e(f"v_mul_lo_u32 {v(t1)}, {v(t1)}, {s(self.S_T1)}")
                    A.e(f"v_add_u32 {v(dst)}, {v(t0)}, {v(t1)}")
                ldsoff = (0 if op is X else X.bytes) + 4096 * jj
                self.pieces.append((op, dst, ldsoff))
                n += 1

    def emit_dma_stage(self, sslot, only=None):
        groups = []
        for (op, vo, ldsoff) in self.pieces:
            if only is not None and op is not only: continue
            so = self.S_SOX if op is self.X else self.S_SOY
            aux = getattr(op, 'aux', '')
            g = [f"s_add_u32 m0, {s(sslot)}, {self.lds0 + ldsoff}", "s_nop 0",
                 f"buffer_load_dwordx4 {v(vo)}, {s(op.srd, 4)}, {s(so)} offen {aux} lds"]
            if self.no_dma: g = []
            groups.append(g)
        adv = []
        for op, so, kc, a in ((self.X, self.S_SOX, self.S_KX, self.advX), (self.Y, self.S_SOY, self.S_KY, self.advY)):
            if only is None or only is op:
                adv.append(f"s_add_u32 {s(so)}, {s(so)}, {a}")
                if self.rot:
                    adv += [f"s_add_u32 {s(kc)}, {s(kc)}, 1", f"s_cmp_eq_u32 {s(kc)}, {self.nst}",
                            f"s_cselect_b32 {s(self.S_T0)}, {a * self.nst}, 0", f"s_cselect_b32 {s(kc)}, 0, {s(kc)}",
                            f"s_sub_u32 {s(so)}, {s(so)}, {s(self.S_T0)}"]
        return groups, adv

    def adv(self, op):
        if getattr(op, 'tiled', False): return op.bytes
        return 128 if op.kind == 'kc' else KS * op.stride
    @property
    def advX(self): return self.adv(self.X)
    @property
    def advY(self): return self.adv(self.Y)

    def emit_soff_init(self):
        A = self.A
        for op, so, o in ((self.X, self.S_SOX, self.S_X0), (self.Y, self.S_SOY, self.S_Y0)):
            if getattr(op, 'base_sgpr', None) is not None:
                A.e(f"s_mov_b32 {s(so)}, {s(op.base_sgpr)}")
            elif getattr(op, 'tiled', False):
                A.e(f"s_mul_i32 {s(so)}, {s(o)}, {self.nst * op.bytes // op.R}")
            elif op.kind == 'kc':
                A.e(f"s_mul_i32 {s(so)}, {s(o)}, {op.stride}")
            else:
                A.e(f"s_lshl_b32 {s(so)}, {s(o)}, 1")

    def slot_next(self, sreg):
        return [f"s_add_u32 {s(sreg)}, {s(sreg)}, {self.slot}",
                f"s_cmp_ge_u32 {s(sreg)}, {s(self.S_T1)}",
                f"s_cselect_b32 {s(self.S_T0)}, {self.NS * self.slot}, 0",
                f"s_sub_u32 {s(sreg)}, {s(sreg)}, {s(self.S_T0)}"]

    def emit_producer_setup(self, lane, vb):
        A = self.A
        self.emit_dma_setup(vb, lane)
        self.emit_soff_init()
        if self.rot:
            a, b = self.rot
            A.e(f"s_and_b32 {s(self.S_T0)}, s29, 3\ns_mul_i32 {s(self.S_KX)}, {s(self.S_T0)}, {a}")
            A.e(f"s_lshr_b32 {s(self.S_T0)}, s29, 2\ns_mul_i32 {s(self.S_T0)}, {s(self.S_T0)}, {b}\ns_add_u32 {s(self.S_KX)}, {s(self.S_KX)}, {s(self.S_T0)}")
            A.e(f"s_cmp_ge_u32 {s(self.S_KX)}, {self.nst}\ns_cselect_b32 {s(self.S_T0)}, {self.nst}, 0\ns_sub_u32 {s(self.S_KX)}, {s(self.S_KX)}, {s(self.S_T0)}")
            A.e(f"s_mov_b32 {s(self.S_KY)}, {s(self.S_KX)}")
            A.e(f"s_mul_i32 {s(self.S_T0)}, {s(self.S_KX)}, {self.advX}\ns_add_u32 {s(self.S_SOX)}, {s(self.S_SOX)}, {s(self.S_T0)}")
            A.e(f"s_mul_i32 {s(self.S_T0)}, {s(self.S_KX)}, {self.advY}\ns_add_u32 {s(self.S_SOY)}, {s(self.S_SOY)}, {s(self.S_T0)}")
            assert 3 * a + 7 * b < 2 * self.nst
        SL = self.S_SLOT
        A.e(f"s_lshl_b32 {s(SL)}, {s(self.S_LW)}, 10")
        A.e(f"s_add_u32 {s(26)}, {s(SL)}, {self.NS * self.slot}")

    def _pstage(self, only=None):
        A, SL = self.A, self.S_SLOT
        groups, adv = self.emit_dma_stage(SL, only)
        for g in groups:
            for ln in g: A.e(ln)
        for ln in adv: A.e(ln)
        A.e(f"s_add_u32 {s(SL)}, {s(SL)}, {self.slot}")
        A.e(f"s_cmp_ge_u32 {s(SL)}, {s(26)}")
        A.e(f"s_cselect_b32 {s(self.S_T0)}, {self.NS * self.slot}, 0")
        A.e(f"s_sub_u32 {s(SL)}, {s(SL)}, {s(self.S_T0)}")

    def emit_producer_run(self, early=None, gate=None):
        A, P, NS, nst = self.A, self.P, self.NS, self.nst
        npro = min(NS, nst)
        assert npro == NS
        if early is None:
            if gate: gate()
            for i in range(npro): self._pstage()
            PL = P
        else:
            late = self.Y if early is self.X else self.X
            for i in range(npro): self._pstage(early)
            if gate: gate()
            for i in range(npro): self._pstage(late)
            PL = late.ndma // 4
        if self.no_dma: PL = P = 0
        A.e(f"s_waitcnt vmcnt({(npro - 1) * PL})")
        A.e("s_barrier")
        nsteady = nst - NS
        peel = min(NS - 1, nsteady) if early is not None else 0
        for b in range(1, peel + 1):
            A.e(f"s_waitcnt vmcnt({(npro - 1 - b) * PL + (b - 1) * P})")
            if not self.nobar: A.e("s_barrier")
            self._pstage()
        if nsteady - peel > 0:
            lp = A.newlabel(self.name + "_pl")
            A.e(f"s_mov_b32 {s(self.S_CNT)}, {nsteady - peel}")
            A.label(lp)
            A.e(f"s_waitcnt vmcnt({(NS - 2) * P})")
            if not self.nobar: A.e("s_barrier")
            self._pstage()
            A.e(f"s_sub_u32 {s(self.S_CNT)}, {s(self.S_CNT)}, 1")
            A.e(f"s_cmp_lg_u32 {s(self.S_CNT)}, 0")
            A.e(f"s_cbranch_scc1 {lp}")
        for b in range(nsteady + 1, nst):
            left = nst - 1 - b
            A.e(f"s_waitcnt vmcnt({min(left, NS - 2) * P})")
            if not self.nobar: A.e("s_barrier")

    def emit_producer(self, lane, vb):
        self.emit_producer_setup(lane, vb)
        self.emit_producer_run()

    def emit_consumer_setup(self, lane, vb):
        A, X, Y = self.A, self.X, self.Y
        self.addr = {}
        self.abase = []
        SWX, SWY = 27, 28
        A.e(f"s_and_b32 {s(SWX)}, {s(self.S_WAVE)}, {self.WX - 1}")
        A.e(f"s_lshr_b32 {s(SWY)}, {s(self.S_WAVE)}, {self.WX.bit_length() - 1}")
        nxt = vb
        t0, t1, t2, t3 = 0, 0, 0, 0
        plan = []
        for nm, op, T, W in (('X', X, self.TX, self.WX), ('Y', Y, self.TY, self.WY)):
            origins = [16 * T * w for w in range(W)]
            keys = []
            for t in range(T):
                for h in range(2):
                    for rd in (range(2) if op.kind == 'ks' else [0]):
                        vec = [[op.read_addr(l, o, t, h, rd) for l in range(64)] for o in origins]
                        found = None
                        if getattr(op, 'xorfam', False) and t > 0:
                            r0, d0 = self.addr[(nm, 0, h, rd)]
                            v0_ = [[op.read_addr(l, o, 0, h, rd) for l in range(64)] for o in origins]
                            assert all(vec[w][l] == (v0_[w][l] ^ (t << 5)) for w in range(W) for l in range(64))
                            self.addr[(nm, t, h, rd)] = (('x', r0, t), d0)
                            continue
                        for (kv, reg) in keys:
                            d = vec[0][0] - kv[0][0]
                            if d >= 0 and all(vec[w][l] - kv[w][l] == d for w in range(W) for l in range(64)):
                                found = (reg, d); break
                        if found is None:
                            reg = len(plan)
                            plan.append((nm, op, t, h, rd))
                            keys.append((vec, reg))
                            found = (reg, 0)
                        self.addr[(nm, t, h, rd)] = found
        nreg = len(plan)
        base0 = vb; cur0 = vb + nreg
        self.xor = {}
        for key, (reg, d) in list(self.addr.items()):
            if isinstance(reg, tuple):
                if (reg[1], reg[2]) not in self.xor: self.xor[(reg[1], reg[2])] = nreg + len(self.xor)
                self.addr[key] = (self.xor[(reg[1], reg[2])], d)
        tmp = vb + 2 * nreg + len(self.xor)
        a, b, c = tmp, tmp + 1, tmp + 2
        for i, (nm, op, t, h, rd) in enumerate(plan):
            dst = base0 + i
            T = self.TX if nm == 'X' else self.TY
            sw = SWX if nm == 'X' else SWY
            opoff = 0 if nm == 'X' else X.bytes
            if op.kind == 'kc':
                A.e(f"v_and_b32 {v(a)}, 15, {v(lane)}")
                A.e(f"v_lshrrev_b32 {v(b)}, 1, {v(a)}")
                A.e(f"v_lshrrev_b32 {v(c)}, 4, {v(lane)}")
                A.e(f"v_xor_b32 {v(b)}, {v(b)}, {v(c)}")
                if h: A.e(f"v_xor_b32 {v(b)}, 4, {v(b)}")
                A.e(f"v_lshlrev_b32 {v(b)}, 4, {v(b)}")
                A.e(f"v_lshlrev_b32 {v(a)}, 7, {v(a)}")
                A.e(f"v_add_u32 {v(a)}, {v(a)}, {v(b)}")
                A.e(f"s_mul_i32 {s(self.S_T0)}, {s(sw)}, {16 * T * 128}")
                A.e(f"s_add_u32 {s(self.S_T0)}, {s(self.S_T0)}, {opoff + t * 2048}")
                A.e(f"v_add_u32 {v(dst)}, {s(self.S_T0)}, {v(a)}")
            else:
                RB = op.RB
                A.e(f"v_lshrrev_b32 {v(a)}, 4, {v(lane)}")
                A.e(f"v_bfe_u32 {v(b)}, {v(lane)}, 2, 2")
                if RB in (256, 512):
                    A.e(f"v_and_b32 {v(c)}, 1, {v(a)}")
                    A.e(f"v_lshlrev_b32 {v(c)}, 2, {v(c)}")
                    A.e(f"v_or_b32 {v(c)}, {v(c)}, {v(b)}")
                elif RB == 448:
                    A.e(f"v_and_b32 {v(c)}, 1, {v(a)}")
                elif RB == 128:
                    A.e(f"v_and_b32 {v(c)}, 1, {v(a)}")
                    A.e(f"v_lshlrev_b32 {v(c)}, 1, {v(c)}")
                    A.e(f"v_lshrrev_b32 {v(dst)}, 1, {v(b)}")
                    A.e(f"v_or_b32 {v(c)}, {v(c)}, {v(dst)}")
                A.e(f"v_lshl_add_u32 {v(a)}, {v(a)}, 3, {v(b)}")
                A.e(f"s_mov_b32 {s(self.S_T1)}, {RB}")
                A.e(f"v_mul_lo_u32 {v(a)}, {v(a)}, {s(self.S_T1)}")
                A.e(f"s_mul_i32 {s(self.S_T0)}, {s(sw)}, {T}")
                A.e(f"s_add_u32 {s(self.S_T0)}, {s(self.S_T0)}, {t}")
                A.e(f"v_xor_b32 {v(c)}, {s(self.S_T0)}, {v(c)}")
                A.e(f"v_lshlrev_b32 {v(c)}, 5, {v(c)}")
                A.e(f"v_add_u32 {v(a)}, {v(a)}, {v(c)}")
                A.e(f"v_and_b32 {v(b)}, 3, {v(lane)}")
                A.e(f"v_lshlrev_b32 {v(b)}, 3, {v(b)}")
                A.e(f"v_add_u32 {v(a)}, {v(a)}, {v(b)}")
                A.e(f"v_add_u32 {v(dst)}, {opoff + (32 * h + 4 * rd) * RB}, {v(a)}")
        self.nab = nreg; self.base0 = base0; self.cur0 = cur0
        return tmp

    def reads(self, setbase, h):
        out = []
        X, Y = self.X, self.Y
        def one(nm, op, t, dst):
            if op.kind == 'kc':
                reg, imm = self.addr[(nm, t, h, 0)]
                return [f"ds_read_b128 {v(dst, 4)}, {v(self.cur0 + reg)} offset:{imm}"]
            res = []
            for rd in range(2):
                reg, imm = self.addr[(nm, t, h, rd)]
                res.append(f"ds_read_b64_tr_b16 {v(dst + 2 * rd, 2)}, {v(self.cur0 + reg)} offset:{imm}")
            return res
        xs = [one('X', X, t, setbase + 4 * t) for t in range(self.TX)]
        ys = [one('Y', Y, t, setbase + 4 * self.TX + 4 * t) for t in range(self.TY)]
        order = []
        order += ys[0] + xs[0]
        rest = ys[1:]
        for y in rest: order += y
        for x in xs[1:]: order += x
        if self.no_read: return []
        return order

    def mfmas(self, setbase):
        out = []
        for i in range(self.TX):
            for j in range(self.TY):
                a0 = self.accb + 4 * (i * self.TY + j)
                out.append(f"v_mfma_f32_16x16x32_bf16 {v(a0,4)}, {v(setbase + 4*i, 4)}, {v(setbase + 4*self.TX + 4*j, 4)}, {v(a0,4)}")
        if self.no_mfma: return []
        return out

    def interleave(self, mf, other, per=1, start=0):
        A = self.A
        o = list(other)
        if not mf:
            for ln in o: A.e(ln)
            return
        for n, m in enumerate(mf):
            A.e(m)
            if n >= start:
                for _ in range(per):
                    if o: A.e(o.pop(0))
        for ln in o: A.e(ln)

    def cur_update(self):
        out = [f"v_add_u32 {v(self.cur0 + i)}, {s(self.S_SLOT)}, {v(self.base0 + i)}" for i in range(self.nab)]
        out += [f"v_xor_b32 {v(self.cur0 + x)}, {t << 5}, {v(self.cur0 + r)}" for (r, t), x in self.xor.items()]
        return out

    def emit_consumer_pre(self, lane, vb, zero=True):
        A, NS = self.A, self.NS
        f = self.emit_consumer_setup(lane, vb)
        nfr = 4 * (self.TX + self.TY)
        set0 = (f + 3) // 4 * 4; set1 = set0 + nfr
        self.set0, self.set1 = set0, set1
        self.accb = set1 + nfr
        self.vend = self.accb + 4 * self.TX * self.TY
        if zero:
            for i in range(4 * self.TX * self.TY):
                A.e(f"v_mov_b32 {v(self.accb + i)}, 0")
        A.e(f"s_mov_b32 {s(self.S_SLOT)}, {self.lds0}")
        for ln in self.cur_update(): A.e(ln)

    def emit_consumer_run(self, pre_last=None, after_bar0=None):
        A, NS, nst = self.A, self.NS, self.nst
        set0, set1 = self.set0, self.set1
        SL = self.S_SLOT
        if self.prio: A.e(f"s_setprio {self.prio}")
        if getattr(self, 'stamp', None): self.stamp(0)
        A.e("s_barrier")
        if getattr(self, 'stamp', None): self.stamp(1)
        for ln in self.reads(set0, 0): A.e(ln)
        if after_bar0: after_bar0()
        A.e("s_waitcnt lgkmcnt(0)")
        lim = self.lds0 + NS * self.slot
        def body(last):
            sl = [] if last else [f"s_add_u32 {s(SL)}, {s(SL)}, {self.slot}",
                  f"s_cmp_ge_u32 {s(SL)}, {lim}",
                  f"s_cselect_b32 {s(self.S_T0)}, {NS * self.slot}, 0",
                  f"s_sub_u32 {s(SL)}, {s(SL)}, {s(self.S_T0)}"]
            shadow = self.shadow
            self.interleave(self.mfmas(set0), self.reads(set1, 1) + sl + (self.cur_update() if (shadow and not last) else []), per=2)
            A.e("s_waitcnt lgkmcnt(0)")
            if last:
                self.interleave(self.mfmas(set1), [])
                return
            if not shadow:
                for ln in self.cur_update(): A.e(ln)
            if not self.nobar: A.e("s_barrier")
            self.interleave(self.mfmas(set1), self.reads(set0, 0) + [f"s_sub_u32 {s(self.S_CNT)}, {s(self.S_CNT)}, 1"], per=2)
            A.e("s_waitcnt lgkmcnt(0)")
        lp = A.newlabel(self.name + "_cl")
        U = self.unroll
        for _ in range((nst - 1) % U): body(False)
        A.e(f"s_mov_b32 {s(self.S_CNT)}, {(nst - 1) // U * U}")
        A.label(lp)
        for _ in range(U): body(False)
        A.e(f"s_cmp_lg_u32 {s(self.S_CNT)}, 0")
        A.e(f"s_cbranch_scc1 {lp}")
        if pre_last: pre_last()
        body(True)
        if self.prio: A.e("s_setprio 0")

    def emit_consumer(self, lane, vb, pre_last=None):
        self.emit_consumer_pre(lane, vb)
        self.emit_consumer_run(pre_last)
```

```python
import sys, json
from asmlib import *
from layout import *
from gemm import *
from kern_gemm import (srd_from, swap_store, lane_out_offset, group_reduce, bf16_round, f2u, GK1, GK2)
from kern_fft import (nop, fconst, affine, cos_frag, row_reduce, ln_stats, twiddle_table, MF32, MF16)

PX, PWR, PWI, PWIN, PWSP, PBSP, PWOUT, POUT, PDBG, PWS = 80, 82, 84, 88, 90, 92, 94, 96, 98, 30
SW = 16
WS_CNT = 68 * MB
SC = "sc1"

class Mega:
    def __init__(self, opts):
        self.o = opts
        self.A = Asm()
        self.stamps = opts.get("stamps", False)
        self.nstamp = 0
        self.stamp_names = []
        self.PSTR = opts.get("pstr", FH * 2)
        self.ZSTR = opts.get("zstr", FH * 2)
        self.LSTR = opts.get("lstr", D * 2)

    def stamp(self, name):
        if not self.stamps: return
        A = self.A
        A.e("s_memrealtime s[100:101]\ns_waitcnt lgkmcnt(0)")
        A.e(f"v_writelane_b32 v255, s100, {self.nstamp}")
        self.stamp_names.append(name); self.nstamp += 1
        if self.o.get("clk") and (name.endswith(".start") or name.endswith(".loop") or name == "start"):
            A.e("s_memtime s[100:101]\ns_waitcnt lgkmcnt(0)")
            A.e(f"v_writelane_b32 v255, s100, {self.nstamp}")
            self.stamp_names.append(name + ".clk"); self.nstamp += 1
        assert self.nstamp <= 64

    def stamp_flush(self):
        if not self.stamps: return
        A = self.A
        lab = A.newlabel("tsf")
        A.e(f"s_cmp_lg_u32 s{SW}, {self.o.get('stamp_wave', 0)}\ns_cbranch_scc1 {lab}")
        srd_from(A, 64, PWS, WS_TS, 65536)
        A.e("v_mbcnt_lo_u32_b32 v0, -1, 0\nv_mbcnt_hi_u32_b32 v0, -1, v0\nv_lshlrev_b32 v0, 2, v0\ns_lshl_b32 s3, s2, 8")
        A.e("buffer_store_dword v255, v0, s[64:67], s3 offen")
        A.label(lab)

    def cnt_srd(self, b, dst):
        A = self.A
        srd_from(A, dst, PWS, WS_CNT + (b - 1) * 32768, 32768)
    def cnt_stride(self, b): return 256

    def arrive(self, b, nowait_ge=None, keep=0):
        A = self.A
        if nowait_ge is not None:
            lw = A.newlabel("nw")
            A.e(f"s_cmp_eq_u32 s19, 0\ns_cbranch_scc1 {lw}")
            A.e("s_waitcnt vmcnt(0)")
            A.label(lw)
            A.e("s_waitcnt lgkmcnt(0)\ns_barrier")
        else:
            A.e(f"s_waitcnt vmcnt({keep}) lgkmcnt(0)\ns_barrier")
        lab = A.newlabel("arr")
        A.e(f"s_cmp_lg_u32 s{SW}, 0\ns_cbranch_scc1 {lab}")
        if b == 1:
            g0 = A.newlabel("b0p"); g1 = A.newlabel("b0d")
            srd_from(A, 64, PDBG, 0, 256)
            A.e("s_mov_b32 s3, 0x20000\nv_mov_b32 v250, 0")
            A.label(g0)
            A.e("v_cmp_le_u32 vcc, 16, v252\ns_sub_u32 s3, s3, 1")
            A.e(f"s_cbranch_scc1 {g1}\ns_cmp_lg_u64 vcc, 0\ns_cbranch_scc1 {g1}")
            A.e(f"buffer_load_dword v252, v250, s[64:67], 0 offen {SC}\ns_waitcnt vmcnt(0)\ns_branch {g0}")
            A.label(g1)
        self.cnt_srd(b, 64)
        A.e(f"s_and_b32 s3, s2, 15\ns_lshl_b32 s3, s3, 8")
        A.e("v_lshlrev_b32 v250, 12, v0\nv_add_u32 v250, s3, v250\nv_mov_b32 v251, 1\ns_mov_b64 exec, 0xff")
        A.e(f"buffer_atomic_add v251, v250, s[64:67], 0 offen {SC}")
        A.e("s_mov_b64 exec, -1")
        A.label(lab)

    def arrive_group5(self):
        A = self.A
        A.e("s_waitcnt vmcnt(0) lgkmcnt(0)\ns_barrier")
        lab = A.newlabel("arr")
        A.e(f"s_cmp_lg_u32 s{SW}, 0\ns_cbranch_scc1 {lab}\ns_lshr_b32 s3, s2, 3\ns_cmp_ge_u32 s3, 28\ns_cbranch_scc1 {lab}")
        self.cnt_srd(5, 64)
        A.e("s_lshl_b32 s3, s40, 8\nv_mov_b32 v250, s3\nv_mov_b32 v251, 1\ns_mov_b64 exec, 1")
        A.e(f"buffer_atomic_add v251, v250, s[64:67], 0 offen {SC}")
        A.e("s_mov_b64 exec, -1")
        A.label(lab)

    def poll(self, b, vt=250):
        A = self.A
        lab = A.newlabel("pw"); lp = A.newlabel("pl"); ld = A.newlabel("pd")
        A.e(f"s_cmp_lg_u32 s{SW}, 0\ns_cbranch_scc1 {lab}")
        self.cnt_srd(b, 64)
        A.e(f"s_bfe_u32 s3, s2, 0x30004\ns_lshl_b32 s3, s3, 12\nv_and_b32 {v(vt)}, 15, v0\nv_lshlrev_b32 {v(vt)}, 8, {v(vt)}\nv_add_u32 {v(vt)}, s3, {v(vt)}")
        self.spin(vt, 16, lp, ld)
        A.label(lab)

    def spin(self, va, target, lp, ld):
        A = self.A
        n = self.o.get("npoll", 1)
        regs = [251, 253, 254][:n]
        A.e("s_mov_b32 s3, 0x20000")
        for i, r in enumerate(regs):
            if i: A.e(f"s_sleep {self.o.get('pspace', 10) // (n - 1) if n > 1 else 0}")
            A.e(f"buffer_load_dword {v(r)}, {v(va)}, s[64:67], 0 offen {SC}")
        A.label(lp)
        for i, r in enumerate(regs):
            A.e(f"s_waitcnt vmcnt({n - 1})")
            A.e(f"v_cmp_gt_u32 vcc, {target}, {v(r)}")
            A.e(f"s_sub_u32 s3, s3, 1\ns_cbranch_scc1 {ld}")
            A.e(f"s_cmp_eq_u64 vcc, 0\ns_cbranch_scc1 {ld}")
            if n == 1: A.e(f"s_sleep {self.o.get('sleep', 1)}")
            A.e(f"buffer_load_dword {v(r)}, {v(va)}, s[64:67], 0 offen {SC}")
        A.e(f"s_branch {lp}")
        A.label(ld)

    def wait(self, b, vt=250):
        self.poll(b, vt)
        self.A.e("s_barrier")

    def prefetch(self, ptr, nbytes, tidreg, nth, vtmp, who="s2", nwg=256, base="0"):
        A = self.A
        per = (nbytes + nwg - 1) // nwg
        n = (per + nth * 16 - 1) // (nth * 16)
        srd_from(A, 56, ptr, 0, nbytes)
        A.e(f"v_lshlrev_b32 {v(vtmp)}, 4, {v(tidreg)}\ns_mul_i32 s54, {who}, {per}")
        for i in range(n):
            A.e(f"buffer_load_dwordx4 {v(vtmp + 2, 4)}, {v(vtmp)}, s[56:59], s54 offen")
            if i + 1 < n: A.e(f"s_add_u32 s54, s54, {nth * 16}")
        return n

    def wg_index(self, dst):
        A = self.A
        A.e(f"s_and_b32 s{dst}, s2, 7\ns_lshl_b32 s{dst}, s{dst}, 1\ns_bfe_u32 s3, s2, 0x10003\ns_or_b32 s{dst}, s{dst}, s3\ns_and_b32 s3, s2, 0xf0\ns_or_b32 s{dst}, s{dst}, s3")

    TBL = 98304

    def gen_tables(self):
        A = self.A
        P, Q, K1F, HF, T, DQ, VT, LF, GF, RO = 92, 93, 94, 95, 96, 104, 108, 109, 110, 111
        A.e(f"v_lshlrev_b32 {v(VT)}, 4, v0\nv_add_u32 {v(VT)}, {self.TBL}, {v(VT)}")
        A.e(f"v_and_b32 {v(K1F)}, 31, v0\nv_cvt_f32_u32 {v(K1F)}, {v(K1F)}\nv_lshrrev_b32 {v(HF)}, 5, v0\nv_cvt_f32_u32 {v(HF)}, {v(HF)}")
        A.e(f"v_and_b32 {v(LF)}, 15, v0\nv_cvt_f32_u32 {v(LF)}, {v(LF)}\nv_lshrrev_b32 {v(GF)}, 4, v0\nv_cvt_f32_u32 {v(GF)}, {v(GF)}")
        par = [0]
        def put(q, reg): A.e(f"ds_write_b128 {v(VT)}, {v(reg, 4)} offset:{q * 1024}")
        def frag(q, co, of):
            d = DQ + 8 + 4 * (par[0] & 1); par[0] += 1
            cos_frag(A, d, P, Q, co, of, T); put(q, d)
        def fam(pexpr, qmul, src=K1F, hsrc=HF):
            A.e(f"v_mul_f32 {v(P)}, {fconst(A, pexpr)}, {v(src)}\nv_mul_f32 {v(Q)}, {fconst(A, qmul)}, {v(hsrc)}\nv_mul_f32 {v(Q)}, {v(Q)}, {v(P)}")
        def F3():
            A.e(f"v_bfe_u32 {v(P)}, v0, 1, 4\nv_cvt_f32_u32 {v(P)}, {v(P)}\nv_mul_f32 {v(P)}, {fconst(A, 1/32)}, {v(P)}")
            A.e(f"v_and_b32 {v(T)}, 1, v0\nv_cvt_f32_u32 {v(T)}, {v(T)}\nv_mul_f32 {v(T)}, {fconst(A, 0.25)}, {v(T)}")
            A.e(f"v_mul_f32 {v(Q)}, 4.0, {v(HF)}\nv_fma_f32 {v(Q)}, {v(Q)}, {v(P)}, {v(T)}")
        def idx8():
            A.e(f"v_bfe_u32 {v(T)}, v0, 2, 1\nv_lshlrev_b32 {v(T)}, 2, {v(T)}")
            A.e(f"v_bfe_u32 {v(T+1)}, v0, 3, 1\nv_lshl_add_u32 {v(T)}, {v(T+1)}, 1, {v(T)}")
            A.e(f"v_bfe_u32 {v(T+1)}, v0, 1, 1\nv_add_u32 {v(T)}, {v(T)}, {v(T+1)}\nv_cvt_f32_u32 {v(T)}, {v(T)}")
        def F4():
            idx8()
            A.e(f"v_mul_f32 {v(P)}, {fconst(A, 0.125)}, {v(T)}")
            A.e(f"v_cvt_f32_u32 {v(T+1)}, s17\nv_mul_f32 {v(T+1)}, {fconst(A, 1/2048)}, {v(T+1)}\nv_mul_f32 {v(Q)}, {v(T)}, {v(T+1)}")
            A.e(f"v_and_b32 {v(T+1)}, 1, v0\nv_cvt_f32_u32 {v(T+1)}, {v(T+1)}\nv_fmamk_f32 {v(Q)}, {v(T+1)}, {hex(f2u(0.25))}, {v(Q)}")
            A.e(f"v_mul_f32 {v(T+1)}, 4.0, {v(HF)}\nv_fma_f32 {v(Q)}, {v(T+1)}, {v(P)}, {v(Q)}")
        def F8():
            idx8()
            A.e(f"v_cvt_f32_u32 {v(T+1)}, s17\nv_mul_f32 {v(T+1)}, {fconst(A, 1/2048)}, {v(T+1)}")
            A.e(f"v_fmamk_f32 {v(P)}, {v(T)}, {hex(f2u(0.125))}, {v(T+1)}")
            A.e(f"v_and_b32 {v(T+1)}, 1, v0\nv_cvt_f32_u32 {v(T+1)}, {v(T+1)}\nv_mul_f32 {v(T+1)}, {fconst(A, -0.25)}, {v(T+1)}")
            A.e(f"v_mul_f32 {v(Q)}, 4.0, {v(HF)}\nv_fma_f32 {v(Q)}, {v(Q)}, {v(P)}, {v(T+1)}")
        def F7(t):
            A.e(f"v_and_b32 {v(RO)}, 1, v0\nv_cvt_f32_u32 {v(RO)}, {v(RO)}\nv_mul_f32 {v(RO)}, {fconst(A, 0.25)}, {v(RO)}")
            A.e(f"v_bfe_u32 {v(P)}, v0, 1, 3\nv_add_u32 {v(P)}, {8*t}, {v(P)}\nv_cvt_f32_u32 {v(P)}, {v(P)}\nv_mul_f32 {v(P)}, {fconst(A, 1/16)}, {v(P)}")
            A.e(f"v_mul_f32 {v(DQ)}, 4.0, {v(GF)}\nv_mul_f32 {v(DQ)}, {v(DQ)}, {v(P)}")
        def twid(qc, qs, coefs):
            d = DQ + 8 + 4 * (par[0] & 1); par[0] += 1
            for r in range(4): affine(A, T + r, P, coefs[r], Q)
            for r in range(4): A.e(f"v_cos_f32 {v(d + r)}, {v(T + r)}")
            for r in range(4): A.e(f"v_sin_f32 {v(T + 4 + r)}, {v(T + r)}")
            A.e("s_nop 0"); put(qc, d); put(qs, T + 4)
        j8 = list(range(8)); co2 = [j >> 1 for j in j8]
        perm = lambda t: [16*t + 8*(j >> 2) + (j & 3) for j in j8]
        alt = lambda x: [x * (j & 1) for j in j8]; nalt = lambda x: [x * (1 - (j & 1)) for j in j8]
        def w0():
            fam(1/32, 8.0)
            frag(0, [j for j in j8], [0]*8); frag(1, [16 + j for j in j8], [0]*8); frag(2, [j for j in j8], [0.25]*8)
        def w1():
            fam(1/32, 8.0); frag(3, [16 + j for j in j8], [0.25]*8)
            F3(); frag(12, perm(0), [0]*8); frag(13, perm(1), [0]*8)
        def w2():
            F3(); frag(14, perm(0), [-0.25]*8); frag(15, perm(1), [-0.25]*8)
            F4(); frag(16, co2, alt(-0.25))
        def w3():
            fam(1/1024, 4.0)
            for a in range(4): twid(4 + a, 8 + a, [8*a + r for r in range(4)])
            fam(1/256, 4.0, LF, GF); twid(21, 22, [0, 1, 2, 3])
            F8(); frag(27, co2, alt(0.25))
        def w4():
            fam(1/16, 4.0, LF, GF); frag(17, co2, alt(-0.25)); frag(18, co2, nalt(0.25))
            fam(1/16, 2.0, LF, GF)
            ci = [((j >> 1) & 1) + 8*(j >> 2) for j in j8]
            frag(19, ci, alt(0.25)); frag(20, ci, nalt(-0.25))
        def w5():
            for t in range(2):
                F7(t)
                A.e(f"v_add_f32 {v(Q)}, {v(DQ)}, {v(RO)}"); frag(23 + 2*t, co2, alt(-0.25))
                A.e(f"v_sub_f32 {v(Q)}, {v(DQ)}, {v(RO)}"); frag(24 + 2*t, co2, alt(0.25))
        def w6():
            fam(1/32, 4.0)
            for t in range(2): frag(28 + t, [8*t + (j >> 1) for j in j8], alt(0.25))
            for t in range(2): frag(30 + t, [8*t + (j >> 1) for j in j8], nalt(-0.25))
        def w7():
            fam(1/32, 4.0)
            for t in range(2): frag(32 + t, perm(t), [0]*8)
            for t in range(2): frag(34 + t, perm(t), [0.25]*8)
        end = A.newlabel("tblend")
        jobs = [w0, w1, w2, w3, w4, w5, w6, w7]
        labs = [A.newlabel("tblw") for _ in jobs]
        for n in range(7):
            A.e(f"s_cmp_eq_u32 s{SW}, {n}\ns_cbranch_scc1 {labs[n]}")
        A.e(f"s_branch {labs[7]}")
        for n, job in enumerate(jobs):
            A.label(labs[n]); job(); A.e(f"s_branch {end}")
        A.label(end)
        A.e("s_waitcnt lgkmcnt(0)\ns_barrier")

    def load_tables(self, pairs, vt):
        A = self.A
        A.e(f"v_lshlrev_b32 {v(vt)}, 4, v0\nv_add_u32 {v(vt)}, {self.TBL}, {v(vt)}")
        for n, (q, reg) in enumerate(pairs):
            if n == 12: A.e("s_waitcnt lgkmcnt(4)")
            A.e(f"ds_read_b128 {v(reg, 4)}, {v(vt)} offset:{q * 1024}")

    def p1(self):
        A = self.A
        LU, LX, LW = 0, 16384, 16384 + 17408
        self.wg_index(17)
        srd_from(A, 4, PX, 0, S * D * 2)
        srd_from(A, 8, PWR, 0, S * 513 * 2)
        srd_from(A, 12, PWI, 0, S * 513 * 2)
        XR = 4
        srd_from(A, 36, PWS, WS_CNT, 5 * 32768)
        A.e("s_lshr_b32 s22, s2, 4\ns_lshl_b32 s22, s22, 15\ns_and_b32 s23, s2, 15\ns_lshl_b32 s23, s23, 8\ns_add_u32 s22, s22, s23")
        lcl = A.newlabel("p1clr")
        A.e(f"v_mov_b32 v21, 0\nv_lshlrev_b32 v3, 12, v0\ns_cmp_lg_u32 s{SW}, 0\ns_cbranch_scc1 {lcl}\ns_mov_b64 exec, 0xff")
        A.e(f"buffer_store_dword v21, v3, s[36:39], s22 offen {SC}")
        A.e("s_mov_b64 exec, -1")
        A.label(lcl)
        A.e("v_lshlrev_b32 v2, 4, v0")
        A.e(f"s_lshl_b32 s18, s{SW}, 8\ns_add_u32 s18, s18, s17\ns_lshl_b32 s18, s18, 11")
        A.e(f"buffer_load_dwordx4 {v(XR, 4)}, v2, s[4:7], s18 offen")
        A.e(f"buffer_load_dwordx4 {v(XR + 4, 4)}, v2, s[4:7], s18 offen offset:1024")
        srd_from(A, 36, PWS, WS_ST, 524288)
        A.e(f"s_lshl_b32 s22, s2, 11\ns_lshl_b32 s23, s{SW}, 10\ns_add_u32 s22, s22, s23\ns_cmp_lt_u32 s{SW}, 2\ns_cselect_b32 s22, s22, 0x100000")
        A.e("v_mov_b32 v20, -1\nv_mov_b32 v21, -1\nv_mov_b32 v22, -1\nv_mov_b32 v23, -1")
        A.e(f"buffer_store_dwordx4 v[20:23], v2, s[36:39], s22 offen {SC}")
        BC, BS, TC, TS, FA, FB, FN, A8 = 20, 28, 36, 52, 68, 76, 84, 88
        P, Q, K1F, HF, T = 92, 93, 94, 95, 96
        self.gen_tables()
        self.load_tables([(0, BC), (1, BC + 4), (2, BS), (3, BS + 4), (12, FA), (13, FA + 4), (14, FB), (15, FB + 4), (16, A8)]
                         + [(4 + a, TC + 4*a) for a in range(4)] + [(8 + a, TS + 4*a) for a in range(4)], 92)
        for n in range(4): A.e(f"v_mov_b32 {v(FN + n)}, 0xbf803f80")
        self.stamp("p1.const")
        FX, ST, DR, W0, AD = 104, 136, 144, 208, 212
        A.e("s_mov_b32 s26, 0xffff0000")
        A.e("s_waitcnt vmcnt(1)")
        self.stamp("p1.x")
        A.e(f"s_mul_i32 s20, s17, 8208\ns_lshl_b32 s21, s{SW}, 10\ns_add_u32 s22, s20, s21")
        for arr, srd in ((0, 8), (1, 12)):
            A.e(f"s_add_u32 m0, s21, {LW + arr * 9216}\ns_nop 0")
            A.e(f"buffer_load_dwordx4 v2, {s(srd,4)}, s22 offen lds")
        lw = A.newlabel("p1w8"); l0 = A.newlabel("p1w8a")
        A.e(f"s_cmp_ge_u32 s{SW}, 2\ns_cbranch_scc1 {lw}")
        A.e(f"s_mul_i32 s22, s{SW}, 9216\ns_add_u32 m0, s22, {LW + 8192}\ns_add_u32 s22, s20, 8192")
        A.e(f"s_cmp_eq_u32 s{SW}, 0\ns_cbranch_scc0 {l0}")
        A.e(f"buffer_load_dwordx4 v2, s[8:11], s22 offen lds\ns_branch {lw}")
        A.label(l0)
        A.e("buffer_load_dwordx4 v2, s[12:15], s22 offen lds")
        A.label(lw)
        if self.o.get("diag1"):
            A.e("s_waitcnt vmcnt(3)"); self.stamp("p1.sent"); A.e("s_waitcnt vmcnt(0)"); self.stamp("p1.wdma")
        lg = A.newlabel("p1b0")
        A.e(f"s_cmp_ge_u32 s2, 16\ns_cbranch_scc1 {lg}\ns_cmp_lg_u32 s{SW}, 0\ns_cbranch_scc1 {lg}")
        srd_from(A, 64, PDBG, 0, 256)
        A.e(f"v_mov_b32 v250, 0\nv_mov_b32 v251, 1\ns_mov_b64 exec, 1")
        A.e(f"buffer_atomic_add v251, v250, s[64:67], 0 offen {SC}")
        A.e("s_mov_b64 exec, -1")
        A.label(lg)
        npf = 0
        for n in range(8):
            A.e(f"v_lshlrev_b32 {v(FX + 2*n)}, 16, {v(XR + n)}\nv_and_b32 {v(FX + 2*n + 1)}, s26, {v(XR + n)}")
        sp, qp = ST + 4, ST + 6
        A.e(f"v_pk_add_f32 {v(sp,2)}, {v(FX,2)}, {v(FX+2,2)}\nv_pk_mul_f32 {v(qp,2)}, {v(FX,2)}, {v(FX,2)}")
        for n in range(1, 8):
            if n >= 2: A.e(f"v_pk_add_f32 {v(sp,2)}, {v(sp,2)}, {v(FX+2*n,2)}")
            A.e(f"v_pk_fma_f32 {v(qp,2)}, {v(FX+2*n,2)}, {v(FX+2*n,2)}, {v(qp,2)}")
        A.e(f"v_add_f32 {v(ST)}, {v(sp)}, {v(sp+1)}\nv_add_f32 {v(ST+1)}, {v(qp)}, {v(qp+1)}\ns_nop 1")
        row_reduce(A, [ST, ST + 1], ST + 12)
        ln_stats(A, ST, ST + 1, D)
        A.e(f"v_sub_f32 {v(ST+4)}, 0, {v(ST)}\nv_mov_b32 {v(ST+5)}, {v(ST+4)}\nv_mov_b32 {v(ST+6)}, {v(ST+1)}\nv_mov_b32 {v(ST+7)}, {v(ST+1)}")
        for n in range(8):
            f = FX + 2*n
            A.e(f"v_pk_add_f32 {v(f,2)}, {v(f,2)}, {v(ST+4,2)}\nv_pk_mul_f32 {v(f,2)}, {v(f,2)}, {v(ST+6,2)}")
            A.e(f"v_cvt_pk_bf16_f32 {v(XR + n)}, {v(f)}, {v(f+1)}")
        A.e(f"s_lshl_b32 s22, s{SW}, 11\nv_add_u32 {v(AD)}, s22, v2")
        A.e(f"ds_write_b128 {v(AD)}, {v(XR, 4)} offset:{LU}\nds_write_b128 {v(AD)}, {v(XR + 4, 4)} offset:{LU + 1024}")
        A.e(f"v_lshrrev_b32 {v(T)}, 5, v0\nv_lshlrev_b32 {v(T)}, 3, {v(T)}\nv_bfe_u32 {v(T+1)}, v0, 2, 2\nv_add_u32 {v(T)}, {v(T)}, {v(T+1)}\nv_lshlrev_b32 {v(T)}, 6, {v(T)}")
        A.e(f"v_bfe_u32 {v(T+1)}, v0, 4, 1\nv_lshl_add_u32 {v(T)}, {v(T+1)}, 5, {v(T)}\nv_and_b32 {v(T+1)}, 3, v0\nv_lshl_add_u32 {v(T)}, {v(T+1)}, 3, {v(T)}")
        A.e(f"v_add_u32 {v(AD)}, s22, {v(T)}")
        AF = FX
        for t in range(2):
            for rd in range(2):
                A.e(f"ds_read_b64_tr_b16 {v(AF + 4*t + 2*rd, 2)}, {v(AD)} offset:{LU + 1024*t + 256*rd}")
        for t in range(2):
            A.e(f"s_waitcnt lgkmcnt({2 * (1 - t)})")
            for im, Bf in ((0, BC), (1, BS)):
                d = DR + 16*im
                A.e(f"{MF32} {v(d,16)}, {v(AF + 4*t, 4)}, {v(Bf + 4*t, 4)}, {v(d,16) if t else '0'}")
        TP = FX
        A.e(f"v_and_b32 {v(T)}, 31, v0\nv_lshlrev_b32 {v(AD)}, 5, {v(T)}")
        A.e(f"v_lshrrev_b32 {v(T+1)}, 5, v0\nv_lshl_add_u32 {v(AD)}, {v(T+1)}, 11, {v(AD)}")
        A.e(f"s_lshr_b32 s22, s{SW}, 2\nv_bfe_u32 {v(T+1)}, v0, 3, 1\nv_xor_b32 {v(T+1)}, s22, {v(T+1)}\nv_lshl_add_u32 {v(AD)}, {v(T+1)}, 4, {v(AD)}")
        A.e(f"s_and_b32 s22, s{SW}, 3\ns_lshl_b32 s22, s22, 2\nv_add_u32 {v(AD)}, s22, {v(AD)}")
        nop(A, 4)
        dre, dim = DR, DR + 16
        for p in range(8):
            c, sn = TC + 2*p, TS + 2*p
            A.e(f"v_pk_mul_f32 {v(W0,2)}, {v(dre + 2*p,2)}, {v(c,2)}")
            A.e(f"v_pk_mul_f32 {v(W0+2,2)}, {v(dim + 2*p,2)}, {v(c,2)}")
            A.e(f"v_pk_fma_f32 {v(W0,2)}, {v(dim + 2*p,2)}, {v(sn,2)}, {v(W0,2)}")
            A.e(f"v_pk_fma_f32 {v(W0+2,2)}, {v(dre + 2*p,2)}, {v(sn,2)}, {v(W0+2,2)} neg_lo:[1,0,0] neg_hi:[1,0,0]")
            A.e(f"v_cvt_pk_bf16_f32 {v(TP + p)}, {v(W0)}, {v(W0+1)}")
            A.e(f"v_cvt_pk_bf16_f32 {v(TP + 8 + p)}, {v(W0+2)}, {v(W0+3)}")
        A.e("s_nop 1")
        d, dn, tre, tim = DR, DR + 16, TP, TP + 8
        A.e(f"{MF32} {v(d,16)}, {v(FA,4)}, {v(tre,4)}, 0")
        A.e(f"{MF32} {v(dn,16)}, {v(FN,4)}, {v(tre,4)}, 0")
        A.e(f"{MF32} {v(d,16)}, {v(FA+4,4)}, {v(tre+4,4)}, {v(d,16)}")
        A.e(f"{MF32} {v(dn,16)}, {v(FN,4)}, {v(tre+4,4)}, {v(dn,16)}")
        A.e(f"{MF32} {v(d,16)}, {v(FB,4)}, {v(tim,4)}, {v(d,16)}")
        A.e(f"{MF32} {v(d,16)}, {v(FB+4,4)}, {v(tim+4,4)}, {v(d,16)}")
        OV = 4
        nop(A, 12)
        for e in range(8):
            A.e(f"v_cvt_pk_bf16_f32 {v(OV + e)}, {v(d + 2*e)}, {v(d + 2*e + 1)}")
        for e in range(8):
            A.e(f"ds_write_b32 {v(AD)}, {v(OV + e)} offset:{LX + (4*(e >> 1) + (e & 1)) * 1024}")
        A.e(f"v_cvt_pk_bf16_f32 {v(W0)}, {v(dn)}, 0\ns_lshl_b32 s22, s{SW}, 2\nv_mov_b32 {v(W0+2)}, s22")
        A.e(f"s_mov_b64 exec, 1\nds_write_b32 {v(W0+2)}, {v(W0)} offset:{LX + 512*32}\ns_mov_b64 exec, -1")
        self.stamp("p1.fft")
        A.e("s_waitcnt lgkmcnt(0)\ns_barrier")
        srd_from(A, 64, PDBG, 0, 256)
        A.e(f"v_mov_b32 v250, 0\nbuffer_load_dword v252, v250, s[64:67], 0 offen {SC}")
        self.stamp("p1.rowfft")
        srd_from(A, 48, PWS, WS_U, 257 * KP_STRIDE)
        srd_from(A, 52, PWS, WS_WT, 257 * KP_STRIDE)
        A.e(f"v_and_b32 {v(T)}, 31, v0\nv_lshlrev_b32 {v(AD)}, 5, {v(T)}\nv_lshrrev_b32 {v(T+1)}, 5, v0\nv_bfe_u32 {v(T+2)}, v0, 3, 1\nv_xor_b32 {v(T+1)}, {v(T+1)}, {v(T+2)}\nv_lshl_add_u32 {v(AD)}, {v(T+1)}, 4, {v(AD)}")
        A.e(f"v_mov_b32 {v(AD+2)}, {v(AD)}\ns_lshl_b32 s22, s{SW}, 11\nv_add_u32 {v(AD)}, s22, {v(AD)}")
        RB = FX
        for b in range(2):
            A.e(f"ds_read_b128 {v(RB + 4*b, 4)}, {v(AD)} offset:{LX + 1024*b}")
        A.e(f"ds_read_b128 {v(RB + 8, 4)}, {v(AD+2)} offset:{LX + 16384}")
        SA = AD + 1
        A.e(f"v_bfe_u32 {v(T)}, v0, 1, 4\ns_mov_b32 s22, {KP_STRIDE}\nv_mul_lo_u32 {v(SA)}, {v(T)}, s22")
        A.e(f"v_and_b32 {v(T)}, 1, v0\nv_lshl_add_u32 {v(SA)}, {v(T)}, 5, {v(SA)}\nv_lshrrev_b32 {v(T)}, 5, v0\nv_lshl_add_u32 {v(SA)}, {v(T)}, 4, {v(SA)}")
        A.e(f"s_mul_i32 s22, s{SW}, {32 * KP_STRIDE}\ns_lshl_b32 s23, s17, 6\ns_add_u32 s22, s22, s23")
        for b in range(3):
            A.e(f"s_waitcnt lgkmcnt({2 - b})")
            A.e(f"{MF32} {v(DR + 16*b, 16)}, {v(A8,4)}, {v(RB + 4*b, 4)}, 0")
        WA, WS_ = 214, 215
        A.e(f"v_and_b32 {v(T)}, 1, v1\nv_mul_u32_u24 {v(WA)}, 4104, {v(T)}")
        A.e(f"v_lshrrev_b32 {v(T)}, 2, v1\nv_lshl_add_u32 {v(WA)}, {v(T)}, 2, {v(WA)}")
        A.e(f"v_bfe_u32 {v(T+1)}, v1, 1, 1\nv_lshl_add_u32 {v(WA)}, {v(T+1)}, 1, {v(WA)}")
        A.e(f"s_mov_b32 s24, {KP_STRIDE}\nv_mul_lo_u32 {v(WS_)}, {v(T)}, s24\nv_and_b32 {v(T)}, 3, v1\nv_lshl_add_u32 {v(WS_)}, {v(T)}, 4, {v(WS_)}")
        WO, WI = 120, 128
        nop(A, 2)
        for b in range(2):
            for n in range(4):
                A.e(f"v_cvt_pk_bf16_f32 {v(OV + 4*b + n)}, {v(DR + 16*b + 2*n)}, {v(DR + 16*b + 2*n + 1)}")
            A.e(f"buffer_store_dwordx4 {v(OV + 4*b, 4)}, {v(SA)}, s[48:51], s22 offen {SC}")
            A.e(f"s_add_u32 s22, s22, {16 * KP_STRIDE}")
        A.e(f"s_waitcnt vmcnt({npf + 3})\ns_barrier")
        lny = A.newlabel("p1ny")
        A.e(f"s_cmp_lg_u32 s{SW}, 7\ns_cbranch_scc1 {lny}")
        for n in range(4):
            A.e(f"v_cvt_pk_bf16_f32 {v(OV + 8 + n)}, {v(DR + 32 + 2*n)}, {v(DR + 32 + 2*n + 1)}")
        A.e(f"s_lshl_b32 s22, s17, 5\ns_add_u32 s22, s22, {256 * KP_STRIDE}\nv_lshrrev_b32 {v(T)}, 5, v0\nv_lshlrev_b32 {v(T)}, 4, {v(T)}")
        A.e("s_mov_b32 exec_lo, 1\ns_mov_b32 exec_hi, 1")
        A.e(f"buffer_store_dwordx4 {v(OV + 8, 4)}, {v(T)}, s[48:51], s22 offen {SC}")
        A.e("s_mov_b64 exec, -1")
        A.label(lny)
        for n in range(2):
            if n: A.e("s_waitcnt lgkmcnt(7)")
            for nn in range(4):
                A.e(f"ds_read_u16 {v(WO + 4*n + nn)}, {v(WA)} offset:{LW + 512*n + 1026*nn}")
                A.e(f"ds_read_u16 {v(WI + 4*n + nn)}, {v(WA)} offset:{LW + 9216 + 512*n + 1026*nn}")
        A.e("s_waitcnt lgkmcnt(0)")
        for n in range(8):
            A.e(f"v_lshl_or_b32 {v(WO + n)}, {v(WI + n)}, 16, {v(WO + n)}")
        A.e("s_lshl_b32 s22, s17, 6")
        for n in range(2):
            A.e(f"buffer_store_dwordx4 {v(WO + 4*n, 4)}, {v(WS_)}, s[52:55], s22 offen {SC}")
            A.e(f"s_add_u32 s22, s22, {128 * KP_STRIDE}")
        lwe = A.newlabel("p1we")
        A.e(f"s_cmp_lg_u32 s{SW}, 0\ns_cbranch_scc1 {lwe}")
        A.e("s_mov_b64 exec, 3")
        WO2 = FX
        for nn in range(4):
            A.e(f"ds_read_u16 {v(WO2 + nn)}, {v(WA)} offset:{LW + 1024 + 1026*nn}")
            A.e(f"ds_read_u16 {v(WO2 + 4 + nn)}, {v(WA)} offset:{LW + 9216 + 1024 + 1026*nn}")
        A.e("s_waitcnt lgkmcnt(0)")
        for nn in range(4):
            A.e(f"v_lshl_or_b32 {v(WO2 + nn)}, {v(WO2 + 4 + nn)}, 16, {v(WO2 + nn)}")
        A.e(f"s_lshl_b32 s22, s17, 5\ns_add_u32 s22, s22, {256 * KP_STRIDE}\nv_lshlrev_b32 {v(T)}, 4, v0")
        A.e(f"buffer_store_dwordx4 {v(WO2, 4)}, {v(T)}, s[52:55], s22 offen {SC}")
        A.e("s_mov_b64 exec, -1")
        A.label(lwe)

    def pf_point(self, name):
        if not self.o.get("pf", True): return
        sched = {"A": 0, "B": 0, "C": 4, "D": 0, "E": 0, "F": 3}
        sched.update(self.o.get("pfs", {}))
        n = sched[name]
        if n == 0: return
        k0 = getattr(self, "_pfk", 0); self._pfk = k0 + n
        A = self.A
        lab = A.newlabel("pfp")
        srd_from(A, 56, PWIN, 0, D * F * 2)
        A.e(f"s_and_b32 s54, s{SW}, 3\nv_lshl_add_u32 v222, s54, 6, v0\nv_lshlrev_b32 v222, 4, v222")
        A.e(f"s_cmp_lt_u32 s{SW}, 4\ns_cbranch_scc1 {lab}")
        for k in range(k0, k0 + n):
            A.e(f"s_mul_i32 s54, s2, 28672\ns_add_u32 s54, s54, {4096 * k}")
            A.e("buffer_load_dwordx4 v[224:227], v222, s[56:59], s54 offen")
        A.label(lab)

    def p2_pre(self):
        A = self.A
        A.e(f"s_and_b32 s20, s{SW}, 3\ns_cmp_lt_u32 s{SW}, 4\ns_cselect_b32 s19, 1, 0")
        lab = A.newlabel("p2ny")
        A.e(f"s_cmp_lg_u32 s2, 0\ns_cbranch_scc1 {lab}\ns_cmp_lt_u32 s{SW}, 4\ns_cbranch_scc1 {lab}")
        A.e("s_mov_b32 s19, 2")
        A.label(lab)
        self.p2_notask = A.newlabel("p2nt")
        A.e(f"s_cmp_eq_u32 s19, 0\ns_cbranch_scc1 {self.p2_notask}")
        CA, CB, CI, CJ, TC, TS = 40, 48, 56, 64, 72, 76
        A.e("v_and_b32 v36, 15, v0\nv_lshrrev_b32 v37, 4, v0")
        self.load_tables([(17, CA), (18, CA + 4), (19, CI), (20, CI + 4), (21, TC), (22, TS), (23, CB), (25, CB + 4), (24, CJ), (26, CJ + 4)], 80)
        srd_from(A, 4, PWS, WS_U, 257 * KP_STRIDE)
        srd_from(A, 8, PWS, WS_WT, 257 * KP_STRIDE)
        srd_from(A, 12, PWS, WS_Y, 257 * KP_STRIDE)
        A.e(f"s_mul_i32 s18, s2, {KP_STRIDE}")
        A.e(f"v_lshrrev_b32 v38, 2, v36\nv_xor_b32 v38, s20, v38\nv_lshlrev_b32 v38, 4, v38")
        A.e(f"v_lshl_add_u32 v32, v37, 6, v36\nv_lshl_add_u32 v32, v32, 6, v38")
        A.e(f"v_lshl_add_u32 v33, v37, 5, v36\nv_lshl_add_u32 v33, v33, 6, v38")
        A.e("v_and_b32 v38, 3, v0\nv_xor_b32 v38, v38, v37\nv_lshrrev_b32 v39, 2, v0\nv_lshlrev_b32 v39, 6, v39\nv_lshl_add_u32 v31, v38, 4, v39")
        A.e(f"v_lshl_add_u32 v34, v37, 6, v36\nv_lshlrev_b32 v34, 5, v34\ns_lshl_b32 s21, s20, 3\ns_add_u32 s21, s21, 49152\nv_add_u32 v34, s21, v34")
        A.e(f"v_lshl_add_u32 v35, v37, 5, v36\nv_lshlrev_b32 v35, 5, v35\nv_add_u32 v35, s21, v35")
        A.label(self.p2_notask)

    def p2_compute(self, NT, R0, WT, wwait):
        A = self.A
        CA, CB, CI, CJ, TC, TS = 40, 48, 56, 64, 72, 76
        DD, W0, OP = 112, 144, R0
        gap = {4: 4, 2: 6, 1: 8}[NT]
        def twiddle(conj):
            for tau in range(NT):
                re, im = DD + 8*tau, DD + 8*tau + 4
                for hh in (0, 2):
                    A.e(f"v_pk_mul_f32 {v(W0+hh,2)}, {v(re+hh,2)}, {v(TC+hh,2)}")
                    A.e(f"v_pk_mul_f32 {v(W0+4+hh,2)}, {v(im+hh,2)}, {v(TC+hh,2)}")
                for hh in (0, 2):
                    n1 = " neg_lo:[1,0,0] neg_hi:[1,0,0]"
                    A.e(f"v_pk_fma_f32 {v(W0+hh,2)}, {v(im+hh,2)}, {v(TS+hh,2)}, {v(W0+hh,2)}" + (n1 if conj else ""))
                    A.e(f"v_pk_fma_f32 {v(W0+4+hh,2)}, {v(re+hh,2)}, {v(TS+hh,2)}, {v(W0+4+hh,2)}" + ("" if conj else n1))
                for r in range(4):
                    A.e(f"v_cvt_pk_bf16_f32 {v(OP + 4*tau + r)}, {v(W0 + r)}, {v(W0 + 4 + r)}")
            A.e("s_nop 1")
        for tau in range(NT):
            A.e(f"{MF16} {v(DD + 8*tau, 4)}, {v(R0 + 4*tau, 4)}, {v(CA, 4)}, 0")
            A.e(f"{MF16} {v(DD + 8*tau + 4, 4)}, {v(R0 + 4*tau, 4)}, {v(CA + 4, 4)}, 0")
        nop(A, gap)
        twiddle(False)
        for tau in range(NT):
            for t in range(2):
                A.e(f"{MF16} {v(DD + 8*tau + 4*t, 4)}, {v(CB + 4*t, 4)}, {v(OP + 4*tau, 4)}, 0")
        A.e("s_mov_b32 s26, 0xffff0000\n" + wwait)
        nop(A, gap - 1)
        for tau in range(NT):
            for e in range(4):
                vv = DD + 8*tau + 2*e
                w = WT + NT*e + tau
                A.e(f"v_lshlrev_b32 {v(W0)}, 16, {v(w)}\nv_and_b32 {v(W0+1)}, s26, {v(w)}")
                A.e(f"v_pk_mul_f32 {v(W0+2,2)}, {v(vv,2)}, {v(W0,2)} op_sel:[0,0] op_sel_hi:[1,0]")
                A.e(f"v_pk_fma_f32 {v(W0+2,2)}, {v(vv,2)}, {v(W0,2)}, {v(W0+2,2)} op_sel:[1,1,0] op_sel_hi:[0,1,1] neg_lo:[1,0,0]")
                A.e(f"v_cvt_pk_bf16_f32 {v(OP + 4*tau + e)}, {v(W0+2)}, {v(W0+3)}")
        A.e("s_nop 1")
        for tau in range(NT):
            A.e(f"{MF16} {v(DD + 8*tau, 4)}, {v(OP + 4*tau, 4)}, {v(CI, 4)}, 0")
            A.e(f"{MF16} {v(DD + 8*tau + 4, 4)}, {v(OP + 4*tau, 4)}, {v(CI + 4, 4)}, 0")
        nop(A, gap)
        twiddle(True)
        for tau in range(NT):
            for t in range(2):
                A.e(f"{MF16} {v(DD + 8*tau + 4*t, 4)}, {v(CJ + 4*t, 4)}, {v(OP + 4*tau, 4)}, 0")
        nop(A, 8)
        for e in range(4):
            for tau in range(NT):
                vv = DD + 8*tau + 2*e
                A.e(f"v_cvt_pk_bf16_f32 {v(WT + NT*e + tau)}, {v(vv)}, {v(vv+1)}")

    def p2(self):
        A = self.A
        nt = A.newlabel("p2idle"); end = A.newlabel("p2end"); ny = A.newlabel("p2nyq")
        LUI, LWI, LOU = 0, 16384, 32768
        R0, WT, VA, VB = 4, 96, 34, 35
        A.e(f"s_cmp_eq_u32 s19, 0\ns_cbranch_scc1 {nt}\ns_cmp_eq_u32 s19, 2\ns_cbranch_scc1 {ny}")
        A.e(f"s_lshl_b32 s22, s20, 12\ns_add_u32 s23, s22, s18")
        for arr, srd, base in ((0, 4, LUI), (1, 8, LWI)):
            for j in range(4):
                A.e(f"s_add_u32 m0, s22, {base + 1024 * j}\ns_add_u32 s24, s23, {1024 * j}")
                A.e(f"buffer_load_dwordx4 v31, {s(srd,4)}, s24 offen {SC} lds")
        A.e("s_waitcnt vmcnt(0)\ns_barrier")
        self.stamp("p2.dma")
        for i in range(4):
            A.e(f"ds_read_b128 {v(R0 + 4*i, 4)}, v32 offset:{LUI + 1024*i}")
        for e in range(4):
            A.e(f"ds_read_b128 {v(WT + 4*e, 4)}, v33 offset:{LWI + 1024*(e & 1) + 8192*(e >> 1)}")
        A.e("s_waitcnt lgkmcnt(4)")
        for i in range(4):
            for tau in range(i + 1, 4):
                A.e(f"v_swap_b32 {v(R0 + 4*i + tau)}, {v(R0 + 4*tau + i)}")
        A.e("s_nop 1")
        self.p2_compute(4, R0, WT, "s_waitcnt lgkmcnt(0)")
        self.stamp("p2.fft")
        for e in range(4):
            A.e(f"ds_write_b128 v33, {v(WT + 4*e, 4)} offset:{LOU + 1024*(e & 1) + 8192*(e >> 1)}")
        A.e("s_waitcnt lgkmcnt(0)\ns_barrier")
        A.e(f"v_lshlrev_b32 v30, 4, v0\nv_add_u32 v30, s22, v30")
        for j in range(4):
            A.e(f"ds_read_b128 {v(R0 + 4*j, 4)}, v30 offset:{LOU + 1024*j}")
        for j in range(4):
            A.e(f"s_waitcnt lgkmcnt({3 - j})")
            A.e(f"buffer_store_dwordx4 {v(R0 + 4*j, 4)}, v31, s[12:15], s23 offen offset:{1024*j} {SC}")
        A.e(f"s_branch {end}")
        A.label(ny)
        LN0 = 49152
        A.e(f"s_lshl_b32 s22, s20, 11\ns_add_u32 s23, s22, {256 * KP_STRIDE}\nv_lshlrev_b32 v30, 4, v0")
        for srd, base in ((4, LN0), (8, LN0 + 8192)):
            for j in range(2):
                A.e(f"s_add_u32 m0, s22, {base + 1024 * j}\ns_add_u32 s24, s23, {1024 * j}")
                A.e(f"buffer_load_dwordx4 v30, {s(srd,4)}, s24 offen {SC} lds")
        A.e("s_waitcnt vmcnt(0)")
        self.stamp("ny.dma")
        A.e("s_barrier")
        self.stamp("ny.bar1")
        for tau in range(2):
            for i in range(4):
                A.e(f"ds_read_b32 {v(R0 + 4*tau + i)}, {v(VA)} offset:{512*i + 4*tau}")
        A.e("s_waitcnt lgkmcnt(7)")
        for e in range(4):
            for tau in range(2):
                A.e(f"ds_read_b32 {v(WT + 2*e + tau)}, {v(VB)} offset:{8192 + 512*(e & 1) + 4096*(e >> 1) + 4*tau}")
        A.e("s_waitcnt lgkmcnt(8)\ns_nop 1")
        self.p2_compute(2, R0, WT, "s_waitcnt lgkmcnt(0)")
        self.stamp("ny.fft")
        for e in range(4):
            A.e(f"ds_write_b64 {v(VB)}, {v(WT + 2*e, 2)} offset:{16384 + 512*(e & 1) + 4096*(e >> 1)}")
        A.e("s_waitcnt lgkmcnt(0)\ns_barrier")
        A.e(f"s_add_u32 s24, s22, {LN0 + 16384}\nv_add_u32 v29, s24, v30")
        for j in range(2):
            A.e(f"ds_read_b128 {v(R0 + 4*j, 4)}, v29 offset:{1024*j}")
        for j in range(2):
            A.e(f"s_waitcnt lgkmcnt({1 - j})")
            A.e(f"buffer_store_dwordx4 {v(R0 + 4*j, 4)}, v30, s[12:15], s23 offen offset:{1024*j} {SC}")
        A.e(f"s_branch {end}")
        A.label(nt)
        A.e("s_barrier")
        self.pf_point("C")
        A.e("s_barrier")
        self.pf_point("D")
        A.label(end)

    def p3_pre(self):
        A = self.A
        self.wg_index(17)
        srd_from(A, 4, PX, 0, S * D * 2)
        srd_from(A, 8, PWS, WS_Y, 257 * KP_STRIDE)
        srd_from(A, 12, PWS, WS_H, S * D * 2)
        srd_from(A, 48, PWS, WS_LN2, S * self.LSTR)
        T = 96
        XR = 24
        A.e("v_and_b32 v3, 31, v0\nv_lshlrev_b32 v3, 6, v3\nv_lshrrev_b32 v40, 5, v0\nv_lshl_add_u32 v3, v40, 3, v3")
        A.e(f"s_lshl_b32 s18, s{SW}, 8\ns_add_u32 s18, s18, s17\ns_lshl_b32 s18, s18, 11")
        for q in range(4):
            A.e(f"buffer_load_dwordx2 {v(XR + 2*q, 2)}, v3, s[4:7], s18 offen offset:{16*q}")
        A8, BR, BI, TC, TS, CC, CS = 40, 44, 52, 60, 76, 104, 112
        self.load_tables([(27, A8), (28, BR), (29, BR + 4), (30, BI), (31, BI + 4), (32, CC), (33, CC + 4), (34, CS), (35, CS + 4)]
                         + [(4 + a, TC + 4*a) for a in range(4)] + [(8 + a, TS + 4*a) for a in range(4)], 92)
        A.e(f"v_bfe_u32 {v(T)}, v0, 1, 4\ns_mov_b32 s22, {KP_STRIDE}\nv_mul_lo_u32 v2, {v(T)}, s22")
        A.e(f"v_and_b32 {v(T)}, 1, v0\nv_lshl_add_u32 v2, {v(T)}, 5, v2\nv_lshrrev_b32 {v(T)}, 5, v0\nv_lshl_add_u32 v2, {v(T)}, 4, v2")
        A.e(f"v_lshlrev_b32 v23, 4, {v(T)}")
        A.e(f"s_mul_i32 s22, s{SW}, {32 * KP_STRIDE}\ns_lshl_b32 s23, s17, 6\ns_add_u32 s22, s22, s23")
        A.e("s_waitcnt lgkmcnt(0)")

    def p3(self):
        A = self.A
        LY = self.o.get("p3_lds", 139264); LN = LY + 16384
        mimic = self.o.get("mimic", True)
        T, XR = 96, 24
        A8, BR, BI, TC, TS, CC, CS = 40, 44, 52, 60, 76, 104, 112
        RB = 4
        for b in range(2):
            A.e(f"buffer_load_dwordx4 {v(RB + 4*b, 4)}, v2, s[8:11], s22 offen {SC}")
            A.e(f"s_add_u32 s22, s22, {16 * KP_STRIDE}")
        A.e(f"s_lshl_b32 s22, s17, 5\ns_add_u32 s22, s22, {256 * KP_STRIDE}")
        A.e(f"buffer_load_dwordx4 {v(12, 4)}, v23, s[8:11], s22 offen {SC}")
        DR, AD, OV = 144, 212, 120
        A.e(f"v_lshrrev_b32 {v(T)}, 5, v0\nv_lshlrev_b32 {v(AD)}, 13, {v(T)}")
        A.e(f"v_and_b32 {v(T)}, 31, v0\nv_lshl_add_u32 {v(AD)}, {v(T)}, 6, {v(AD)}")
        A.e(f"s_lshr_b32 s24, s{SW}, 1\nv_bfe_u32 {v(T)}, v0, 2, 2\nv_xor_b32 {v(T)}, s24, {v(T)}\nv_lshl_add_u32 {v(AD)}, {v(T)}, 4, {v(AD)}")
        A.e(f"s_and_b32 s24, s{SW}, 1\ns_lshl_b32 s24, s24, 3\ns_add_u32 s24, s24, {LY}\nv_add_u32 {v(AD)}, s24, {v(AD)}")
        for b in range(3):
            A.e(f"s_waitcnt vmcnt({2 - b})")
            A.e(f"{MF32} {v(DR + 16*b, 16)}, {v(A8,4)}, {v(RB + 4*b, 4)}, 0")
        self.pf_point("F")
        nop(A, 12)
        for b in range(2):
            for n in range(4):
                A.e(f"v_cvt_pk_bf16_f32 {v(OV + 4*b + n)}, {v(DR + 16*b + 2*n)}, {v(DR + 16*b + 2*n + 1)}")
        l0 = A.newlabel("p3dc"); l1 = A.newlabel("p3ny")
        A.e(f"s_cmp_lg_u32 s{SW}, 0\ns_cbranch_scc1 {l0}")
        A.e("s_mov_b32 exec_lo, 1\ns_mov_b32 exec_hi, 1")
        for n in range(4):
            A.e(f"v_mul_f32 {v(T)}, 0.5, {v(DR + 2*n)}\nv_cvt_pk_bf16_f32 {v(OV + n)}, {v(T)}, 0")
        A.e("s_mov_b64 exec, -1")
        A.label(l0)
        A.e(f"s_cmp_lg_u32 s{SW}, 7\ns_cbranch_scc1 {l1}")
        for n in range(4):
            A.e(f"v_mul_f32 {v(T+2+n)}, 0.5, {v(DR + 32 + 2*n)}")
        A.e(f"v_add_u32 {v(T+1)}, {LN}, v23")
        A.e("s_mov_b32 exec_lo, 1\ns_mov_b32 exec_hi, 1")
        A.e(f"ds_write_b128 {v(T+1)}, {v(T+2, 4)}")
        A.e("s_mov_b64 exec, -1")
        A.label(l1)
        for b in range(2):
            for n in range(4):
                A.e(f"ds_write_b32 {v(AD)}, {v(OV + 4*b + n)} offset:{2048*n + 4*b}")
        A.e("s_waitcnt lgkmcnt(0)\ns_barrier")
        self.stamp("p3.radix8")
        TA, TB = T, T + 1
        A.e(f"v_and_b32 {v(T+2)}, 31, v0\nv_lshlrev_b32 {v(TA)}, 6, {v(T+2)}\ns_lshl_b32 s22, s{SW}, 11\ns_add_u32 s22, s22, {LY}\nv_add_u32 {v(TA)}, s22, {v(TA)}")
        A.e(f"v_lshrrev_b32 {v(T+2)}, 5, v0\nv_bfe_u32 {v(T+3)}, v0, 2, 2\nv_xor_b32 {v(T+2)}, {v(T+2)}, {v(T+3)}")
        A.e(f"v_xor_b32 {v(T+3)}, 2, {v(T+2)}")
        A.e(f"v_lshl_add_u32 {v(TB)}, {v(T+3)}, 4, {v(TA)}\nv_lshl_add_u32 {v(TA)}, {v(T+2)}, 4, {v(TA)}")
        AF, NY, SG = 120, 136, 138
        A.e(f"ds_read_b128 {v(AF, 4)}, {v(TA)}\nds_read_b128 {v(AF + 4, 4)}, {v(TB)}")
        A.e(f"s_lshl_b32 s22, s{SW}, 2\ns_add_u32 s22, s22, {LN}\nv_mov_b32 {v(T+2)}, s22")
        A.e(f"ds_read_b32 {v(NY)}, {v(T+2)}")
        A.e(f"v_and_b32 {v(SG)}, 1, v0\nv_cvt_f32_u32 {v(SG)}, {v(SG)}\nv_fma_f32 {v(SG)}, {v(SG)}, -2.0, 1.0")
        A.e(f"v_cmp_gt_u32 vcc, 32, v0\ns_nop 1\nv_cndmask_b32 {v(SG)}, 0, {v(SG)}, vcc")
        for t in range(2):
            A.e(f"s_waitcnt lgkmcnt({2 - t})")
            for im, Bf in ((0, BR), (1, BI)):
                d = DR + 16*im
                A.e(f"{MF32} {v(d,16)}, {v(AF + 4*t, 4)}, {v(Bf + 4*t, 4)}, {v(d,16) if t else '0'}")
        A.e("s_waitcnt lgkmcnt(0)")
        TP, W0 = 4, 208
        nop(A, 11)
        dre, dim = DR, DR + 16
        A.e(f"v_fma_f32 {v(dre)}, {v(SG)}, {v(NY)}, {v(dre)}")
        for p in range(8):
            c, sn = TC + 2*p, TS + 2*p
            A.e(f"v_pk_mul_f32 {v(W0,2)}, {v(dre + 2*p,2)}, {v(c,2)}")
            A.e(f"v_pk_mul_f32 {v(W0+2,2)}, {v(dim + 2*p,2)}, {v(c,2)}")
            A.e(f"v_pk_fma_f32 {v(W0,2)}, {v(dim + 2*p,2)}, {v(sn,2)}, {v(W0,2)} neg_lo:[1,0,0] neg_hi:[1,0,0]")
            A.e(f"v_pk_fma_f32 {v(W0+2,2)}, {v(dre + 2*p,2)}, {v(sn,2)}, {v(W0+2,2)}")
            A.e(f"v_cvt_pk_bf16_f32 {v(TP + p)}, {v(W0)}, {v(W0+1)}")
            A.e(f"v_cvt_pk_bf16_f32 {v(TP + 8 + p)}, {v(W0+2)}, {v(W0+3)}")
        A.e("s_nop 1")
        d, tre, tim = DR, TP, TP + 8
        A.e(f"{MF32} {v(d,16)}, {v(tre,4)}, {v(CC,4)}, 0")
        A.e(f"{MF32} {v(d,16)}, {v(tre+4,4)}, {v(CC+4,4)}, {v(d,16)}")
        A.e(f"{MF32} {v(d,16)}, {v(tim,4)}, {v(CS,4)}, {v(d,16)}")
        A.e(f"{MF32} {v(d,16)}, {v(tim+4,4)}, {v(CS+4,4)}, {v(d,16)}")
        A.e("s_mov_b32 s26, 0xffff0000")
        A.e(f"s_mov_b32 s44, {hex(f2u(2.0**-20))}\ns_mov_b32 s45, {hex(f2u(2.0**-20))}")
        hf, ST, HP, LP = DR + 16, 120, 4, 32
        for n in range(8):
            A.e(f"v_lshlrev_b32 {v(hf + 2*n)}, 16, {v(XR + n)}\nv_and_b32 {v(hf + 2*n + 1)}, s26, {v(XR + n)}")
        for n in range(8):
            A.e(f"v_pk_mul_f32 {v(d + 2*n,2)}, {v(d + 2*n,2)}, s[44:45]")
            if mimic:
                A.e(f"v_cvt_pk_bf16_f32 {v(W0)}, {v(d + 2*n)}, {v(d + 2*n + 1)}")
                A.e(f"v_lshlrev_b32 {v(d + 2*n)}, 16, {v(W0)}\nv_and_b32 {v(d + 2*n + 1)}, s26, {v(W0)}")
            A.e(f"v_pk_add_f32 {v(hf + 2*n,2)}, {v(hf + 2*n,2)}, {v(d + 2*n,2)}")
            A.e(f"v_cvt_pk_bf16_f32 {v(HP + n)}, {v(hf + 2*n)}, {v(hf + 2*n + 1)}")
            A.e(f"v_lshlrev_b32 {v(hf + 2*n)}, 16, {v(HP + n)}\nv_and_b32 {v(hf + 2*n + 1)}, s26, {v(HP + n)}")
        sp, qp = ST + 4, ST + 6
        A.e(f"v_pk_add_f32 {v(sp,2)}, {v(hf,2)}, {v(hf+2,2)}\nv_pk_mul_f32 {v(qp,2)}, {v(hf,2)}, {v(hf,2)}")
        for n in range(1, 8):
            if n >= 2: A.e(f"v_pk_add_f32 {v(sp,2)}, {v(sp,2)}, {v(hf+2*n,2)}")
            A.e(f"v_pk_fma_f32 {v(qp,2)}, {v(hf+2*n,2)}, {v(hf+2*n,2)}, {v(qp,2)}")
        A.e(f"v_add_f32 {v(ST)}, {v(sp)}, {v(sp+1)}\nv_add_f32 {v(ST+1)}, {v(qp)}, {v(qp+1)}")
        WA_, RA_, GA_ = 212, 216, 217
        A.e(f"s_lshl_b32 s22, s{SW}, 11\ns_add_u32 s22, s22, {LY}")
        A.e(f"v_and_b32 {v(T)}, 31, v0\nv_lshlrev_b32 {v(T+1)}, 6, {v(T)}\nv_lshrrev_b32 {v(T+2)}, 5, v0\nv_lshl_add_u32 {v(T+1)}, {v(T+2)}, 3, {v(T+1)}\nv_add_u32 {v(T+1)}, s22, {v(T+1)}")
        A.e(f"v_bfe_u32 {v(T)}, v0, 1, 2")
        for q in range(4):
            A.e(f"v_xor_b32 {v(T+2)}, {q}, {v(T)}\nv_lshl_add_u32 {v(WA_ + q)}, {v(T+2)}, 4, {v(T+1)}")
        A.e(f"v_lshrrev_b32 {v(T)}, 2, v0\nv_lshlrev_b32 {v(RA_)}, 6, {v(T)}\nv_bfe_u32 {v(T)}, v0, 3, 2\nv_and_b32 {v(T+1)}, 3, v0\nv_xor_b32 {v(T)}, {v(T)}, {v(T+1)}\nv_lshl_add_u32 {v(RA_)}, {v(T)}, 4, {v(RA_)}\nv_add_u32 {v(RA_)}, s22, {v(RA_)}")
        A.e(f"v_lshlrev_b32 {v(GA_)}, 4, v0")
        A.e(f"s_lshr_b32 s19, s18, 11\ns_mul_i32 s19, s19, {self.LSTR}")
        def row_store(src, srd, tmp, so=18):
            for q in range(4):
                A.e(f"ds_write_b64 {v(WA_ + q)}, {v(src + 2*q, 2)}")
            for n in range(2):
                A.e(f"ds_read_b128 {v(tmp + 4*n, 4)}, {v(RA_)} offset:{1024*n}")
            for n in range(2):
                A.e(f"s_waitcnt lgkmcnt({1 - n})")
                A.e(f"buffer_store_dwordx4 {v(tmp + 4*n, 4)}, {v(GA_)}, {s(srd,4)}, s{so} offen offset:{1024*n} {SC}")
        row_reduce(A, [ST, ST + 1], ST + 12)
        ln_stats(A, ST, ST + 1, D)
        A.e(f"v_sub_f32 {v(ST+4)}, 0, {v(ST)}\nv_mov_b32 {v(ST+5)}, {v(ST+4)}\nv_mov_b32 {v(ST+6)}, {v(ST+1)}\nv_mov_b32 {v(ST+7)}, {v(ST+1)}")
        for n in range(8):
            f = hf + 2*n
            A.e(f"v_pk_add_f32 {v(f,2)}, {v(f,2)}, {v(ST+4,2)}")
            if mimic:
                A.e(f"v_cvt_pk_bf16_f32 {v(W0)}, {v(f)}, {v(f+1)}")
                A.e(f"v_lshlrev_b32 {v(f)}, 16, {v(W0)}\nv_and_b32 {v(f+1)}, s26, {v(W0)}")
            A.e(f"v_pk_mul_f32 {v(f,2)}, {v(f,2)}, {v(ST+6,2)}")
            A.e(f"v_cvt_pk_bf16_f32 {v(LP + n)}, {v(f)}, {v(f+1)}")
        row_store(LP, 48, 12, 19)
        row_store(HP, 12, 20 if False else 120)

    def gemm_phase(self, G, b, tilemap, early, pre_last, epilogue, vb=1, ptail=None, cvb=3, idle=None, init_pre=None, init_post=None, init_fin=None, poll=None):
        A = self.A
        skip = A.newlabel(G.name + "_skip"); cons = A.newlabel(G.name + "_cons"); end = A.newlabel(G.name + "_end")
        tilemap(skip)
        A.e(f"s_cmp_lt_u32 s{SW}, 4\ns_cbranch_scc1 {cons}")
        A.e(f"s_sub_u32 s25, s{SW}, 4")
        G.emit_producer_setup(0, vb)
        G.emit_producer_run(early=early if self.o.get("early", True) else None, gate=lambda: A.e("s_barrier"))
        if ptail: ptail()
        A.e(f"s_branch {end}")
        A.label(cons)
        G.emit_consumer_pre(0, cvb, zero=(init_pre is None and init_post is None))
        if init_pre: init_pre()
        (poll or self.poll)(b)
        A.e("s_barrier")
        self.stamp(G.name + ".start")
        if init_post: init_post()
        G.emit_consumer_run(pre_last, init_fin)
        self.stamp(G.name + ".loop")
        epilogue()
        A.e(f"s_branch {end}")
        A.label(skip)
        if idle: idle()
        A.label(end)

    def tilemap_16x14(self, skip):
        A = self.A
        A.e("s_and_b32 s3, s2, 7\ns_lshr_b32 s29, s2, 3")
        A.e(f"s_cmp_ge_u32 s29, 28\ns_cbranch_scc1 {skip}")
        A.e("s_and_b32 s18, s3, 3\ns_lshl_b32 s18, s18, 2\ns_and_b32 s23, s29, 3\ns_add_u32 s18, s18, s23\ns_mov_b32 s40, s18\ns_lshl_b32 s18, s18, 7")
        A.e("s_lshr_b32 s17, s3, 2\ns_mul_i32 s17, s17, 7\ns_lshr_b32 s23, s29, 2\ns_add_u32 s17, s17, s23\ns_mov_b32 s41, s17\ns_lshl_b32 s17, s17, 7")

    ZP = 16

    def l2_wsp(self, tid):
        A = self.A
        srd_from(A, 56, PWSP, 0, S * S * 2)
        A.e("s_and_b32 s54, s2, 3\ns_lshl_b32 s54, s54, 21\ns_lshr_b32 s55, s2, 3\ns_lshl_b32 s55, s55, 16\ns_add_u32 s54, s54, s55")
        A.e(f"v_lshlrev_b32 v22, 4, {v(tid)}")
        for n in range(16):
            A.e("buffer_load_dwordx4 v[24:27], v22, s[56:59], s54 offen\ns_add_u32 s54, s54, 4096")

    def l2_wout(self, wave_sgpr):
        A = self.A
        srd_from(A, 56, PWOUT, 0, FH * D * 2)
        A.e(f"s_lshr_b32 s55, s2, 3\ns_mul_i32 s55, s55, 56\ns_mul_i32 s54, s{wave_sgpr}, 14\ns_add_u32 s55, s55, s54\ns_lshl_b32 s55, s55, 11")
        A.e("s_bfe_u32 s54, s2, 0x10002\ns_lshl_b32 s54, s54, 10\ns_add_u32 s54, s54, s55")
        A.e("v_lshlrev_b32 v22, 4, v0")
        for n in range(14):
            A.e("buffer_load_dwordx4 v[24:27], v22, s[56:59], s54 offen\ns_add_u32 s54, s54, 2048")

    def p4(self):
        A = self.A
        NS = self.o.get("NS1", 3)
        X = Op('ks', 256, F * 2, 4); X.segmap = FH * 2; X.xorfam = True
        Y = Op('kc', 128, self.LSTR, 8); Y.aux = SC
        G = Gemm(A, "g1", D, NS, X, Y, 2, 2, **self.o.get("g1", {}))
        def tilemap(skip):
            self.tilemap_16x14(skip)
            srd_from(A, 4, PWIN, 0, D * F * 2)
            srd_from(A, 8, PWS, WS_LN2, S * self.LSTR)
        def idle():
            if not self.o.get("pf", True): return
            A.e("s_sub_u32 s23, s29, 28\ns_lshl_b32 s24, s3, 2\ns_add_u32 s23, s23, s24")
            A.e(f"v_lshl_add_u32 v4, s{SW}, 6, v0\nv_lshlrev_b32 v4, 4, v4")
            for ptr, nbytes in ((PWSP, S * S * 2), (PWOUT, FH * D * 2)):
                per = nbytes // 32; n = (per + 8191) // 8192
                srd_from(A, 56, ptr, 0, nbytes)
                lp = A.newlabel("pfl")
                A.e(f"s_mul_i32 s54, s23, {per}\ns_mov_b32 s55, {n}")
                A.label(lp)
                A.e(f"buffer_load_dwordx4 v[8:11], v4, s[56:59], s54 offen\ns_add_u32 s54, s54, 8192")
                A.e(f"s_waitcnt vmcnt({self.o.get('pfq', 6)})\ns_sub_u32 s55, s55, 1\ns_cmp_lg_u32 s55, 0\ns_cbranch_scc1 {lp}")
        def epi():
            TX, TY = G.TX, G.TY
            assert G.set0 == 16 and G.accb == 112, (G.set0, G.accb)
            ZP = self.ZP; T = 48
            A.e(f"s_mov_b32 s44, {f2u(GK1)}\ns_mov_b32 s45, {f2u(GK1)}\ns_mov_b32 s46, {f2u(GK2)}\ns_mov_b32 s47, {f2u(GK2)}")
            A.e(f"v_mov_b32 {v(T+8)}, s44\nv_mov_b32 {v(T+9)}, s45")
            SP = 64
            for n in range(16): A.e(f"v_mov_b32 {v(SP + n)}, 0")
            A.e("s_nop 3")
            def accq(i, j): return G.accb + 4 * (i * TY + j)
            def gelu2(qa, qb):
                ta, tb = T, T + 10
                pr = ((qa, ta), (qb, tb))
                for a0, t in pr:
                    for hh in (0, 2): A.e(f"v_pk_mul_f32 {v(t+hh,2)}, {v(a0+hh,2)}, {v(a0+hh,2)}")
                for a0, t in pr:
                    for hh in (0, 2): A.e(f"v_pk_fma_f32 {v(t+hh,2)}, {v(t+hh,2)}, s[46:47], {v(T+8,2)}")
                for a0, t in pr:
                    for hh in (0, 2): A.e(f"v_pk_mul_f32 {v(t+hh,2)}, {v(t+hh,2)}, {v(a0+hh,2)}")
                for a0, t in pr:
                    for r in range(4): A.e(f"v_exp_f32 {v(t+r)}, {v(t+r)}")
                for a0, t in pr:
                    for hh in (0, 2): A.e(f"v_pk_add_f32 {v(t+hh,2)}, {v(t+hh,2)}, 1.0 op_sel_hi:[1,0]")
                    for r in range(4): A.e(f"v_rcp_f32 {v(t+r)}, {v(t+r)}")
                for a0, t in pr:
                    for hh in (0, 2): A.e(f"v_pk_mul_f32 {v(a0+hh,2)}, {v(a0+hh,2)}, {v(t+hh,2)}")
            for j in range(TY):
                for i in range(4, 8):
                    if i % 2 == 0: gelu2(accq(i, j), accq(i + 1, j))
                    a0 = accq(i, j)
                    for hh in (0, 2):
                        A.e(f"v_pk_add_f32 {v(SP + 2*j, 2)}, {v(SP + 2*j, 2)}, {v(a0+hh,2)}")
                        A.e(f"v_pk_fma_f32 {v(SP + 8 + 2*j, 2)}, {v(a0+hh,2)}, {v(a0+hh,2)}, {v(SP + 8 + 2*j, 2)}")
            R = 80; vt, va = 96, 97
            for j in range(TY):
                A.e(f"v_add_f32 {v(R + j)}, {v(SP + 2*j)}, {v(SP + 2*j + 1)}")
                A.e(f"v_add_f32 {v(R + 4 + j)}, {v(SP + 8 + 2*j)}, {v(SP + 8 + 2*j + 1)}")
            group_reduce(A, [R + n for n in range(8)], R + 8)
            A.e(f"v_cmp_le_u32 vcc, 16, v0\ns_nop 1")
            P4 = R + 8
            A.e(f"v_cndmask_b32 {v(P4)}, {v(R)}, {v(R + 2)}, vcc\nv_cndmask_b32 {v(P4 + 1)}, {v(R + 4)}, {v(R + 6)}, vcc")
            A.e(f"v_cndmask_b32 {v(P4 + 2)}, {v(R + 1)}, {v(R + 3)}, vcc\nv_cndmask_b32 {v(P4 + 3)}, {v(R + 5)}, {v(R + 7)}, vcc")
            srd_from(A, 36, PWS, WS_ST, 524288)
            A.e(f"s_lshl_b32 s23, s40, 1\ns_add_u32 s23, s23, s28\ns_mul_i32 s23, s23, {28 * 512}")
            A.e("s_lshl_b32 s24, s41, 1\ns_add_u32 s24, s24, s27\ns_lshl_b32 s24, s24, 9\ns_add_u32 s24, s24, s23")
            A.e(f"v_lshlrev_b32 v1, 4, v0\ns_mov_b32 exec_hi, 0")
            A.e(f"buffer_store_dwordx4 {v(P4,4)}, v1, s[36:39], s24 offen {SC}")
            A.e("s_mov_b32 exec_hi, -1")
            A.e("v_and_b32 v1, 15, v0\nv_lshlrev_b32 v1, 4, v1\nv_bfe_u32 v2, v0, 4, 1\nv_lshl_add_u32 v1, v2, 3, v1\nv_lshrrev_b32 v2, 5, v0\nv_lshl_add_u32 v1, v2, 8, v1")
            self.stamp("g1.z2")
            for j in range(TY):
                for i in range(4):
                    if i % 2 == 0: gelu2(accq(i, j), accq(i + 1, j))
                    a0 = accq(i, j); z = ZP + 2 * (4 * j + i)
                    A.e(f"v_cvt_pk_bf16_f32 {v(z)}, {v(a0)}, {v(a0+1)}\nv_cvt_pk_bf16_f32 {v(z+1)}, {v(a0+2)}, {v(a0+3)}")
            self.stamp("g1.z1")
            A.e("v_and_b32 v2, 31, v0\nv_min_u32 v2, 27, v2\nv_lshlrev_b32 v2, 9, v2")
            Q = 56
            pl = A.newlabel("g1poll"); pd = A.newlabel("g1polld"); pf = A.newlabel("g1fetch")
            A.e("s_mov_b32 s42, 0x20000\ns_add_u32 s48, s23, 4096\ns_add_u32 s49, s23, 8192\ns_add_u32 s50, s23, 12288")
            A.e(f"s_branch {pf}")
            A.label(pl)
            A.e(f"buffer_load_dword {v(Q)}, v2, s[36:39], s23 offen offset:504 {SC}\ns_waitcnt vmcnt(0)")
            A.e(f"v_cmp_eq_u32 vcc, -1, {v(Q)}")
            A.e(f"s_sub_u32 s42, s42, 1\ns_cbranch_scc1 {pf}")
            A.e(f"s_cmp_eq_u64 vcc, 0\ns_cbranch_scc1 {pf}")
            A.e(f"s_sleep 1\ns_branch {pl}")
            A.label(pf)
            for p in range(28):
                so = ("s23", "s48", "s49", "s50")[p >> 3]
                A.e(f"buffer_load_dwordx2 {v(Q + 2*p, 2)}, v1, s[36:39], {so} offen offset:{512 * (p & 7)} {SC}")
            A.e("s_waitcnt vmcnt(0)")
            A.e(f"v_max_u32 v3, {v(Q)}, {v(Q+1)}")
            for n in range(2, 56, 2):
                A.e(f"v_max3_u32 v3, v3, {v(Q+n)}, {v(Q+n+1)}")
            A.e(f"v_cmp_eq_u32 vcc, -1, v3")
            A.e(f"s_sub_u32 s42, s42, 1\ns_cbranch_scc1 {pd}")
            A.e(f"s_cmp_eq_u64 vcc, 0\ns_cbranch_scc0 {pl}")
            A.label(pd)
            self.stamp("g1.xchg")
            n = 28
            while n > 1:
                hi = n // 2
                for p in range(hi):
                    A.e(f"v_pk_add_f32 {v(Q + 2*p, 2)}, {v(Q + 2*p, 2)}, {v(Q + 2*(n - 1 - p), 2)}")
                n -= hi
            m, q = Q, Q + 1
            A.e(f"s_mov_b32 s44, {f2u(1.0 / FH)}\ns_mov_b32 s45, {f2u(1e-5)}")
            A.e(f"v_mul_f32 {v(m)}, s44, {v(m)}\nv_mul_f32 {v(q)}, s44, {v(q)}")
            A.e(f"v_fma_f32 {v(q)}, -{v(m)}, {v(m)}, {v(q)}\nv_max_f32 {v(q)}, 0, {v(q)}")
            bf16_round(A, m); bf16_round(A, q)
            A.e(f"v_add_f32 {v(q)}, s45, {v(q)}")
            bf16_round(A, q)
            A.e(f"v_sqrt_f32 {v(q)}, {v(q)}\ns_nop 0")
            bf16_round(A, q)
            A.e(f"v_rcp_f32 {v(q)}, {v(q)}\ns_nop 0")
            A.e(f"v_sub_f32 {v(m)}, 0, {v(m)}")
            SP2 = 64
            for (src, dstb) in ((m, SP2), (q, SP2 + 8)):
                a, b_, a2, b2 = dstb, dstb + 2, dstb + 4, dstb + 6
                A.e(f"v_mov_b32 {v(a)}, {v(src)}\nv_mov_b32 {v(b_)}, {v(src)}\ns_nop 1")
                A.e(f"v_permlane16_swap_b32 {v(a)}, {v(b_)}")
                A.e(f"v_mov_b32 {v(a2)}, {v(a)}\nv_mov_b32 {v(b2)}, {v(b_)}\ns_nop 1")
                A.e(f"v_permlane32_swap_b32 {v(a)}, {v(a2)}\nv_permlane32_swap_b32 {v(b_)}, {v(b2)}")
                for x in (a, b_, a2, b2): A.e(f"v_mov_b32 {v(x + 1)}, {v(x)}")
            PK = 80
            def pk(i, j): return PK + 2 * (4 * j + i)
            srd_from(A, 12, PWS, WS_Z2, S * self.ZSTR)
            va2, T2 = 4, 6
            lane_out_offset(A, va2, va2 + 1, 18, 17, 28, 27, TY, 4, self.ZSTR)
            for j in range(TY):
                for i in range(4):
                    a0 = accq(i + 4, j)
                    for hh in (0, 2):
                        A.e(f"v_pk_add_f32 {v(a0+hh,2)}, {v(a0+hh,2)}, {v(SP2 + 2*j, 2)}")
                        A.e(f"v_pk_mul_f32 {v(a0+hh,2)}, {v(a0+hh,2)}, {v(SP2 + 8 + 2*j, 2)}")
                    A.e(f"v_cvt_pk_bf16_f32 {v(pk(i,j))}, {v(a0)}, {v(a0+1)}\nv_cvt_pk_bf16_f32 {v(pk(i,j)+1)}, {v(a0+2)}, {v(a0+3)}")
            swap_store(A, G, pk, T2, va2, 12, self.ZSTR, 4, TY, aux=SC)
        def ptail():
            if self.o.get("l2pf", False):
                A.e("v_lshl_add_u32 v20, s25, 6, v0")
                self.l2_wsp(20)
        def idle2():
            idle()
            if self.o.get("l2pf", False):
                lab = A.newlabel("l2i")
                A.e(f"s_waitcnt vmcnt(0)\ns_cmp_ge_u32 s{SW}, 4\ns_cbranch_scc1 {lab}")
                A.e(f"v_lshl_add_u32 v20, s{SW}, 6, v0")
                self.l2_wsp(20)
                A.label(lab)
        self.gemm_phase(G, 3, tilemap, X, None, epi, idle=idle2, ptail=ptail)

    def p5(self):
        A = self.A
        NS = self.o.get("NS2", 4)
        X = Op('ks', 128, self.ZSTR, 4); Y = Op('kc', 128, S * 2, 8); X.aux = SC
        G = Gemm(A, "g2", S, NS, X, Y, 2, 2, **self.o.get("g2", {}))
        st = {}
        def tilemap(skip):
            self.tilemap_16x14(skip)
            srd_from(A, 4, PWS, WS_Z2, S * self.ZSTR)
            srd_from(A, 8, PWSP, 0, S * S * 2)
        def init_pre():
            ZB = G.vend
            srd_from(A, 36, PBSP, 0, S * 2)
            vb_ = ZB + 5
            A.e(f"s_lshl_b32 s23, s28, 6\ns_add_u32 s23, s23, s18")
            A.e(f"v_and_b32 {v(vb_)}, 15, v0\nv_add_u32 {v(vb_)}, s23, {v(vb_)}\nv_lshlrev_b32 {v(vb_)}, 1, {v(vb_)}")
            for j in range(4):
                A.e(f"buffer_load_ushort {v(ZB + j)}, {v(vb_)}, s[36:39], 0 offen offset:{32 * j}")
            A.e("s_waitcnt vmcnt(0)")
            for j in range(4): A.e(f"v_lshlrev_b32 {v(ZB + j)}, 16, {v(ZB + j)}")
            for i in range(4):
                for j in range(4):
                    for r in range(4): A.e(f"v_mov_b32 {v(G.accb + 4 * (i * 4 + j) + r)}, {v(ZB + j)}")
        def epi():
            ZB = G.vend; va = ZB + 4; T = ZB + 8; ZP = self.ZP
            srd_from(A, 12, PWS, WS_P, S * self.PSTR)
            lane_out_offset(A, va, va + 1, 18, 17, 28, 27, 4, 4, self.PSTR)
            A.e("s_mov_b32 s26, 0xffff0000")
            for j in range(4):
                for i in range(4):
                    a0 = G.accb + 4 * (i * 4 + j); z = ZP + 2 * (4 * j + i)
                    t = T + 4 * ((i + j) & 1)
                    A.e(f"v_lshlrev_b32 {v(t)}, 16, {v(z)}\nv_and_b32 {v(t+1)}, s26, {v(z)}")
                    A.e(f"v_lshlrev_b32 {v(t+2)}, 16, {v(z+1)}\nv_and_b32 {v(t+3)}, s26, {v(z+1)}")
                    A.e(f"v_pk_mul_f32 {v(a0,2)}, {v(a0,2)}, {v(t,2)}\nv_pk_mul_f32 {v(a0+2,2)}, {v(a0+2,2)}, {v(t+2,2)}")
                    A.e(f"v_cvt_pk_bf16_f32 {v(z)}, {v(a0)}, {v(a0+1)}\nv_cvt_pk_bf16_f32 {v(z+1)}, {v(a0+2)}, {v(a0+3)}")
            swap_store(A, G, lambda i, j: ZP + 2 * (4 * j + i), T, va, 12, self.PSTR, 4, 4, aux=SC)
        def ptail():
            if self.o.get("l2pf", False): self.l2_wout(25)
        def idle():
            if self.o.get("l2pf2idle", False):
                lab = A.newlabel("l2j")
                A.e(f"s_cmp_ge_u32 s{SW}, 4\ns_cbranch_scc1 {lab}")
                self.l2_wout(SW)
                A.label(lab)
        self.gemm_phase(G, 4, tilemap, Y, None, epi, cvb=48, ptail=ptail, idle=idle, init_pre=init_pre)

    def p6(self):
        A = self.A
        NS = self.o.get("NS3", 4); BN = 64
        X = Op('ks', BN, D * 2, 4); Y = Op('kc', 128, self.PSTR, 8); Y.aux = SC
        G = Gemm(A, "g3", FH, NS, X, Y, 2, 2, **self.o.get("g3", {}))
        TX, TY = G.TX, G.TY
        st = {}; nq = TX * TY
        def tilemap(skip):
            A.e("s_and_b32 s3, s2, 7\ns_lshr_b32 s29, s2, 3")
            A.e("s_and_b32 s18, s3, 3\ns_lshl_b32 s18, s18, 2\ns_and_b32 s23, s29, 3\ns_add_u32 s18, s18, s23\ns_lshl_b32 s18, s18, 7")
            A.e(f"s_lshr_b32 s17, s3, 2\ns_mul_i32 s17, s17, 8\ns_lshr_b32 s23, s29, 2\ns_xor_b32 s23, s23, {self.o.get('g3x', 0)}\ns_add_u32 s17, s17, s23\ns_mul_i32 s17, s17, {BN}")
            srd_from(A, 4, PWOUT, 0, FH * D * 2)
            srd_from(A, 8, PWS, WS_P, S * self.PSTR)
        def h_loads():
            ZB = G.vend
            va = ZB + 2 * nq
            for j in range(TY):
                A.e(f"s_mov_b32 s24, {16 * j * D * 2}")
                for i in range(TX):
                    A.e(f"buffer_load_dwordx2 {v(ZB + 2 * (TX * j + i), 2)}, {v(va)}, s[12:15], s24 offen offset:{32 * i} {SC}")
        def init_pre():
            ZB = G.vend
            srd_from(A, 12, PWS, WS_H, S * D * 2)
            va, vb_ = ZB + 2 * nq, ZB + 2 * nq + 1
            lane_out_offset(A, va, vb_, 18, 17, 28, 27, TY, TX, D * 2)
            lab = A.newlabel("hpre")
            A.e(f"s_cmp_ge_u32 s29, 28\ns_cbranch_scc1 {lab}")
            h_loads()
            A.label(lab)
        def init_post():
            lab = A.newlabel("hpost")
            A.e(f"s_cmp_lt_u32 s29, 28\ns_cbranch_scc1 {lab}")
            h_loads()
            A.label(lab)
        def init_fin():
            ZB = G.vend
            A.e("s_mov_b32 s26, 0xffff0000\ns_waitcnt vmcnt(0)")
            for j in range(TY):
                for i in range(TX):
                    a0 = G.accb + 4 * (i * TY + j); z = ZB + 2 * (TX * j + i)
                    A.e(f"v_lshlrev_b32 {v(a0)}, 16, {v(z)}\nv_and_b32 {v(a0+1)}, s26, {v(z)}")
                    A.e(f"v_lshlrev_b32 {v(a0+2)}, 16, {v(z+1)}\nv_and_b32 {v(a0+3)}, s26, {v(z+1)}")
            A.e("s_nop 1")
            self.stamp("g3.hinit")
        def epi():
            ZB = G.vend; va = ZB + 2 * nq
            srd_from(A, 12, POUT, 0, S * D * 2)
            A.e("s_nop 3")
            T = (va + 2 + 1) // 2 * 2
            for j in range(TY):
                for i in range(TX):
                    a0 = G.accb + 4 * (i * TY + j); z = ZB + 2 * (TX * j + i)
                    A.e(f"v_cvt_pk_bf16_f32 {v(z)}, {v(a0)}, {v(a0+1)}\nv_cvt_pk_bf16_f32 {v(z+1)}, {v(a0+2)}, {v(a0+3)}")
            swap_store(A, G, lambda i, j: ZB + 2 * (TX * j + i), T, va, 12, D * 2, TX, TY)
        def poll_group(b):
            lab = A.newlabel("pw"); lp = A.newlabel("pl"); ld = A.newlabel("pd")
            A.e(f"s_cmp_lg_u32 s{SW}, 0\ns_cbranch_scc1 {lab}")
            self.cnt_srd(b, 64)
            A.e("s_lshr_b32 s3, s18, 7\ns_lshl_b32 s3, s3, 8\nv_mov_b32 v250, s3")
            self.spin(250, 14, lp, ld)
            A.label(lab)
        self.gemm_phase(G, 5, tilemap, X, None, epi, init_pre=init_pre, init_post=init_post, init_fin=init_fin,
                        poll=poll_group if self.o.get('grp5', True) else None)

    def build(self, name):
        A = self.A
        kernel_header(A, name)
        done = "L_done"
        A.e("s_load_dwordx4 s[80:83], s[0:1], 0\ns_load_dwordx2 s[84:85], s[0:1], 16\ns_load_dwordx8 s[88:95], s[0:1], 32")
        A.e("s_load_dwordx4 s[96:99], s[0:1], 64\ns_load_dwordx2 s[30:31], s[0:1], 80")
        A.e(f"s_cmp_ge_u32 s2, 256\ns_cbranch_scc1 {done}")
        if self.o.get("scramble"):
            A.e("s_and_b32 s3, s2, 7\ns_lshl_b32 s3, s3, 5\ns_lshr_b32 s2, s2, 3\ns_or_b32 s2, s2, s3")
        A.e(f"v_mov_b32 v1, v0\nv_lshrrev_b32 v2, 6, v0\nv_and_b32 v0, 63, v0\ns_nop 0\nv_readfirstlane_b32 s{SW}, v2")
        if self.stamps: A.e("v_mov_b32 v255, 0")
        if self.o.get("codepf", True):
            A.e("s_getpc_b64 s[52:53]")
            A.label("L_pc")
            A.e(f"s_lshr_b32 s3, s2, 3\ns_lshl_b32 s3, s3, 3\ns_add_u32 s3, s3, s{SW}")
            A.e("s_mov_b32 s54, (L_done - L_pc) / 1024")
            lab = A.newlabel("cpf")
            A.e(f"s_cmp_ge_u32 s3, s54\ns_cbranch_scc1 {lab}")
            A.e("s_lshl_b32 s3, s3, 10\nv_lshl_add_u32 v2, v0, 4, s3")
            A.e("global_load_dwordx4 v[228:231], v2, s[52:53]")
            A.label(lab)
        A.e("s_waitcnt lgkmcnt(0)")
        self.stamp("start")
        self.p1(); self.stamp("p1.end")
        self.arrive(1); self.stamp("p1.arrived")
        self.pf_point("A")
        self.p2_pre(); self.stamp("p2.pre"); self.wait(1); self.stamp("b1")
        lb = A.newlabel("pfb"); A.e(f"s_cmp_eq_u32 s19, 2\ns_cbranch_scc1 {lb}"); self.pf_point("B"); A.label(lb)
        self.p2(); self.stamp("p2.end")
        self.arrive(2, nowait_ge=6); self.stamp("p2.arrived")
        self.pf_point("E")
        self.p3_pre(); self.stamp("p3.pre"); self.wait(2); self.stamp("b2")
        self.p3(); self.stamp("p3.end")
        self.arrive(3, keep=2); self.stamp("p3.arrived")
        self.p4(); self.stamp("p4.end")
        self.arrive(4); self.stamp("p4.arrived")
        self.p5(); self.stamp("p5.end")
        if self.o.get("grp5", True): self.arrive_group5()
        else: self.arrive(5)
        self.stamp("p5.arrived")
        self.p6()
        if self.stamps: A.e("s_waitcnt vmcnt(0)")
        self.stamp("p6.end")
        self.stamp_flush()
        A.label(done)
        A.e("s_endpgm")

HEADER = """Spectral (GFNet) block + gMLP block: one persistent gfx950 kernel (256 workgroups, one per CU), text emitted by the author's own generator scripts.
Kernarg: 0 A_x, 8 A_w_r, 16 A_w_i, 24 B_x (unused by the reference), 32 B_w_in, 40 B_w_sp, 48 B_b_sp, 56 B_w_out, 64 out, 72 debug, 80 ws
phase 1: LayerNorm + 1024-pt real FFT per row (32x32 MFMA DFT stages) + radix-8 step of the 2048-pt column FFT; re-tiles W
phase 2: 256-pt column FFT (16x16), multiply by W, inverse 256-pt FFT
phase 3: inverse radix-8 step, inverse 1024-pt real FFT, residual, LayerNorm
phase 4: z = gelu(ln2 @ w_in); LayerNorm of the second half (row statistics exchanged between workgroups)
phase 5: P = z1 * (w_sp @ z2n + b_sp)
phase 6: out = h + P @ w_out
Phases are separated by grid barriers (arrival counters: debug buffer for the first, workspace lines cleared in phase 1 for the others)."""
NAME = "sequential_preLN__spectral_gfnet__mixer_gmlp__prompt_kernel"

def build(opts=None):
    opts = opts or {}
    m = Mega(opts)
    m.build(NAME)
    lds = 163840
    out = ["; " + l for l in HEADER.split("\n")]
    out.append(f"; @launch grid=(256,1,1) block=(512,1,1) lds={lds}")
    out.append('.amdgcn_target "amdgcn-amd-amdhsa--gfx950"')
    out.append(".text")
    t = "\n".join(out) + "\n" + m.A.text() + '.section .rodata,"a"\n' + kernel_desc(NAME, 256)
    return t, m.stamp_names

if __name__ == "__main__":
    opts = json.loads(sys.argv[2]) if len(sys.argv) > 2 else {}
    t, names = build(opts)
    open(sys.argv[1], "w").write(t)
    print("bytes", len(t), "stamps", names)
```

```python
import sys, json
from asmlib import *
from layout import *
from gemm import *
from kern_gemm import (srd_from, swap_store, lane_out_offset, group_reduce, bf16_round, f2u, GK1, GK2)
from kern_fft import (nop, fconst, affine, cos_frag, row_reduce, ln_stats, twiddle_table, MF32, MF16)

PX, PWR, PWI, PWIN, PWSP, PBSP, PWOUT, POUT, PDBG, PWS = 80, 82, 84, 88, 90, 92, 94, 96, 98, 30
SW = 16
WS_CNT = 68 * MB
SC = "sc1"

class Mega:
    def __init__(self, opts):
        self.o = opts
        self.A = Asm()
        self.stamps = opts.get("stamps", False)
        self.nstamp = 0
        self.stamp_names = []
        self.PSTR = opts.get("pstr", FH * 2)
        self.ZSTR = opts.get("zstr", FH * 2)
        self.LSTR = opts.get("lstr", D * 2)

    def stamp(self, name):
        if not self.stamps: return
        A = self.A
        A.e("s_memrealtime s[100:101]\ns_waitcnt lgkmcnt(0)")
        A.e(f"v_writelane_b32 v255, s100, {self.nstamp}")
        self.stamp_names.append(name); self.nstamp += 1
        if self.o.get("clk") and (name.endswith(".start") or name.endswith(".loop") or name == "start"):
            A.e("s_memtime s[100:101]\ns_waitcnt lgkmcnt(0)")
            A.e(f"v_writelane_b32 v255, s100, {self.nstamp}")
            self.stamp_names.append(name + ".clk"); self.nstamp += 1
        assert self.nstamp <= 64

    def stamp_flush(self):
        if not self.stamps: return
        A = self.A
        lab = A.newlabel("tsf")
        A.e(f"s_cmp_lg_u32 s{SW}, {self.o.get('stamp_wave', 0)}\ns_cbranch_scc1 {lab}")
        srd_from(A, 64, PWS, WS_TS, 65536)
        A.e("v_mbcnt_lo_u32_b32 v0, -1, 0\nv_mbcnt_hi_u32_b32 v0, -1, v0\nv_lshlrev_b32 v0, 2, v0\ns_lshl_b32 s3, s2, 8")
        A.e("buffer_store_dword v255, v0, s[64:67], s3 offen")
        A.label(lab)

    def cnt_srd(self, b, dst):
        A = self.A
        idx = {1: 0, "W": 1, 2: 2, 3: 3, 4: 4, 5: 5}[b]
        srd_from(A, dst, PWS, WS_CNT + idx * 32768, 32768)
    def cnt_stride(self, b): return 256

    def arrive(self, b, nowait_ge=None, keep=0):
        A = self.A
        if nowait_ge is not None:
            lw = A.newlabel("nw")
            A.e(f"s_cmp_eq_u32 s19, 0\ns_cbranch_scc1 {lw}")
            A.e("s_waitcnt vmcnt(0)")
            A.label(lw)
            A.e("s_waitcnt lgkmcnt(0)\ns_barrier")
        else:
            A.e(f"s_waitcnt vmcnt({keep}) lgkmcnt(0)\ns_barrier")
        lab = A.newlabel("arr")
        A.e(f"s_cmp_lg_u32 s{SW}, 0\ns_cbranch_scc1 {lab}")
        if b == 1:
            g0 = A.newlabel("b0p"); g1 = A.newlabel("b0d")
            srd_from(A, 64, PDBG, 0, 256)
            A.e("s_mov_b32 s3, 0x20000\nv_mov_b32 v250, 0")
            A.label(g0)
            A.e("v_cmp_le_u32 vcc, 32, v252\ns_sub_u32 s3, s3, 1")
            A.e(f"s_cbranch_scc1 {g1}\ns_cmp_lg_u64 vcc, 0\ns_cbranch_scc1 {g1}")
            A.e(f"buffer_load_dword v252, v250, s[64:67], 0 offen {SC}\ns_waitcnt vmcnt(0)\ns_branch {g0}")
            A.label(g1)
        self.cnt_srd(b, 64)
        A.e(f"s_and_b32 s3, s2, 15\ns_lshl_b32 s3, s3, 8")
        A.e("v_lshlrev_b32 v250, 12, v0\nv_add_u32 v250, s3, v250\nv_mov_b32 v251, 1\ns_mov_b64 exec, 0xff")
        A.e(f"buffer_atomic_add v251, v250, s[64:67], 0 offen {SC}")
        A.e("s_mov_b64 exec, -1")
        A.label(lab)

    def arrive_group5(self):
        A = self.A
        A.e("s_waitcnt vmcnt(0) lgkmcnt(0)\ns_barrier")
        lab = A.newlabel("arr")
        A.e(f"s_cmp_lg_u32 s{SW}, 0\ns_cbranch_scc1 {lab}\ns_lshr_b32 s3, s2, 3\ns_cmp_ge_u32 s3, 28\ns_cbranch_scc1 {lab}")
        self.cnt_srd(5, 64)
        A.e("s_lshl_b32 s3, s40, 8\nv_mov_b32 v250, s3\nv_mov_b32 v251, 1\ns_mov_b64 exec, 1")
        A.e(f"buffer_atomic_add v251, v250, s[64:67], 0 offen {SC}")
        A.e("s_mov_b64 exec, -1")
        A.label(lab)

    def poll(self, b, vt=250, wave=0):
        A = self.A
        lab = A.newlabel("pw"); lp = A.newlabel("pl"); ld = A.newlabel("pd")
        A.e(f"s_cmp_lg_u32 s{SW}, {wave}\ns_cbranch_scc1 {lab}")
        self.cnt_srd(b, 64)
        A.e(f"s_bfe_u32 s3, s2, 0x30004\ns_lshl_b32 s3, s3, 12\nv_and_b32 {v(vt)}, 15, v0\nv_lshlrev_b32 {v(vt)}, 8, {v(vt)}\nv_add_u32 {v(vt)}, s3, {v(vt)}")
        self.spin(vt, 16, lp, ld)
        A.label(lab)

    def spin(self, va, target, lp, ld):
        A = self.A
        n = self.o.get("npoll", 1)
        regs = [251, 253, 254][:n]
        A.e("s_mov_b32 s3, 0x20000")
        for i, r in enumerate(regs):
            if i: A.e(f"s_sleep {self.o.get('pspace', 10) // (n - 1) if n > 1 else 0}")
            A.e(f"buffer_load_dword {v(r)}, {v(va)}, s[64:67], 0 offen {SC}")
        A.label(lp)
        for i, r in enumerate(regs):
            A.e(f"s_waitcnt vmcnt({n - 1})")
            A.e(f"v_cmp_gt_u32 vcc, {target}, {v(r)}")
            A.e(f"s_sub_u32 s3, s3, 1\ns_cbranch_scc1 {ld}")
            A.e(f"s_cmp_eq_u64 vcc, 0\ns_cbranch_scc1 {ld}")
            if n == 1: A.e(f"s_sleep {self.o.get('sleep', 1)}")
            A.e(f"buffer_load_dword {v(r)}, {v(va)}, s[64:67], 0 offen {SC}")
        A.e(f"s_branch {lp}")
        A.label(ld)

    def wait(self, b, vt=250):
        self.poll(b, vt)
        self.A.e("s_barrier")

    def prefetch(self, ptr, nbytes, tidreg, nth, vtmp, who="s2", nwg=256, base="0"):
        A = self.A
        per = (nbytes + nwg - 1) // nwg
        n = (per + nth * 16 - 1) // (nth * 16)
        srd_from(A, 56, ptr, 0, nbytes)
        A.e(f"v_lshlrev_b32 {v(vtmp)}, 4, {v(tidreg)}\ns_mul_i32 s54, {who}, {per}")
        for i in range(n):
            A.e(f"buffer_load_dwordx4 {v(vtmp + 2, 4)}, {v(vtmp)}, s[56:59], s54 offen")
            if i + 1 < n: A.e(f"s_add_u32 s54, s54, {nth * 16}")
        return n

    def wg_index(self, dst):
        A = self.A
        A.e(f"s_and_b32 s{dst}, s2, 7\ns_lshl_b32 s{dst}, s{dst}, 1\ns_bfe_u32 s3, s2, 0x10003\ns_or_b32 s{dst}, s{dst}, s3\ns_and_b32 s3, s2, 0xf0\ns_or_b32 s{dst}, s{dst}, s3")

    TBL = 98304

    def gen_tables(self):
        A = self.A
        P, Q, K1F, HF, T, DQ, VT, LF, GF, RO = 92, 93, 94, 95, 96, 104, 108, 109, 110, 111
        A.e(f"v_lshlrev_b32 {v(VT)}, 4, v0\nv_add_u32 {v(VT)}, {self.TBL}, {v(VT)}")
        A.e(f"v_and_b32 {v(K1F)}, 31, v0\nv_cvt_f32_u32 {v(K1F)}, {v(K1F)}\nv_lshrrev_b32 {v(HF)}, 5, v0\nv_cvt_f32_u32 {v(HF)}, {v(HF)}")
        A.e(f"v_and_b32 {v(LF)}, 15, v0\nv_cvt_f32_u32 {v(LF)}, {v(LF)}\nv_lshrrev_b32 {v(GF)}, 4, v0\nv_cvt_f32_u32 {v(GF)}, {v(GF)}")
        par = [0]
        def put(q, reg): A.e(f"ds_write_b128 {v(VT)}, {v(reg, 4)} offset:{q * 1024}")
        def frag(q, co, of):
            d = DQ + 8 + 4 * (par[0] & 1); par[0] += 1
            cos_frag(A, d, P, Q, co, of, T); put(q, d)
        def fam(pexpr, qmul, src=K1F, hsrc=HF):
            A.e(f"v_mul_f32 {v(P)}, {fconst(A, pexpr)}, {v(src)}\nv_mul_f32 {v(Q)}, {fconst(A, qmul)}, {v(hsrc)}\nv_mul_f32 {v(Q)}, {v(Q)}, {v(P)}")
        def F3():
            A.e(f"v_bfe_u32 {v(P)}, v0, 1, 4\nv_cvt_f32_u32 {v(P)}, {v(P)}\nv_mul_f32 {v(P)}, {fconst(A, 1/32)}, {v(P)}")
            A.e(f"v_and_b32 {v(T)}, 1, v0\nv_cvt_f32_u32 {v(T)}, {v(T)}\nv_mul_f32 {v(T)}, {fconst(A, 0.25)}, {v(T)}")
            A.e(f"v_mul_f32 {v(Q)}, 4.0, {v(HF)}\nv_fma_f32 {v(Q)}, {v(Q)}, {v(P)}, {v(T)}")
        def idx8():
            A.e(f"v_bfe_u32 {v(T)}, v0, 2, 1\nv_lshlrev_b32 {v(T)}, 2, {v(T)}")
            A.e(f"v_bfe_u32 {v(T+1)}, v0, 3, 1\nv_lshl_add_u32 {v(T)}, {v(T+1)}, 1, {v(T)}")
            A.e(f"v_bfe_u32 {v(T+1)}, v0, 1, 1\nv_add_u32 {v(T)}, {v(T)}, {v(T+1)}\nv_cvt_f32_u32 {v(T)}, {v(T)}")
        def F4():
            idx8()
            A.e(f"v_mul_f32 {v(P)}, {fconst(A, 0.125)}, {v(T)}")
            A.e(f"v_cvt_f32_u32 {v(T+1)}, s17\nv_mul_f32 {v(T+1)}, {fconst(A, 1/2048)}, {v(T+1)}\nv_mul_f32 {v(Q)}, {v(T)}, {v(T+1)}")
            A.e(f"v_and_b32 {v(T+1)}, 1, v0\nv_cvt_f32_u32 {v(T+1)}, {v(T+1)}\nv_fmamk_f32 {v(Q)}, {v(T+1)}, {hex(f2u(0.25))}, {v(Q)}")
            A.e(f"v_mul_f32 {v(T+1)}, 4.0, {v(HF)}\nv_fma_f32 {v(Q)}, {v(T+1)}, {v(P)}, {v(Q)}")
        def F8():
            idx8()
            A.e(f"v_cvt_f32_u32 {v(T+1)}, s17\nv_mul_f32 {v(T+1)}, {fconst(A, 1/2048)}, {v(T+1)}")
            A.e(f"v_fmamk_f32 {v(P)}, {v(T)}, {hex(f2u(0.125))}, {v(T+1)}")
            A.e(f"v_and_b32 {v(T+1)}, 1, v0\nv_cvt_f32_u32 {v(T+1)}, {v(T+1)}\nv_mul_f32 {v(T+1)}, {fconst(A, -0.25)}, {v(T+1)}")
            A.e(f"v_mul_f32 {v(Q)}, 4.0, {v(HF)}\nv_fma_f32 {v(Q)}, {v(Q)}, {v(P)}, {v(T+1)}")
        def F7(t):
            A.e(f"v_and_b32 {v(RO)}, 1, v0\nv_cvt_f32_u32 {v(RO)}, {v(RO)}\nv_mul_f32 {v(RO)}, {fconst(A, 0.25)}, {v(RO)}")
            A.e(f"v_bfe_u32 {v(P)}, v0, 1, 3\nv_add_u32 {v(P)}, {8*t}, {v(P)}\nv_cvt_f32_u32 {v(P)}, {v(P)}\nv_mul_f32 {v(P)}, {fconst(A, 1/16)}, {v(P)}")
            A.e(f"v_mul_f32 {v(DQ)}, 4.0, {v(GF)}\nv_mul_f32 {v(DQ)}, {v(DQ)}, {v(P)}")
        def twid(qc, qs, coefs):
            d = DQ + 8 + 4 * (par[0] & 1); par[0] += 1
            for r in range(4): affine(A, T + r, P, coefs[r], Q)
            for r in range(4): A.e(f"v_cos_f32 {v(d + r)}, {v(T + r)}")
            for r in range(4): A.e(f"v_sin_f32 {v(T + 4 + r)}, {v(T + r)}")
            A.e("s_nop 0"); put(qc, d); put(qs, T + 4)
        j8 = list(range(8)); co2 = [j >> 1 for j in j8]
        perm = lambda t: [16*t + 8*(j >> 2) + (j & 3) for j in j8]
        alt = lambda x: [x * (j & 1) for j in j8]; nalt = lambda x: [x * (1 - (j & 1)) for j in j8]
        def w0():
            fam(1/32, 8.0)
            frag(0, [j for j in j8], [0]*8); frag(1, [16 + j for j in j8], [0]*8); frag(2, [j for j in j8], [0.25]*8)
        def w1():
            fam(1/32, 8.0); frag(3, [16 + j for j in j8], [0.25]*8)
            F3(); frag(12, perm(0), [0]*8); frag(13, perm(1), [0]*8)
        def w2():
            F3(); frag(14, perm(0), [-0.25]*8); frag(15, perm(1), [-0.25]*8)
            F4(); frag(16, co2, alt(-0.25))
        def w3():
            fam(1/1024, 4.0)
            for a in range(4): twid(4 + a, 8 + a, [8*a + r for r in range(4)])
            fam(1/256, 4.0, LF, GF); twid(21, 22, [0, 1, 2, 3])
            F8(); frag(27, co2, alt(0.25))
        def w4():
            fam(1/16, 4.0, LF, GF); frag(17, co2, alt(-0.25)); frag(18, co2, nalt(0.25))
            fam(1/16, 2.0, LF, GF)
            ci = [((j >> 1) & 1) + 8*(j >> 2) for j in j8]
            frag(19, ci, alt(0.25)); frag(20, ci, nalt(-0.25))
        def w5():
            for t in range(2):
                F7(t)
                A.e(f"v_add_f32 {v(Q)}, {v(DQ)}, {v(RO)}"); frag(23 + 2*t, co2, alt(-0.25))
                A.e(f"v_sub_f32 {v(Q)}, {v(DQ)}, {v(RO)}"); frag(24 + 2*t, co2, alt(0.25))
        def w6():
            fam(1/32, 4.0)
            for t in range(2): frag(28 + t, [8*t + (j >> 1) for j in j8], alt(0.25))
            for t in range(2): frag(30 + t, [8*t + (j >> 1) for j in j8], nalt(-0.25))
        def w7():
            fam(1/32, 4.0)
            for t in range(2): frag(32 + t, perm(t), [0]*8)
            for t in range(2): frag(34 + t, perm(t), [0.25]*8)
        end = A.newlabel("tblend")
        jobs = [w0, w1, w2, w3, w4, w5, w6, w7]
        labs = [A.newlabel("tblw") for _ in jobs]
        for n in range(7):
            A.e(f"s_cmp_eq_u32 s{SW}, {n}\ns_cbranch_scc1 {labs[n]}")
        A.e(f"s_branch {labs[7]}")
        for n, job in enumerate(jobs):
            A.label(labs[n]); job(); A.e(f"s_branch {end}")
        A.label(end)
        A.e("s_waitcnt lgkmcnt(0)\ns_barrier")

    def load_tables(self, pairs, vt):
        A = self.A
        A.e(f"v_lshlrev_b32 {v(vt)}, 4, v0\nv_add_u32 {v(vt)}, {self.TBL}, {v(vt)}")
        for n, (q, reg) in enumerate(pairs):
            if n == 12: A.e("s_waitcnt lgkmcnt(4)")
            A.e(f"ds_read_b128 {v(reg, 4)}, {v(vt)} offset:{q * 1024}")

    def p1(self):
        A = self.A
        LU, LX, LW = 0, 16384, 16384 + 17408
        self.wg_index(17)
        srd_from(A, 4, PX, 0, S * D * 2)
        srd_from(A, 8, PWR, 0, S * 513 * 2)
        srd_from(A, 12, PWI, 0, S * 513 * 2)
        XR = 4
        srd_from(A, 36, PWS, WS_CNT, 6 * 32768)
        A.e("s_lshr_b32 s22, s2, 4\ns_lshl_b32 s22, s22, 15\ns_and_b32 s23, s2, 15\ns_lshl_b32 s23, s23, 8\ns_add_u32 s22, s22, s23")
        lcl = A.newlabel("p1clr")
        A.e(f"v_mov_b32 v21, 0\nv_lshlrev_b32 v3, 12, v0\ns_cmp_lg_u32 s{SW}, 0\ns_cbranch_scc1 {lcl}\ns_mov_b64 exec, 0xff")
        A.e(f"buffer_store_dword v21, v3, s[36:39], s22 offen {SC}")
        A.e("s_mov_b64 exec, -1")
        A.label(lcl)
        A.e("v_lshlrev_b32 v2, 4, v0")
        A.e(f"s_lshl_b32 s18, s{SW}, 8\ns_add_u32 s18, s18, s17\ns_lshl_b32 s18, s18, 11")
        A.e(f"buffer_load_dwordx4 {v(XR, 4)}, v2, s[4:7], s18 offen")
        A.e(f"buffer_load_dwordx4 {v(XR + 4, 4)}, v2, s[4:7], s18 offen offset:1024")
        srd_from(A, 36, PWS, WS_ST, 524288)
        A.e(f"s_lshl_b32 s22, s2, 11\ns_lshl_b32 s23, s{SW}, 10\ns_add_u32 s22, s22, s23\ns_cmp_lt_u32 s{SW}, 2\ns_cselect_b32 s22, s22, 0x100000")
        A.e("v_mov_b32 v20, -1\nv_mov_b32 v21, -1\nv_mov_b32 v22, -1\nv_mov_b32 v23, -1")
        A.e(f"buffer_store_dwordx4 v[20:23], v2, s[36:39], s22 offen {SC}")
        BC, BS, TC, TS, FA, FB, FN, A8 = 20, 28, 36, 52, 68, 76, 84, 88
        P, Q, K1F, HF, T = 92, 93, 94, 95, 96
        self.gen_tables()
        self.load_tables([(0, BC), (1, BC + 4), (2, BS), (3, BS + 4), (12, FA), (13, FA + 4), (14, FB), (15, FB + 4), (16, A8)]
                         + [(4 + a, TC + 4*a) for a in range(4)] + [(8 + a, TS + 4*a) for a in range(4)], 92)
        for n in range(4): A.e(f"v_mov_b32 {v(FN + n)}, 0xbf803f80")
        self.stamp("p1.const")
        FX, ST, DR, W0, AD = 104, 136, 144, 208, 212
        A.e("s_mov_b32 s26, 0xffff0000")
        A.e("s_waitcnt vmcnt(1)")
        self.stamp("p1.x")
        A.e(f"s_mul_i32 s20, s17, 8208\ns_lshl_b32 s21, s{SW}, 10\ns_add_u32 s22, s20, s21")
        for arr, srd in ((0, 8), (1, 12)):
            A.e(f"s_add_u32 m0, s21, {LW + arr * 9216}\ns_nop 0")
            A.e(f"buffer_load_dwordx4 v2, {s(srd,4)}, s22 offen lds")
        lw = A.newlabel("p1w8"); l0 = A.newlabel("p1w8a")
        A.e(f"s_cmp_ge_u32 s{SW}, 2\ns_cbranch_scc1 {lw}")
        A.e(f"s_mul_i32 s22, s{SW}, 9216\ns_add_u32 m0, s22, {LW + 8192}\ns_add_u32 s22, s20, 8192")
        A.e(f"s_cmp_eq_u32 s{SW}, 0\ns_cbranch_scc0 {l0}")
        A.e(f"buffer_load_dwordx4 v2, s[8:11], s22 offen lds\ns_branch {lw}")
        A.label(l0)
        A.e("buffer_load_dwordx4 v2, s[12:15], s22 offen lds")
        A.label(lw)
        if self.o.get("diag1"):
            A.e("s_waitcnt vmcnt(3)"); self.stamp("p1.sent"); A.e("s_waitcnt vmcnt(0)"); self.stamp("p1.wdma")
        lg = A.newlabel("p1b0")
        A.e(f"s_cmp_ge_u32 s2, 32\ns_cbranch_scc1 {lg}\ns_cmp_lg_u32 s{SW}, 0\ns_cbranch_scc1 {lg}")
        srd_from(A, 64, PDBG, 0, 256)
        A.e(f"v_mov_b32 v250, 0\nv_mov_b32 v251, 1\ns_mov_b64 exec, 1")
        A.e(f"buffer_atomic_add v251, v250, s[64:67], 0 offen {SC}")
        A.e("s_mov_b64 exec, -1")
        A.label(lg)
        npf = 0
        for n in range(8):
            A.e(f"v_lshlrev_b32 {v(FX + 2*n)}, 16, {v(XR + n)}\nv_and_b32 {v(FX + 2*n + 1)}, s26, {v(XR + n)}")
        sp, qp = ST + 4, ST + 6
        A.e(f"v_pk_add_f32 {v(sp,2)}, {v(FX,2)}, {v(FX+2,2)}\nv_pk_mul_f32 {v(qp,2)}, {v(FX,2)}, {v(FX,2)}")
        for n in range(1, 8):
            if n >= 2: A.e(f"v_pk_add_f32 {v(sp,2)}, {v(sp,2)}, {v(FX+2*n,2)}")
            A.e(f"v_pk_fma_f32 {v(qp,2)}, {v(FX+2*n,2)}, {v(FX+2*n,2)}, {v(qp,2)}")
        A.e(f"v_add_f32 {v(ST)}, {v(sp)}, {v(sp+1)}\nv_add_f32 {v(ST+1)}, {v(qp)}, {v(qp+1)}\ns_nop 1")
        row_reduce(A, [ST, ST + 1], ST + 12)
        ln_stats(A, ST, ST + 1, D)
        A.e(f"v_sub_f32 {v(ST+4)}, 0, {v(ST)}\nv_mov_b32 {v(ST+5)}, {v(ST+4)}\nv_mov_b32 {v(ST+6)}, {v(ST+1)}\nv_mov_b32 {v(ST+7)}, {v(ST+1)}")
        for n in range(8):
            f = FX + 2*n
            A.e(f"v_pk_add_f32 {v(f,2)}, {v(f,2)}, {v(ST+4,2)}\nv_pk_mul_f32 {v(f,2)}, {v(f,2)}, {v(ST+6,2)}")
            A.e(f"v_cvt_pk_bf16_f32 {v(XR + n)}, {v(f)}, {v(f+1)}")
        A.e(f"s_lshl_b32 s22, s{SW}, 11\nv_add_u32 {v(AD)}, s22, v2")
        A.e(f"ds_write_b128 {v(AD)}, {v(XR, 4)} offset:{LU}\nds_write_b128 {v(AD)}, {v(XR + 4, 4)} offset:{LU + 1024}")
        A.e(f"v_lshrrev_b32 {v(T)}, 5, v0\nv_lshlrev_b32 {v(T)}, 3, {v(T)}\nv_bfe_u32 {v(T+1)}, v0, 2, 2\nv_add_u32 {v(T)}, {v(T)}, {v(T+1)}\nv_lshlrev_b32 {v(T)}, 6, {v(T)}")
        A.e(f"v_bfe_u32 {v(T+1)}, v0, 4, 1\nv_lshl_add_u32 {v(T)}, {v(T+1)}, 5, {v(T)}\nv_and_b32 {v(T+1)}, 3, v0\nv_lshl_add_u32 {v(T)}, {v(T+1)}, 3, {v(T)}")
        A.e(f"v_add_u32 {v(AD)}, s22, {v(T)}")
        AF = FX
        for t in range(2):
            for rd in range(2):
                A.e(f"ds_read_b64_tr_b16 {v(AF + 4*t + 2*rd, 2)}, {v(AD)} offset:{LU + 1024*t + 256*rd}")
        for t in range(2):
            A.e(f"s_waitcnt lgkmcnt({2 * (1 - t)})")
            for im, Bf in ((0, BC), (1, BS)):
                d = DR + 16*im
                A.e(f"{MF32} {v(d,16)}, {v(AF + 4*t, 4)}, {v(Bf + 4*t, 4)}, {v(d,16) if t else '0'}")
        TP = FX
        A.e(f"v_and_b32 {v(T)}, 31, v0\nv_lshlrev_b32 {v(AD)}, 5, {v(T)}")
        A.e(f"v_lshrrev_b32 {v(T+1)}, 5, v0\nv_lshl_add_u32 {v(AD)}, {v(T+1)}, 11, {v(AD)}")
        A.e(f"s_lshr_b32 s22, s{SW}, 2\nv_bfe_u32 {v(T+1)}, v0, 3, 1\nv_xor_b32 {v(T+1)}, s22, {v(T+1)}\nv_lshl_add_u32 {v(AD)}, {v(T+1)}, 4, {v(AD)}")
        A.e(f"s_and_b32 s22, s{SW}, 3\ns_lshl_b32 s22, s22, 2\nv_add_u32 {v(AD)}, s22, {v(AD)}")
        nop(A, 4)
        dre, dim = DR, DR + 16
        for p in range(8):
            c, sn = TC + 2*p, TS + 2*p
            A.e(f"v_pk_mul_f32 {v(W0,2)}, {v(dre + 2*p,2)}, {v(c,2)}")
            A.e(f"v_pk_mul_f32 {v(W0+2,2)}, {v(dim + 2*p,2)}, {v(c,2)}")
            A.e(f"v_pk_fma_f32 {v(W0,2)}, {v(dim + 2*p,2)}, {v(sn,2)}, {v(W0,2)}")
            A.e(f"v_pk_fma_f32 {v(W0+2,2)}, {v(dre + 2*p,2)}, {v(sn,2)}, {v(W0+2,2)} neg_lo:[1,0,0] neg_hi:[1,0,0]")
            A.e(f"v_cvt_pk_bf16_f32 {v(TP + p)}, {v(W0)}, {v(W0+1)}")
            A.e(f"v_cvt_pk_bf16_f32 {v(TP + 8 + p)}, {v(W0+2)}, {v(W0+3)}")
        A.e("s_nop 1")
        d, dn, tre, tim = DR, DR + 16, TP, TP + 8
        A.e(f"{MF32} {v(d,16)}, {v(FA,4)}, {v(tre,4)}, 0")
        A.e(f"{MF32} {v(dn,16)}, {v(FN,4)}, {v(tre,4)}, 0")
        A.e(f"{MF32} {v(d,16)}, {v(FA+4,4)}, {v(tre+4,4)}, {v(d,16)}")
        A.e(f"{MF32} {v(dn,16)}, {v(FN,4)}, {v(tre+4,4)}, {v(dn,16)}")
        A.e(f"{MF32} {v(d,16)}, {v(FB,4)}, {v(tim,4)}, {v(d,16)}")
        A.e(f"{MF32} {v(d,16)}, {v(FB+4,4)}, {v(tim+4,4)}, {v(d,16)}")
        OV = 4
        nop(A, 12)
        for e in range(8):
            A.e(f"v_cvt_pk_bf16_f32 {v(OV + e)}, {v(d + 2*e)}, {v(d + 2*e + 1)}")
        for e in range(8):
            A.e(f"ds_write_b32 {v(AD)}, {v(OV + e)} offset:{LX + (4*(e >> 1) + (e & 1)) * 1024}")
        A.e(f"v_cvt_pk_bf16_f32 {v(W0)}, {v(dn)}, 0\ns_lshl_b32 s22, s{SW}, 2\nv_mov_b32 {v(W0+2)}, s22")
        A.e(f"s_mov_b64 exec, 1\nds_write_b32 {v(W0+2)}, {v(W0)} offset:{LX + 512*32}\ns_mov_b64 exec, -1")
        self.stamp("p1.fft")
        A.e("s_waitcnt lgkmcnt(0)\ns_barrier")
        srd_from(A, 64, PDBG, 0, 256)
        A.e(f"v_mov_b32 v250, 0\nbuffer_load_dword v252, v250, s[64:67], 0 offen {SC}")
        self.stamp("p1.rowfft")
        srd_from(A, 48, PWS, WS_U, 257 * KP_STRIDE)
        srd_from(A, 52, PWS, WS_WT, 257 * KP_STRIDE)
        A.e(f"v_and_b32 {v(T)}, 31, v0\nv_lshlrev_b32 {v(AD)}, 5, {v(T)}\nv_lshrrev_b32 {v(T+1)}, 5, v0\nv_bfe_u32 {v(T+2)}, v0, 3, 1\nv_xor_b32 {v(T+1)}, {v(T+1)}, {v(T+2)}\nv_lshl_add_u32 {v(AD)}, {v(T+1)}, 4, {v(AD)}")
        A.e(f"v_mov_b32 {v(AD+2)}, {v(AD)}\ns_lshl_b32 s22, s{SW}, 11\nv_add_u32 {v(AD)}, s22, {v(AD)}")
        RB = FX
        for b in range(2):
            A.e(f"ds_read_b128 {v(RB + 4*b, 4)}, {v(AD)} offset:{LX + 1024*b}")
        A.e(f"ds_read_b128 {v(RB + 8, 4)}, {v(AD+2)} offset:{LX + 16384}")
        SA = AD + 1
        A.e(f"v_bfe_u32 {v(T)}, v0, 1, 4\ns_mov_b32 s22, {KP_STRIDE}\nv_mul_lo_u32 {v(SA)}, {v(T)}, s22")
        A.e(f"v_and_b32 {v(T)}, 1, v0\nv_lshl_add_u32 {v(SA)}, {v(T)}, 5, {v(SA)}\nv_lshrrev_b32 {v(T)}, 5, v0\nv_lshl_add_u32 {v(SA)}, {v(T)}, 4, {v(SA)}")
        A.e(f"s_mul_i32 s22, s{SW}, {32 * KP_STRIDE}\ns_lshl_b32 s23, s17, 6\ns_add_u32 s22, s22, s23")
        for b in range(3):
            A.e(f"s_waitcnt lgkmcnt({2 - b})")
            A.e(f"{MF32} {v(DR + 16*b, 16)}, {v(A8,4)}, {v(RB + 4*b, 4)}, 0")
        WA, WS_ = 214, 215
        A.e(f"v_and_b32 {v(T)}, 1, v1\nv_mul_u32_u24 {v(WA)}, 4104, {v(T)}")
        A.e(f"v_lshrrev_b32 {v(T)}, 2, v1\nv_lshl_add_u32 {v(WA)}, {v(T)}, 2, {v(WA)}")
        A.e(f"v_bfe_u32 {v(T+1)}, v1, 1, 1\nv_lshl_add_u32 {v(WA)}, {v(T+1)}, 1, {v(WA)}")
        A.e(f"s_mov_b32 s24, {KP_STRIDE}\nv_mul_lo_u32 {v(WS_)}, {v(T)}, s24\nv_and_b32 {v(T)}, 3, v1\nv_lshl_add_u32 {v(WS_)}, {v(T)}, 4, {v(WS_)}")
        WO, WI = 120, 128
        nop(A, 2)
        for b in range(2):
            for n in range(4):
                A.e(f"v_cvt_pk_bf16_f32 {v(OV + 4*b + n)}, {v(DR + 16*b + 2*n)}, {v(DR + 16*b + 2*n + 1)}")
            A.e(f"buffer_store_dwordx4 {v(OV + 4*b, 4)}, {v(SA)}, s[48:51], s22 offen {SC}")
            A.e(f"s_add_u32 s22, s22, {16 * KP_STRIDE}")
        lny = A.newlabel("p1ny")
        A.e(f"s_cmp_lg_u32 s{SW}, 7\ns_cbranch_scc1 {lny}")
        for n in range(4):
            A.e(f"v_cvt_pk_bf16_f32 {v(OV + 8 + n)}, {v(DR + 32 + 2*n)}, {v(DR + 32 + 2*n + 1)}")
        A.e(f"s_lshl_b32 s22, s17, 5\ns_add_u32 s22, s22, {256 * KP_STRIDE}\nv_lshrrev_b32 {v(T)}, 5, v0\nv_lshlrev_b32 {v(T)}, 4, {v(T)}")
        A.e("s_mov_b32 exec_lo, 1\ns_mov_b32 exec_hi, 1")
        A.e(f"buffer_store_dwordx4 {v(OV + 8, 4)}, {v(T)}, s[48:51], s22 offen {SC}")
        A.e("s_mov_b64 exec, -1")
        A.label(lny)
        self._p1w = (LW, WA, WS_, WO, WI, FX, T)

    def p1w(self):
        A = self.A
        LW, WA, WS_, WO, WI, FX, T = self._p1w
        for n in range(2):
            if n: A.e("s_waitcnt lgkmcnt(7)")
            for nn in range(4):
                A.e(f"ds_read_u16 {v(WO + 4*n + nn)}, {v(WA)} offset:{LW + 512*n + 1026*nn}")
                A.e(f"ds_read_u16 {v(WI + 4*n + nn)}, {v(WA)} offset:{LW + 9216 + 512*n + 1026*nn}")
        A.e("s_waitcnt lgkmcnt(0)")
        for n in range(8):
            A.e(f"v_lshl_or_b32 {v(WO + n)}, {v(WI + n)}, 16, {v(WO + n)}")
        A.e("s_lshl_b32 s22, s17, 6")
        for n in range(2):
            A.e(f"buffer_store_dwordx4 {v(WO + 4*n, 4)}, {v(WS_)}, s[52:55], s22 offen {SC}")
            A.e(f"s_add_u32 s22, s22, {128 * KP_STRIDE}")
        lwe = A.newlabel("p1we")
        A.e(f"s_cmp_lg_u32 s{SW}, 0\ns_cbranch_scc1 {lwe}")
        A.e("s_mov_b64 exec, 3")
        WO2 = FX
        for nn in range(4):
            A.e(f"ds_read_u16 {v(WO2 + nn)}, {v(WA)} offset:{LW + 1024 + 1026*nn}")
            A.e(f"ds_read_u16 {v(WO2 + 4 + nn)}, {v(WA)} offset:{LW + 9216 + 1024 + 1026*nn}")
        A.e("s_waitcnt lgkmcnt(0)")
        for nn in range(4):
            A.e(f"v_lshl_or_b32 {v(WO2 + nn)}, {v(WO2 + 4 + nn)}, 16, {v(WO2 + nn)}")
        A.e(f"s_lshl_b32 s22, s17, 5\ns_add_u32 s22, s22, {256 * KP_STRIDE}\nv_lshlrev_b32 {v(T)}, 4, v0")
        A.e(f"buffer_store_dwordx4 {v(WO2, 4)}, {v(T)}, s[52:55], s22 offen {SC}")
        A.e("s_mov_b64 exec, -1")
        A.label(lwe)

    def pf_point(self, name):
        if not self.o.get("pf", True): return
        sched = {"A": 0, "B": 0, "C": 0, "D": 0, "E": 3, "F": 4}
        sched.update(self.o.get("pfs", {}))
        n = sched[name]
        if n == 0: return
        k0 = getattr(self, "_pfk", 0); self._pfk = k0 + n
        A = self.A
        lab = A.newlabel("pfp")
        srd_from(A, 56, PWIN, 0, D * F * 2)
        A.e(f"s_and_b32 s54, s{SW}, 3\nv_lshl_add_u32 v222, s54, 6, v0\nv_lshlrev_b32 v222, 4, v222")
        A.e(f"s_cmp_lt_u32 s{SW}, 4\ns_cbranch_scc1 {lab}")
        for k in range(k0, k0 + n):
            A.e(f"s_mul_i32 s54, s2, 28672\ns_add_u32 s54, s54, {4096 * k}")
            A.e("buffer_load_dwordx4 v[224:227], v222, s[56:59], s54 offen")
        A.label(lab)

    def p2_pre(self):
        A = self.A
        A.e(f"s_and_b32 s20, s{SW}, 3\ns_cmp_lt_u32 s{SW}, 4\ns_cselect_b32 s19, 1, 0")
        lab = A.newlabel("p2ny")
        A.e(f"s_cmp_lg_u32 s2, 0\ns_cbranch_scc1 {lab}\ns_cmp_lt_u32 s{SW}, 4\ns_cbranch_scc1 {lab}")
        A.e("s_mov_b32 s19, 2")
        A.label(lab)
        self.p2_notask = A.newlabel("p2nt")
        A.e(f"s_cmp_eq_u32 s19, 0\ns_cbranch_scc1 {self.p2_notask}")
        CA, CB, CI, CJ, TC, TS = 40, 48, 56, 64, 72, 76
        A.e("v_and_b32 v36, 15, v0\nv_lshrrev_b32 v37, 4, v0")
        self.load_tables([(17, CA), (18, CA + 4), (19, CI), (20, CI + 4), (21, TC), (22, TS), (23, CB), (25, CB + 4), (24, CJ), (26, CJ + 4)], 80)
        srd_from(A, 4, PWS, WS_U, 257 * KP_STRIDE)
        srd_from(A, 8, PWS, WS_WT, 257 * KP_STRIDE)
        srd_from(A, 12, PWS, WS_Y, 257 * KP_STRIDE)
        A.e(f"s_mul_i32 s18, s2, {KP_STRIDE}")
        A.e(f"v_lshrrev_b32 v38, 2, v36\nv_xor_b32 v38, s20, v38\nv_lshlrev_b32 v38, 4, v38")
        A.e(f"v_lshl_add_u32 v32, v37, 6, v36\nv_lshl_add_u32 v32, v32, 6, v38")
        A.e(f"v_lshl_add_u32 v33, v37, 5, v36\nv_lshl_add_u32 v33, v33, 6, v38")
        A.e("v_and_b32 v38, 3, v0\nv_xor_b32 v38, v38, v37\nv_lshrrev_b32 v39, 2, v0\nv_lshlrev_b32 v39, 6, v39\nv_lshl_add_u32 v31, v38, 4, v39")
        A.e(f"v_lshl_add_u32 v34, v37, 6, v36\nv_lshlrev_b32 v34, 5, v34\ns_lshl_b32 s21, s20, 3\ns_add_u32 s21, s21, 49152\nv_add_u32 v34, s21, v34")
        A.e(f"v_lshl_add_u32 v35, v37, 5, v36\nv_lshlrev_b32 v35, 5, v35\nv_add_u32 v35, s21, v35")
        A.label(self.p2_notask)

    def p2_compute(self, NT, R0, WT, wwait):
        A = self.A
        CA, CB, CI, CJ, TC, TS = 40, 48, 56, 64, 72, 76
        DD, W0, OP = 112, 144, R0
        gap = {4: 4, 2: 6, 1: 8}[NT]
        def twiddle(conj):
            for tau in range(NT):
                re, im = DD + 8*tau, DD + 8*tau + 4
                for hh in (0, 2):
                    A.e(f"v_pk_mul_f32 {v(W0+hh,2)}, {v(re+hh,2)}, {v(TC+hh,2)}")
                    A.e(f"v_pk_mul_f32 {v(W0+4+hh,2)}, {v(im+hh,2)}, {v(TC+hh,2)}")
                for hh in (0, 2):
                    n1 = " neg_lo:[1,0,0] neg_hi:[1,0,0]"
                    A.e(f"v_pk_fma_f32 {v(W0+hh,2)}, {v(im+hh,2)}, {v(TS+hh,2)}, {v(W0+hh,2)}" + (n1 if conj else ""))
                    A.e(f"v_pk_fma_f32 {v(W0+4+hh,2)}, {v(re+hh,2)}, {v(TS+hh,2)}, {v(W0+4+hh,2)}" + ("" if conj else n1))
                for r in range(4):
                    A.e(f"v_cvt_pk_bf16_f32 {v(OP + 4*tau + r)}, {v(W0 + r)}, {v(W0 + 4 + r)}")
            A.e("s_nop 1")
        for tau in range(NT):
            A.e(f"{MF16} {v(DD + 8*tau, 4)}, {v(R0 + 4*tau, 4)}, {v(CA, 4)}, 0")
            A.e(f"{MF16} {v(DD + 8*tau + 4, 4)}, {v(R0 + 4*tau, 4)}, {v(CA + 4, 4)}, 0")
        nop(A, gap)
        twiddle(False)
        for tau in range(NT):
            for t in range(2):
                A.e(f"{MF16} {v(DD + 8*tau + 4*t, 4)}, {v(CB + 4*t, 4)}, {v(OP + 4*tau, 4)}, 0")
        A.e("s_mov_b32 s26, 0xffff0000\n" + wwait)
        nop(A, gap - 1)
        for tau in range(NT):
            for e in range(4):
                vv = DD + 8*tau + 2*e
                w = WT + NT*e + tau
                A.e(f"v_lshlrev_b32 {v(W0)}, 16, {v(w)}\nv_and_b32 {v(W0+1)}, s26, {v(w)}")
                A.e(f"v_pk_mul_f32 {v(W0+2,2)}, {v(vv,2)}, {v(W0,2)} op_sel:[0,0] op_sel_hi:[1,0]")
                A.e(f"v_pk_fma_f32 {v(W0+2,2)}, {v(vv,2)}, {v(W0,2)}, {v(W0+2,2)} op_sel:[1,1,0] op_sel_hi:[0,1,1] neg_lo:[1,0,0]")
                A.e(f"v_cvt_pk_bf16_f32 {v(OP + 4*tau + e)}, {v(W0+2)}, {v(W0+3)}")
        A.e("s_nop 1")
        for tau in range(NT):
            A.e(f"{MF16} {v(DD + 8*tau, 4)}, {v(OP + 4*tau, 4)}, {v(CI, 4)}, 0")
            A.e(f"{MF16} {v(DD + 8*tau + 4, 4)}, {v(OP + 4*tau, 4)}, {v(CI + 4, 4)}, 0")
        nop(A, gap)
        twiddle(True)
        for tau in range(NT):
            for t in range(2):
                A.e(f"{MF16} {v(DD + 8*tau + 4*t, 4)}, {v(CJ + 4*t, 4)}, {v(OP + 4*tau, 4)}, 0")
        nop(A, 8)
        for e in range(4):
            for tau in range(NT):
                vv = DD + 8*tau + 2*e
                A.e(f"v_cvt_pk_bf16_f32 {v(WT + NT*e + tau)}, {v(vv)}, {v(vv+1)}")

    def p2(self):
        A = self.A
        nt = A.newlabel("p2idle"); end = A.newlabel("p2end"); ny = A.newlabel("p2nyq")
        LUI, LWI, LOU = 0, 16384, 32768
        R0, WT, VA, VB = 4, 96, 34, 35
        A.e(f"s_cmp_eq_u32 s19, 0\ns_cbranch_scc1 {nt}\ns_cmp_eq_u32 s19, 2\ns_cbranch_scc1 {ny}")
        A.e(f"s_lshl_b32 s22, s20, 12\ns_add_u32 s23, s22, s18")
        def dma(srd, base, n, vreg):
            for j in range(n):
                A.e(f"s_add_u32 m0, s22, {base + 1024 * j}\ns_add_u32 s24, s23, {1024 * j}")
                A.e(f"buffer_load_dwordx4 {vreg}, {s(srd,4)}, s24 offen {SC} lds")
        dma(4, LUI, 4, "v31")
        A.e("s_barrier")
        dma(8, LWI, 4, "v31")
        A.e("s_waitcnt vmcnt(4)\ns_barrier")
        self.stamp("p2.dma")
        for i in range(4):
            A.e(f"ds_read_b128 {v(R0 + 4*i, 4)}, v32 offset:{LUI + 1024*i}")
        A.e("s_waitcnt lgkmcnt(0)")
        for i in range(4):
            for tau in range(i + 1, 4):
                A.e(f"v_swap_b32 {v(R0 + 4*i + tau)}, {v(R0 + 4*tau + i)}")
        A.e("s_nop 1")
        wl = ["s_waitcnt vmcnt(0)", "s_barrier"] + [f"ds_read_b128 {v(WT + 4*e, 4)}, v33 offset:{LWI + 1024*(e & 1) + 8192*(e >> 1)}" for e in range(4)] + ["s_waitcnt lgkmcnt(0)"]
        self.p2_compute(4, R0, WT, "\n".join(wl))
        self.stamp("p2.fft")
        for e in range(4):
            A.e(f"ds_write_b128 v33, {v(WT + 4*e, 4)} offset:{LOU + 1024*(e & 1) + 8192*(e >> 1)}")
        A.e("s_waitcnt lgkmcnt(0)\ns_barrier")
        A.e(f"v_lshlrev_b32 v30, 4, v0\nv_add_u32 v30, s22, v30")
        for j in range(4):
            A.e(f"ds_read_b128 {v(R0 + 4*j, 4)}, v30 offset:{LOU + 1024*j}")
        for j in range(4):
            A.e(f"s_waitcnt lgkmcnt({3 - j})")
            A.e(f"buffer_store_dwordx4 {v(R0 + 4*j, 4)}, v31, s[12:15], s23 offen offset:{1024*j} {SC}")
        A.e(f"s_branch {end}")
        A.label(ny)
        LN0 = 49152
        A.e(f"s_and_b32 s22, s{SW}, 1\ns_lshl_b32 s22, s22, 12\ns_add_u32 s23, s22, {256 * KP_STRIDE}\nv_lshlrev_b32 v30, 4, v0")
        l1 = A.newlabel("nyd"); l2 = A.newlabel("nyd")
        A.e(f"s_cmp_lt_u32 s{SW}, 6\ns_cbranch_scc1 {l1}")
        dma(4, LN0, 4, "v30")
        A.label(l1)
        self.poll("W", wave=5)
        A.e("s_barrier")
        A.e(f"s_cmp_lt_u32 s{SW}, 6\ns_cbranch_scc1 {l2}")
        dma(8, LN0 + 8192, 4, "v30")
        A.label(l2)
        A.e("s_waitcnt vmcnt(4)\ns_barrier")
        A.e(f"s_lshl_b32 s22, s20, 11\ns_add_u32 s23, s22, {256 * KP_STRIDE}")
        for tau in range(2):
            for i in range(4):
                A.e(f"ds_read_b32 {v(R0 + 4*tau + i)}, {v(VA)} offset:{512*i + 4*tau}")
        A.e("s_waitcnt lgkmcnt(0)\ns_nop 1")
        wl = ["s_waitcnt vmcnt(0)", "s_barrier"]
        for e in range(4):
            for tau in range(2):
                wl.append(f"ds_read_b32 {v(WT + 2*e + tau)}, {v(VB)} offset:{8192 + 512*(e & 1) + 4096*(e >> 1) + 4*tau}")
        wl.append("s_waitcnt lgkmcnt(0)")
        self.p2_compute(2, R0, WT, "\n".join(wl))
        for e in range(4):
            A.e(f"ds_write_b64 {v(VB)}, {v(WT + 2*e, 2)} offset:{16384 + 512*(e & 1) + 4096*(e >> 1)}")
        A.e("s_waitcnt lgkmcnt(0)\ns_barrier")
        A.e(f"s_add_u32 s24, s22, {LN0 + 16384}\nv_add_u32 v29, s24, v30")
        for j in range(2):
            A.e(f"ds_read_b128 {v(R0 + 4*j, 4)}, v29 offset:{1024*j}")
        for j in range(2):
            A.e(f"s_waitcnt lgkmcnt({1 - j})")
            A.e(f"buffer_store_dwordx4 {v(R0 + 4*j, 4)}, v30, s[12:15], s23 offen offset:{1024*j} {SC}")
        A.e(f"s_branch {end}")
        A.label(nt)
        self.poll("W", wave=5)
        A.e("s_barrier\ns_barrier")
        self.pf_point("C")
        A.e("s_barrier\ns_barrier")
        self.pf_point("D")
        A.label(end)

    def p3_pre(self):
        A = self.A
        self.wg_index(17)
        srd_from(A, 4, PX, 0, S * D * 2)
        srd_from(A, 8, PWS, WS_Y, 257 * KP_STRIDE)
        srd_from(A, 12, PWS, WS_H, S * D * 2)
        srd_from(A, 48, PWS, WS_LN2, S * self.LSTR)
        T = 96
        XR = 24
        A.e("v_and_b32 v3, 31, v0\nv_lshlrev_b32 v3, 6, v3\nv_lshrrev_b32 v40, 5, v0\nv_lshl_add_u32 v3, v40, 3, v3")
        A.e(f"s_lshl_b32 s18, s{SW}, 8\ns_add_u32 s18, s18, s17\ns_lshl_b32 s18, s18, 11")
        for q in range(4):
            A.e(f"buffer_load_dwordx2 {v(XR + 2*q, 2)}, v3, s[4:7], s18 offen offset:{16*q}")
        A8, BR, BI, TC, TS, CC, CS = 40, 44, 52, 60, 76, 104, 112
        self.load_tables([(27, A8), (28, BR), (29, BR + 4), (30, BI), (31, BI + 4), (32, CC), (33, CC + 4), (34, CS), (35, CS + 4)]
                         + [(4 + a, TC + 4*a) for a in range(4)] + [(8 + a, TS + 4*a) for a in range(4)], 92)
        A.e(f"v_bfe_u32 {v(T)}, v0, 1, 4\ns_mov_b32 s22, {KP_STRIDE}\nv_mul_lo_u32 v2, {v(T)}, s22")
        A.e(f"v_and_b32 {v(T)}, 1, v0\nv_lshl_add_u32 v2, {v(T)}, 5, v2\nv_lshrrev_b32 {v(T)}, 5, v0\nv_lshl_add_u32 v2, {v(T)}, 4, v2")
        A.e(f"v_lshlrev_b32 v23, 4, {v(T)}")
        A.e(f"s_mul_i32 s22, s{SW}, {32 * KP_STRIDE}\ns_lshl_b32 s23, s17, 6\ns_add_u32 s22, s22, s23")
        A.e("s_waitcnt lgkmcnt(0)")

    def p3(self):
        A = self.A
        LY = self.o.get("p3_lds", 139264); LN = LY + 16384
        mimic = self.o.get("mimic", True)
        T, XR = 96, 24
        A8, BR, BI, TC, TS, CC, CS = 40, 44, 52, 60, 76, 104, 112
        RB = 4
        for b in range(2):
            A.e(f"buffer_load_dwordx4 {v(RB + 4*b, 4)}, v2, s[8:11], s22 offen {SC}")
            A.e(f"s_add_u32 s22, s22, {16 * KP_STRIDE}")
        A.e(f"s_lshl_b32 s22, s17, 5\ns_add_u32 s22, s22, {256 * KP_STRIDE}")
        A.e(f"buffer_load_dwordx4 {v(12, 4)}, v23, s[8:11], s22 offen {SC}")
        DR, AD, OV = 144, 212, 120
        A.e(f"v_lshrrev_b32 {v(T)}, 5, v0\nv_lshlrev_b32 {v(AD)}, 13, {v(T)}")
        A.e(f"v_and_b32 {v(T)}, 31, v0\nv_lshl_add_u32 {v(AD)}, {v(T)}, 6, {v(AD)}")
        A.e(f"s_lshr_b32 s24, s{SW}, 1\nv_bfe_u32 {v(T)}, v0, 2, 2\nv_xor_b32 {v(T)}, s24, {v(T)}\nv_lshl_add_u32 {v(AD)}, {v(T)}, 4, {v(AD)}")
        A.e(f"s_and_b32 s24, s{SW}, 1\ns_lshl_b32 s24, s24, 3\ns_add_u32 s24, s24, {LY}\nv_add_u32 {v(AD)}, s24, {v(AD)}")
        for b in range(3):
            A.e(f"s_waitcnt vmcnt({2 - b})")
            A.e(f"{MF32} {v(DR + 16*b, 16)}, {v(A8,4)}, {v(RB + 4*b, 4)}, 0")
        self.pf_point("F")
        nop(A, 12)
        for b in range(2):
            for n in range(4):
                A.e(f"v_cvt_pk_bf16_f32 {v(OV + 4*b + n)}, {v(DR + 16*b + 2*n)}, {v(DR + 16*b + 2*n + 1)}")
        l0 = A.newlabel("p3dc"); l1 = A.newlabel("p3ny")
        A.e(f"s_cmp_lg_u32 s{SW}, 0\ns_cbranch_scc1 {l0}")
        A.e("s_mov_b32 exec_lo, 1\ns_mov_b32 exec_hi, 1")
        for n in range(4):
            A.e(f"v_mul_f32 {v(T)}, 0.5, {v(DR + 2*n)}\nv_cvt_pk_bf16_f32 {v(OV + n)}, {v(T)}, 0")
        A.e("s_mov_b64 exec, -1")
        A.label(l0)
        A.e(f"s_cmp_lg_u32 s{SW}, 7\ns_cbranch_scc1 {l1}")
        for n in range(4):
            A.e(f"v_mul_f32 {v(T+2+n)}, 0.5, {v(DR + 32 + 2*n)}")
        A.e(f"v_add_u32 {v(T+1)}, {LN}, v23")
        A.e("s_mov_b32 exec_lo, 1\ns_mov_b32 exec_hi, 1")
        A.e(f"ds_write_b128 {v(T+1)}, {v(T+2, 4)}")
        A.e("s_mov_b64 exec, -1")
        A.label(l1)
        for b in range(2):
            for n in range(4):
                A.e(f"ds_write_b32 {v(AD)}, {v(OV + 4*b + n)} offset:{2048*n + 4*b}")
        A.e("s_waitcnt lgkmcnt(0)\ns_barrier")
        self.stamp("p3.radix8")
        TA, TB = T, T + 1
        A.e(f"v_and_b32 {v(T+2)}, 31, v0\nv_lshlrev_b32 {v(TA)}, 6, {v(T+2)}\ns_lshl_b32 s22, s{SW}, 11\ns_add_u32 s22, s22, {LY}\nv_add_u32 {v(TA)}, s22, {v(TA)}")
        A.e(f"v_lshrrev_b32 {v(T+2)}, 5, v0\nv_bfe_u32 {v(T+3)}, v0, 2, 2\nv_xor_b32 {v(T+2)}, {v(T+2)}, {v(T+3)}")
        A.e(f"v_xor_b32 {v(T+3)}, 2, {v(T+2)}")
        A.e(f"v_lshl_add_u32 {v(TB)}, {v(T+3)}, 4, {v(TA)}\nv_lshl_add_u32 {v(TA)}, {v(T+2)}, 4, {v(TA)}")
        AF, NY, SG = 120, 136, 138
        A.e(f"ds_read_b128 {v(AF, 4)}, {v(TA)}\nds_read_b128 {v(AF + 4, 4)}, {v(TB)}")
        A.e(f"s_lshl_b32 s22, s{SW}, 2\ns_add_u32 s22, s22, {LN}\nv_mov_b32 {v(T+2)}, s22")
        A.e(f"ds_read_b32 {v(NY)}, {v(T+2)}")
        A.e(f"v_and_b32 {v(SG)}, 1, v0\nv_cvt_f32_u32 {v(SG)}, {v(SG)}\nv_fma_f32 {v(SG)}, {v(SG)}, -2.0, 1.0")
        A.e(f"v_cmp_gt_u32 vcc, 32, v0\ns_nop 1\nv_cndmask_b32 {v(SG)}, 0, {v(SG)}, vcc")
        for t in range(2):
            A.e(f"s_waitcnt lgkmcnt({2 - t})")
            for im, Bf in ((0, BR), (1, BI)):
                d = DR + 16*im
                A.e(f"{MF32} {v(d,16)}, {v(AF + 4*t, 4)}, {v(Bf + 4*t, 4)}, {v(d,16) if t else '0'}")
        A.e("s_waitcnt lgkmcnt(0)")
        TP, W0 = 4, 208
        nop(A, 11)
        dre, dim = DR, DR + 16
        A.e(f"v_fma_f32 {v(dre)}, {v(SG)}, {v(NY)}, {v(dre)}")
        for p in range(8):
            c, sn = TC + 2*p, TS + 2*p
            A.e(f"v_pk_mul_f32 {v(W0,2)}, {v(dre + 2*p,2)}, {v(c,2)}")
            A.e(f"v_pk_mul_f32 {v(W0+2,2)}, {v(dim + 2*p,2)}, {v(c,2)}")
            A.e(f"v_pk_fma_f32 {v(W0,2)}, {v(dim + 2*p,2)}, {v(sn,2)}, {v(W0,2)} neg_lo:[1,0,0] neg_hi:[1,0,0]")
            A.e(f"v_pk_fma_f32 {v(W0+2,2)}, {v(dre + 2*p,2)}, {v(sn,2)}, {v(W0+2,2)}")
            A.e(f"v_cvt_pk_bf16_f32 {v(TP + p)}, {v(W0)}, {v(W0+1)}")
            A.e(f"v_cvt_pk_bf16_f32 {v(TP + 8 + p)}, {v(W0+2)}, {v(W0+3)}")
        A.e("s_nop 1")
        d, tre, tim = DR, TP, TP + 8
        A.e(f"{MF32} {v(d,16)}, {v(tre,4)}, {v(CC,4)}, 0")
        A.e(f"{MF32} {v(d,16)}, {v(tre+4,4)}, {v(CC+4,4)}, {v(d,16)}")
        A.e(f"{MF32} {v(d,16)}, {v(tim,4)}, {v(CS,4)}, {v(d,16)}")
        A.e(f"{MF32} {v(d,16)}, {v(tim+4,4)}, {v(CS+4,4)}, {v(d,16)}")
        A.e("s_mov_b32 s26, 0xffff0000")
        A.e(f"s_mov_b32 s44, {hex(f2u(2.0**-20))}\ns_mov_b32 s45, {hex(f2u(2.0**-20))}")
        hf, ST, HP, LP = DR + 16, 120, 4, 32
        for n in range(8):
            A.e(f"v_lshlrev_b32 {v(hf + 2*n)}, 16, {v(XR + n)}\nv_and_b32 {v(hf + 2*n + 1)}, s26, {v(XR + n)}")
        for n in range(8):
            A.e(f"v_pk_mul_f32 {v(d + 2*n,2)}, {v(d + 2*n,2)}, s[44:45]")
            if mimic:
                A.e(f"v_cvt_pk_bf16_f32 {v(W0)}, {v(d + 2*n)}, {v(d + 2*n + 1)}")
                A.e(f"v_lshlrev_b32 {v(d + 2*n)}, 16, {v(W0)}\nv_and_b32 {v(d + 2*n + 1)}, s26, {v(W0)}")
            A.e(f"v_pk_add_f32 {v(hf + 2*n,2)}, {v(hf + 2*n,2)}, {v(d + 2*n,2)}")
            A.e(f"v_cvt_pk_bf16_f32 {v(HP + n)}, {v(hf + 2*n)}, {v(hf + 2*n + 1)}")
            A.e(f"v_lshlrev_b32 {v(hf + 2*n)}, 16, {v(HP + n)}\nv_and_b32 {v(hf + 2*n + 1)}, s26, {v(HP + n)}")
        sp, qp = ST + 4, ST + 6
        A.e(f"v_pk_add_f32 {v(sp,2)}, {v(hf,2)}, {v(hf+2,2)}\nv_pk_mul_f32 {v(qp,2)}, {v(hf,2)}, {v(hf,2)}")
        for n in range(1, 8):
            if n >= 2: A.e(f"v_pk_add_f32 {v(sp,2)}, {v(sp,2)}, {v(hf+2*n,2)}")
            A.e(f"v_pk_fma_f32 {v(qp,2)}, {v(hf+2*n,2)}, {v(hf+2*n,2)}, {v(qp,2)}")
        A.e(f"v_add_f32 {v(ST)}, {v(sp)}, {v(sp+1)}\nv_add_f32 {v(ST+1)}, {v(qp)}, {v(qp+1)}")
        WA_, RA_, GA_ = 212, 216, 217
        A.e(f"s_lshl_b32 s22, s{SW}, 11\ns_add_u32 s22, s22, {LY}")
        A.e(f"v_and_b32 {v(T)}, 31, v0\nv_lshlrev_b32 {v(T+1)}, 6, {v(T)}\nv_lshrrev_b32 {v(T+2)}, 5, v0\nv_lshl_add_u32 {v(T+1)}, {v(T+2)}, 3, {v(T+1)}\nv_add_u32 {v(T+1)}, s22, {v(T+1)}")
        A.e(f"v_bfe_u32 {v(T)}, v0, 1, 2")
        for q in range(4):
            A.e(f"v_xor_b32 {v(T+2)}, {q}, {v(T)}\nv_lshl_add_u32 {v(WA_ + q)}, {v(T+2)}, 4, {v(T+1)}")
        A.e(f"v_lshrrev_b32 {v(T)}, 2, v0\nv_lshlrev_b32 {v(RA_)}, 6, {v(T)}\nv_bfe_u32 {v(T)}, v0, 3, 2\nv_and_b32 {v(T+1)}, 3, v0\nv_xor_b32 {v(T)}, {v(T)}, {v(T+1)}\nv_lshl_add_u32 {v(RA_)}, {v(T)}, 4, {v(RA_)}\nv_add_u32 {v(RA_)}, s22, {v(RA_)}")
        A.e(f"v_lshlrev_b32 {v(GA_)}, 4, v0")
        A.e(f"s_lshr_b32 s19, s18, 11\ns_mul_i32 s19, s19, {self.LSTR}")
        def row_store(src, srd, tmp, so=18):
            for q in range(4):
                A.e(f"ds_write_b64 {v(WA_ + q)}, {v(src + 2*q, 2)}")
            for n in range(2):
                A.e(f"ds_read_b128 {v(tmp + 4*n, 4)}, {v(RA_)} offset:{1024*n}")
            for n in range(2):
                A.e(f"s_waitcnt lgkmcnt({1 - n})")
                A.e(f"buffer_store_dwordx4 {v(tmp + 4*n, 4)}, {v(GA_)}, {s(srd,4)}, s{so} offen offset:{1024*n} {SC}")
        row_reduce(A, [ST, ST + 1], ST + 12)
        ln_stats(A, ST, ST + 1, D)
        A.e(f"v_sub_f32 {v(ST+4)}, 0, {v(ST)}\nv_mov_b32 {v(ST+5)}, {v(ST+4)}\nv_mov_b32 {v(ST+6)}, {v(ST+1)}\nv_mov_b32 {v(ST+7)}, {v(ST+1)}")
        for n in range(8):
            f = hf + 2*n
            A.e(f"v_pk_add_f32 {v(f,2)}, {v(f,2)}, {v(ST+4,2)}")
            if mimic:
                A.e(f"v_cvt_pk_bf16_f32 {v(W0)}, {v(f)}, {v(f+1)}")
                A.e(f"v_lshlrev_b32 {v(f)}, 16, {v(W0)}\nv_and_b32 {v(f+1)}, s26, {v(W0)}")
            A.e(f"v_pk_mul_f32 {v(f,2)}, {v(f,2)}, {v(ST+6,2)}")
            A.e(f"v_cvt_pk_bf16_f32 {v(LP + n)}, {v(f)}, {v(f+1)}")
        row_store(LP, 48, 12, 19)
        row_store(HP, 12, 20 if False else 120)

    def gemm_phase(self, G, b, tilemap, early, pre_last, epilogue, vb=1, ptail=None, cvb=3, idle=None, init_pre=None, init_post=None, init_fin=None, poll=None):
        A = self.A
        skip = A.newlabel(G.name + "_skip"); cons = A.newlabel(G.name + "_cons"); end = A.newlabel(G.name + "_end")
        tilemap(skip)
        A.e(f"s_cmp_lt_u32 s{SW}, 4\ns_cbranch_scc1 {cons}")
        A.e(f"s_sub_u32 s25, s{SW}, 4")
        G.emit_producer_setup(0, vb)
        G.emit_producer_run(early=early if self.o.get("early", True) else None, gate=lambda: A.e("s_barrier"))
        if ptail: ptail()
        A.e(f"s_branch {end}")
        A.label(cons)
        G.emit_consumer_pre(0, cvb, zero=(init_pre is None and init_post is None))
        if init_pre: init_pre()
        (poll or self.poll)(b)
        A.e("s_barrier")
        self.stamp(G.name + ".start")
        if init_post: init_post()
        G.emit_consumer_run(pre_last, init_fin)
        self.stamp(G.name + ".loop")
        epilogue()
        A.e(f"s_branch {end}")
        A.label(skip)
        if idle: idle()
        A.label(end)

    def tilemap_16x14(self, skip):
        A = self.A
        A.e("s_and_b32 s3, s2, 7\ns_lshr_b32 s29, s2, 3")
        A.e(f"s_cmp_ge_u32 s29, 28\ns_cbranch_scc1 {skip}")
        A.e("s_and_b32 s18, s3, 3\ns_lshl_b32 s18, s18, 2\ns_and_b32 s23, s29, 3\ns_add_u32 s18, s18, s23\ns_mov_b32 s40, s18\ns_lshl_b32 s18, s18, 7")
        A.e("s_lshr_b32 s17, s3, 2\ns_mul_i32 s17, s17, 7\ns_lshr_b32 s23, s29, 2\ns_add_u32 s17, s17, s23\ns_mov_b32 s41, s17\ns_lshl_b32 s17, s17, 7")

    ZP = 16

    def l2_wsp(self, tid):
        A = self.A
        srd_from(A, 56, PWSP, 0, S * S * 2)
        A.e("s_and_b32 s54, s2, 3\ns_lshl_b32 s54, s54, 21\ns_lshr_b32 s55, s2, 3\ns_lshl_b32 s55, s55, 16\ns_add_u32 s54, s54, s55")
        A.e(f"v_lshlrev_b32 v22, 4, {v(tid)}")
        for n in range(16):
            A.e("buffer_load_dwordx4 v[24:27], v22, s[56:59], s54 offen\ns_add_u32 s54, s54, 4096")

    def l2_wout(self, wave_sgpr):
        A = self.A
        srd_from(A, 56, PWOUT, 0, FH * D * 2)
        A.e(f"s_lshr_b32 s55, s2, 3\ns_mul_i32 s55, s55, 56\ns_mul_i32 s54, s{wave_sgpr}, 14\ns_add_u32 s55, s55, s54\ns_lshl_b32 s55, s55, 11")
        A.e("s_bfe_u32 s54, s2, 0x10002\ns_lshl_b32 s54, s54, 10\ns_add_u32 s54, s54, s55")
        A.e("v_lshlrev_b32 v22, 4, v0")
        for n in range(14):
            A.e("buffer_load_dwordx4 v[24:27], v22, s[56:59], s54 offen\ns_add_u32 s54, s54, 2048")

    def p4(self):
        A = self.A
        NS = self.o.get("NS1", 3)
        X = Op('ks', 256, F * 2, 4); X.segmap = FH * 2; X.xorfam = True
        Y = Op('kc', 128, self.LSTR, 8); Y.aux = SC
        G = Gemm(A, "g1", D, NS, X, Y, 2, 2, **self.o.get("g1", {}))
        def tilemap(skip):
            self.tilemap_16x14(skip)
            srd_from(A, 4, PWIN, 0, D * F * 2)
            srd_from(A, 8, PWS, WS_LN2, S * self.LSTR)
        def idle():
            if not self.o.get("pf", True): return
            A.e("s_sub_u32 s23, s29, 28\ns_lshl_b32 s24, s3, 2\ns_add_u32 s23, s23, s24")
            A.e(f"v_lshl_add_u32 v4, s{SW}, 6, v0\nv_lshlrev_b32 v4, 4, v4")
            retile = self.o.get("wo_tile", True)
            for ptr, nbytes in ((PWSP, S * S * 2),) + (() if retile else ((PWOUT, FH * D * 2),)):
                per = nbytes // 32; n = (per + 8191) // 8192
                srd_from(A, 56, ptr, 0, nbytes)
                lp = A.newlabel("pfl")
                A.e(f"s_mul_i32 s54, s23, {per}\ns_mov_b32 s55, {n}")
                A.label(lp)
                A.e(f"buffer_load_dwordx4 v[8:11], v4, s[56:59], s54 offen\ns_add_u32 s54, s54, 8192")
                A.e(f"s_waitcnt vmcnt({self.o.get('pfq', 6)})\ns_sub_u32 s55, s55, 1\ns_cmp_lg_u32 s55, 0\ns_cbranch_scc1 {lp}")
            if retile:
                srd_from(A, 56, PWOUT, 0, FH * D * 2)
                srd_from(A, 48, PWS, WS_Z1, 16 * 229376)
                A.e(f"v_lshl_add_u32 v5, s{SW}, 6, v0")
                A.e("v_bfe_u32 v6, v5, 3, 4\ns_mov_b32 s54, 229376\nv_mul_lo_u32 v6, v6, s54")
                A.e("v_lshrrev_b32 v7, 7, v5\nv_lshl_add_u32 v6, v7, 7, v6\nv_and_b32 v7, 7, v5\nv_lshl_add_u32 v6, v7, 4, v6")
                A.e(f"s_mul_i32 s54, s23, 114688\ns_mul_i32 s55, s23, {56 * 128}")
                for half in range(2):
                    for r in range(7):
                        A.e(f"buffer_load_dwordx4 {v(12 + 4*r, 4)}, v4, s[56:59], s54 offen\ns_add_u32 s54, s54, 8192")
                    for r in range(7):
                        A.e(f"s_waitcnt vmcnt({6 - r + r})" if False else f"s_waitcnt vmcnt(6)")
                        A.e(f"buffer_store_dwordx4 {v(12 + 4*r, 4)}, v6, s[48:51], s55 offen {SC}\ns_add_u32 s55, s55, 512")
                    A.e("s_waitcnt vmcnt(0)")
        def epi():
            TX, TY = G.TX, G.TY
            assert G.set0 == 16 and G.accb == 112, (G.set0, G.accb)
            ZP = self.ZP; T = 48
            A.e(f"s_mov_b32 s44, {f2u(GK1)}\ns_mov_b32 s45, {f2u(GK1)}\ns_mov_b32 s46, {f2u(GK2)}\ns_mov_b32 s47, {f2u(GK2)}")
            A.e(f"v_mov_b32 {v(T+8)}, s44\nv_mov_b32 {v(T+9)}, s45")
            SP = 64
            for n in range(16): A.e(f"v_mov_b32 {v(SP + n)}, 0")
            A.e("s_nop 3")
            def accq(i, j): return G.accb + 4 * (i * TY + j)
            def gelu2(qa, qb):
                ta, tb = T, T + 10
                pr = ((qa, ta), (qb, tb))
                for a0, t in pr:
                    for hh in (0, 2): A.e(f"v_pk_mul_f32 {v(t+hh,2)}, {v(a0+hh,2)}, {v(a0+hh,2)}")
                for a0, t in pr:
                    for hh in (0, 2): A.e(f"v_pk_fma_f32 {v(t+hh,2)}, {v(t+hh,2)}, s[46:47], {v(T+8,2)}")
                for a0, t in pr:
                    for hh in (0, 2): A.e(f"v_pk_mul_f32 {v(t+hh,2)}, {v(t+hh,2)}, {v(a0+hh,2)}")
                for a0, t in pr:
                    for r in range(4): A.e(f"v_exp_f32 {v(t+r)}, {v(t+r)}")
                for a0, t in pr:
                    for hh in (0, 2): A.e(f"v_pk_add_f32 {v(t+hh,2)}, {v(t+hh,2)}, 1.0 op_sel_hi:[1,0]")
                    for r in range(4): A.e(f"v_rcp_f32 {v(t+r)}, {v(t+r)}")
                for a0, t in pr:
                    for hh in (0, 2): A.e(f"v_pk_mul_f32 {v(a0+hh,2)}, {v(a0+hh,2)}, {v(t+hh,2)}")
            for j in range(TY):
                for i in range(4, 8):
                    if i % 2 == 0: gelu2(accq(i, j), accq(i + 1, j))
                    a0 = accq(i, j)
                    for hh in (0, 2):
                        A.e(f"v_pk_add_f32 {v(SP + 2*j, 2)}, {v(SP + 2*j, 2)}, {v(a0+hh,2)}")
                        A.e(f"v_pk_fma_f32 {v(SP + 8 + 2*j, 2)}, {v(a0+hh,2)}, {v(a0+hh,2)}, {v(SP + 8 + 2*j, 2)}")
            R = 80; vt, va = 96, 97
            for j in range(TY):
                A.e(f"v_add_f32 {v(R + j)}, {v(SP + 2*j)}, {v(SP + 2*j + 1)}")
                A.e(f"v_add_f32 {v(R + 4 + j)}, {v(SP + 8 + 2*j)}, {v(SP + 8 + 2*j + 1)}")
            group_reduce(A, [R + n for n in range(8)], R + 8)
            A.e(f"v_cmp_le_u32 vcc, 16, v0\ns_nop 1")
            P4 = R + 8
            A.e(f"v_cndmask_b32 {v(P4)}, {v(R)}, {v(R + 2)}, vcc\nv_cndmask_b32 {v(P4 + 1)}, {v(R + 4)}, {v(R + 6)}, vcc")
            A.e(f"v_cndmask_b32 {v(P4 + 2)}, {v(R + 1)}, {v(R + 3)}, vcc\nv_cndmask_b32 {v(P4 + 3)}, {v(R + 5)}, {v(R + 7)}, vcc")
            srd_from(A, 36, PWS, WS_ST, 524288)
            A.e(f"s_lshl_b32 s23, s40, 1\ns_add_u32 s23, s23, s28\ns_mul_i32 s23, s23, {28 * 512}")
            A.e("s_lshl_b32 s24, s41, 1\ns_add_u32 s24, s24, s27\ns_lshl_b32 s24, s24, 9\ns_add_u32 s24, s24, s23")
            A.e(f"v_lshlrev_b32 v1, 4, v0\ns_mov_b32 exec_hi, 0")
            A.e(f"buffer_store_dwordx4 {v(P4,4)}, v1, s[36:39], s24 offen {SC}")
            A.e("s_mov_b32 exec_hi, -1")
            A.e("v_and_b32 v1, 15, v0\nv_lshlrev_b32 v1, 4, v1\nv_bfe_u32 v2, v0, 4, 1\nv_lshl_add_u32 v1, v2, 3, v1\nv_lshrrev_b32 v2, 5, v0\nv_lshl_add_u32 v1, v2, 8, v1")
            self.stamp("g1.z2")
            for j in range(TY):
                for i in range(4):
                    if i % 2 == 0: gelu2(accq(i, j), accq(i + 1, j))
                    a0 = accq(i, j); z = ZP + 2 * (4 * j + i)
                    A.e(f"v_cvt_pk_bf16_f32 {v(z)}, {v(a0)}, {v(a0+1)}\nv_cvt_pk_bf16_f32 {v(z+1)}, {v(a0+2)}, {v(a0+3)}")
            self.stamp("g1.z1")
            A.e("v_and_b32 v2, 31, v0\nv_min_u32 v2, 27, v2\nv_lshlrev_b32 v2, 9, v2")
            Q = 56
            pl = A.newlabel("g1poll"); pd = A.newlabel("g1polld"); pf = A.newlabel("g1fetch")
            A.e("s_mov_b32 s42, 0x20000\ns_add_u32 s48, s23, 4096\ns_add_u32 s49, s23, 8192\ns_add_u32 s50, s23, 12288")
            A.e(f"s_branch {pf}")
            A.label(pl)
            A.e(f"buffer_load_dword {v(Q)}, v2, s[36:39], s23 offen offset:504 {SC}\ns_waitcnt vmcnt(0)")
            A.e(f"v_cmp_eq_u32 vcc, -1, {v(Q)}")
            A.e(f"s_sub_u32 s42, s42, 1\ns_cbranch_scc1 {pf}")
            A.e(f"s_cmp_eq_u64 vcc, 0\ns_cbranch_scc1 {pf}")
            A.e(f"s_sleep 1\ns_branch {pl}")
            A.label(pf)
            for p in range(28):
                so = ("s23", "s48", "s49", "s50")[p >> 3]
                A.e(f"buffer_load_dwordx2 {v(Q + 2*p, 2)}, v1, s[36:39], {so} offen offset:{512 * (p & 7)} {SC}")
            A.e("s_waitcnt vmcnt(0)")
            A.e(f"v_max_u32 v3, {v(Q)}, {v(Q+1)}")
            for n in range(2, 56, 2):
                A.e(f"v_max3_u32 v3, v3, {v(Q+n)}, {v(Q+n+1)}")
            A.e(f"v_cmp_eq_u32 vcc, -1, v3")
            A.e(f"s_sub_u32 s42, s42, 1\ns_cbranch_scc1 {pd}")
            A.e(f"s_cmp_eq_u64 vcc, 0\ns_cbranch_scc0 {pl}")
            A.label(pd)
            self.stamp("g1.xchg")
            n = 28
            while n > 1:
                hi = n // 2
                for p in range(hi):
                    A.e(f"v_pk_add_f32 {v(Q + 2*p, 2)}, {v(Q + 2*p, 2)}, {v(Q + 2*(n - 1 - p), 2)}")
                n -= hi
            m, q = Q, Q + 1
            A.e(f"s_mov_b32 s44, {f2u(1.0 / FH)}\ns_mov_b32 s45, {f2u(1e-5)}")
            A.e(f"v_mul_f32 {v(m)}, s44, {v(m)}\nv_mul_f32 {v(q)}, s44, {v(q)}")
            A.e(f"v_fma_f32 {v(q)}, -{v(m)}, {v(m)}, {v(q)}\nv_max_f32 {v(q)}, 0, {v(q)}")
            bf16_round(A, m); bf16_round(A, q)
            A.e(f"v_add_f32 {v(q)}, s45, {v(q)}")
            bf16_round(A, q)
            A.e(f"v_sqrt_f32 {v(q)}, {v(q)}\ns_nop 0")
            bf16_round(A, q)
            A.e(f"v_rcp_f32 {v(q)}, {v(q)}\ns_nop 0")
            A.e(f"v_sub_f32 {v(m)}, 0, {v(m)}")
            SP2 = 64
            for (src, dstb) in ((m, SP2), (q, SP2 + 8)):
                a, b_, a2, b2 = dstb, dstb + 2, dstb + 4, dstb + 6
                A.e(f"v_mov_b32 {v(a)}, {v(src)}\nv_mov_b32 {v(b_)}, {v(src)}\ns_nop 1")
                A.e(f"v_permlane16_swap_b32 {v(a)}, {v(b_)}")
                A.e(f"v_mov_b32 {v(a2)}, {v(a)}\nv_mov_b32 {v(b2)}, {v(b_)}\ns_nop 1")
                A.e(f"v_permlane32_swap_b32 {v(a)}, {v(a2)}\nv_permlane32_swap_b32 {v(b_)}, {v(b2)}")
                for x in (a, b_, a2, b2): A.e(f"v_mov_b32 {v(x + 1)}, {v(x)}")
            PK = 80
            def pk(i, j): return PK + 2 * (4 * j + i)
            srd_from(A, 12, PWS, WS_Z2, S * self.ZSTR)
            va2, T2 = 4, 6
            lane_out_offset(A, va2, va2 + 1, 18, 17, 28, 27, TY, 4, self.ZSTR)
            for j in range(TY):
                for i in range(4):
                    a0 = accq(i + 4, j)
                    for hh in (0, 2):
                        A.e(f"v_pk_add_f32 {v(a0+hh,2)}, {v(a0+hh,2)}, {v(SP2 + 2*j, 2)}")
                        A.e(f"v_pk_mul_f32 {v(a0+hh,2)}, {v(a0+hh,2)}, {v(SP2 + 8 + 2*j, 2)}")
                    A.e(f"v_cvt_pk_bf16_f32 {v(pk(i,j))}, {v(a0)}, {v(a0+1)}\nv_cvt_pk_bf16_f32 {v(pk(i,j)+1)}, {v(a0+2)}, {v(a0+3)}")
            swap_store(A, G, pk, T2, va2, 12, self.ZSTR, 4, TY, aux=SC)
        def ptail():
            if self.o.get("l2pf", False):
                A.e("v_lshl_add_u32 v20, s25, 6, v0")
                self.l2_wsp(20)
        def idle2():
            idle()
            if self.o.get("l2pf", False):
                lab = A.newlabel("l2i")
                A.e(f"s_waitcnt vmcnt(0)\ns_cmp_ge_u32 s{SW}, 4\ns_cbranch_scc1 {lab}")
                A.e(f"v_lshl_add_u32 v20, s{SW}, 6, v0")
                self.l2_wsp(20)
                A.label(lab)
        self.gemm_phase(G, 3, tilemap, X, None, epi, idle=idle2, ptail=ptail)

    def p5(self):
        A = self.A
        NS = self.o.get("NS2", 4)
        X = Op('ks', 128, self.ZSTR, 4); Y = Op('kc', 128, S * 2, 8); X.aux = SC
        G = Gemm(A, "g2", S, NS, X, Y, 2, 2, **self.o.get("g2", {}))
        st = {}
        def tilemap(skip):
            self.tilemap_16x14(skip)
            srd_from(A, 4, PWS, WS_Z2, S * self.ZSTR)
            srd_from(A, 8, PWSP, 0, S * S * 2)
        def init_pre():
            ZB = G.vend
            srd_from(A, 36, PBSP, 0, S * 2)
            vb_ = ZB + 5
            A.e(f"s_lshl_b32 s23, s28, 6\ns_add_u32 s23, s23, s18")
            A.e(f"v_and_b32 {v(vb_)}, 15, v0\nv_add_u32 {v(vb_)}, s23, {v(vb_)}\nv_lshlrev_b32 {v(vb_)}, 1, {v(vb_)}")
            for j in range(4):
                A.e(f"buffer_load_ushort {v(ZB + j)}, {v(vb_)}, s[36:39], 0 offen offset:{32 * j}")
            A.e("s_waitcnt vmcnt(0)")
            for j in range(4): A.e(f"v_lshlrev_b32 {v(ZB + j)}, 16, {v(ZB + j)}")
            for i in range(4):
                for j in range(4):
                    for r in range(4): A.e(f"v_mov_b32 {v(G.accb + 4 * (i * 4 + j) + r)}, {v(ZB + j)}")
        def epi():
            ZB = G.vend; va = ZB + 4; T = ZB + 8; ZP = self.ZP
            srd_from(A, 12, PWS, WS_P, S * self.PSTR)
            lane_out_offset(A, va, va + 1, 18, 17, 28, 27, 4, 4, self.PSTR)
            A.e("s_mov_b32 s26, 0xffff0000")
            for j in range(4):
                for i in range(4):
                    a0 = G.accb + 4 * (i * 4 + j); z = ZP + 2 * (4 * j + i)
                    t = T + 4 * ((i + j) & 1)
                    A.e(f"v_lshlrev_b32 {v(t)}, 16, {v(z)}\nv_and_b32 {v(t+1)}, s26, {v(z)}")
                    A.e(f"v_lshlrev_b32 {v(t+2)}, 16, {v(z+1)}\nv_and_b32 {v(t+3)}, s26, {v(z+1)}")
                    A.e(f"v_pk_mul_f32 {v(a0,2)}, {v(a0,2)}, {v(t,2)}\nv_pk_mul_f32 {v(a0+2,2)}, {v(a0+2,2)}, {v(t+2,2)}")
                    A.e(f"v_cvt_pk_bf16_f32 {v(z)}, {v(a0)}, {v(a0+1)}\nv_cvt_pk_bf16_f32 {v(z+1)}, {v(a0+2)}, {v(a0+3)}")
            swap_store(A, G, lambda i, j: ZP + 2 * (4 * j + i), T, va, 12, self.PSTR, 4, 4, aux=SC)
        def ptail():
            if self.o.get("l2pf", False): self.l2_wout(25)
        def idle():
            self.wait(4)
            if self.o.get("l2pf2idle", False):
                lab = A.newlabel("l2j")
                A.e(f"s_cmp_ge_u32 s{SW}, 4\ns_cbranch_scc1 {lab}")
                self.l2_wout(SW)
                A.label(lab)
        self.gemm_phase(G, 4, tilemap, Y, None, epi, cvb=48, ptail=ptail, idle=idle, init_pre=init_pre)

    def p6(self):
        A = self.A
        NS = self.o.get("NS3", 4); BN = 64
        wt = self.o.get("wo_tile", True) and self.o.get("pf", True)
        X = Op('ks', BN, 128 if wt else D * 2, 4); Y = Op('kc', 128, self.PSTR, 8); Y.aux = SC
        if wt: X.aux = SC; X.base_sgpr = 41
        G = Gemm(A, "g3", FH, NS, X, Y, 2, 2, **self.o.get("g3", {}))
        TX, TY = G.TX, G.TY
        st = {}; nq = TX * TY
        def tilemap(skip):
            A.e("s_and_b32 s3, s2, 7\ns_lshr_b32 s29, s2, 3")
            A.e("s_and_b32 s18, s3, 3\ns_lshl_b32 s18, s18, 2\ns_and_b32 s23, s29, 3\ns_add_u32 s18, s18, s23\ns_lshl_b32 s18, s18, 7")
            A.e(f"s_lshr_b32 s17, s3, 2\ns_mul_i32 s17, s17, 8\ns_lshr_b32 s23, s29, 2\ns_xor_b32 s23, s23, {self.o.get('g3x', 0)}\ns_add_u32 s17, s17, s23\ns_mul_i32 s17, s17, {BN}")
            if wt:
                srd_from(A, 4, PWS, WS_Z1, 16 * 229376)
                A.e("s_lshr_b32 s41, s17, 6\ns_mul_i32 s41, s41, 229376")
            else: srd_from(A, 4, PWOUT, 0, FH * D * 2)
            srd_from(A, 8, PWS, WS_P, S * self.PSTR)
        def h_loads():
            ZB = G.vend
            va = ZB + 2 * nq
            for j in range(TY):
                A.e(f"s_mov_b32 s24, {16 * j * D * 2}")
                for i in range(TX):
                    A.e(f"buffer_load_dwordx2 {v(ZB + 2 * (TX * j + i), 2)}, {v(va)}, s[12:15], s24 offen offset:{32 * i} {SC}")
        def init_pre():
            ZB = G.vend
            srd_from(A, 12, PWS, WS_H, S * D * 2)
            va, vb_ = ZB + 2 * nq, ZB + 2 * nq + 1
            lane_out_offset(A, va, vb_, 18, 17, 28, 27, TY, TX, D * 2)
            h_loads()
        init_post = None
        def init_fin():
            ZB = G.vend
            A.e("s_mov_b32 s26, 0xffff0000\ns_waitcnt vmcnt(0)")
            for j in range(TY):
                for i in range(TX):
                    a0 = G.accb + 4 * (i * TY + j); z = ZB + 2 * (TX * j + i)
                    A.e(f"v_lshlrev_b32 {v(a0)}, 16, {v(z)}\nv_and_b32 {v(a0+1)}, s26, {v(z)}")
                    A.e(f"v_lshlrev_b32 {v(a0+2)}, 16, {v(z+1)}\nv_and_b32 {v(a0+3)}, s26, {v(z+1)}")
            A.e("s_nop 1")
            self.stamp("g3.hinit")
        def epi():
            ZB = G.vend; va = ZB + 2 * nq
            srd_from(A, 12, POUT, 0, S * D * 2)
            A.e("s_nop 3")
            T = (va + 2 + 1) // 2 * 2
            for j in range(TY):
                for i in range(TX):
                    a0 = G.accb + 4 * (i * TY + j); z = ZB + 2 * (TX * j + i)
                    A.e(f"v_cvt_pk_bf16_f32 {v(z)}, {v(a0)}, {v(a0+1)}\nv_cvt_pk_bf16_f32 {v(z+1)}, {v(a0+2)}, {v(a0+3)}")
            swap_store(A, G, lambda i, j: ZB + 2 * (TX * j + i), T, va, 12, D * 2, TX, TY)
        def poll_group(b):
            lab = A.newlabel("pw"); lp = A.newlabel("pl"); ld = A.newlabel("pd")
            A.e(f"s_cmp_lg_u32 s{SW}, 0\ns_cbranch_scc1 {lab}")
            self.cnt_srd(b, 64)
            A.e("s_lshr_b32 s3, s18, 7\ns_lshl_b32 s3, s3, 8\nv_mov_b32 v250, s3")
            self.spin(250, 14, lp, ld)
            A.label(lab)
        self.gemm_phase(G, 5, tilemap, X, None, epi, init_pre=init_pre, init_post=init_post, init_fin=init_fin,
                        poll=poll_group if self.o.get('grp5', True) else None)

    def build(self, name):
        A = self.A
        kernel_header(A, name)
        done = "L_done"
        A.e("s_load_dwordx4 s[80:83], s[0:1], 0\ns_load_dwordx2 s[84:85], s[0:1], 16\ns_load_dwordx8 s[88:95], s[0:1], 32")
        A.e("s_load_dwordx4 s[96:99], s[0:1], 64\ns_load_dwordx2 s[30:31], s[0:1], 80")
        A.e(f"s_cmp_ge_u32 s2, 256\ns_cbranch_scc1 {done}")
        if self.o.get("scramble"):
            A.e("s_and_b32 s3, s2, 7\ns_lshl_b32 s3, s3, 5\ns_lshr_b32 s2, s2, 3\ns_or_b32 s2, s2, s3")
        A.e(f"v_mov_b32 v1, v0\nv_lshrrev_b32 v2, 6, v0\nv_and_b32 v0, 63, v0\ns_nop 0\nv_readfirstlane_b32 s{SW}, v2")
        if self.stamps: A.e("v_mov_b32 v255, 0")
        if self.o.get("codepf", True):
            A.e("s_getpc_b64 s[52:53]")
            A.label("L_pc")
            A.e(f"s_lshr_b32 s3, s2, 3\ns_lshl_b32 s3, s3, 3\ns_add_u32 s3, s3, s{SW}")
            A.e("s_mov_b32 s54, (L_done - L_pc) / 1024")
            lab = A.newlabel("cpf")
            A.e(f"s_cmp_ge_u32 s3, s54\ns_cbranch_scc1 {lab}")
            A.e("s_lshl_b32 s3, s3, 10\nv_lshl_add_u32 v2, v0, 4, s3")
            A.e("global_load_dwordx4 v[228:231], v2, s[52:53]")
            A.label(lab)
        A.e("s_waitcnt lgkmcnt(0)")
        self.stamp("start")
        self.p1(); self.stamp("p1.end")
        if self.o.get("worder", 1) == 1:
            A.e("s_waitcnt vmcnt(3)\ns_barrier")
            self.p1w()
            self.arrive(1, keep=2); self.stamp("p1.arrived")
        else:
            self.arrive(1); self.stamp("p1.arrived")
            self.p1w()
        self.arrive("W"); self.stamp("p1.w")
        self.pf_point("A")
        self.p2_pre(); self.stamp("p2.pre"); self.wait(1); self.stamp("b1")
        lb = A.newlabel("pfb"); A.e(f"s_cmp_eq_u32 s19, 2\ns_cbranch_scc1 {lb}"); self.pf_point("B"); A.label(lb)
        self.p2(); self.stamp("p2.end")
        self.arrive(2, nowait_ge=6); self.stamp("p2.arrived")
        self.pf_point("E")
        self.p3_pre(); self.stamp("p3.pre"); self.wait(2); self.stamp("b2")
        self.p3(); self.stamp("p3.end")
        self.arrive(3, keep=2); self.stamp("p3.arrived")
        self.p4(); self.stamp("p4.end")
        self.arrive(4); self.stamp("p4.arrived")
        self.p5(); self.stamp("p5.end")
        if self.o.get("grp5", True): self.arrive_group5()
        else: self.arrive(5)
        self.stamp("p5.arrived")
        self.p6()
        if self.stamps: A.e("s_waitcnt vmcnt(0)")
        self.stamp("p6.end")
        self.stamp_flush()
        A.label(done)
        A.e("s_endpgm")

HEADER = """Spectral (GFNet) block + gMLP block: one persistent gfx950 kernel (256 workgroups, one per CU), text emitted by the author's own generator scripts.
Kernarg: 0 A_x, 8 A_w_r, 16 A_w_i, 24 B_x (unused by the reference), 32 B_w_in, 40 B_w_sp, 48 B_b_sp, 56 B_w_out, 64 out, 72 debug, 80 ws
phase 1: LayerNorm + 1024-pt real FFT per row (32x32 MFMA DFT stages) + radix-8 step of the 2048-pt column FFT; re-tiles W
phase 2: 256-pt column FFT (16x16), multiply by W, inverse 256-pt FFT
phase 3: inverse radix-8 step, inverse 1024-pt real FFT, residual, LayerNorm
phase 4: z = gelu(ln2 @ w_in); LayerNorm of the second half (row statistics exchanged between workgroups)
phase 5: P = z1 * (w_sp @ z2n + b_sp)
phase 6: out = h + P @ w_out
Phases are separated by grid barriers (arrival counters: debug buffer for the first, workspace lines cleared in phase 1 for the others)."""
NAME = "sequential_preLN__spectral_gfnet__mixer_gmlp__prompt_kernel"

def build(opts=None):
    opts = opts or {}
    m = Mega(opts)
    m.build(NAME)
    lds = 163840
    out = ["; " + l for l in HEADER.split("\n")]
    out.append(f"; @launch grid=(256,1,1) block=(512,1,1) lds={lds}")
    out.append('.amdgcn_target "amdgcn-amd-amdhsa--gfx950"')
    out.append(".text")
    t = "\n".join(out) + "\n" + m.A.text() + '.section .rodata,"a"\n' + kernel_desc(NAME, 256)
    return t, m.stamp_names

if __name__ == "__main__":
    opts = json.loads(sys.argv[2]) if len(sys.argv) > 2 else {}
    t, names = build(opts)
    open(sys.argv[1], "w").write(t)
    print("bytes", len(t), "stamps", names)
```

```python
from asmlib import *
from banks import cycles

KS = 64

def sigma(RB, k):
    if RB in (256, 512): return (k & 3) | (((k >> 3) & 1) << 2)
    if RB == 448: return (k >> 3) & 1
    if RB == 128: return ((k >> 1) & 1) | (((k >> 3) & 1) << 1)
    raise ValueError(RB)

class Op:
    def __init__(self, kind, R, stride, srd):
        self.kind, self.R, self.stride, self.srd = kind, R, stride, srd
        self.bytes = R * KS * 2
        self.ndma = self.bytes // 1024
        self.RB = 2 * R if kind == 'ks' else 128
    def read_addr(self, lane, idx0, t, h, rd=0):
        if self.kind == 'kc':
            row = idx0 + 16 * t + (lane & 15)
            return row * 128 + (((4 * h + (lane >> 4)) ^ ((row >> 1) & 7)) * 16)
        G, r, c = lane >> 4, (lane >> 2) & 3, lane & 3
        k = 32 * h + 8 * G + 4 * rd + r
        u = idx0 // 16 + t
        return k * self.RB + ((2 * u + (c >> 1)) ^ (sigma(self.RB, k) << 1)) * 16 + (c & 1) * 8

def check_conflicts(op, origins, T):
    for idx0 in origins:
        for t in range(T):
            for h in range(2):
                if op.kind == 'kc':
                    a = [op.read_addr(l, idx0, t, h) for l in range(64)]
                    assert cycles(a, 'b128') == 4
                else:
                    for rd in range(2):
                        a = [op.read_addr(l, idx0, t, h, rd) for l in range(64)]
                        assert cycles(a, 'tr_b64') == 2, (op.RB, idx0, t, h, rd, cycles(a, 'tr_b64'))

class Gemm:
    def __init__(self, A, name, Ktot, NS, X, Y, WX, WY, mode='pc', no_mfma=False, no_dma=False, no_read=False, lds0=0, shadow=True, prio=0, rot=None, nobar=False, unroll=1, wrap=None):
        self.A, self.name, self.Ktot, self.NS, self.X, self.Y = A, name, Ktot, NS, X, Y
        self.WX, self.WY = WX, WY
        self.TX = X.R // 16 // WX
        self.TY = Y.R // 16 // WY
        self.nst = Ktot // KS
        self.slot = X.bytes + Y.bytes
        self.mode = mode
        self.lds0 = lds0
        self.shadow = shadow
        self.prio = prio
        self.rot = rot
        self.wrap = wrap
        self.nobar = nobar
        self.unroll = unroll
        self.no_mfma, self.no_dma, self.no_read = no_mfma, no_dma, no_read
        self.nd = X.ndma + Y.ndma
        assert self.nd % 4 == 0
        self.P = self.nd // 4
        check_conflicts(X, [16 * self.TX * w for w in range(WX)], self.TX)
        check_conflicts(Y, [16 * self.TY * w for w in range(WY)], self.TY)
        assert self.NS * self.slot <= 163840

    S_WAVE, S_X0, S_Y0, S_SOX, S_SOY, S_SLOT, S_CNT, S_T0, S_T1, S_LW = 16, 17, 18, 19, 20, 21, 22, 23, 24, 25
    S_KX, S_KY = 42, 43

    def emit_dma_setup(self, vb, lane):
        A = self.A
        t0, t1, t2 = vb + self.P, vb + self.P + 1, vb + self.P + 2
        self.pieces = []
        X, Y = self.X, self.Y
        assert X.ndma % 4 == 0 and Y.ndma % 4 == 0
        n = 0
        for op in (X, Y):
            for jj in range(op.ndma // 4):
                dst = vb + n
                if getattr(op, 'tiled', False):
                    A.e(f"s_lshl_b32 {s(self.S_T0)}, {s(self.S_LW)}, 10")
                    A.e(f"s_add_u32 {s(self.S_T0)}, {s(self.S_T0)}, {4096 * jj}")
                    A.e(f"v_lshlrev_b32 {v(t0)}, 4, {v(lane)}")
                    A.e(f"v_add_u32 {v(dst)}, {s(self.S_T0)}, {v(t0)}")
                elif op.kind == 'kc':
                    A.e(f"s_and_b32 {s(self.S_T0)}, {s(self.S_LW)}, 1")
                    A.e(f"s_lshl_b32 {s(self.S_T0)}, {s(self.S_T0)}, 2")
                    A.e(f"v_lshrrev_b32 {v(t0)}, 4, {v(lane)}")
                    A.e(f"v_xor_b32 {v(t0)}, {s(self.S_T0)}, {v(t0)}")
                    A.e(f"v_and_b32 {v(t1)}, 7, {v(lane)}")
                    A.e(f"v_xor_b32 {v(t0)}, {v(t0)}, {v(t1)}")
                    A.e(f"v_lshlrev_b32 {v(t0)}, 4, {v(t0)}")
                    A.e(f"s_lshl_b32 {s(self.S_T0)}, {s(self.S_LW)}, 3")
                    A.e(f"s_add_u32 {s(self.S_T0)}, {s(self.S_T0)}, {32 * jj}")
                    A.e(f"v_lshrrev_b32 {v(t1)}, 3, {v(lane)}")
                    A.e(f"v_add_u32 {v(t1)}, {s(self.S_T0)}, {v(t1)}")
                    A.e(f"s_mov_b32 {s(self.S_T1)}, {op.stride}")
                    A.e(f"v_mul_lo_u32 {v(t1)}, {v(t1)}, {s(self.S_T1)}")
                    A.e(f"v_add_u32 {v(dst)}, {v(t0)}, {v(t1)}")
                else:
                    CPR = op.RB // 16
                    A.e(f"s_lshl_b32 {s(self.S_T0)}, {s(self.S_LW)}, 6")
                    A.e(f"s_add_u32 {s(self.S_T0)}, {s(self.S_T0)}, {256 * jj}")
                    A.e(f"v_add_u32 {v(t0)}, {s(self.S_T0)}, {v(lane)}")
                    if CPR & (CPR - 1) == 0:
                        sh = CPR.bit_length() - 1
                        A.e(f"v_lshrrev_b32 {v(t1)}, {sh}, {v(t0)}")
                        A.e(f"v_and_b32 {v(t0)}, {CPR - 1}, {v(t0)}")
                    else:
                        magic = (65536 + CPR - 1) // CPR
                        for p in range(64 * op.ndma):
                            assert (p * magic) >> 16 == p // CPR
                        A.e(f"v_mul_u32_u24 {v(t1)}, {magic}, {v(t0)}")
                        A.e(f"v_lshrrev_b32 {v(t1)}, 16, {v(t1)}")
                        A.e(f"v_mul_u32_u24 {v(t2)}, {CPR}, {v(t1)}")
                        A.e(f"v_sub_u32 {v(t0)}, {v(t0)}, {v(t2)}")
                    if op.RB in (256, 512):
                        A.e(f"v_and_b32 {v(t2)}, 3, {v(t1)}")
                        A.e(f"v_lshlrev_b32 {v(t2)}, 1, {v(t2)}")
                        A.e(f"v_xor_b32 {v(t0)}, {v(t0)}, {v(t2)}")
                        A.e(f"v_and_b32 {v(t2)}, 8, {v(t1)}")
                        A.e(f"v_xor_b32 {v(t0)}, {v(t0)}, {v(t2)}")
                    elif op.RB == 448:
                        A.e(f"v_lshrrev_b32 {v(t2)}, 2, {v(t1)}")
                        A.e(f"v_and_b32 {v(t2)}, 2, {v(t2)}")
                        A.e(f"v_xor_b32 {v(t0)}, {v(t0)}, {v(t2)}")
                    elif op.RB == 128:
                        A.e(f"v_and_b32 {v(t2)}, 2, {v(t1)}")
                        A.e(f"v_xor_b32 {v(t0)}, {v(t0)}, {v(t2)}")
                        A.e(f"v_lshrrev_b32 {v(t2)}, 1, {v(t1)}")
                        A.e(f"v_and_b32 {v(t2)}, 4, {v(t2)}")
                        A.e(f"v_xor_b32 {v(t0)}, {v(t0)}, {v(t2)}")
                    if getattr(op, 'segmap', None):
                        A.e(f"v_bfe_u32 {v(t2)}, {v(t0)}, 3, 1\nv_mul_u32_u24 {v(t2)}, {op.segmap}, {v(t2)}")
                        A.e(f"v_bfe_u32 {v(dst)}, {v(t0)}, 4, 1\nv_lshl_add_u32 {v(t2)}, {v(dst)}, 7, {v(t2)}")
                        A.e(f"v_and_b32 {v(t0)}, 7, {v(t0)}\nv_lshl_add_u32 {v(t0)}, {v(t0)}, 4, {v(t2)}")
                    else:
                        A.e(f"v_lshlrev_b32 {v(t0)}, 4, {v(t0)}")
                    A.e(f"s_mov_b32 {s(self.S_T1)}, {op.stride}")
                    A.e(f"v_mul_lo_u32 {v(t1)}, {v(t1)}, {s(self.S_T1)}")
                    A.e(f"v_add_u32 {v(dst)}, {v(t0)}, {v(t1)}")
                ldsoff = (0 if op is X else X.bytes) + 4096 * jj
                self.pieces.append((op, dst, ldsoff))
                n += 1

    def emit_dma_stage(self, sslot, only=None):
        groups = []
        for (op, vo, ldsoff) in self.pieces:
            if only is not None and op is not only: continue
            so = self.S_SOX if op is self.X else self.S_SOY
            aux = getattr(op, 'aux', '')
            g = [f"s_add_u32 m0, {s(sslot)}, {self.lds0 + ldsoff}", "s_nop 0",
                 f"buffer_load_dwordx4 {v(vo)}, {s(op.srd, 4)}, {s(so)} offen {aux} lds"]
            if self.no_dma: g = []
            groups.append(g)
        adv = []
        for op, so, kc, a in ((self.X, self.S_SOX, self.S_KX, self.advX), (self.Y, self.S_SOY, self.S_KY, self.advY)):
            if only is None or only is op:
                adv.append(f"s_add_u32 {s(so)}, {s(so)}, {a}")
                if self.wrap:
                    d = self.wrap[1] if op is self.X else self.wrap[2]
                    adv += [f"s_add_u32 {s(kc)}, {s(kc)}, 1", f"s_cmp_eq_u32 {s(kc)}, {self.wrap[0]}",
                            f"s_cselect_b32 {s(self.S_T0)}, {d}, 0", f"s_sub_u32 {s(so)}, {s(so)}, {s(self.S_T0)}"]
                if self.rot:
                    adv += [f"s_add_u32 {s(kc)}, {s(kc)}, 1", f"s_cmp_eq_u32 {s(kc)}, {self.nst}",
                            f"s_cselect_b32 {s(self.S_T0)}, {a * self.nst}, 0", f"s_cselect_b32 {s(kc)}, 0, {s(kc)}",
                            f"s_sub_u32 {s(so)}, {s(so)}, {s(self.S_T0)}"]
        return groups, adv

    def adv(self, op):
        if getattr(op, 'tiled', False): return op.bytes
        return 128 if op.kind == 'kc' else KS * op.stride
    @property
    def advX(self): return self.adv(self.X)
    @property
    def advY(self): return self.adv(self.Y)

    def emit_soff_init(self):
        A = self.A
        for op, so, o in ((self.X, self.S_SOX, self.S_X0), (self.Y, self.S_SOY, self.S_Y0)):
            if getattr(op, 'base_sgpr', None) is not None:
                A.e(f"s_mov_b32 {s(so)}, {s(op.base_sgpr)}")
            elif getattr(op, 'tiled', False):
                A.e(f"s_mul_i32 {s(so)}, {s(o)}, {self.nst * op.bytes // op.R}")
            elif op.kind == 'kc':
                A.e(f"s_mul_i32 {s(so)}, {s(o)}, {op.stride}")
            else:
                A.e(f"s_lshl_b32 {s(so)}, {s(o)}, 1")

    def slot_next(self, sreg):
        return [f"s_add_u32 {s(sreg)}, {s(sreg)}, {self.slot}",
                f"s_cmp_ge_u32 {s(sreg)}, {s(self.S_T1)}",
                f"s_cselect_b32 {s(self.S_T0)}, {self.NS * self.slot}, 0",
                f"s_sub_u32 {s(sreg)}, {s(sreg)}, {s(self.S_T0)}"]

    def emit_producer_setup(self, lane, vb):
        A = self.A
        self.emit_dma_setup(vb, lane)
        self.emit_soff_init()
        if self.wrap: A.e(f"s_mov_b32 {s(self.S_KX)}, 0\ns_mov_b32 {s(self.S_KY)}, 0")
        if self.rot:
            a, b = self.rot
            A.e(f"s_and_b32 {s(self.S_T0)}, s29, 3\ns_mul_i32 {s(self.S_KX)}, {s(self.S_T0)}, {a}")
            A.e(f"s_lshr_b32 {s(self.S_T0)}, s29, 2\ns_mul_i32 {s(self.S_T0)}, {s(self.S_T0)}, {b}\ns_add_u32 {s(self.S_KX)}, {s(self.S_KX)}, {s(self.S_T0)}")
            A.e(f"s_cmp_ge_u32 {s(self.S_KX)}, {self.nst}\ns_cselect_b32 {s(self.S_T0)}, {self.nst}, 0\ns_sub_u32 {s(self.S_KX)}, {s(self.S_KX)}, {s(self.S_T0)}")
            A.e(f"s_mov_b32 {s(self.S_KY)}, {s(self.S_KX)}")
            A.e(f"s_mul_i32 {s(self.S_T0)}, {s(self.S_KX)}, {self.advX}\ns_add_u32 {s(self.S_SOX)}, {s(self.S_SOX)}, {s(self.S_T0)}")
            A.e(f"s_mul_i32 {s(self.S_T0)}, {s(self.S_KX)}, {self.advY}\ns_add_u32 {s(self.S_SOY)}, {s(self.S_SOY)}, {s(self.S_T0)}")
            assert 3 * a + 7 * b < 2 * self.nst
        SL = self.S_SLOT
        A.e(f"s_lshl_b32 {s(SL)}, {s(self.S_LW)}, 10")
        A.e(f"s_add_u32 {s(26)}, {s(SL)}, {self.NS * self.slot}")

    def _pstage(self, only=None):
        A, SL = self.A, self.S_SLOT
        groups, adv = self.emit_dma_stage(SL, only)
        for g in groups:
            for ln in g: A.e(ln)
        for ln in adv: A.e(ln)
        A.e(f"s_add_u32 {s(SL)}, {s(SL)}, {self.slot}")
        A.e(f"s_cmp_ge_u32 {s(SL)}, {s(26)}")
        A.e(f"s_cselect_b32 {s(self.S_T0)}, {self.NS * self.slot}, 0")
        A.e(f"s_sub_u32 {s(SL)}, {s(SL)}, {s(self.S_T0)}")

    def emit_producer_run(self, early=None, gate=None):
        A, P, NS, nst = self.A, self.P, self.NS, self.nst
        npro = min(NS, nst)
        assert npro == NS
        if early is None:
            if gate: gate()
            for i in range(npro): self._pstage()
            PL = P
        else:
            late = self.Y if early is self.X else self.X
            for i in range(npro): self._pstage(early)
            if gate: gate()
            for i in range(npro): self._pstage(late)
            PL = late.ndma // 4
        if self.no_dma: PL = P = 0
        A.e(f"s_waitcnt vmcnt({(npro - 1) * PL})")
        A.e("s_barrier")
        nsteady = nst - NS
        peel = min(NS - 1, nsteady) if early is not None else 0
        for b in range(1, peel + 1):
            A.e(f"s_waitcnt vmcnt({(npro - 1 - b) * PL + (b - 1) * P})")
            if not self.nobar: A.e("s_barrier")
            self._pstage()
        if nsteady - peel > 0:
            lp = A.newlabel(self.name + "_pl")
            A.e(f"s_mov_b32 {s(self.S_CNT)}, {nsteady - peel}")
            A.label(lp)
            A.e(f"s_waitcnt vmcnt({(NS - 2) * P})")
            if not self.nobar: A.e("s_barrier")
            self._pstage()
            A.e(f"s_sub_u32 {s(self.S_CNT)}, {s(self.S_CNT)}, 1")
            A.e(f"s_cmp_lg_u32 {s(self.S_CNT)}, 0")
            A.e(f"s_cbranch_scc1 {lp}")
        for b in range(nsteady + 1, nst):
            left = nst - 1 - b
            A.e(f"s_waitcnt vmcnt({min(left, NS - 2) * P})")
            if not self.nobar: A.e("s_barrier")

    def emit_producer(self, lane, vb):
        self.emit_producer_setup(lane, vb)
        self.emit_producer_run()

    def emit_consumer_setup(self, lane, vb):
        A, X, Y = self.A, self.X, self.Y
        self.addr = {}
        self.abase = []
        SWX, SWY = 27, 28
        A.e(f"s_and_b32 {s(SWX)}, {s(self.S_WAVE)}, {self.WX - 1}")
        A.e(f"s_lshr_b32 {s(SWY)}, {s(self.S_WAVE)}, {self.WX.bit_length() - 1}")
        nxt = vb
        t0, t1, t2, t3 = 0, 0, 0, 0
        plan = []
        for nm, op, T, W in (('X', X, self.TX, self.WX), ('Y', Y, self.TY, self.WY)):
            origins = [16 * T * w for w in range(W)]
            keys = []
            for t in range(T):
                for h in range(2):
                    for rd in (range(2) if op.kind == 'ks' else [0]):
                        vec = [[op.read_addr(l, o, t, h, rd) for l in range(64)] for o in origins]
                        found = None
                        if getattr(op, 'xorfam', False) and t > 0:
                            r0, d0 = self.addr[(nm, 0, h, rd)]
                            v0_ = [[op.read_addr(l, o, 0, h, rd) for l in range(64)] for o in origins]
                            assert all(vec[w][l] == (v0_[w][l] ^ (t << 5)) for w in range(W) for l in range(64))
                            self.addr[(nm, t, h, rd)] = (('x', r0, t), d0)
                            continue
                        for (kv, reg) in keys:
                            d = vec[0][0] - kv[0][0]
                            if d >= 0 and all(vec[w][l] - kv[w][l] == d for w in range(W) for l in range(64)):
                                found = (reg, d); break
                        if found is None:
                            reg = len(plan)
                            plan.append((nm, op, t, h, rd))
                            keys.append((vec, reg))
                            found = (reg, 0)
                        self.addr[(nm, t, h, rd)] = found
        nreg = len(plan)
        base0 = vb; cur0 = vb + nreg
        self.xor = {}
        for key, (reg, d) in list(self.addr.items()):
            if isinstance(reg, tuple):
                if (reg[1], reg[2]) not in self.xor: self.xor[(reg[1], reg[2])] = nreg + len(self.xor)
                self.addr[key] = (self.xor[(reg[1], reg[2])], d)
        tmp = vb + 2 * nreg + len(self.xor)
        a, b, c = tmp, tmp + 1, tmp + 2
        for i, (nm, op, t, h, rd) in enumerate(plan):
            dst = base0 + i
            T = self.TX if nm == 'X' else self.TY
            sw = SWX if nm == 'X' else SWY
            opoff = 0 if nm == 'X' else X.bytes
            if op.kind == 'kc':
                A.e(f"v_and_b32 {v(a)}, 15, {v(lane)}")
                A.e(f"v_lshrrev_b32 {v(b)}, 1, {v(a)}")
                A.e(f"v_lshrrev_b32 {v(c)}, 4, {v(lane)}")
                A.e(f"v_xor_b32 {v(b)}, {v(b)}, {v(c)}")
                if h: A.e(f"v_xor_b32 {v(b)}, 4, {v(b)}")
                A.e(f"v_lshlrev_b32 {v(b)}, 4, {v(b)}")
                A.e(f"v_lshlrev_b32 {v(a)}, 7, {v(a)}")
                A.e(f"v_add_u32 {v(a)}, {v(a)}, {v(b)}")
                A.e(f"s_mul_i32 {s(self.S_T0)}, {s(sw)}, {16 * T * 128}")
                A.e(f"s_add_u32 {s(self.S_T0)}, {s(self.S_T0)}, {opoff + t * 2048}")
                A.e(f"v_add_u32 {v(dst)}, {s(self.S_T0)}, {v(a)}")
            else:
                RB = op.RB
                A.e(f"v_lshrrev_b32 {v(a)}, 4, {v(lane)}")
                A.e(f"v_bfe_u32 {v(b)}, {v(lane)}, 2, 2")
                if RB in (256, 512):
                    A.e(f"v_and_b32 {v(c)}, 1, {v(a)}")
                    A.e(f"v_lshlrev_b32 {v(c)}, 2, {v(c)}")
                    A.e(f"v_or_b32 {v(c)}, {v(c)}, {v(b)}")
                elif RB == 448:
                    A.e(f"v_and_b32 {v(c)}, 1, {v(a)}")
                elif RB == 128:
                    A.e(f"v_and_b32 {v(c)}, 1, {v(a)}")
                    A.e(f"v_lshlrev_b32 {v(c)}, 1, {v(c)}")
                    A.e(f"v_lshrrev_b32 {v(dst)}, 1, {v(b)}")
                    A.e(f"v_or_b32 {v(c)}, {v(c)}, {v(dst)}")
                A.e(f"v_lshl_add_u32 {v(a)}, {v(a)}, 3, {v(b)}")
                A.e(f"s_mov_b32 {s(self.S_T1)}, {RB}")
                A.e(f"v_mul_lo_u32 {v(a)}, {v(a)}, {s(self.S_T1)}")
                A.e(f"s_mul_i32 {s(self.S_T0)}, {s(sw)}, {T}")
                A.e(f"s_add_u32 {s(self.S_T0)}, {s(self.S_T0)}, {t}")
                A.e(f"v_xor_b32 {v(c)}, {s(self.S_T0)}, {v(c)}")
                A.e(f"v_lshlrev_b32 {v(c)}, 5, {v(c)}")
                A.e(f"v_add_u32 {v(a)}, {v(a)}, {v(c)}")
                A.e(f"v_and_b32 {v(b)}, 3, {v(lane)}")
                A.e(f"v_lshlrev_b32 {v(b)}, 3, {v(b)}")
                A.e(f"v_add_u32 {v(a)}, {v(a)}, {v(b)}")
                A.e(f"v_add_u32 {v(dst)}, {opoff + (32 * h + 4 * rd) * RB}, {v(a)}")
        self.nab = nreg; self.base0 = base0; self.cur0 = cur0
        return tmp

    def reads(self, setbase, h):
        out = []
        X, Y = self.X, self.Y
        def one(nm, op, t, dst):
            if op.kind == 'kc':
                reg, imm = self.addr[(nm, t, h, 0)]
                return [f"ds_read_b128 {v(dst, 4)}, {v(self.cur0 + reg)} offset:{imm}"]
            res = []
            for rd in range(2):
                reg, imm = self.addr[(nm, t, h, rd)]
                res.append(f"ds_read_b64_tr_b16 {v(dst + 2 * rd, 2)}, {v(self.cur0 + reg)} offset:{imm}")
            return res
        xs = [one('X', X, t, setbase + 4 * t) for t in range(self.TX)]
        ys = [one('Y', Y, t, setbase + 4 * self.TX + 4 * t) for t in range(self.TY)]
        order = []
        order += ys[0] + xs[0]
        rest = ys[1:]
        for y in rest: order += y
        for x in xs[1:]: order += x
        if self.no_read: return []
        return order

    def mfmas(self, setbase, accb=None):
        out = []
        accb = self.accb if accb is None else accb
        for i in range(self.TX):
            for j in range(self.TY):
                a0 = accb + 4 * (i * self.TY + j)
                out.append(f"v_mfma_f32_16x16x32_bf16 {v(a0,4)}, {v(setbase + 4*i, 4)}, {v(setbase + 4*self.TX + 4*j, 4)}, {v(a0,4)}")
        if self.no_mfma: return []
        return out

    def interleave(self, mf, other, per=1, start=0):
        A = self.A
        o = list(other)
        if not mf:
            for ln in o: A.e(ln)
            return
        for n, m in enumerate(mf):
            A.e(m)
            if n >= start:
                for _ in range(per):
                    if o: A.e(o.pop(0))
        for ln in o: A.e(ln)

    def cur_update(self):
        out = [f"v_add_u32 {v(self.cur0 + i)}, {s(self.S_SLOT)}, {v(self.base0 + i)}" for i in range(self.nab)]
        out += [f"v_xor_b32 {v(self.cur0 + x)}, {t << 5}, {v(self.cur0 + r)}" for (r, t), x in self.xor.items()]
        return out

    def emit_consumer_pre(self, lane, vb, zero=True):
        A, NS = self.A, self.NS
        f = self.emit_consumer_setup(lane, vb)
        nfr = 4 * (self.TX + self.TY)
        set0 = (f + 3) // 4 * 4; set1 = set0 + nfr
        self.set0, self.set1 = set0, set1
        self.accb = set1 + nfr
        self.vend = self.accb + 4 * self.TX * self.TY
        if zero:
            for i in range(4 * self.TX * self.TY):
                A.e(f"v_mov_b32 {v(self.accb + i)}, 0")
        A.e(f"s_mov_b32 {s(self.S_SLOT)}, {self.lds0}")
        for ln in self.cur_update(): A.e(ln)

    def emit_consumer_run(self, pre_last=None, after_bar0=None):
        A, NS, nst = self.A, self.NS, self.nst
        set0, set1 = self.set0, self.set1
        SL = self.S_SLOT
        if self.prio: A.e(f"s_setprio {self.prio}")
        if getattr(self, 'stamp', None): self.stamp(0)
        A.e("s_barrier")
        if getattr(self, 'stamp', None): self.stamp(1)
        for ln in self.reads(set0, 0): A.e(ln)
        if after_bar0: after_bar0()
        A.e("s_waitcnt lgkmcnt(0)")
        lim = self.lds0 + NS * self.slot
        def body(last):
            sl = [] if last else [f"s_add_u32 {s(SL)}, {s(SL)}, {self.slot}",
                  f"s_cmp_ge_u32 {s(SL)}, {lim}",
                  f"s_cselect_b32 {s(self.S_T0)}, {NS * self.slot}, 0",
                  f"s_sub_u32 {s(SL)}, {s(SL)}, {s(self.S_T0)}"]
            shadow = self.shadow
            self.interleave(self.mfmas(set0), self.reads(set1, 1) + sl + (self.cur_update() if (shadow and not last) else []), per=2)
            A.e("s_waitcnt lgkmcnt(0)")
            if last:
                self.interleave(self.mfmas(set1), [])
                return
            if not shadow:
                for ln in self.cur_update(): A.e(ln)
            if not self.nobar: A.e("s_barrier")
            self.interleave(self.mfmas(set1), self.reads(set0, 0) + [f"s_sub_u32 {s(self.S_CNT)}, {s(self.S_CNT)}, 1"], per=2)
            A.e("s_waitcnt lgkmcnt(0)")
        lp = A.newlabel(self.name + "_cl")
        U = self.unroll
        for _ in range((nst - 1) % U): body(False)
        A.e(f"s_mov_b32 {s(self.S_CNT)}, {(nst - 1) // U * U}")
        A.label(lp)
        for _ in range(U): body(False)
        A.e(f"s_cmp_lg_u32 {s(self.S_CNT)}, 0")
        A.e(f"s_cbranch_scc1 {lp}")
        if pre_last: pre_last()
        body(True)
        if self.prio: A.e("s_setprio 0")

    def stage(self, accb=None, last=False, extraA=(), extraB=()):
        A, NS, SL = self.A, self.NS, self.S_SLOT
        set0, set1 = self.set0, self.set1
        lim = self.lds0 + NS * self.slot
        sl = [] if last else [f"s_add_u32 {s(SL)}, {s(SL)}, {self.slot}", f"s_cmp_ge_u32 {s(SL)}, {lim}",
                              f"s_cselect_b32 {s(self.S_T0)}, {NS * self.slot}, 0", f"s_sub_u32 {s(SL)}, {s(SL)}, {s(self.S_T0)}"]
        self.interleave(self.mfmas(set0, accb), self.reads(set1, 1) + sl + ([] if last else self.cur_update()) + list(extraA), per=2)
        A.e("s_waitcnt lgkmcnt(0)")
        if last:
            self.interleave(self.mfmas(set1, accb), list(extraB), per=2)
            return
        A.e("s_barrier")
        self.interleave(self.mfmas(set1, accb), self.reads(set0, 0) + [f"s_sub_u32 {s(self.S_CNT)}, {s(self.S_CNT)}, 1"] + list(extraB), per=2)
        A.e("s_waitcnt lgkmcnt(0)")

    def stages_loop(self, n, accb=None):
        A = self.A
        if n == 1: self.stage(accb); return
        lp = A.newlabel(self.name + "_cl")
        A.e(f"s_mov_b32 {s(self.S_CNT)}, {n}")
        A.label(lp)
        self.stage(accb)
        A.e(f"s_cmp_lg_u32 {s(self.S_CNT)}, 0")
        A.e(f"s_cbranch_scc1 {lp}")

    def consumer_head(self):
        A = self.A
        A.e("s_barrier")
        for ln in self.reads(self.set0, 0): A.e(ln)
        A.e("s_waitcnt lgkmcnt(0)")

    def emit_consumer(self, lane, vb, pre_last=None):
        self.emit_consumer_pre(lane, vb)
        self.emit_consumer_run(pre_last)
```

```python
import sys, json
from asmlib import *
from layout import *
from gemm import *
from kern_gemm import (srd_from, swap_store, lane_out_offset, group_reduce, bf16_round, f2u, GK1, GK2)
from kern_fft import (nop, fconst, affine, cos_frag, row_reduce, ln_stats, twiddle_table, MF32, MF16)

PX, PWR, PWI, PWIN, PWSP, PBSP, PWOUT, POUT, PDBG, PWS = 80, 82, 84, 88, 90, 92, 94, 96, 98, 30
SW = 16
WS_CNT = 68 * MB
SC = "sc1"

class Mega:
    def __init__(self, opts):
        self.o = opts
        self.A = Asm()
        self.stamps = opts.get("stamps", False)
        self.nstamp = 0
        self.stamp_names = []
        self.PSTR = opts.get("pstr", FH * 2)
        self.ZSTR = opts.get("zstr", FH * 2)
        self.LSTR = opts.get("lstr", D * 2)

    def stamp(self, name):
        if not self.stamps: return
        A = self.A
        A.e("s_memrealtime s[100:101]\ns_waitcnt lgkmcnt(0)")
        A.e(f"v_writelane_b32 v255, s100, {self.nstamp}")
        self.stamp_names.append(name); self.nstamp += 1
        if self.o.get("clk") and (name.endswith(".start") or name.endswith(".loop") or name == "start"):
            A.e("s_memtime s[100:101]\ns_waitcnt lgkmcnt(0)")
            A.e(f"v_writelane_b32 v255, s100, {self.nstamp}")
            self.stamp_names.append(name + ".clk"); self.nstamp += 1
        assert self.nstamp <= 64

    def stamp_flush(self):
        if not self.stamps: return
        A = self.A
        lab = A.newlabel("tsf")
        A.e(f"s_cmp_lg_u32 s{SW}, {self.o.get('stamp_wave', 0)}\ns_cbranch_scc1 {lab}")
        srd_from(A, 64, PWS, WS_TS, 65536)
        A.e("v_mbcnt_lo_u32_b32 v0, -1, 0\nv_mbcnt_hi_u32_b32 v0, -1, v0\nv_lshlrev_b32 v0, 2, v0\ns_lshl_b32 s3, s2, 8")
        A.e("buffer_store_dword v255, v0, s[64:67], s3 offen")
        A.label(lab)

    def cnt_srd(self, b, dst):
        A = self.A
        idx = {1: 0, "W": 1, 2: 2, 3: 3, 4: 4, 5: 5}[b]
        srd_from(A, dst, PWS, WS_CNT + idx * 32768, 32768)
    def cnt_stride(self, b): return 256

    def arrive(self, b, nowait_ge=None, keep=0):
        A = self.A
        if nowait_ge is not None:
            lw = A.newlabel("nw")
            A.e(f"s_cmp_eq_u32 s19, 0\ns_cbranch_scc1 {lw}")
            A.e("s_waitcnt vmcnt(0)")
            A.label(lw)
            A.e("s_waitcnt lgkmcnt(0)\ns_barrier")
        else:
            A.e(f"s_waitcnt vmcnt({keep}) lgkmcnt(0)\ns_barrier")
        lab = A.newlabel("arr")
        A.e(f"s_cmp_lg_u32 s{SW}, 0\ns_cbranch_scc1 {lab}")
        if b == 1:
            g0 = A.newlabel("b0p"); g1 = A.newlabel("b0d")
            srd_from(A, 64, PDBG, 0, 256)
            A.e("s_mov_b32 s3, 0x20000\nv_mov_b32 v250, 0")
            A.label(g0)
            A.e("v_cmp_le_u32 vcc, 32, v252\ns_sub_u32 s3, s3, 1")
            A.e(f"s_cbranch_scc1 {g1}\ns_cmp_lg_u64 vcc, 0\ns_cbranch_scc1 {g1}")
            A.e(f"buffer_load_dword v252, v250, s[64:67], 0 offen {SC}\ns_waitcnt vmcnt(0)\ns_branch {g0}")
            A.label(g1)
        self.cnt_srd(b, 64)
        if b == 3 and self.o.get("half3", False):
            A.e("s_and_b32 s3, s2, 7\ns_lshr_b32 s67, s2, 7\ns_lshl_b32 s67, s67, 3\ns_or_b32 s3, s3, s67\ns_mov_b32 s67, 0x20000\ns_lshl_b32 s3, s3, 8")
        else:
            A.e(f"s_and_b32 s3, s2, 15\ns_lshl_b32 s3, s3, 8")
        A.e("v_lshlrev_b32 v250, 12, v0\nv_add_u32 v250, s3, v250\nv_mov_b32 v251, 1\ns_mov_b64 exec, 0xff")
        if b == 4 and self.o.get("grp4", False):
            lg = A.newlabel("arr4")
            A.e(f"s_mov_b32 s66, 65536\ns_lshr_b32 s3, s2, 3\ns_cmp_ge_u32 s3, 28\ns_cbranch_scc1 {lg}")
            A.e("s_add_u32 s3, s41, 16\ns_lshl_b32 s3, s3, 8\ns_add_u32 s3, s3, 32768\nv_writelane_b32 v250, s3, 8\ns_mov_b64 exec, 0x1ff")
            A.label(lg)
        A.e(f"buffer_atomic_add v251, v250, s[64:67], 0 offen {SC}")
        A.e("s_mov_b64 exec, -1")
        A.label(lab)

    def arrive_group5(self):
        A = self.A
        A.e("s_waitcnt vmcnt(0) lgkmcnt(0)\ns_barrier")
        lab = A.newlabel("arr")
        A.e(f"s_cmp_lg_u32 s{SW}, 0\ns_cbranch_scc1 {lab}\ns_lshr_b32 s3, s2, 3\ns_cmp_ge_u32 s3, 28\ns_cbranch_scc1 {lab}")
        self.cnt_srd(5, 64)
        A.e("s_lshl_b32 s3, s40, 8\nv_mov_b32 v250, s3\nv_mov_b32 v251, 1\ns_mov_b64 exec, 1")
        A.e(f"buffer_atomic_add v251, v250, s[64:67], 0 offen {SC}")
        A.e("s_mov_b64 exec, -1")
        A.label(lab)

    def poll(self, b, vt=250, wave=0):
        A = self.A
        lab = A.newlabel("pw"); lp = A.newlabel("pl"); ld = A.newlabel("pd")
        A.e(f"s_cmp_lg_u32 s{SW}, {wave}\ns_cbranch_scc1 {lab}")
        self.cnt_srd(b, 64)
        if b == 3 and self.o.get("half3", False):
            A.e(f"s_bfe_u32 s3, s2, 0x30004\ns_lshl_b32 s3, s3, 4\ns_and_b32 s67, s40, 1\ns_lshl_b32 s67, s67, 3\ns_add_u32 s3, s3, s67\ns_mov_b32 s67, 0x20000\ns_lshl_b32 s3, s3, 8")
            A.e(f"v_and_b32 {v(vt)}, 7, v0\nv_lshlrev_b32 {v(vt)}, 8, {v(vt)}\nv_add_u32 {v(vt)}, s3, {v(vt)}")
        else:
            A.e(f"s_bfe_u32 s3, s2, 0x30004\ns_lshl_b32 s3, s3, 12\nv_and_b32 {v(vt)}, 15, v0\nv_lshlrev_b32 {v(vt)}, 8, {v(vt)}\nv_add_u32 {v(vt)}, s3, {v(vt)}")
        self.spin(vt, 16, lp, ld)
        A.label(lab)

    def spin(self, va, target, lp, ld):
        A = self.A
        n = self.o.get("npoll", 1)
        regs = [251, 253, 254][:n]
        A.e("s_mov_b32 s3, 0x20000")
        for i, r in enumerate(regs):
            if i: A.e(f"s_sleep {self.o.get('pspace', 10) // (n - 1) if n > 1 else 0}")
            A.e(f"buffer_load_dword {v(r)}, {v(va)}, s[64:67], 0 offen {SC}")
        A.label(lp)
        for i, r in enumerate(regs):
            A.e(f"s_waitcnt vmcnt({n - 1})")
            A.e(f"v_cmp_gt_u32 vcc, {target}, {v(r)}")
            A.e(f"s_sub_u32 s3, s3, 1\ns_cbranch_scc1 {ld}")
            A.e(f"s_cmp_eq_u64 vcc, 0\ns_cbranch_scc1 {ld}")
            if n == 1: A.e(f"s_sleep {self.o.get('sleep', 1)}")
            A.e(f"buffer_load_dword {v(r)}, {v(va)}, s[64:67], 0 offen {SC}")
        A.e(f"s_branch {lp}")
        A.label(ld)

    def wait(self, b, vt=250):
        self.poll(b, vt)
        self.A.e("s_barrier")

    def prefetch(self, ptr, nbytes, tidreg, nth, vtmp, who="s2", nwg=256, base="0"):
        A = self.A
        per = (nbytes + nwg - 1) // nwg
        n = (per + nth * 16 - 1) // (nth * 16)
        srd_from(A, 56, ptr, 0, nbytes)
        A.e(f"v_lshlrev_b32 {v(vtmp)}, 4, {v(tidreg)}\ns_mul_i32 s54, {who}, {per}")
        for i in range(n):
            A.e(f"buffer_load_dwordx4 {v(vtmp + 2, 4)}, {v(vtmp)}, s[56:59], s54 offen")
            if i + 1 < n: A.e(f"s_add_u32 s54, s54, {nth * 16}")
        return n

    def wg_index(self, dst):
        A = self.A
        A.e(f"s_and_b32 s{dst}, s2, 7\ns_lshl_b32 s{dst}, s{dst}, 1\ns_bfe_u32 s3, s2, 0x10003\ns_or_b32 s{dst}, s{dst}, s3\ns_and_b32 s3, s2, 0xf0\ns_or_b32 s{dst}, s{dst}, s3")

    TBL = 98304

    def gen_tables(self):
        A = self.A
        P, Q, K1F, HF, T, DQ, VT, LF, GF, RO = 92, 93, 94, 95, 96, 104, 108, 109, 110, 111
        A.e(f"v_lshlrev_b32 {v(VT)}, 4, v0\nv_add_u32 {v(VT)}, {self.TBL}, {v(VT)}")
        A.e(f"v_and_b32 {v(K1F)}, 31, v0\nv_cvt_f32_u32 {v(K1F)}, {v(K1F)}\nv_lshrrev_b32 {v(HF)}, 5, v0\nv_cvt_f32_u32 {v(HF)}, {v(HF)}")
        A.e(f"v_and_b32 {v(LF)}, 15, v0\nv_cvt_f32_u32 {v(LF)}, {v(LF)}\nv_lshrrev_b32 {v(GF)}, 4, v0\nv_cvt_f32_u32 {v(GF)}, {v(GF)}")
        par = [0]
        def put(q, reg): A.e(f"ds_write_b128 {v(VT)}, {v(reg, 4)} offset:{q * 1024}")
        def frag(q, co, of):
            d = DQ + 8 + 4 * (par[0] & 1); par[0] += 1
            cos_frag(A, d, P, Q, co, of, T); put(q, d)
        def fam(pexpr, qmul, src=K1F, hsrc=HF):
            A.e(f"v_mul_f32 {v(P)}, {fconst(A, pexpr)}, {v(src)}\nv_mul_f32 {v(Q)}, {fconst(A, qmul)}, {v(hsrc)}\nv_mul_f32 {v(Q)}, {v(Q)}, {v(P)}")
        def F3():
            A.e(f"v_bfe_u32 {v(P)}, v0, 1, 4\nv_cvt_f32_u32 {v(P)}, {v(P)}\nv_mul_f32 {v(P)}, {fconst(A, 1/32)}, {v(P)}")
            A.e(f"v_and_b32 {v(T)}, 1, v0\nv_cvt_f32_u32 {v(T)}, {v(T)}\nv_mul_f32 {v(T)}, {fconst(A, 0.25)}, {v(T)}")
            A.e(f"v_mul_f32 {v(Q)}, 4.0, {v(HF)}\nv_fma_f32 {v(Q)}, {v(Q)}, {v(P)}, {v(T)}")
        def idx8():
            A.e(f"v_bfe_u32 {v(T)}, v0, 2, 1\nv_lshlrev_b32 {v(T)}, 2, {v(T)}")
            A.e(f"v_bfe_u32 {v(T+1)}, v0, 3, 1\nv_lshl_add_u32 {v(T)}, {v(T+1)}, 1, {v(T)}")
            A.e(f"v_bfe_u32 {v(T+1)}, v0, 1, 1\nv_add_u32 {v(T)}, {v(T)}, {v(T+1)}\nv_cvt_f32_u32 {v(T)}, {v(T)}")
        def F4():
            idx8()
            A.e(f"v_mul_f32 {v(P)}, {fconst(A, 0.125)}, {v(T)}")
            A.e(f"v_cvt_f32_u32 {v(T+1)}, s17\nv_mul_f32 {v(T+1)}, {fconst(A, 1/2048)}, {v(T+1)}\nv_mul_f32 {v(Q)}, {v(T)}, {v(T+1)}")
            A.e(f"v_and_b32 {v(T+1)}, 1, v0\nv_cvt_f32_u32 {v(T+1)}, {v(T+1)}\nv_fmamk_f32 {v(Q)}, {v(T+1)}, {hex(f2u(0.25))}, {v(Q)}")
            A.e(f"v_mul_f32 {v(T+1)}, 4.0, {v(HF)}\nv_fma_f32 {v(Q)}, {v(T+1)}, {v(P)}, {v(Q)}")
        def F8():
            idx8()
            A.e(f"v_cvt_f32_u32 {v(T+1)}, s17\nv_mul_f32 {v(T+1)}, {fconst(A, 1/2048)}, {v(T+1)}")
            A.e(f"v_fmamk_f32 {v(P)}, {v(T)}, {hex(f2u(0.125))}, {v(T+1)}")
            A.e(f"v_and_b32 {v(T+1)}, 1, v0\nv_cvt_f32_u32 {v(T+1)}, {v(T+1)}\nv_mul_f32 {v(T+1)}, {fconst(A, -0.25)}, {v(T+1)}")
            A.e(f"v_mul_f32 {v(Q)}, 4.0, {v(HF)}\nv_fma_f32 {v(Q)}, {v(Q)}, {v(P)}, {v(T+1)}")
        def F7(t):
            A.e(f"v_and_b32 {v(RO)}, 1, v0\nv_cvt_f32_u32 {v(RO)}, {v(RO)}\nv_mul_f32 {v(RO)}, {fconst(A, 0.25)}, {v(RO)}")
            A.e(f"v_bfe_u32 {v(P)}, v0, 1, 3\nv_add_u32 {v(P)}, {8*t}, {v(P)}\nv_cvt_f32_u32 {v(P)}, {v(P)}\nv_mul_f32 {v(P)}, {fconst(A, 1/16)}, {v(P)}")
            A.e(f"v_mul_f32 {v(DQ)}, 4.0, {v(GF)}\nv_mul_f32 {v(DQ)}, {v(DQ)}, {v(P)}")
        def twid(qc, qs, coefs):
            d = DQ + 8 + 4 * (par[0] & 1); par[0] += 1
            for r in range(4): affine(A, T + r, P, coefs[r], Q)
            for r in range(4): A.e(f"v_cos_f32 {v(d + r)}, {v(T + r)}")
            for r in range(4): A.e(f"v_sin_f32 {v(T + 4 + r)}, {v(T + r)}")
            A.e("s_nop 0"); put(qc, d); put(qs, T + 4)
        j8 = list(range(8)); co2 = [j >> 1 for j in j8]
        perm = lambda t: [16*t + 8*(j >> 2) + (j & 3) for j in j8]
        alt = lambda x: [x * (j & 1) for j in j8]; nalt = lambda x: [x * (1 - (j & 1)) for j in j8]
        def w0():
            fam(1/32, 8.0)
            frag(0, [j for j in j8], [0]*8); frag(1, [16 + j for j in j8], [0]*8); frag(2, [j for j in j8], [0.25]*8)
        def w1():
            fam(1/32, 8.0); frag(3, [16 + j for j in j8], [0.25]*8)
            F3(); frag(12, perm(0), [0]*8); frag(13, perm(1), [0]*8)
        def w2():
            F3(); frag(14, perm(0), [-0.25]*8); frag(15, perm(1), [-0.25]*8)
            F4(); frag(16, co2, alt(-0.25))
        def w3():
            fam(1/1024, 4.0)
            for a in range(4): twid(4 + a, 8 + a, [8*a + r for r in range(4)])
            fam(1/256, 4.0, LF, GF); twid(21, 22, [0, 1, 2, 3])
            F8(); frag(27, co2, alt(0.25))
        def w4():
            fam(1/16, 4.0, LF, GF); frag(17, co2, alt(-0.25)); frag(18, co2, nalt(0.25))
            fam(1/16, 2.0, LF, GF)
            ci = [((j >> 1) & 1) + 8*(j >> 2) for j in j8]
            frag(19, ci, alt(0.25)); frag(20, ci, nalt(-0.25))
        def w5():
            for t in range(2):
                F7(t)
                A.e(f"v_add_f32 {v(Q)}, {v(DQ)}, {v(RO)}"); frag(23 + 2*t, co2, alt(-0.25))
                A.e(f"v_sub_f32 {v(Q)}, {v(DQ)}, {v(RO)}"); frag(24 + 2*t, co2, alt(0.25))
        def w6():
            fam(1/32, 4.0)
            for t in range(2): frag(28 + t, [8*t + (j >> 1) for j in j8], alt(0.25))
            for t in range(2): frag(30 + t, [8*t + (j >> 1) for j in j8], nalt(-0.25))
        def w7():
            fam(1/32, 4.0)
            for t in range(2): frag(32 + t, perm(t), [0]*8)
            for t in range(2): frag(34 + t, perm(t), [0.25]*8)
        end = A.newlabel("tblend")
        jobs = [w0, w1, w2, w3, w4, w5, w6, w7]
        labs = [A.newlabel("tblw") for _ in jobs]
        for n in range(7):
            A.e(f"s_cmp_eq_u32 s{SW}, {n}\ns_cbranch_scc1 {labs[n]}")
        A.e(f"s_branch {labs[7]}")
        for n, job in enumerate(jobs):
            A.label(labs[n]); job(); A.e(f"s_branch {end}")
        A.label(end)
        A.e("s_waitcnt lgkmcnt(0)\ns_barrier")

    def load_tables(self, pairs, vt):
        A = self.A
        A.e(f"v_lshlrev_b32 {v(vt)}, 4, v0\nv_add_u32 {v(vt)}, {self.TBL}, {v(vt)}")
        for n, (q, reg) in enumerate(pairs):
            if n == 12: A.e("s_waitcnt lgkmcnt(4)")
            A.e(f"ds_read_b128 {v(reg, 4)}, {v(vt)} offset:{q * 1024}")

    def p1(self):
        A = self.A
        LU, LX, LW = 0, 16384, 16384 + 17408
        self.wg_index(17)
        srd_from(A, 4, PX, 0, S * D * 2)
        srd_from(A, 8, PWR, 0, S * 513 * 2)
        srd_from(A, 12, PWI, 0, S * 513 * 2)
        XR = 4
        srd_from(A, 36, PWS, WS_CNT, 6 * 32768)
        A.e("s_lshr_b32 s22, s2, 4\ns_lshl_b32 s22, s22, 15\ns_and_b32 s23, s2, 15\ns_lshl_b32 s23, s23, 8\ns_add_u32 s22, s22, s23")
        lcl = A.newlabel("p1clr")
        A.e(f"v_mov_b32 v21, 0\nv_lshlrev_b32 v3, 12, v0\ns_cmp_lg_u32 s{SW}, 0\ns_cbranch_scc1 {lcl}\ns_mov_b64 exec, 0xff")
        A.e(f"buffer_store_dword v21, v3, s[36:39], s22 offen {SC}")
        A.e("s_mov_b64 exec, -1")
        A.label(lcl)
        A.e("v_lshlrev_b32 v2, 4, v0")
        A.e(f"s_lshl_b32 s18, s{SW}, 8\ns_add_u32 s18, s18, s17\ns_lshl_b32 s18, s18, 11")
        A.e(f"buffer_load_dwordx4 {v(XR, 4)}, v2, s[4:7], s18 offen")
        A.e(f"buffer_load_dwordx4 {v(XR + 4, 4)}, v2, s[4:7], s18 offen offset:1024")
        srd_from(A, 36, PWS, WS_ST, 524288)
        A.e(f"s_lshl_b32 s22, s2, 11\ns_lshl_b32 s23, s{SW}, 10\ns_add_u32 s22, s22, s23\ns_cmp_lt_u32 s{SW}, 2\ns_cselect_b32 s22, s22, 0x100000")
        A.e("v_mov_b32 v20, -1\nv_mov_b32 v21, -1\nv_mov_b32 v22, -1\nv_mov_b32 v23, -1")
        A.e(f"buffer_store_dwordx4 v[20:23], v2, s[36:39], s22 offen {SC}")
        BC, BS, TC, TS, FA, FB, FN, A8 = 20, 28, 36, 52, 68, 76, 84, 88
        P, Q, K1F, HF, T = 92, 93, 94, 95, 96
        self.gen_tables()
        self.load_tables([(0, BC), (1, BC + 4), (2, BS), (3, BS + 4), (12, FA), (13, FA + 4), (14, FB), (15, FB + 4), (16, A8)]
                         + [(4 + a, TC + 4*a) for a in range(4)] + [(8 + a, TS + 4*a) for a in range(4)], 92)
        for n in range(4): A.e(f"v_mov_b32 {v(FN + n)}, 0xbf803f80")
        self.stamp("p1.const")
        FX, ST, DR, W0, AD = 104, 136, 144, 208, 212
        A.e("s_mov_b32 s26, 0xffff0000")
        A.e("s_waitcnt vmcnt(1)")
        self.stamp("p1.x")
        A.e(f"s_mul_i32 s20, s17, 8208\ns_lshl_b32 s21, s{SW}, 10\ns_add_u32 s22, s20, s21")
        for arr, srd in ((0, 8), (1, 12)):
            A.e(f"s_add_u32 m0, s21, {LW + arr * 9216}\ns_nop 0")
            A.e(f"buffer_load_dwordx4 v2, {s(srd,4)}, s22 offen lds")
        lw = A.newlabel("p1w8"); l0 = A.newlabel("p1w8a")
        A.e(f"s_cmp_ge_u32 s{SW}, 2\ns_cbranch_scc1 {lw}")
        A.e(f"s_mul_i32 s22, s{SW}, 9216\ns_add_u32 m0, s22, {LW + 8192}\ns_add_u32 s22, s20, 8192")
        A.e(f"s_cmp_eq_u32 s{SW}, 0\ns_cbranch_scc0 {l0}")
        A.e(f"buffer_load_dwordx4 v2, s[8:11], s22 offen lds\ns_branch {lw}")
        A.label(l0)
        A.e("buffer_load_dwordx4 v2, s[12:15], s22 offen lds")
        A.label(lw)
        if self.o.get("diag1"):
            A.e("s_waitcnt vmcnt(3)"); self.stamp("p1.sent"); A.e("s_waitcnt vmcnt(0)"); self.stamp("p1.wdma")
        lg = A.newlabel("p1b0")
        A.e(f"s_cmp_ge_u32 s2, 32\ns_cbranch_scc1 {lg}\ns_cmp_lg_u32 s{SW}, 0\ns_cbranch_scc1 {lg}")
        srd_from(A, 64, PDBG, 0, 256)
        A.e(f"v_mov_b32 v250, 0\nv_mov_b32 v251, 1\ns_mov_b64 exec, 1")
        A.e(f"buffer_atomic_add v251, v250, s[64:67], 0 offen {SC}")
        A.e("s_mov_b64 exec, -1")
        A.label(lg)
        npf = 0
        for n in range(8):
            A.e(f"v_lshlrev_b32 {v(FX + 2*n)}, 16, {v(XR + n)}\nv_and_b32 {v(FX + 2*n + 1)}, s26, {v(XR + n)}")
        sp, qp = ST + 4, ST + 6
        A.e(f"v_pk_add_f32 {v(sp,2)}, {v(FX,2)}, {v(FX+2,2)}\nv_pk_mul_f32 {v(qp,2)}, {v(FX,2)}, {v(FX,2)}")
        for n in range(1, 8):
            if n >= 2: A.e(f"v_pk_add_f32 {v(sp,2)}, {v(sp,2)}, {v(FX+2*n,2)}")
            A.e(f"v_pk_fma_f32 {v(qp,2)}, {v(FX+2*n,2)}, {v(FX+2*n,2)}, {v(qp,2)}")
        A.e(f"v_add_f32 {v(ST)}, {v(sp)}, {v(sp+1)}\nv_add_f32 {v(ST+1)}, {v(qp)}, {v(qp+1)}\ns_nop 1")
        row_reduce(A, [ST, ST + 1], ST + 12)
        ln_stats(A, ST, ST + 1, D)
        A.e(f"v_sub_f32 {v(ST+4)}, 0, {v(ST)}\nv_mov_b32 {v(ST+5)}, {v(ST+4)}\nv_mov_b32 {v(ST+6)}, {v(ST+1)}\nv_mov_b32 {v(ST+7)}, {v(ST+1)}")
        for n in range(8):
            f = FX + 2*n
            A.e(f"v_pk_add_f32 {v(f,2)}, {v(f,2)}, {v(ST+4,2)}\nv_pk_mul_f32 {v(f,2)}, {v(f,2)}, {v(ST+6,2)}")
            A.e(f"v_cvt_pk_bf16_f32 {v(XR + n)}, {v(f)}, {v(f+1)}")
        A.e(f"s_lshl_b32 s22, s{SW}, 11\nv_add_u32 {v(AD)}, s22, v2")
        A.e(f"ds_write_b128 {v(AD)}, {v(XR, 4)} offset:{LU}\nds_write_b128 {v(AD)}, {v(XR + 4, 4)} offset:{LU + 1024}")
        A.e(f"v_lshrrev_b32 {v(T)}, 5, v0\nv_lshlrev_b32 {v(T)}, 3, {v(T)}\nv_bfe_u32 {v(T+1)}, v0, 2, 2\nv_add_u32 {v(T)}, {v(T)}, {v(T+1)}\nv_lshlrev_b32 {v(T)}, 6, {v(T)}")
        A.e(f"v_bfe_u32 {v(T+1)}, v0, 4, 1\nv_lshl_add_u32 {v(T)}, {v(T+1)}, 5, {v(T)}\nv_and_b32 {v(T+1)}, 3, v0\nv_lshl_add_u32 {v(T)}, {v(T+1)}, 3, {v(T)}")
        A.e(f"v_add_u32 {v(AD)}, s22, {v(T)}")
        AF = FX
        for t in range(2):
            for rd in range(2):
                A.e(f"ds_read_b64_tr_b16 {v(AF + 4*t + 2*rd, 2)}, {v(AD)} offset:{LU + 1024*t + 256*rd}")
        for t in range(2):
            A.e(f"s_waitcnt lgkmcnt({2 * (1 - t)})")
            for im, Bf in ((0, BC), (1, BS)):
                d = DR + 16*im
                A.e(f"{MF32} {v(d,16)}, {v(AF + 4*t, 4)}, {v(Bf + 4*t, 4)}, {v(d,16) if t else '0'}")
        TP = FX
        A.e(f"v_and_b32 {v(T)}, 31, v0\nv_lshlrev_b32 {v(AD)}, 5, {v(T)}")
        A.e(f"v_lshrrev_b32 {v(T+1)}, 5, v0\nv_lshl_add_u32 {v(AD)}, {v(T+1)}, 11, {v(AD)}")
        A.e(f"s_lshr_b32 s22, s{SW}, 2\nv_bfe_u32 {v(T+1)}, v0, 3, 1\nv_xor_b32 {v(T+1)}, s22, {v(T+1)}\nv_lshl_add_u32 {v(AD)}, {v(T+1)}, 4, {v(AD)}")
        A.e(f"s_and_b32 s22, s{SW}, 3\ns_lshl_b32 s22, s22, 2\nv_add_u32 {v(AD)}, s22, {v(AD)}")
        nop(A, 4)
        dre, dim = DR, DR + 16
        for p in range(8):
            c, sn = TC + 2*p, TS + 2*p
            A.e(f"v_pk_mul_f32 {v(W0,2)}, {v(dre + 2*p,2)}, {v(c,2)}")
            A.e(f"v_pk_mul_f32 {v(W0+2,2)}, {v(dim + 2*p,2)}, {v(c,2)}")
            A.e(f"v_pk_fma_f32 {v(W0,2)}, {v(dim + 2*p,2)}, {v(sn,2)}, {v(W0,2)}")
            A.e(f"v_pk_fma_f32 {v(W0+2,2)}, {v(dre + 2*p,2)}, {v(sn,2)}, {v(W0+2,2)} neg_lo:[1,0,0] neg_hi:[1,0,0]")
            A.e(f"v_cvt_pk_bf16_f32 {v(TP + p)}, {v(W0)}, {v(W0+1)}")
            A.e(f"v_cvt_pk_bf16_f32 {v(TP + 8 + p)}, {v(W0+2)}, {v(W0+3)}")
        A.e("s_nop 1")
        d, dn, tre, tim = DR, DR + 16, TP, TP + 8
        A.e(f"{MF32} {v(d,16)}, {v(FA,4)}, {v(tre,4)}, 0")
        A.e(f"{MF32} {v(dn,16)}, {v(FN,4)}, {v(tre,4)}, 0")
        A.e(f"{MF32} {v(d,16)}, {v(FA+4,4)}, {v(tre+4,4)}, {v(d,16)}")
        A.e(f"{MF32} {v(dn,16)}, {v(FN,4)}, {v(tre+4,4)}, {v(dn,16)}")
        A.e(f"{MF32} {v(d,16)}, {v(FB,4)}, {v(tim,4)}, {v(d,16)}")
        A.e(f"{MF32} {v(d,16)}, {v(FB+4,4)}, {v(tim+4,4)}, {v(d,16)}")
        OV = 4
        nop(A, 12)
        for e in range(8):
            A.e(f"v_cvt_pk_bf16_f32 {v(OV + e)}, {v(d + 2*e)}, {v(d + 2*e + 1)}")
        for e in range(8):
            A.e(f"ds_write_b32 {v(AD)}, {v(OV + e)} offset:{LX + (4*(e >> 1) + (e & 1)) * 1024}")
        A.e(f"v_cvt_pk_bf16_f32 {v(W0)}, {v(dn)}, 0\ns_lshl_b32 s22, s{SW}, 2\nv_mov_b32 {v(W0+2)}, s22")
        A.e(f"s_mov_b64 exec, 1\nds_write_b32 {v(W0+2)}, {v(W0)} offset:{LX + 512*32}\ns_mov_b64 exec, -1")
        self.stamp("p1.fft")
        A.e("s_waitcnt lgkmcnt(0)\ns_barrier")
        srd_from(A, 64, PDBG, 0, 256)
        A.e(f"v_mov_b32 v250, 0\nbuffer_load_dword v252, v250, s[64:67], 0 offen {SC}")
        self.stamp("p1.rowfft")
        srd_from(A, 48, PWS, WS_U, 257 * KP_STRIDE)
        srd_from(A, 52, PWS, WS_WT, 257 * KP_STRIDE)
        A.e(f"v_and_b32 {v(T)}, 31, v0\nv_lshlrev_b32 {v(AD)}, 5, {v(T)}\nv_lshrrev_b32 {v(T+1)}, 5, v0\nv_bfe_u32 {v(T+2)}, v0, 3, 1\nv_xor_b32 {v(T+1)}, {v(T+1)}, {v(T+2)}\nv_lshl_add_u32 {v(AD)}, {v(T+1)}, 4, {v(AD)}")
        A.e(f"v_mov_b32 {v(AD+2)}, {v(AD)}\ns_lshl_b32 s22, s{SW}, 11\nv_add_u32 {v(AD)}, s22, {v(AD)}")
        RB = FX
        for b in range(2):
            A.e(f"ds_read_b128 {v(RB + 4*b, 4)}, {v(AD)} offset:{LX + 1024*b}")
        A.e(f"ds_read_b128 {v(RB + 8, 4)}, {v(AD+2)} offset:{LX + 16384}")
        SA = AD + 1
        A.e(f"v_bfe_u32 {v(T)}, v0, 1, 4\ns_mov_b32 s22, {KP_STRIDE}\nv_mul_lo_u32 {v(SA)}, {v(T)}, s22")
        A.e(f"v_and_b32 {v(T)}, 1, v0\nv_lshl_add_u32 {v(SA)}, {v(T)}, 5, {v(SA)}\nv_lshrrev_b32 {v(T)}, 5, v0\nv_lshl_add_u32 {v(SA)}, {v(T)}, 4, {v(SA)}")
        A.e(f"s_mul_i32 s22, s{SW}, {32 * KP_STRIDE}\ns_lshl_b32 s23, s17, 6\ns_add_u32 s22, s22, s23")
        for b in range(3):
            A.e(f"s_waitcnt lgkmcnt({2 - b})")
            A.e(f"{MF32} {v(DR + 16*b, 16)}, {v(A8,4)}, {v(RB + 4*b, 4)}, 0")
        WA, WS_ = 214, 215
        A.e(f"v_and_b32 {v(T)}, 1, v1\nv_mul_u32_u24 {v(WA)}, 4104, {v(T)}")
        A.e(f"v_lshrrev_b32 {v(T)}, 2, v1\nv_lshl_add_u32 {v(WA)}, {v(T)}, 2, {v(WA)}")
        A.e(f"v_bfe_u32 {v(T+1)}, v1, 1, 1\nv_lshl_add_u32 {v(WA)}, {v(T+1)}, 1, {v(WA)}")
        A.e(f"s_mov_b32 s24, {KP_STRIDE}\nv_mul_lo_u32 {v(WS_)}, {v(T)}, s24\nv_and_b32 {v(T)}, 3, v1\nv_lshl_add_u32 {v(WS_)}, {v(T)}, 4, {v(WS_)}")
        WO, WI = 120, 128
        nop(A, 2)
        for b in range(2):
            for n in range(4):
                A.e(f"v_cvt_pk_bf16_f32 {v(OV + 4*b + n)}, {v(DR + 16*b + 2*n)}, {v(DR + 16*b + 2*n + 1)}")
            A.e(f"buffer_store_dwordx4 {v(OV + 4*b, 4)}, {v(SA)}, s[48:51], s22 offen {SC}")
            A.e(f"s_add_u32 s22, s22, {16 * KP_STRIDE}")
        lny = A.newlabel("p1ny")
        A.e(f"s_cmp_lg_u32 s{SW}, 7\ns_cbranch_scc1 {lny}")
        for n in range(4):
            A.e(f"v_cvt_pk_bf16_f32 {v(OV + 8 + n)}, {v(DR + 32 + 2*n)}, {v(DR + 32 + 2*n + 1)}")
        A.e(f"s_lshl_b32 s22, s17, 5\ns_add_u32 s22, s22, {256 * KP_STRIDE}\nv_lshrrev_b32 {v(T)}, 5, v0\nv_lshlrev_b32 {v(T)}, 4, {v(T)}")
        A.e("s_mov_b32 exec_lo, 1\ns_mov_b32 exec_hi, 1")
        A.e(f"buffer_store_dwordx4 {v(OV + 8, 4)}, {v(T)}, s[48:51], s22 offen {SC}")
        A.e("s_mov_b64 exec, -1")
        A.label(lny)
        self._p1w = (LW, WA, WS_, WO, WI, FX, T)

    def p1w(self):
        A = self.A
        LW, WA, WS_, WO, WI, FX, T = self._p1w
        for n in range(2):
            if n: A.e("s_waitcnt lgkmcnt(7)")
            for nn in range(4):
                A.e(f"ds_read_u16 {v(WO + 4*n + nn)}, {v(WA)} offset:{LW + 512*n + 1026*nn}")
                A.e(f"ds_read_u16 {v(WI + 4*n + nn)}, {v(WA)} offset:{LW + 9216 + 512*n + 1026*nn}")
        A.e("s_waitcnt lgkmcnt(0)")
        for n in range(8):
            A.e(f"v_lshl_or_b32 {v(WO + n)}, {v(WI + n)}, 16, {v(WO + n)}")
        A.e("s_lshl_b32 s22, s17, 6")
        for n in range(2):
            A.e(f"buffer_store_dwordx4 {v(WO + 4*n, 4)}, {v(WS_)}, s[52:55], s22 offen {SC}")
            A.e(f"s_add_u32 s22, s22, {128 * KP_STRIDE}")
        lwe = A.newlabel("p1we")
        A.e(f"s_cmp_lg_u32 s{SW}, 0\ns_cbranch_scc1 {lwe}")
        A.e("s_mov_b64 exec, 3")
        WO2 = FX
        for nn in range(4):
            A.e(f"ds_read_u16 {v(WO2 + nn)}, {v(WA)} offset:{LW + 1024 + 1026*nn}")
            A.e(f"ds_read_u16 {v(WO2 + 4 + nn)}, {v(WA)} offset:{LW + 9216 + 1024 + 1026*nn}")
        A.e("s_waitcnt lgkmcnt(0)")
        for nn in range(4):
            A.e(f"v_lshl_or_b32 {v(WO2 + nn)}, {v(WO2 + 4 + nn)}, 16, {v(WO2 + nn)}")
        A.e(f"s_lshl_b32 s22, s17, 5\ns_add_u32 s22, s22, {256 * KP_STRIDE}\nv_lshlrev_b32 {v(T)}, 4, v0")
        A.e(f"buffer_store_dwordx4 {v(WO2, 4)}, {v(T)}, s[52:55], s22 offen {SC}")
        A.e("s_mov_b64 exec, -1")
        A.label(lwe)

    def pf_point(self, name):
        if not self.o.get("pf", True): return
        sched = {"A": 0, "B": 0, "C": 0, "D": 0, "E": 3, "F": 4, "G": 0}
        sched.update(self.o.get("pfs", {}))
        n = sched[name]
        if n == 0: return
        k0 = getattr(self, "_pfk", 0); self._pfk = k0 + n
        A = self.A
        lab = A.newlabel("pfp")
        if self.o.get("wint"): srd_from(A, 56, PWS, 80 * MB, D * F * 2)
        else: srd_from(A, 56, PWIN, 0, D * F * 2)
        A.e(f"s_and_b32 s54, s{SW}, 3\nv_lshl_add_u32 v222, s54, 6, v0\nv_lshlrev_b32 v222, 4, v222")
        A.e(f"s_cmp_lt_u32 s{SW}, 4\ns_cbranch_scc1 {lab}")
        for k in range(n):
            A.e(f"s_mul_i32 s54, s2, {4096 * n}\ns_add_u32 s54, s54, {k0 * 1048576 + 4096 * k}")
            A.e("buffer_load_dwordx4 v[224:227], v222, s[56:59], s54 offen")
        A.label(lab)

    def p2_pre(self):
        A = self.A
        A.e(f"s_and_b32 s20, s{SW}, 3\ns_cmp_lt_u32 s{SW}, 4\ns_cselect_b32 s19, 1, 0")
        lab = A.newlabel("p2ny")
        A.e(f"s_cmp_lg_u32 s2, 0\ns_cbranch_scc1 {lab}\ns_cmp_lt_u32 s{SW}, 4\ns_cbranch_scc1 {lab}")
        A.e("s_mov_b32 s19, 2")
        A.label(lab)
        self.p2_notask = A.newlabel("p2nt")
        A.e(f"s_cmp_eq_u32 s19, 0\ns_cbranch_scc1 {self.p2_notask}")
        CA, CB, CI, CJ, TC, TS = 40, 48, 56, 64, 72, 76
        A.e("v_and_b32 v36, 15, v0\nv_lshrrev_b32 v37, 4, v0")
        self.load_tables([(17, CA), (18, CA + 4), (19, CI), (20, CI + 4), (21, TC), (22, TS), (23, CB), (25, CB + 4), (24, CJ), (26, CJ + 4)], 80)
        srd_from(A, 4, PWS, WS_U, 257 * KP_STRIDE)
        srd_from(A, 8, PWS, WS_WT, 257 * KP_STRIDE)
        srd_from(A, 12, PWS, WS_Y, 257 * KP_STRIDE)
        A.e(f"s_mul_i32 s18, s2, {KP_STRIDE}")
        A.e(f"v_lshrrev_b32 v38, 2, v36\nv_xor_b32 v38, s20, v38\nv_lshlrev_b32 v38, 4, v38")
        A.e(f"v_lshl_add_u32 v32, v37, 6, v36\nv_lshl_add_u32 v32, v32, 6, v38")
        A.e(f"v_lshl_add_u32 v33, v37, 5, v36\nv_lshl_add_u32 v33, v33, 6, v38")
        A.e("v_and_b32 v38, 3, v0\nv_xor_b32 v38, v38, v37\nv_lshrrev_b32 v39, 2, v0\nv_lshlrev_b32 v39, 6, v39\nv_lshl_add_u32 v31, v38, 4, v39")
        A.e(f"v_lshl_add_u32 v34, v37, 6, v36\nv_lshlrev_b32 v34, 5, v34\ns_lshl_b32 s21, s20, 3\ns_add_u32 s21, s21, 49152\nv_add_u32 v34, s21, v34")
        A.e(f"v_lshl_add_u32 v35, v37, 5, v36\nv_lshlrev_b32 v35, 5, v35\nv_add_u32 v35, s21, v35")
        A.label(self.p2_notask)

    def p2_compute(self, NT, R0, WT, wwait):
        A = self.A
        CA, CB, CI, CJ, TC, TS = 40, 48, 56, 64, 72, 76
        DD, W0, OP = 112, 144, R0
        gap = {4: 4, 2: 6, 1: 8}[NT]
        def twiddle(conj):
            for tau in range(NT):
                re, im = DD + 8*tau, DD + 8*tau + 4
                for hh in (0, 2):
                    A.e(f"v_pk_mul_f32 {v(W0+hh,2)}, {v(re+hh,2)}, {v(TC+hh,2)}")
                    A.e(f"v_pk_mul_f32 {v(W0+4+hh,2)}, {v(im+hh,2)}, {v(TC+hh,2)}")
                for hh in (0, 2):
                    n1 = " neg_lo:[1,0,0] neg_hi:[1,0,0]"
                    A.e(f"v_pk_fma_f32 {v(W0+hh,2)}, {v(im+hh,2)}, {v(TS+hh,2)}, {v(W0+hh,2)}" + (n1 if conj else ""))
                    A.e(f"v_pk_fma_f32 {v(W0+4+hh,2)}, {v(re+hh,2)}, {v(TS+hh,2)}, {v(W0+4+hh,2)}" + ("" if conj else n1))
                for r in range(4):
                    A.e(f"v_cvt_pk_bf16_f32 {v(OP + 4*tau + r)}, {v(W0 + r)}, {v(W0 + 4 + r)}")
            A.e("s_nop 1")
        for tau in range(NT):
            A.e(f"{MF16} {v(DD + 8*tau, 4)}, {v(R0 + 4*tau, 4)}, {v(CA, 4)}, 0")
            A.e(f"{MF16} {v(DD + 8*tau + 4, 4)}, {v(R0 + 4*tau, 4)}, {v(CA + 4, 4)}, 0")
        nop(A, gap)
        twiddle(False)
        for tau in range(NT):
            for t in range(2):
                A.e(f"{MF16} {v(DD + 8*tau + 4*t, 4)}, {v(CB + 4*t, 4)}, {v(OP + 4*tau, 4)}, 0")
        A.e("s_mov_b32 s26, 0xffff0000\n" + wwait)
        nop(A, gap - 1)
        for tau in range(NT):
            for e in range(4):
                vv = DD + 8*tau + 2*e
                w = WT + NT*e + tau
                A.e(f"v_lshlrev_b32 {v(W0)}, 16, {v(w)}\nv_and_b32 {v(W0+1)}, s26, {v(w)}")
                A.e(f"v_pk_mul_f32 {v(W0+2,2)}, {v(vv,2)}, {v(W0,2)} op_sel:[0,0] op_sel_hi:[1,0]")
                A.e(f"v_pk_fma_f32 {v(W0+2,2)}, {v(vv,2)}, {v(W0,2)}, {v(W0+2,2)} op_sel:[1,1,0] op_sel_hi:[0,1,1] neg_lo:[1,0,0]")
                A.e(f"v_cvt_pk_bf16_f32 {v(OP + 4*tau + e)}, {v(W0+2)}, {v(W0+3)}")
        A.e("s_nop 1")
        for tau in range(NT):
            A.e(f"{MF16} {v(DD + 8*tau, 4)}, {v(OP + 4*tau, 4)}, {v(CI, 4)}, 0")
            A.e(f"{MF16} {v(DD + 8*tau + 4, 4)}, {v(OP + 4*tau, 4)}, {v(CI + 4, 4)}, 0")
        nop(A, gap)
        twiddle(True)
        for tau in range(NT):
            for t in range(2):
                A.e(f"{MF16} {v(DD + 8*tau + 4*t, 4)}, {v(CJ + 4*t, 4)}, {v(OP + 4*tau, 4)}, 0")
        nop(A, 8)
        for e in range(4):
            for tau in range(NT):
                vv = DD + 8*tau + 2*e
                A.e(f"v_cvt_pk_bf16_f32 {v(WT + NT*e + tau)}, {v(vv)}, {v(vv+1)}")

    def p2(self):
        A = self.A
        nt = A.newlabel("p2idle"); end = A.newlabel("p2end"); ny = A.newlabel("p2nyq")
        LUI, LWI, LOU = 0, 16384, 32768
        R0, WT, VA, VB = 4, 96, 34, 35
        A.e(f"s_cmp_eq_u32 s19, 0\ns_cbranch_scc1 {nt}\ns_cmp_eq_u32 s19, 2\ns_cbranch_scc1 {ny}")
        A.e(f"s_lshl_b32 s22, s20, 12\ns_add_u32 s23, s22, s18")
        def dma(srd, base, n, vreg):
            for j in range(n):
                A.e(f"s_add_u32 m0, s22, {base + 1024 * j}\ns_add_u32 s24, s23, {1024 * j}")
                A.e(f"buffer_load_dwordx4 {vreg}, {s(srd,4)}, s24 offen {SC} lds")
        dma(4, LUI, 4, "v31")
        A.e("s_barrier")
        dma(8, LWI, 4, "v31")
        A.e("s_waitcnt vmcnt(4)\ns_barrier")
        self.stamp("p2.dma")
        for i in range(4):
            A.e(f"ds_read_b128 {v(R0 + 4*i, 4)}, v32 offset:{LUI + 1024*i}")
        A.e("s_waitcnt lgkmcnt(0)")
        for i in range(4):
            for tau in range(i + 1, 4):
                A.e(f"v_swap_b32 {v(R0 + 4*i + tau)}, {v(R0 + 4*tau + i)}")
        A.e("s_nop 1")
        wl = ["s_waitcnt vmcnt(0)", "s_barrier"] + [f"ds_read_b128 {v(WT + 4*e, 4)}, v33 offset:{LWI + 1024*(e & 1) + 8192*(e >> 1)}" for e in range(4)] + ["s_waitcnt lgkmcnt(0)"]
        self.p2_compute(4, R0, WT, "\n".join(wl))
        self.stamp("p2.fft")
        for e in range(4):
            A.e(f"ds_write_b128 v33, {v(WT + 4*e, 4)} offset:{LOU + 1024*(e & 1) + 8192*(e >> 1)}")
        A.e("s_waitcnt lgkmcnt(0)\ns_barrier")
        A.e(f"v_lshlrev_b32 v30, 4, v0\nv_add_u32 v30, s22, v30")
        for j in range(4):
            A.e(f"ds_read_b128 {v(R0 + 4*j, 4)}, v30 offset:{LOU + 1024*j}")
        for j in range(4):
            A.e(f"s_waitcnt lgkmcnt({3 - j})")
            A.e(f"buffer_store_dwordx4 {v(R0 + 4*j, 4)}, v31, s[12:15], s23 offen offset:{1024*j} {SC}")
        A.e(f"s_branch {end}")
        A.label(ny)
        LN0 = 49152
        A.e(f"s_and_b32 s22, s{SW}, 1\ns_lshl_b32 s22, s22, 12\ns_add_u32 s23, s22, {256 * KP_STRIDE}\nv_lshlrev_b32 v30, 4, v0")
        l1 = A.newlabel("nyd"); l2 = A.newlabel("nyd")
        A.e(f"s_cmp_lt_u32 s{SW}, 6\ns_cbranch_scc1 {l1}")
        dma(4, LN0, 4, "v30")
        A.label(l1)
        self.poll("W", wave=5)
        A.e("s_barrier")
        A.e(f"s_cmp_lt_u32 s{SW}, 6\ns_cbranch_scc1 {l2}")
        dma(8, LN0 + 8192, 4, "v30")
        A.label(l2)
        A.e("s_waitcnt vmcnt(4)\ns_barrier")
        A.e(f"s_lshl_b32 s22, s20, 11\ns_add_u32 s23, s22, {256 * KP_STRIDE}")
        for tau in range(2):
            for i in range(4):
                A.e(f"ds_read_b32 {v(R0 + 4*tau + i)}, {v(VA)} offset:{512*i + 4*tau}")
        A.e("s_waitcnt lgkmcnt(0)\ns_nop 1")
        wl = ["s_waitcnt vmcnt(0)", "s_barrier"]
        for e in range(4):
            for tau in range(2):
                wl.append(f"ds_read_b32 {v(WT + 2*e + tau)}, {v(VB)} offset:{8192 + 512*(e & 1) + 4096*(e >> 1) + 4*tau}")
        wl.append("s_waitcnt lgkmcnt(0)")
        self.p2_compute(2, R0, WT, "\n".join(wl))
        for e in range(4):
            A.e(f"ds_write_b64 {v(VB)}, {v(WT + 2*e, 2)} offset:{16384 + 512*(e & 1) + 4096*(e >> 1)}")
        A.e("s_waitcnt lgkmcnt(0)\ns_barrier")
        A.e(f"s_add_u32 s24, s22, {LN0 + 16384}\nv_add_u32 v29, s24, v30")
        for j in range(2):
            A.e(f"ds_read_b128 {v(R0 + 4*j, 4)}, v29 offset:{1024*j}")
        for j in range(2):
            A.e(f"s_waitcnt lgkmcnt({1 - j})")
            A.e(f"buffer_store_dwordx4 {v(R0 + 4*j, 4)}, v30, s[12:15], s23 offen offset:{1024*j} {SC}")
        A.e(f"s_branch {end}")
        A.label(nt)
        self.poll("W", wave=5)
        A.e("s_barrier\ns_barrier")
        self.pf_point("C")
        A.e("s_barrier\ns_barrier")
        self.pf_point("D")
        A.label(end)

    def p3_pre(self):
        A = self.A
        self.wg_index(17)
        srd_from(A, 4, PX, 0, S * D * 2)
        srd_from(A, 8, PWS, WS_Y, 257 * KP_STRIDE)
        srd_from(A, 12, PWS, WS_H, S * D * 2)
        srd_from(A, 48, PWS, WS_LN2, S * self.LSTR)
        T = 96
        XR = 24
        A.e("v_and_b32 v3, 31, v0\nv_lshlrev_b32 v3, 6, v3\nv_lshrrev_b32 v40, 5, v0\nv_lshl_add_u32 v3, v40, 3, v3")
        A.e(f"s_lshl_b32 s18, s{SW}, 8\ns_add_u32 s18, s18, s17\ns_lshl_b32 s18, s18, 11")
        for q in range(4):
            A.e(f"buffer_load_dwordx2 {v(XR + 2*q, 2)}, v3, s[4:7], s18 offen offset:{16*q}")
        A8, BR, BI, TC, TS, CC, CS = 40, 44, 52, 60, 76, 104, 112
        self.load_tables([(27, A8), (28, BR), (29, BR + 4), (30, BI), (31, BI + 4), (32, CC), (33, CC + 4), (34, CS), (35, CS + 4)]
                         + [(4 + a, TC + 4*a) for a in range(4)] + [(8 + a, TS + 4*a) for a in range(4)], 92)
        A.e(f"v_bfe_u32 {v(T)}, v0, 1, 4\ns_mov_b32 s22, {KP_STRIDE}\nv_mul_lo_u32 v2, {v(T)}, s22")
        A.e(f"v_and_b32 {v(T)}, 1, v0\nv_lshl_add_u32 v2, {v(T)}, 5, v2\nv_lshrrev_b32 {v(T)}, 5, v0\nv_lshl_add_u32 v2, {v(T)}, 4, v2")
        A.e(f"v_lshlrev_b32 v23, 4, {v(T)}")
        A.e(f"s_mul_i32 s22, s{SW}, {32 * KP_STRIDE}\ns_lshl_b32 s23, s17, 6\ns_add_u32 s22, s22, s23")
        A.e("s_waitcnt lgkmcnt(0)")

    def p3(self):
        A = self.A
        LY = self.o.get("p3_lds", 139264); LN = LY + 16384
        mimic = self.o.get("mimic", True)
        T, XR = 96, 24
        A8, BR, BI, TC, TS, CC, CS = 40, 44, 52, 60, 76, 104, 112
        RB = 4
        for b in range(2):
            A.e(f"buffer_load_dwordx4 {v(RB + 4*b, 4)}, v2, s[8:11], s22 offen {SC}")
            A.e(f"s_add_u32 s22, s22, {16 * KP_STRIDE}")
        A.e(f"s_lshl_b32 s22, s17, 5\ns_add_u32 s22, s22, {256 * KP_STRIDE}")
        A.e(f"buffer_load_dwordx4 {v(12, 4)}, v23, s[8:11], s22 offen {SC}")
        DR, AD, OV = 144, 212, 120
        A.e(f"v_lshrrev_b32 {v(T)}, 5, v0\nv_lshlrev_b32 {v(AD)}, 13, {v(T)}")
        A.e(f"v_and_b32 {v(T)}, 31, v0\nv_lshl_add_u32 {v(AD)}, {v(T)}, 6, {v(AD)}")
        A.e(f"s_lshr_b32 s24, s{SW}, 1\nv_bfe_u32 {v(T)}, v0, 2, 2\nv_xor_b32 {v(T)}, s24, {v(T)}\nv_lshl_add_u32 {v(AD)}, {v(T)}, 4, {v(AD)}")
        A.e(f"s_and_b32 s24, s{SW}, 1\ns_lshl_b32 s24, s24, 3\ns_add_u32 s24, s24, {LY}\nv_add_u32 {v(AD)}, s24, {v(AD)}")
        for b in range(3):
            A.e(f"s_waitcnt vmcnt({2 - b})")
            A.e(f"{MF32} {v(DR + 16*b, 16)}, {v(A8,4)}, {v(RB + 4*b, 4)}, 0")
        self.pf_point("F")
        nop(A, 12)
        for b in range(2):
            for n in range(4):
                A.e(f"v_cvt_pk_bf16_f32 {v(OV + 4*b + n)}, {v(DR + 16*b + 2*n)}, {v(DR + 16*b + 2*n + 1)}")
        l0 = A.newlabel("p3dc"); l1 = A.newlabel("p3ny")
        A.e(f"s_cmp_lg_u32 s{SW}, 0\ns_cbranch_scc1 {l0}")
        A.e("s_mov_b32 exec_lo, 1\ns_mov_b32 exec_hi, 1")
        for n in range(4):
            A.e(f"v_mul_f32 {v(T)}, 0.5, {v(DR + 2*n)}\nv_cvt_pk_bf16_f32 {v(OV + n)}, {v(T)}, 0")
        A.e("s_mov_b64 exec, -1")
        A.label(l0)
        A.e(f"s_cmp_lg_u32 s{SW}, 7\ns_cbranch_scc1 {l1}")
        for n in range(4):
            A.e(f"v_mul_f32 {v(T+2+n)}, 0.5, {v(DR + 32 + 2*n)}")
        A.e(f"v_add_u32 {v(T+1)}, {LN}, v23")
        A.e("s_mov_b32 exec_lo, 1\ns_mov_b32 exec_hi, 1")
        A.e(f"ds_write_b128 {v(T+1)}, {v(T+2, 4)}")
        A.e("s_mov_b64 exec, -1")
        A.label(l1)
        for b in range(2):
            for n in range(4):
                A.e(f"ds_write_b32 {v(AD)}, {v(OV + 4*b + n)} offset:{2048*n + 4*b}")
        A.e("s_waitcnt lgkmcnt(0)\ns_barrier")
        self.stamp("p3.radix8")
        TA, TB = T, T + 1
        A.e(f"v_and_b32 {v(T+2)}, 31, v0\nv_lshlrev_b32 {v(TA)}, 6, {v(T+2)}\ns_lshl_b32 s22, s{SW}, 11\ns_add_u32 s22, s22, {LY}\nv_add_u32 {v(TA)}, s22, {v(TA)}")
        A.e(f"v_lshrrev_b32 {v(T+2)}, 5, v0\nv_bfe_u32 {v(T+3)}, v0, 2, 2\nv_xor_b32 {v(T+2)}, {v(T+2)}, {v(T+3)}")
        A.e(f"v_xor_b32 {v(T+3)}, 2, {v(T+2)}")
        A.e(f"v_lshl_add_u32 {v(TB)}, {v(T+3)}, 4, {v(TA)}\nv_lshl_add_u32 {v(TA)}, {v(T+2)}, 4, {v(TA)}")
        AF, NY, SG = 120, 136, 138
        A.e(f"ds_read_b128 {v(AF, 4)}, {v(TA)}\nds_read_b128 {v(AF + 4, 4)}, {v(TB)}")
        A.e(f"s_lshl_b32 s22, s{SW}, 2\ns_add_u32 s22, s22, {LN}\nv_mov_b32 {v(T+2)}, s22")
        A.e(f"ds_read_b32 {v(NY)}, {v(T+2)}")
        A.e(f"v_and_b32 {v(SG)}, 1, v0\nv_cvt_f32_u32 {v(SG)}, {v(SG)}\nv_fma_f32 {v(SG)}, {v(SG)}, -2.0, 1.0")
        A.e(f"v_cmp_gt_u32 vcc, 32, v0\ns_nop 1\nv_cndmask_b32 {v(SG)}, 0, {v(SG)}, vcc")
        for t in range(2):
            A.e(f"s_waitcnt lgkmcnt({2 - t})")
            for im, Bf in ((0, BR), (1, BI)):
                d = DR + 16*im
                A.e(f"{MF32} {v(d,16)}, {v(AF + 4*t, 4)}, {v(Bf + 4*t, 4)}, {v(d,16) if t else '0'}")
        A.e("s_waitcnt lgkmcnt(0)")
        TP, W0 = 4, 208
        nop(A, 11)
        dre, dim = DR, DR + 16
        A.e(f"v_fma_f32 {v(dre)}, {v(SG)}, {v(NY)}, {v(dre)}")
        for p in range(8):
            c, sn = TC + 2*p, TS + 2*p
            A.e(f"v_pk_mul_f32 {v(W0,2)}, {v(dre + 2*p,2)}, {v(c,2)}")
            A.e(f"v_pk_mul_f32 {v(W0+2,2)}, {v(dim + 2*p,2)}, {v(c,2)}")
            A.e(f"v_pk_fma_f32 {v(W0,2)}, {v(dim + 2*p,2)}, {v(sn,2)}, {v(W0,2)} neg_lo:[1,0,0] neg_hi:[1,0,0]")
            A.e(f"v_pk_fma_f32 {v(W0+2,2)}, {v(dre + 2*p,2)}, {v(sn,2)}, {v(W0+2,2)}")
            A.e(f"v_cvt_pk_bf16_f32 {v(TP + p)}, {v(W0)}, {v(W0+1)}")
            A.e(f"v_cvt_pk_bf16_f32 {v(TP + 8 + p)}, {v(W0+2)}, {v(W0+3)}")
        A.e("s_nop 1")
        d, tre, tim = DR, TP, TP + 8
        A.e(f"{MF32} {v(d,16)}, {v(tre,4)}, {v(CC,4)}, 0")
        A.e(f"{MF32} {v(d,16)}, {v(tre+4,4)}, {v(CC+4,4)}, {v(d,16)}")
        A.e(f"{MF32} {v(d,16)}, {v(tim,4)}, {v(CS,4)}, {v(d,16)}")
        A.e(f"{MF32} {v(d,16)}, {v(tim+4,4)}, {v(CS+4,4)}, {v(d,16)}")
        A.e("s_mov_b32 s26, 0xffff0000")
        A.e(f"s_mov_b32 s44, {hex(f2u(2.0**-20))}\ns_mov_b32 s45, {hex(f2u(2.0**-20))}")
        hf, ST, HP, LP = DR + 16, 120, 4, 32
        for n in range(8):
            A.e(f"v_lshlrev_b32 {v(hf + 2*n)}, 16, {v(XR + n)}\nv_and_b32 {v(hf + 2*n + 1)}, s26, {v(XR + n)}")
        for n in range(8):
            A.e(f"v_pk_mul_f32 {v(d + 2*n,2)}, {v(d + 2*n,2)}, s[44:45]")
            if mimic:
                A.e(f"v_cvt_pk_bf16_f32 {v(W0)}, {v(d + 2*n)}, {v(d + 2*n + 1)}")
                A.e(f"v_lshlrev_b32 {v(d + 2*n)}, 16, {v(W0)}\nv_and_b32 {v(d + 2*n + 1)}, s26, {v(W0)}")
            A.e(f"v_pk_add_f32 {v(hf + 2*n,2)}, {v(hf + 2*n,2)}, {v(d + 2*n,2)}")
            A.e(f"v_cvt_pk_bf16_f32 {v(HP + n)}, {v(hf + 2*n)}, {v(hf + 2*n + 1)}")
            A.e(f"v_lshlrev_b32 {v(hf + 2*n)}, 16, {v(HP + n)}\nv_and_b32 {v(hf + 2*n + 1)}, s26, {v(HP + n)}")
        sp, qp = ST + 4, ST + 6
        A.e(f"v_pk_add_f32 {v(sp,2)}, {v(hf,2)}, {v(hf+2,2)}\nv_pk_mul_f32 {v(qp,2)}, {v(hf,2)}, {v(hf,2)}")
        for n in range(1, 8):
            if n >= 2: A.e(f"v_pk_add_f32 {v(sp,2)}, {v(sp,2)}, {v(hf+2*n,2)}")
            A.e(f"v_pk_fma_f32 {v(qp,2)}, {v(hf+2*n,2)}, {v(hf+2*n,2)}, {v(qp,2)}")
        A.e(f"v_add_f32 {v(ST)}, {v(sp)}, {v(sp+1)}\nv_add_f32 {v(ST+1)}, {v(qp)}, {v(qp+1)}")
        WA_, RA_, GA_ = 212, 216, 217
        A.e(f"s_lshl_b32 s22, s{SW}, 11\ns_add_u32 s22, s22, {LY}")
        A.e(f"v_and_b32 {v(T)}, 31, v0\nv_lshlrev_b32 {v(T+1)}, 6, {v(T)}\nv_lshrrev_b32 {v(T+2)}, 5, v0\nv_lshl_add_u32 {v(T+1)}, {v(T+2)}, 3, {v(T+1)}\nv_add_u32 {v(T+1)}, s22, {v(T+1)}")
        A.e(f"v_bfe_u32 {v(T)}, v0, 1, 2")
        for q in range(4):
            A.e(f"v_xor_b32 {v(T+2)}, {q}, {v(T)}\nv_lshl_add_u32 {v(WA_ + q)}, {v(T+2)}, 4, {v(T+1)}")
        A.e(f"v_lshrrev_b32 {v(T)}, 2, v0\nv_lshlrev_b32 {v(RA_)}, 6, {v(T)}\nv_bfe_u32 {v(T)}, v0, 3, 2\nv_and_b32 {v(T+1)}, 3, v0\nv_xor_b32 {v(T)}, {v(T)}, {v(T+1)}\nv_lshl_add_u32 {v(RA_)}, {v(T)}, 4, {v(RA_)}\nv_add_u32 {v(RA_)}, s22, {v(RA_)}")
        A.e(f"v_lshlrev_b32 {v(GA_)}, 4, v0")
        A.e(f"s_lshr_b32 s19, s18, 11\ns_mul_i32 s19, s19, {self.LSTR}")
        def row_store(src, srd, tmp, so=18):
            for q in range(4):
                A.e(f"ds_write_b64 {v(WA_ + q)}, {v(src + 2*q, 2)}")
            for n in range(2):
                A.e(f"ds_read_b128 {v(tmp + 4*n, 4)}, {v(RA_)} offset:{1024*n}")
            for n in range(2):
                A.e(f"s_waitcnt lgkmcnt({1 - n})")
                A.e(f"buffer_store_dwordx4 {v(tmp + 4*n, 4)}, {v(GA_)}, {s(srd,4)}, s{so} offen offset:{1024*n} {SC}")
        row_reduce(A, [ST, ST + 1], ST + 12)
        ln_stats(A, ST, ST + 1, D)
        A.e(f"v_sub_f32 {v(ST+4)}, 0, {v(ST)}\nv_mov_b32 {v(ST+5)}, {v(ST+4)}\nv_mov_b32 {v(ST+6)}, {v(ST+1)}\nv_mov_b32 {v(ST+7)}, {v(ST+1)}")
        for n in range(8):
            f = hf + 2*n
            A.e(f"v_pk_add_f32 {v(f,2)}, {v(f,2)}, {v(ST+4,2)}")
            if mimic:
                A.e(f"v_cvt_pk_bf16_f32 {v(W0)}, {v(f)}, {v(f+1)}")
                A.e(f"v_lshlrev_b32 {v(f)}, 16, {v(W0)}\nv_and_b32 {v(f+1)}, s26, {v(W0)}")
            A.e(f"v_pk_mul_f32 {v(f,2)}, {v(f,2)}, {v(ST+6,2)}")
            A.e(f"v_cvt_pk_bf16_f32 {v(LP + n)}, {v(f)}, {v(f+1)}")
        row_store(LP, 48, 12, 19)
        row_store(HP, 12, 20 if False else 120)

    def gemm_phase(self, G, b, tilemap, early, pre_last, epilogue, vb=1, ptail=None, cvb=3, idle=None, init_pre=None, init_post=None, init_fin=None, poll=None, run=None, pre_cons=None, arrive=None):
        A = self.A
        skip = A.newlabel(G.name + "_skip"); cons = A.newlabel(G.name + "_cons"); end = A.newlabel(G.name + "_end")
        tilemap(skip)
        A.e(f"s_cmp_lt_u32 s{SW}, 4\ns_cbranch_scc1 {cons}")
        A.e(f"s_sub_u32 s25, s{SW}, 4")
        G.emit_producer_setup(0, vb)
        if arrive: arrive()
        G.emit_producer_run(early=early if self.o.get("early", True) else None, gate=lambda: A.e("s_barrier"))
        if ptail: ptail()
        A.e(f"s_branch {end}")
        A.label(cons)
        if pre_cons: pre_cons()
        G.emit_consumer_pre(0, cvb, zero=(init_pre is None and init_post is None))
        if init_pre: init_pre()
        if arrive: arrive()
        (poll or self.poll)(b)
        A.e("s_barrier")
        self.stamp(G.name + ".start")
        if init_post: init_post()
        if run: run()
        else: G.emit_consumer_run(pre_last, init_fin)
        self.stamp(G.name + ".loop")
        epilogue()
        A.e(f"s_branch {end}")
        A.label(skip)
        if arrive: arrive()
        if idle: idle()
        A.label(end)

    def tilemap_16x14(self, skip):
        A = self.A
        A.e("s_and_b32 s3, s2, 7\ns_lshr_b32 s29, s2, 3")
        A.e(f"s_cmp_ge_u32 s29, 28\ns_cbranch_scc1 {skip}")
        A.e("s_and_b32 s18, s3, 3\ns_lshl_b32 s18, s18, 2\ns_and_b32 s23, s29, 3\ns_add_u32 s18, s18, s23\ns_mov_b32 s40, s18\ns_lshl_b32 s18, s18, 7")
        A.e("s_lshr_b32 s17, s3, 2\ns_mul_i32 s17, s17, 7\ns_lshr_b32 s23, s29, 2\ns_add_u32 s17, s17, s23\ns_mov_b32 s41, s17\ns_lshl_b32 s17, s17, 7")

    ZP = 16

    def l2_wsp(self, tid):
        A = self.A
        srd_from(A, 56, PWSP, 0, S * S * 2)
        A.e("s_and_b32 s54, s2, 3\ns_lshl_b32 s54, s54, 21\ns_lshr_b32 s55, s2, 3\ns_lshl_b32 s55, s55, 16\ns_add_u32 s54, s54, s55")
        A.e(f"v_lshlrev_b32 v22, 4, {v(tid)}")
        for n in range(16):
            A.e("buffer_load_dwordx4 v[24:27], v22, s[56:59], s54 offen\ns_add_u32 s54, s54, 4096")

    def l2_wout(self, wave_sgpr):
        A = self.A
        srd_from(A, 56, PWOUT, 0, FH * D * 2)
        A.e(f"s_lshr_b32 s55, s2, 3\ns_mul_i32 s55, s55, 56\ns_mul_i32 s54, s{wave_sgpr}, 14\ns_add_u32 s55, s55, s54\ns_lshl_b32 s55, s55, 11")
        A.e("s_bfe_u32 s54, s2, 0x10002\ns_lshl_b32 s54, s54, 10\ns_add_u32 s54, s54, s55")
        A.e("v_lshlrev_b32 v22, 4, v0")
        for n in range(14):
            A.e("buffer_load_dwordx4 v[24:27], v22, s[56:59], s54 offen\ns_add_u32 s54, s54, 2048")

    def p4_idle(self):
        A = self.A
        if not self.o.get("pf", True): return
        A.e("s_and_b32 s24, s2, 7\ns_lshl_b32 s24, s24, 2\ns_sub_u32 s23, s29, 28\ns_add_u32 s23, s23, s24")
        A.e(f"v_lshl_add_u32 v4, s{SW}, 6, v0\nv_lshlrev_b32 v4, 4, v4")
        retile = self.o.get("wo_tile", True)
        jobs = ((PWSP, S * S * 2),) if self.o.get("pfsp", True) else ()
        for ptr, nbytes in jobs + (() if retile else ((PWOUT, FH * D * 2),)):
            per = nbytes // 32; n = (per + 8191) // 8192
            srd_from(A, 56, ptr, 0, nbytes)
            lp = A.newlabel("pfl")
            A.e(f"s_mul_i32 s54, s23, {per}\ns_mov_b32 s55, {n}")
            A.label(lp)
            A.e(f"buffer_load_dwordx4 v[8:11], v4, s[56:59], s54 offen\ns_add_u32 s54, s54, 8192")
            A.e(f"s_waitcnt vmcnt({self.o.get('pfq', 6)})")
            if self.o.get("pfsleep"): A.e(f"s_sleep {self.o['pfsleep']}")
            A.e(f"s_sub_u32 s55, s55, 1\ns_cmp_lg_u32 s55, 0\ns_cbranch_scc1 {lp}")
        if retile and self.o.get("wo_job", True) and not self.o.get("wo_late"): self.wo_copy()

    def wo_copy(self, setup=False):
        A = self.A
        if setup:
            A.e("s_and_b32 s3, s2, 7\ns_lshr_b32 s29, s2, 3\ns_sub_u32 s23, s29, 28\ns_lshl_b32 s24, s3, 2\ns_add_u32 s23, s23, s24")
            A.e(f"v_lshl_add_u32 v4, s{SW}, 6, v0\nv_lshlrev_b32 v4, 4, v4")
        if True:
            srd_from(A, 56, PWOUT, 0, FH * D * 2)
            srd_from(A, 48, PWS, WS_Z1, 16 * 229376)
            A.e(f"v_lshl_add_u32 v5, s{SW}, 6, v0")
            A.e("v_bfe_u32 v6, v5, 3, 4\ns_mov_b32 s54, 229376\nv_mul_lo_u32 v6, v6, s54")
            A.e("v_lshrrev_b32 v7, 7, v5\nv_lshl_add_u32 v6, v7, 7, v6\nv_and_b32 v7, 7, v5\nv_lshl_add_u32 v6, v7, 4, v6")
            A.e(f"s_mul_i32 s54, s23, 114688\ns_mul_i32 s55, s23, {56 * 128}")
            for half in range(2):
                for r in range(7):
                    A.e(f"buffer_load_dwordx4 {v(12 + 4*r, 4)}, v4, s[56:59], s54 offen\ns_add_u32 s54, s54, 8192")
                for r in range(7):
                    A.e("s_waitcnt vmcnt(6)")
                    A.e(f"buffer_store_dwordx4 {v(12 + 4*r, 4)}, v6, s[48:51], s55 offen {SC}\ns_add_u32 s55, s55, 512")
                A.e("s_waitcnt vmcnt(0)")

    def gelu2(self, qa, qb, T):
        A = self.A
        pr = ((qa, T), (qb, T + 10))
        for a0, t in pr:
            for hh in (0, 2): A.e(f"v_pk_mul_f32 {v(t+hh,2)}, {v(a0+hh,2)}, {v(a0+hh,2)}")
        for a0, t in pr:
            for hh in (0, 2): A.e(f"v_pk_fma_f32 {v(t+hh,2)}, {v(t+hh,2)}, s[46:47], {v(T+8,2)}")
        for a0, t in pr:
            for hh in (0, 2): A.e(f"v_pk_mul_f32 {v(t+hh,2)}, {v(t+hh,2)}, {v(a0+hh,2)}")
        for a0, t in pr:
            for r in range(4): A.e(f"v_exp_f32 {v(t+r)}, {v(t+r)}")
        for a0, t in pr:
            for hh in (0, 2): A.e(f"v_pk_add_f32 {v(t+hh,2)}, {v(t+hh,2)}, 1.0 op_sel_hi:[1,0]")
            for r in range(4): A.e(f"v_rcp_f32 {v(t+r)}, {v(t+r)}")
        for a0, t in pr:
            for hh in (0, 2): A.e(f"v_pk_mul_f32 {v(a0+hh,2)}, {v(a0+hh,2)}, {v(t+hh,2)}")

    def gelu_consts(self, T):
        A = self.A
        A.e(f"s_mov_b32 s44, {f2u(GK1)}\ns_mov_b32 s45, {f2u(GK1)}\ns_mov_b32 s46, {f2u(GK2)}\ns_mov_b32 s47, {f2u(GK2)}")
        A.e(f"v_mov_b32 {v(T+8)}, s44\nv_mov_b32 {v(T+9)}, s45")

    def p4b(self):
        A = self.A
        NS = self.o.get("NS1", 4)
        wint = self.o.get("wint")
        X = Op('ks', 128, 256 if wint == "tiled" else F * 2, 4); X.base_sgpr = 45
        Y = Op('kc', 128, self.LSTR, 8); Y.aux = self.o.get("g1yaux", SC)
        X.aux = self.o.get("g1xaux", "")
        wrapX = (16 * KS * 256 + 1024 * 256) if wint == "tiled" else (16 * KS * F * 2 + FH * 2)
        G = Gemm(A, "g1", 2 * D, NS, X, Y, 2, 2, wrap=(16, wrapX, 16 * 128), **self.o.get("g1", {}))
        self.G1 = G
        def tilemap(skip):
            self.tilemap_16x14(skip)
            if wint: srd_from(A, 4, PWS, 80 * MB, D * F * 2)
            else: srd_from(A, 4, PWIN, 0, D * F * 2)
            srd_from(A, 8, PWS, WS_LN2, S * self.LSTR)
            if wint == "tiled": A.e(f"s_mul_i32 s45, s41, {2 * 1024 * 256}\ns_add_u32 s45, s45, {1024 * 256}")
            else: A.e(f"s_add_u32 s45, s17, {FH}\ns_lshl_b32 s45, s45, 1")
        slow = []
        def run():
            assert G.set0 == 56 and G.accb == 120, (G.set0, G.accb)
            accA, accB = 120, 184
            self.accB = accB
            G.consumer_head()
            G.stages_loop(16, accA)
            self.stamp("g1.passA")
            T, SP, R, TMP, P4 = 2, 16, 32, 88, 96
            self.gelu_consts(T)
            for n in range(16): A.e(f"v_mov_b32 {v(SP + n)}, 0")
            def q(acc, i, j): return acc + 4 * (i * 4 + j)
            for j in range(4):
                for i in range(4):
                    if i % 2 == 0: self.gelu2(q(accA, i, j), q(accA, i + 1, j), T)
                    a0 = q(accA, i, j)
                    for hh in (0, 2):
                        A.e(f"v_pk_add_f32 {v(SP + 2*j, 2)}, {v(SP + 2*j, 2)}, {v(a0+hh,2)}")
                        A.e(f"v_pk_fma_f32 {v(SP + 8 + 2*j, 2)}, {v(a0+hh,2)}, {v(a0+hh,2)}, {v(SP + 8 + 2*j, 2)}")
            for j in range(4):
                A.e(f"v_add_f32 {v(R + j)}, {v(SP + 2*j)}, {v(SP + 2*j + 1)}")
                A.e(f"v_add_f32 {v(R + 4 + j)}, {v(SP + 8 + 2*j)}, {v(SP + 8 + 2*j + 1)}")
            group_reduce(A, [R + n for n in range(8)], TMP)
            A.e(f"v_cmp_le_u32 vcc, 16, v0\ns_nop 1")
            A.e(f"v_cndmask_b32 {v(P4)}, {v(R)}, {v(R + 2)}, vcc\nv_cndmask_b32 {v(P4 + 1)}, {v(R + 4)}, {v(R + 6)}, vcc")
            A.e(f"v_cndmask_b32 {v(P4 + 2)}, {v(R + 1)}, {v(R + 3)}, vcc\nv_cndmask_b32 {v(P4 + 3)}, {v(R + 5)}, {v(R + 7)}, vcc")
            srd_from(A, 36, PWS, WS_ST, 524288)
            A.e(f"s_lshl_b32 s51, s40, 1\ns_add_u32 s51, s51, s28\ns_mul_i32 s51, s51, {28 * 512}")
            A.e("s_lshl_b32 s24, s41, 1\ns_add_u32 s24, s24, s27\ns_lshl_b32 s24, s24, 9\ns_add_u32 s24, s24, s51")
            A.e(f"v_lshlrev_b32 v1, 4, v0\ns_mov_b32 exec_hi, 0")
            A.e(f"buffer_store_dwordx4 {v(P4,4)}, v1, s[36:39], s24 offen {SC}")
            A.e("s_mov_b32 exec_hi, -1")
            A.e("s_add_u32 s52, s51, 4096\ns_add_u32 s53, s51, 8192\ns_add_u32 s55, s51, 12288")
            A.e("v_and_b32 v1, 15, v0\nv_lshlrev_b32 v1, 4, v1\nv_bfe_u32 v2, v0, 4, 1\nv_lshl_add_u32 v1, v2, 3, v1\nv_lshrrev_b32 v2, 5, v0\nv_lshl_add_u32 v1, v2, 8, v1")
            VA = 34
            srd_from(A, 12, PWS, WS_Z2, S * self.ZSTR)
            lane_out_offset(A, VA, VA + 1, 18, 17, 28, 27, 4, 4, self.ZSTR)
            A.e(f"v_lshrrev_b32 {v(VA+1)}, 4, v0\nv_lshlrev_b32 {v(VA+2)}, 3, {v(VA+1)}\nv_sub_u32 {v(VA)}, {v(VA)}, {v(VA+2)}")
            A.e(f"v_and_b32 {v(VA+2)}, 1, {v(VA+1)}\nv_lshl_add_u32 {v(VA)}, {v(VA+2)}, 5, {v(VA)}")
            A.e(f"v_lshrrev_b32 {v(VA+2)}, 1, {v(VA+1)}\nv_lshl_add_u32 {v(VA)}, {v(VA+2)}, 4, {v(VA)}")
            self.stamp("g1.pub")
            Q, AC = 2, 30
            def loads(b):
                out = []
                for n in range(14):
                    p = 14 * b + n
                    so = ("s51", "s52", "s53", "s55")[p >> 3]
                    out.append(f"buffer_load_dwordx2 {v(Q + 2*n, 2)}, v1, s[36:39], {so} offen offset:{512 * (p & 7)} {SC}")
                return out
            def check(b):
                ok = A.newlabel("xok"); rt = A.newlabel("xrt")
                A.e("s_waitcnt vmcnt(0)")
                A.e(f"v_max_u32 v32, {v(Q)}, {v(Q+1)}")
                for n in range(2, 28, 2): A.e(f"v_max3_u32 v32, v32, {v(Q+n)}, {v(Q+n+1)}")
                A.e(f"v_cmp_eq_u32 vcc, -1, v32\ns_nop 1\ns_cmp_lg_u64 vcc, 0\ns_cbranch_scc1 {rt}")
                A.label(ok)
                slow.append((rt, ok, b))
            def tree(first):
                out = []; n = 14
                while n > 1:
                    hi = n // 2
                    for p in range(hi): out.append(f"v_pk_add_f32 {v(Q + 2*p, 2)}, {v(Q + 2*p, 2)}, {v(Q + 2*(n - 1 - p), 2)}")
                    n -= hi
                if first: out += [f"v_mov_b32 {v(AC)}, {v(Q)}", f"v_mov_b32 {v(AC+1)}, {v(Q+1)}"]
                else: out.append(f"v_pk_add_f32 {v(AC, 2)}, {v(AC, 2)}, {v(Q, 2)}")
                return out
            self._p4_loads = loads; self._p4_Q = Q
            G.stages_loop(4, accB)
            l1 = loads(0)
            G.stage(accB, extraA=l1[:8], extraB=l1[8:])
            G.stage(accB)
            check(0)
            w = tree(True) + loads(1)
            G.stage(accB, extraA=w[:10], extraB=w[10:])
            G.stage(accB)
            check(1)
            m, qv = AC, AC + 1
            rnd = lambda r: [f"v_cvt_pk_bf16_f32 {v(r)}, {v(r)}, {v(r)}", f"v_lshlrev_b32 {v(r)}, 16, {v(r)}"]
            st = tree(False)
            st += [f"v_mul_f32 {v(m)}, {hex(f2u(1.0 / FH))}, {v(m)}", f"v_mul_f32 {v(qv)}, {hex(f2u(1.0 / FH))}, {v(qv)}",
                   f"v_fma_f32 {v(qv)}, -{v(m)}, {v(m)}, {v(qv)}", f"v_max_f32 {v(qv)}, 0, {v(qv)}"]
            st += rnd(m) + rnd(qv) + [f"v_add_f32 {v(qv)}, {hex(f2u(1e-5))}, {v(qv)}"] + rnd(qv)
            st += [f"v_sqrt_f32 {v(qv)}, {v(qv)}", "s_nop 0"] + rnd(qv) + [f"v_rcp_f32 {v(qv)}, {v(qv)}", "s_nop 0", f"v_sub_f32 {v(m)}, 0, {v(m)}"]
            SP2 = 2
            for (src, dstb) in ((m, SP2), (qv, SP2 + 8)):
                a, b_, a2, b2 = dstb, dstb + 2, dstb + 4, dstb + 6
                st += [f"v_mov_b32 {v(a)}, {v(src)}", f"v_mov_b32 {v(b_)}, {v(src)}", "s_nop 1", f"v_permlane16_swap_b32 {v(a)}, {v(b_)}",
                       f"v_mov_b32 {v(a2)}, {v(a)}", f"v_mov_b32 {v(b2)}, {v(b_)}", "s_nop 1",
                       f"v_permlane32_swap_b32 {v(a)}, {v(a2)}", f"v_permlane32_swap_b32 {v(b_)}, {v(b2)}"]
                st += [f"v_mov_b32 {v(x + 1)}, {v(x)}" for x in (a, b_, a2, b2)]
            h = len(st) // 2
            G.stage(accB, extraA=st[:10], extraB=st[10:32])
            G.stage(accB, extraA=st[32:42], extraB=st[42:])
            PK = 18
            for j in range(4):
                nm = []
                for i in range(4):
                    a0 = q(accA, i, j)
                    for hh in (0, 2):
                        nm.append(f"v_pk_add_f32 {v(a0+hh,2)}, {v(a0+hh,2)}, {v(SP2 + 2*j, 2)}")
                        nm.append(f"v_pk_mul_f32 {v(a0+hh,2)}, {v(a0+hh,2)}, {v(SP2 + 8 + 2*j, 2)}")
                    nm += [f"v_cvt_pk_bf16_f32 {v(PK + 2*i)}, {v(a0)}, {v(a0+1)}", f"v_cvt_pk_bf16_f32 {v(PK + 2*i + 1)}, {v(a0+2)}, {v(a0+3)}"]
                nm += [f"s_mov_b32 s24, {16 * j * self.ZSTR}", "s_nop 0"]
                for ip in range(2):
                    z0 = PK + 4 * ip
                    nm += [f"v_permlane16_swap_b32 {v(z0)}, {v(z0+2)}", f"v_permlane16_swap_b32 {v(z0+1)}, {v(z0+3)}",
                           f"buffer_store_dwordx4 {v(z0,4)}, {v(VA)}, s[12:15], s24 offen offset:{64 * ip} {SC}"]
                G.stage(accB, extraA=nm[:10], extraB=nm[10:])
            G.stage(accB)
            G.stage(accB, last=True)
        def epi():
            fin = A.newlabel("g1fin")
            A.e(f"s_branch {fin}")
            for rt, ok, b in slow:
                lp = A.newlabel("xlp")
                A.label(rt)
                A.e("s_mov_b32 s42, 0x8000")
                A.label(lp)
                A.e("s_sleep 2")
                for ln in self._p4_loads(b): A.e(ln)
                A.e("s_waitcnt vmcnt(0)")
                Q = self._p4_Q
                A.e(f"v_max_u32 v32, {v(Q)}, {v(Q+1)}")
                for n in range(2, 28, 2): A.e(f"v_max3_u32 v32, v32, {v(Q+n)}, {v(Q+n+1)}")
                A.e(f"v_cmp_eq_u32 vcc, -1, v32\ns_sub_u32 s42, s42, 1\ns_cbranch_scc1 {ok}\ns_cmp_lg_u64 vcc, 0\ns_cbranch_scc1 {lp}\ns_branch {ok}")
            A.label(fin)
        def zero():
            for n in range(128): A.e(f"v_mov_b32 {v(120 + n)}, 0")
        self.gemm_phase(G, 3, tilemap, X, None, epi, cvb=41, idle=self.p4_idle, run=run, init_pre=zero, arrive=self.hook3)

    def z1_finish(self):
        A = self.A
        T = 48
        self.gelu_consts(T)
        for j in range(4):
            for i in range(4):
                if i % 2 == 0: self.gelu2(self.accB + 4 * (i * 4 + j), self.accB + 4 * ((i + 1) * 4 + j), T)
                a0 = self.accB + 4 * (i * 4 + j); z = self.ZP + 2 * (4 * j + i)
                A.e(f"v_cvt_pk_bf16_f32 {v(z)}, {v(a0)}, {v(a0+1)}\nv_cvt_pk_bf16_f32 {v(z+1)}, {v(a0+2)}, {v(a0+3)}")

    def p4(self):
        A = self.A
        NS = self.o.get("NS1", 3)
        X = Op('ks', 256, F * 2, 4); X.segmap = FH * 2; X.xorfam = True
        Y = Op('kc', 128, self.LSTR, 8); Y.aux = SC
        G = Gemm(A, "g1", D, NS, X, Y, 2, 2, **self.o.get("g1", {}))
        def tilemap(skip):
            self.tilemap_16x14(skip)
            srd_from(A, 4, PWIN, 0, D * F * 2)
            srd_from(A, 8, PWS, WS_LN2, S * self.LSTR)
        idle = self.p4_idle
        def epi():
            TX, TY = G.TX, G.TY
            assert G.set0 == 16 and G.accb == 112, (G.set0, G.accb)
            ZP = self.ZP; T = 48
            srd_from(A, 36, PBSP, 0, S * 2)
            A.e(f"s_lshl_b32 s23, s28, 6\ns_add_u32 s23, s23, s18\nv_and_b32 v244, 15, v0\nv_add_u32 v244, s23, v244\nv_lshlrev_b32 v244, 1, v244")
            for j in range(4):
                A.e(f"buffer_load_ushort v{240 + j}, v244, s[36:39], 0 offen offset:{32 * j}")
            A.e(f"s_mov_b32 s44, {f2u(GK1)}\ns_mov_b32 s45, {f2u(GK1)}\ns_mov_b32 s46, {f2u(GK2)}\ns_mov_b32 s47, {f2u(GK2)}")
            A.e(f"v_mov_b32 {v(T+8)}, s44\nv_mov_b32 {v(T+9)}, s45")
            SP = 64
            for n in range(16): A.e(f"v_mov_b32 {v(SP + n)}, 0")
            A.e("s_nop 3")
            def accq(i, j): return G.accb + 4 * (i * TY + j)
            def gelu2(qa, qb):
                ta, tb = T, T + 10
                pr = ((qa, ta), (qb, tb))
                for a0, t in pr:
                    for hh in (0, 2): A.e(f"v_pk_mul_f32 {v(t+hh,2)}, {v(a0+hh,2)}, {v(a0+hh,2)}")
                for a0, t in pr:
                    for hh in (0, 2): A.e(f"v_pk_fma_f32 {v(t+hh,2)}, {v(t+hh,2)}, s[46:47], {v(T+8,2)}")
                for a0, t in pr:
                    for hh in (0, 2): A.e(f"v_pk_mul_f32 {v(t+hh,2)}, {v(t+hh,2)}, {v(a0+hh,2)}")
                for a0, t in pr:
                    for r in range(4): A.e(f"v_exp_f32 {v(t+r)}, {v(t+r)}")
                for a0, t in pr:
                    for hh in (0, 2): A.e(f"v_pk_add_f32 {v(t+hh,2)}, {v(t+hh,2)}, 1.0 op_sel_hi:[1,0]")
                    for r in range(4): A.e(f"v_rcp_f32 {v(t+r)}, {v(t+r)}")
                for a0, t in pr:
                    for hh in (0, 2): A.e(f"v_pk_mul_f32 {v(a0+hh,2)}, {v(a0+hh,2)}, {v(t+hh,2)}")
            for j in range(TY):
                for i in range(4, 8):
                    if i % 2 == 0: gelu2(accq(i, j), accq(i + 1, j))
                    a0 = accq(i, j)
                    for hh in (0, 2):
                        A.e(f"v_pk_add_f32 {v(SP + 2*j, 2)}, {v(SP + 2*j, 2)}, {v(a0+hh,2)}")
                        A.e(f"v_pk_fma_f32 {v(SP + 8 + 2*j, 2)}, {v(a0+hh,2)}, {v(a0+hh,2)}, {v(SP + 8 + 2*j, 2)}")
            R = 80; vt, va = 96, 97
            for j in range(TY):
                A.e(f"v_add_f32 {v(R + j)}, {v(SP + 2*j)}, {v(SP + 2*j + 1)}")
                A.e(f"v_add_f32 {v(R + 4 + j)}, {v(SP + 8 + 2*j)}, {v(SP + 8 + 2*j + 1)}")
            group_reduce(A, [R + n for n in range(8)], R + 8)
            A.e(f"v_cmp_le_u32 vcc, 16, v0\ns_nop 1")
            P4 = R + 8
            A.e(f"v_cndmask_b32 {v(P4)}, {v(R)}, {v(R + 2)}, vcc\nv_cndmask_b32 {v(P4 + 1)}, {v(R + 4)}, {v(R + 6)}, vcc")
            A.e(f"v_cndmask_b32 {v(P4 + 2)}, {v(R + 1)}, {v(R + 3)}, vcc\nv_cndmask_b32 {v(P4 + 3)}, {v(R + 5)}, {v(R + 7)}, vcc")
            srd_from(A, 36, PWS, WS_ST, 524288)
            A.e(f"s_lshl_b32 s23, s40, 1\ns_add_u32 s23, s23, s28\ns_mul_i32 s23, s23, {28 * 512}")
            A.e("s_lshl_b32 s24, s41, 1\ns_add_u32 s24, s24, s27\ns_lshl_b32 s24, s24, 9\ns_add_u32 s24, s24, s23")
            A.e(f"v_lshlrev_b32 v1, 4, v0\ns_mov_b32 exec_hi, 0")
            A.e(f"buffer_store_dwordx4 {v(P4,4)}, v1, s[36:39], s24 offen {SC}")
            A.e("s_mov_b32 exec_hi, -1")
            A.e("v_and_b32 v1, 15, v0\nv_lshlrev_b32 v1, 4, v1\nv_bfe_u32 v2, v0, 4, 1\nv_lshl_add_u32 v1, v2, 3, v1\nv_lshrrev_b32 v2, 5, v0\nv_lshl_add_u32 v1, v2, 8, v1")
            self.stamp("g1.z2")
            for j in range(TY):
                for i in range(4):
                    if i % 2 == 0: gelu2(accq(i, j), accq(i + 1, j))
                    a0 = accq(i, j); z = ZP + 2 * (4 * j + i)
                    A.e(f"v_cvt_pk_bf16_f32 {v(z)}, {v(a0)}, {v(a0+1)}\nv_cvt_pk_bf16_f32 {v(z+1)}, {v(a0+2)}, {v(a0+3)}")
            self.stamp("g1.z1")
            A.e("v_and_b32 v2, 31, v0\nv_min_u32 v2, 27, v2\nv_lshlrev_b32 v2, 9, v2")
            Q = 56
            pl = A.newlabel("g1poll"); pd = A.newlabel("g1polld"); pf = A.newlabel("g1fetch")
            A.e("s_mov_b32 s42, 0x20000\ns_add_u32 s48, s23, 4096\ns_add_u32 s49, s23, 8192\ns_add_u32 s50, s23, 12288")
            A.e(f"s_branch {pf}")
            A.label(pl)
            A.e(f"buffer_load_dword {v(Q)}, v2, s[36:39], s23 offen offset:504 {SC}\ns_waitcnt vmcnt(0)")
            A.e(f"v_cmp_eq_u32 vcc, -1, {v(Q)}")
            A.e(f"s_sub_u32 s42, s42, 1\ns_cbranch_scc1 {pf}")
            A.e(f"s_cmp_eq_u64 vcc, 0\ns_cbranch_scc1 {pf}")
            A.e(f"s_sleep 1\ns_branch {pl}")
            A.label(pf)
            for p in range(28):
                so = ("s23", "s48", "s49", "s50")[p >> 3]
                A.e(f"buffer_load_dwordx2 {v(Q + 2*p, 2)}, v1, s[36:39], {so} offen offset:{512 * (p & 7)} {SC}")
            A.e("s_waitcnt vmcnt(0)")
            A.e(f"v_max_u32 v3, {v(Q)}, {v(Q+1)}")
            for n in range(2, 56, 2):
                A.e(f"v_max3_u32 v3, v3, {v(Q+n)}, {v(Q+n+1)}")
            A.e(f"v_cmp_eq_u32 vcc, -1, v3")
            A.e(f"s_sub_u32 s42, s42, 1\ns_cbranch_scc1 {pd}")
            A.e(f"s_cmp_eq_u64 vcc, 0\ns_cbranch_scc0 {pf if self.o.get('xretry') else pl}")
            A.label(pd)
            self.stamp("g1.xchg")
            n = 28
            while n > 1:
                hi = n // 2
                for p in range(hi):
                    A.e(f"v_pk_add_f32 {v(Q + 2*p, 2)}, {v(Q + 2*p, 2)}, {v(Q + 2*(n - 1 - p), 2)}")
                n -= hi
            m, q = Q, Q + 1
            A.e(f"s_mov_b32 s44, {f2u(1.0 / FH)}\ns_mov_b32 s45, {f2u(1e-5)}")
            A.e(f"v_mul_f32 {v(m)}, s44, {v(m)}\nv_mul_f32 {v(q)}, s44, {v(q)}")
            A.e(f"v_fma_f32 {v(q)}, -{v(m)}, {v(m)}, {v(q)}\nv_max_f32 {v(q)}, 0, {v(q)}")
            bf16_round(A, m); bf16_round(A, q)
            A.e(f"v_add_f32 {v(q)}, s45, {v(q)}")
            bf16_round(A, q)
            A.e(f"v_sqrt_f32 {v(q)}, {v(q)}\ns_nop 0")
            bf16_round(A, q)
            A.e(f"v_rcp_f32 {v(q)}, {v(q)}\ns_nop 0")
            A.e(f"v_sub_f32 {v(m)}, 0, {v(m)}")
            SP2 = 64
            for (src, dstb) in ((m, SP2), (q, SP2 + 8)):
                a, b_, a2, b2 = dstb, dstb + 2, dstb + 4, dstb + 6
                A.e(f"v_mov_b32 {v(a)}, {v(src)}\nv_mov_b32 {v(b_)}, {v(src)}\ns_nop 1")
                A.e(f"v_permlane16_swap_b32 {v(a)}, {v(b_)}")
                A.e(f"v_mov_b32 {v(a2)}, {v(a)}\nv_mov_b32 {v(b2)}, {v(b_)}\ns_nop 1")
                A.e(f"v_permlane32_swap_b32 {v(a)}, {v(a2)}\nv_permlane32_swap_b32 {v(b_)}, {v(b2)}")
                for x in (a, b_, a2, b2): A.e(f"v_mov_b32 {v(x + 1)}, {v(x)}")
            PK = 80
            def pk(i, j): return PK + 2 * (4 * j + i)
            srd_from(A, 12, PWS, WS_Z2, S * self.ZSTR)
            va2, T2 = 4, 6
            lane_out_offset(A, va2, va2 + 1, 18, 17, 28, 27, TY, 4, self.ZSTR)
            for j in range(TY):
                for i in range(4):
                    a0 = accq(i + 4, j)
                    for hh in (0, 2):
                        A.e(f"v_pk_add_f32 {v(a0+hh,2)}, {v(a0+hh,2)}, {v(SP2 + 2*j, 2)}")
                        A.e(f"v_pk_mul_f32 {v(a0+hh,2)}, {v(a0+hh,2)}, {v(SP2 + 8 + 2*j, 2)}")
                    A.e(f"v_cvt_pk_bf16_f32 {v(pk(i,j))}, {v(a0)}, {v(a0+1)}\nv_cvt_pk_bf16_f32 {v(pk(i,j)+1)}, {v(a0+2)}, {v(a0+3)}")
            swap_store(A, G, pk, T2, va2, 12, self.ZSTR, 4, TY, aux=SC)
        def ptail():
            if self.o.get("l2pf", False):
                A.e("v_lshl_add_u32 v20, s25, 6, v0")
                self.l2_wsp(20)
        def idle2():
            idle()
            if self.o.get("l2pf", False):
                lab = A.newlabel("l2i")
                A.e(f"s_waitcnt vmcnt(0)\ns_cmp_ge_u32 s{SW}, 4\ns_cbranch_scc1 {lab}")
                A.e(f"v_lshl_add_u32 v20, s{SW}, 6, v0")
                self.l2_wsp(20)
                A.label(lab)
        self.gemm_phase(G, 3, tilemap, X, None, epi, idle=idle2, ptail=ptail, arrive=self.hook3)

    def p5(self):
        A = self.A
        NS = self.o.get("NS2", 4)
        X = Op('ks', 128, self.ZSTR, 4); Y = Op('kc', 128, S * 2, 8); X.aux = SC
        G = Gemm(A, "g2", S, NS, X, Y, 2, 2, **self.o.get("g2", {}))
        st = {}
        def tilemap(skip):
            self.tilemap_16x14(skip)
            srd_from(A, 4, PWS, WS_Z2, S * self.ZSTR)
            srd_from(A, 8, PWSP, 0, S * S * 2)
        def init_pre():
            if self.o.get("twopass", False):
                ZB = G.vend
                srd_from(A, 36, PBSP, 0, S * 2)
                vb_ = ZB + 5
                A.e(f"s_lshl_b32 s23, s28, 6\ns_add_u32 s23, s23, s18")
                A.e(f"v_and_b32 {v(vb_)}, 15, v0\nv_add_u32 {v(vb_)}, s23, {v(vb_)}\nv_lshlrev_b32 {v(vb_)}, 1, {v(vb_)}")
                for j in range(4):
                    A.e(f"buffer_load_ushort {v(ZB + j)}, {v(vb_)}, s[36:39], 0 offen offset:{32 * j}")
                A.e("s_waitcnt vmcnt(0)")
            else:
                ZB = 240
            for j in range(4): A.e(f"v_lshlrev_b32 {v(ZB + j)}, 16, {v(ZB + j)}")
            for i in range(4):
                for j in range(4):
                    for r in range(4): A.e(f"v_mov_b32 {v(G.accb + 4 * (i * 4 + j) + r)}, {v(ZB + j)}")
        def epi():
            ZB = G.vend; va = ZB + 4; T = ZB + 8; ZP = self.ZP
            srd_from(A, 12, PWS, WS_P, S * self.PSTR)
            lane_out_offset(A, va, va + 1, 18, 17, 28, 27, 4, 4, self.PSTR)
            A.e("s_mov_b32 s26, 0xffff0000")
            for j in range(4):
                for i in range(4):
                    a0 = G.accb + 4 * (i * 4 + j); z = ZP + 2 * (4 * j + i)
                    t = T + 4 * ((i + j) & 1)
                    A.e(f"v_lshlrev_b32 {v(t)}, 16, {v(z)}\nv_and_b32 {v(t+1)}, s26, {v(z)}")
                    A.e(f"v_lshlrev_b32 {v(t+2)}, 16, {v(z+1)}\nv_and_b32 {v(t+3)}, s26, {v(z+1)}")
                    A.e(f"v_pk_mul_f32 {v(a0,2)}, {v(a0,2)}, {v(t,2)}\nv_pk_mul_f32 {v(a0+2,2)}, {v(a0+2,2)}, {v(t+2,2)}")
                    A.e(f"v_cvt_pk_bf16_f32 {v(z)}, {v(a0)}, {v(a0+1)}\nv_cvt_pk_bf16_f32 {v(z+1)}, {v(a0+2)}, {v(a0+3)}")
            swap_store(A, G, lambda i, j: ZP + 2 * (4 * j + i), T, va, 12, self.PSTR, 4, 4, aux=SC)
        def ptail():
            if self.o.get("grp4", False): self.poll(4, wave=4)
            if self.o.get("l2pf", False): self.l2_wout(25)
        def idle():
            if self.o.get("grp4", False): self.poll(4)
            else: self.wait(4)
            if self.o.get("l2pf2idle", False):
                lab = A.newlabel("l2j")
                A.e(f"s_cmp_ge_u32 s{SW}, 4\ns_cbranch_scc1 {lab}")
                self.l2_wout(SW)
                A.label(lab)
        def poll_f(b):
            lab = A.newlabel("pw"); lp = A.newlabel("pl"); ld = A.newlabel("pd")
            A.e(f"s_cmp_lg_u32 s{SW}, 0\ns_cbranch_scc1 {lab}")
            self.cnt_srd(5, 64)
            A.e("s_add_u32 s3, s41, 16\ns_lshl_b32 s3, s3, 8\nv_mov_b32 v250, s3")
            self.spin(250, 16, lp, ld)
            A.label(lab)
        self.gemm_phase(G, 4, tilemap, Y, None, epi, cvb=48, ptail=ptail, idle=idle, init_pre=init_pre,
                        poll=poll_f if self.o.get("grp4", False) else None,
                        pre_cons=self.z1_finish if self.o.get("twopass", False) else None, arrive=self.hook4)

    def p6(self):
        A = self.A
        NS = self.o.get("NS3", 4); BN = 64
        wt = self.o.get("wo_tile", True) and self.o.get("pf", True)
        X = Op('ks', BN, 128 if wt else D * 2, 4); Y = Op('kc', 128, self.PSTR, 8); Y.aux = SC
        if wt: X.aux = SC; X.base_sgpr = 41
        G = Gemm(A, "g3", FH, NS, X, Y, 2, 2, **self.o.get("g3", {}))
        TX, TY = G.TX, G.TY
        st = {}; nq = TX * TY
        def tilemap(skip):
            A.e("s_and_b32 s3, s2, 7\ns_lshr_b32 s29, s2, 3")
            A.e("s_and_b32 s18, s3, 3\ns_lshl_b32 s18, s18, 2\ns_and_b32 s23, s29, 3\ns_add_u32 s18, s18, s23\ns_lshl_b32 s18, s18, 7")
            A.e(f"s_lshr_b32 s17, s3, 2\ns_mul_i32 s17, s17, 8\ns_lshr_b32 s23, s29, 2\ns_xor_b32 s23, s23, {self.o.get('g3x', 0)}\ns_add_u32 s17, s17, s23\ns_mul_i32 s17, s17, {BN}")
            if wt:
                srd_from(A, 4, PWS, WS_Z1, 16 * 229376)
                A.e("s_lshr_b32 s41, s17, 6\ns_mul_i32 s41, s41, 229376")
            else: srd_from(A, 4, PWOUT, 0, FH * D * 2)
            srd_from(A, 8, PWS, WS_P, S * self.PSTR)
        def h_loads():
            ZB = G.vend
            va = ZB + 2 * nq
            for j in range(TY):
                A.e(f"s_mov_b32 s24, {16 * j * D * 2}")
                for i in range(TX):
                    A.e(f"buffer_load_dwordx2 {v(ZB + 2 * (TX * j + i), 2)}, {v(va)}, s[12:15], s24 offen offset:{32 * i} {SC}")
        def init_pre():
            ZB = G.vend
            srd_from(A, 12, PWS, WS_H, S * D * 2)
            va, vb_ = ZB + 2 * nq, ZB + 2 * nq + 1
            lane_out_offset(A, va, vb_, 18, 17, 28, 27, TY, TX, D * 2)
            h_loads()
        init_post = None
        def init_fin():
            ZB = G.vend
            A.e("s_mov_b32 s26, 0xffff0000\ns_waitcnt vmcnt(0)")
            for j in range(TY):
                for i in range(TX):
                    a0 = G.accb + 4 * (i * TY + j); z = ZB + 2 * (TX * j + i)
                    A.e(f"v_lshlrev_b32 {v(a0)}, 16, {v(z)}\nv_and_b32 {v(a0+1)}, s26, {v(z)}")
                    A.e(f"v_lshlrev_b32 {v(a0+2)}, 16, {v(z+1)}\nv_and_b32 {v(a0+3)}, s26, {v(z+1)}")
            A.e("s_nop 1")
            self.stamp("g3.hinit")
        def epi():
            ZB = G.vend; va = ZB + 2 * nq
            srd_from(A, 12, POUT, 0, S * D * 2)
            A.e("s_nop 3")
            T = (va + 2 + 1) // 2 * 2
            for j in range(TY):
                for i in range(TX):
                    a0 = G.accb + 4 * (i * TY + j); z = ZB + 2 * (TX * j + i)
                    A.e(f"v_cvt_pk_bf16_f32 {v(z)}, {v(a0)}, {v(a0+1)}\nv_cvt_pk_bf16_f32 {v(z+1)}, {v(a0+2)}, {v(a0+3)}")
            swap_store(A, G, lambda i, j: ZB + 2 * (TX * j + i), T, va, 12, D * 2, TX, TY)
        def poll_group(b):
            lab = A.newlabel("pw"); lp = A.newlabel("pl"); ld = A.newlabel("pd")
            A.e(f"s_cmp_lg_u32 s{SW}, 0\ns_cbranch_scc1 {lab}")
            self.cnt_srd(b, 64)
            A.e("s_lshr_b32 s3, s18, 7\ns_lshl_b32 s3, s3, 8\nv_mov_b32 v250, s3")
            self.spin(250, 14, lp, ld)
            A.label(lab)
        self.gemm_phase(G, 5, tilemap, X, None, epi, init_pre=init_pre, init_post=init_post, init_fin=init_fin,
                        poll=poll_group if self.o.get('grp5', True) else None, arrive=self.hook5)

    def build(self, name):
        A = self.A
        kernel_header(A, name)
        done = "L_done"
        A.e("s_load_dwordx4 s[80:83], s[0:1], 0\ns_load_dwordx2 s[84:85], s[0:1], 16\ns_load_dwordx8 s[88:95], s[0:1], 32")
        A.e("s_load_dwordx4 s[96:99], s[0:1], 64\ns_load_dwordx2 s[30:31], s[0:1], 80")
        A.e(f"s_cmp_ge_u32 s2, 256\ns_cbranch_scc1 {done}")
        if self.o.get("scramble"):
            A.e("s_and_b32 s3, s2, 7\ns_lshl_b32 s3, s3, 5\ns_lshr_b32 s2, s2, 3\ns_or_b32 s2, s2, s3")
        A.e(f"v_mov_b32 v1, v0\nv_lshrrev_b32 v2, 6, v0\nv_and_b32 v0, 63, v0\ns_nop 0\nv_readfirstlane_b32 s{SW}, v2")
        if self.stamps: A.e("v_mov_b32 v255, 0")
        if self.o.get("codepf", True):
            A.e("s_getpc_b64 s[52:53]")
            A.label("L_pc")
            A.e(f"s_lshr_b32 s3, s2, 3\ns_lshl_b32 s3, s3, 3\ns_add_u32 s3, s3, s{SW}")
            A.e("s_mov_b32 s54, (L_done - L_pc) / 1024")
            lab = A.newlabel("cpf")
            A.e(f"s_cmp_ge_u32 s3, s54\ns_cbranch_scc1 {lab}")
            A.e("s_lshl_b32 s3, s3, 10\nv_lshl_add_u32 v2, v0, 4, s3")
            A.e("global_load_dwordx4 v[228:231], v2, s[52:53]")
            A.label(lab)
        A.e("s_waitcnt lgkmcnt(0)")
        self.stamp("start")
        pw = self.o.get("prework", [])
        e1, e2, e3, e4, e5 = [(n in pw) for n in (1, 2, 3, 4, 5)]
        self.p1(); self.stamp("p1.end")
        A.e("s_waitcnt vmcnt(3)\ns_barrier")
        self.p1w()
        if e1: self.p2_pre()
        self.arrive(1, keep=2); self.stamp("p1.arrived")
        self.arrive("W"); self.stamp("p1.w")
        self.pf_point("A")
        if not e1: self.p2_pre()
        self.stamp("p2.pre"); self.wait(1); self.stamp("b1")
        lb = A.newlabel("pfb"); A.e(f"s_cmp_eq_u32 s19, 2\ns_cbranch_scc1 {lb}"); self.pf_point("B"); A.label(lb)
        self.p2(); self.stamp("p2.end")
        if e2:
            self.p3_pre()
        self.arrive(2, nowait_ge=6); self.stamp("p2.arrived")
        self.pf_point("E")
        if not e2: self.p3_pre()
        self.stamp("p3.pre"); self.wait(2); self.stamp("b2")
        self.p3(); self.stamp("p3.end")
        def a3():
            self.arrive(3, keep=2); self.pf_point("G")
        def a5():
            if self.o.get("grp5", True): self.arrive_group5()
            else: self.arrive(5)
        a4 = lambda: self.arrive(4)
        self.hook3, self.hook4, self.hook5 = (a3 if e3 else None, a4 if e4 else None, a5 if e5 else None)
        if not e3: a3()
        self.stamp("p3.arrived")
        if self.o.get("twopass", False): self.p4b()
        else: self.p4()
        self.stamp("p4.end")
        if not e4: a4()
        self.stamp("p4.arrived")
        self.p5(); self.stamp("p5.end")
        if not e5: a5()
        self.stamp("p5.arrived")
        self.p6()
        if self.stamps: A.e("s_waitcnt vmcnt(0)")
        self.stamp("p6.end")
        self.stamp_flush()
        A.label(done)
        A.e("s_endpgm")

HEADER = """Spectral (GFNet) block + gMLP block: one persistent gfx950 kernel (256 workgroups, one per CU), text emitted by the author's own generator scripts.
Kernarg: 0 A_x, 8 A_w_r, 16 A_w_i, 24 B_x (unused by the reference), 32 B_w_in, 40 B_w_sp, 48 B_b_sp, 56 B_w_out, 64 out, 72 debug, 80 ws
phase 1: LayerNorm + 1024-pt real FFT per row (32x32 MFMA DFT stages) + radix-8 step of the 2048-pt column FFT; re-tiles W
phase 2: 256-pt column FFT (16x16), multiply by W, inverse 256-pt FFT
phase 3: inverse radix-8 step, inverse 1024-pt real FFT, residual, LayerNorm
phase 4: z = gelu(ln2 @ w_in); LayerNorm of the second half (row statistics exchanged between workgroups)
phase 5: P = z1 * (w_sp @ z2n + b_sp)
phase 6: out = h + P @ w_out
Phases are separated by grid barriers (arrival counters: debug buffer for the first, workspace lines cleared in phase 1 for the others)."""
NAME = "sequential_preLN__spectral_gfnet__mixer_gmlp__prompt_kernel"

def build(opts=None):
    opts = opts or {}
    m = Mega(opts)
    m.build(NAME)
    lds = 163840
    out = ["; " + l for l in HEADER.split("\n")]
    out.append(f"; @launch grid=(256,1,1) block=(512,1,1) lds={lds}")
    out.append('.amdgcn_target "amdgcn-amd-amdhsa--gfx950"')
    out.append(".text")
    t = "\n".join(out) + "\n" + m.A.text() + '.section .rodata,"a"\n' + kernel_desc(NAME, 256)
    return t, m.stamp_names

if __name__ == "__main__":
    opts = json.loads(sys.argv[2]) if len(sys.argv) > 2 else {}
    t, names = build(opts)
    open(sys.argv[1], "w").write(t)
    print("bytes", len(t), "stamps", names)
```

```python
from asmlib import *
from gemm import *
from layout import *

def srd_from(A, dst, ptr_lo, off, nbytes):
    if off:
        A.e(f"s_add_u32 {s(dst)}, {s(ptr_lo)}, {off}")
        A.e(f"s_addc_u32 {s(dst+1)}, {s(ptr_lo+1)}, 0")
    else:
        A.e(f"s_mov_b32 {s(dst)}, {s(ptr_lo)}")
        A.e(f"s_mov_b32 {s(dst+1)}, {s(ptr_lo+1)}")
    A.e(f"s_mov_b32 {s(dst+2)}, {nbytes}")
    A.e(f"s_mov_b32 {s(dst+3)}, 0x20000")

def stamp_start(A):
    A.e("s_memrealtime s[60:61]")
    A.e("s_memtime s[68:69]")
def stamp_mid(A, n):
    A.e(f"s_memrealtime s[{72+2*n}:{73+2*n}]")
def stamp_end(A, name, kidx, wsptr, wave_sgpr=16):
    lab = A.newlabel(name + "_ts")
    A.e("s_memrealtime s[62:63]")
    A.e("s_memtime s[70:71]")
    A.e(f"s_cmp_lg_u32 s{wave_sgpr}, 0")
    A.e(f"s_cbranch_scc1 {lab}")
    srd_from(A, 64, wsptr, WS_TS + kidx * 65536, 65536)
    A.e("s_waitcnt lgkmcnt(0)")
    A.e("s_lshl_b32 s3, s2, 7")
    A.e("v_mov_b32 v4, s3")
    A.e("s_mov_b64 exec, 1")
    for n, b in enumerate([60, 68, 72, 76, 80, 84, 88]):
        A.e(f"v_mov_b32 v0, s{b}\nv_mov_b32 v1, s{b+1}\nv_mov_b32 v2, s{b+2}\nv_mov_b32 v3, s{b+3}")
        A.e(f"buffer_store_dwordx4 v[0:3], v4, s[64:67], 0 offen offset:{16*n}")
        A.e("s_nop 1")
    A.label(lab)

def prologue_ids(A):
    A.e("v_lshrrev_b32 v1, 6, v0")
    A.e("v_and_b32 v0, 63, v0")
    A.e("s_nop 0")
    A.e("v_readfirstlane_b32 s16, v1")

def swap_store_setup(A, T, va, odd=False):
    A.e(f"v_lshrrev_b32 {v(T)}, 4, v0")
    if odd:
        A.e(f"v_mov_b32 {v(T+2)}, {v(va)}")
    A.e(f"v_lshlrev_b32 {v(T+1)}, 3, {v(T)}")
    A.e(f"v_sub_u32 {v(va)}, {v(va)}, {v(T+1)}")
    A.e(f"v_and_b32 {v(T+1)}, 1, {v(T)}\nv_lshlrev_b32 {v(T+1)}, 5, {v(T+1)}")
    A.e(f"v_lshrrev_b32 {v(T)}, 1, {v(T)}\nv_lshlrev_b32 {v(T)}, 4, {v(T)}")
    A.e(f"v_add3_u32 {v(va)}, {v(va)}, {v(T)}, {v(T+1)}")

def swap_store_j(A, pk, T, va, srd, rowstride, nI, j, soff=24, aux=""):
    odd = nI % 2
    A.e(f"s_mov_b32 s{soff}, {16 * j * rowstride}")
    for ip in range(nI // 2):
        z0 = pk(2 * ip, j); z1 = pk(2 * ip + 1, j)
        assert z1 == z0 + 2 and z0 % 2 == 0
        if ip == 0: A.e("s_nop 1")
        A.e(f"v_permlane16_swap_b32 {v(z0)}, {v(z1)}")
        A.e(f"v_permlane16_swap_b32 {v(z0+1)}, {v(z1+1)}")
        A.e(f"buffer_store_dwordx4 {v(z0,4)}, {v(va)}, {s(srd,4)}, s{soff} offen offset:{64 * ip} {aux}")
    if odd:
        z0 = pk(nI - 1, j)
        A.e(f"buffer_store_dwordx2 {v(z0,2)}, {v(T+2)}, {s(srd,4)}, s{soff} offen offset:{32 * (nI - 1)} {aux}")

def swap_store(A, G, pk, T, va, srd, rowstride, nI, nJ, soff=24, aux=""):
    swap_store_setup(A, T, va, nI % 2)
    for j in range(nJ): swap_store_j(A, pk, T, va, srd, rowstride, nI, j, soff, aux)

def lane_out_offset(A, va, tmp, y0, x0, swy, swx, TY, TX, rowstride):
    A.e(f"s_mul_i32 s23, s{swy}, {16 * TY}\ns_add_u32 s23, s23, s{y0}")
    A.e(f"v_and_b32 {v(va)}, 15, v0\nv_add_u32 {v(va)}, s23, {v(va)}")
    A.e(f"s_mov_b32 s24, {rowstride}")
    A.e(f"v_mul_lo_u32 {v(va)}, {v(va)}, s24")
    A.e(f"s_mul_i32 s23, s{swx}, {16 * TX}\ns_add_u32 s23, s23, s{x0}\ns_lshl_b32 s23, s23, 1")
    A.e(f"v_lshrrev_b32 {v(tmp)}, 4, v0\nv_lshlrev_b32 {v(tmp)}, 3, {v(tmp)}")
    A.e(f"v_add3_u32 {v(va)}, {v(va)}, {v(tmp)}, s23")

def gen_gemm2(A, name="k5_kernel", NS=4, stamps=False, kidx=0, **kw):
    kernel_header(A, name)
    done = name + "_done"
    if stamps: stamp_start(A)
    A.e("s_load_dwordx2 s[30:31], s[0:1], 80")
    A.e("s_load_dwordx4 s[32:35], s[0:1], 40")
    A.e(f"s_cmp_ge_u32 s2, 256\ns_cbranch_scc1 {done}")
    A.e("s_and_b32 s3, s2, 7\ns_lshr_b32 s29, s2, 3")
    A.e(f"s_cmp_ge_u32 s29, 28\ns_cbranch_scc1 {done}")
    A.e("s_and_b32 s18, s3, 3\ns_lshl_b32 s18, s18, 2\ns_and_b32 s23, s29, 3\ns_add_u32 s18, s18, s23\ns_lshl_b32 s18, s18, 7")
    A.e("s_lshr_b32 s17, s3, 2\ns_mul_i32 s17, s17, 7\ns_lshr_b32 s23, s29, 2\ns_add_u32 s17, s17, s23\ns_lshl_b32 s17, s17, 7")
    prologue_ids(A)
    A.e("s_waitcnt lgkmcnt(0)")
    srd_from(A, 4, 30, WS_Z2, S * FH * 2)
    srd_from(A, 8, 32, 0, S * S * 2)
    X = Op('ks', 128, FH * 2, 4); Y = Op('kc', 128, S * 2, 8)
    G = Gemm(A, name, S, NS, X, Y, 2, 2, **kw)
    cons = name + "_cons"
    A.e("s_nop 4")
    A.e(f"s_cmp_lt_u32 s16, 4\ns_cbranch_scc1 {cons}")
    A.e("s_sub_u32 s25, s16, 4")
    G.emit_producer(0, 1)
    A.e(f"s_branch {done}")
    A.label(cons)
    st = {}
    def pre_last():
        ZB = st['ZB'] = G.vend
        srd_from(A, 12, 30, WS_Z1, S * FH * 2)
        srd_from(A, 36, 34, 0, S * 2)
        va, vb_ = ZB + 36, ZB + 37
        A.e(f"s_lshl_b32 s23, s28, 6\ns_add_u32 s23, s23, s18")
        A.e(f"v_and_b32 {v(vb_)}, 15, v0\nv_add_u32 {v(vb_)}, s23, {v(vb_)}\nv_lshlrev_b32 {v(vb_)}, 1, {v(vb_)}")
        for j in range(4):
            A.e(f"buffer_load_ushort {v(ZB + 32 + j)}, {v(vb_)}, s[36:39], 0 offen offset:{32 * j}")
        lane_out_offset(A, va, vb_, 18, 17, 28, 27, 4, 4, FH * 2)
        for j in range(4):
            A.e(f"s_mov_b32 s24, {16 * j * FH * 2}")
            for i in range(4):
                A.e(f"buffer_load_dwordx2 {v(ZB + 2 * (4 * j + i), 2)}, {v(va)}, s[12:15], s24 offen offset:{32 * i}")
    G.stamp = (lambda n: stamp_mid(A, n)) if stamps else None
    G.emit_consumer(0, 1, pre_last)
    if stamps: stamp_mid(A, 2)
    ZB = st['ZB']; va = ZB + 36
    srd_from(A, 12, 30, WS_P, S * FH * 2)
    A.e("s_nop 7")
    A.e("s_waitcnt vmcnt(0)")
    T = ZB + 40
    A.e(f"s_mov_b32 s26, 0xffff0000")
    for j in range(4):
        A.e(f"v_lshlrev_b32 {v(ZB + 32 + j)}, 16, {v(ZB + 32 + j)}")
    for j in range(4):
        for i in range(4):
            a0 = G.accb + 4 * (i * 4 + j)
            z = ZB + 2 * (4 * j + i)
            bj = ZB + 32 + j
            for r in range(4):
                A.e(f"v_add_f32 {v(a0 + r)}, {v(a0 + r)}, {v(bj)}")
            A.e(f"v_lshlrev_b32 {v(T)}, 16, {v(z)}\nv_and_b32 {v(T+1)}, s26, {v(z)}")
            A.e(f"v_lshlrev_b32 {v(T+2)}, 16, {v(z+1)}\nv_and_b32 {v(T+3)}, s26, {v(z+1)}")
            A.e(f"v_pk_mul_f32 {v(a0,2)}, {v(a0,2)}, {v(T,2)}")
            A.e(f"v_pk_mul_f32 {v(a0+2,2)}, {v(a0+2,2)}, {v(T+2,2)}")
            A.e(f"v_cvt_pk_bf16_f32 {v(z)}, {v(a0)}, {v(a0+1)}")
            A.e(f"v_cvt_pk_bf16_f32 {v(z+1)}, {v(a0+2)}, {v(a0+3)}")
    swap_store(A, G, lambda i, j: ZB + 2 * (4 * j + i), T, va, 12, FH * 2, 4, 4)
    if stamps:
        A.e("s_waitcnt vmcnt(0)")
        stamp_end(A, name, kidx, 30)
    A.label(done)
    A.e("s_endpgm")
    return G, T + 8

def gen_gemm3(A, name="k6_kernel", NS=4, BN=128, WX=2, stamps=False, kidx=0, **kw):
    kernel_header(A, name)
    done = name + "_done"
    if stamps: stamp_start(A)
    A.e("s_load_dwordx2 s[30:31], s[0:1], 80")
    A.e("s_load_dwordx4 s[32:35], s[0:1], 56")
    A.e(f"s_cmp_ge_u32 s2, 256\ns_cbranch_scc1 {done}")
    A.e("s_and_b32 s3, s2, 7\ns_lshr_b32 s29, s2, 3")
    nd = 1024 // BN // 2
    A.e(f"s_cmp_ge_u32 s29, {4 * nd}\ns_cbranch_scc1 {done}")
    A.e("s_and_b32 s18, s3, 3\ns_lshl_b32 s18, s18, 2\ns_and_b32 s23, s29, 3\ns_add_u32 s18, s18, s23\ns_lshl_b32 s18, s18, 7")
    A.e(f"s_lshr_b32 s17, s3, 2\ns_mul_i32 s17, s17, {nd}\ns_lshr_b32 s23, s29, 2\ns_add_u32 s17, s17, s23\ns_mul_i32 s17, s17, {BN}")
    prologue_ids(A)
    A.e("s_waitcnt lgkmcnt(0)")
    srd_from(A, 4, 32, 0, FH * D * 2)
    srd_from(A, 8, 30, WS_P, S * FH * 2)
    X = Op('ks', BN, D * 2, 4); Y = Op('kc', 128, FH * 2, 8)
    WY = 4 // WX
    G = Gemm(A, name, FH, NS, X, Y, WX, WY, **kw)
    TX, TY = G.TX, G.TY
    cons = name + "_cons"
    A.e("s_nop 4")
    A.e(f"s_cmp_lt_u32 s16, 4\ns_cbranch_scc1 {cons}")
    A.e("s_sub_u32 s25, s16, 4")
    G.emit_producer(0, 1)
    A.e(f"s_branch {done}")
    A.label(cons)
    st = {}
    nq = TX * TY
    def pre_last():
        ZB = st['ZB'] = G.vend
        srd_from(A, 12, 30, WS_H, S * D * 2)
        va, vb_ = ZB + 2 * nq, ZB + 2 * nq + 1
        lane_out_offset(A, va, vb_, 18, 17, 28, 27, TY, TX, D * 2)
        for j in range(TY):
            A.e(f"s_mov_b32 s24, {16 * j * D * 2}")
            for i in range(TX):
                A.e(f"buffer_load_dwordx2 {v(ZB + 2 * (TX * j + i), 2)}, {v(va)}, s[12:15], s24 offen offset:{32 * i}")
    G.stamp = (lambda n: stamp_mid(A, n)) if stamps else None
    G.emit_consumer(0, 1, pre_last)
    if stamps: stamp_mid(A, 2)
    ZB = st['ZB']; va = ZB + 2 * nq
    srd_from(A, 12, 34, 0, S * D * 2)
    A.e("s_nop 7")
    A.e("s_waitcnt vmcnt(0)")
    T = (va + 2 + 1) // 2 * 2
    A.e(f"s_mov_b32 s26, 0xffff0000")
    for j in range(TY):
        for i in range(TX):
            a0 = G.accb + 4 * (i * TY + j)
            z = ZB + 2 * (TX * j + i)
            A.e(f"v_lshlrev_b32 {v(T)}, 16, {v(z)}\nv_and_b32 {v(T+1)}, s26, {v(z)}")
            A.e(f"v_lshlrev_b32 {v(T+2)}, 16, {v(z+1)}\nv_and_b32 {v(T+3)}, s26, {v(z+1)}")
            A.e(f"v_pk_add_f32 {v(a0,2)}, {v(a0,2)}, {v(T,2)}")
            A.e(f"v_pk_add_f32 {v(a0+2,2)}, {v(a0+2,2)}, {v(T+2,2)}")
            A.e(f"v_cvt_pk_bf16_f32 {v(z)}, {v(a0)}, {v(a0+1)}")
            A.e(f"v_cvt_pk_bf16_f32 {v(z+1)}, {v(a0+2)}, {v(a0+3)}")
    swap_store(A, G, lambda i, j: ZB + 2 * (TX * j + i), T, va, 12, D * 2, TX, TY)
    if stamps:
        A.e("s_waitcnt vmcnt(0)")
        stamp_end(A, name, kidx, 30)
    A.label(done)
    A.e("s_endpgm")
    return G, T + 8

GK1 = -2.0 * 1.4426950408889634 * 0.7978845608028654
GK2 = GK1 * 0.044715
import struct
def f2u(x): return struct.unpack("<I", struct.pack("<f", x))[0]

def bf16_round(A, reg):
    A.e(f"v_cvt_pk_bf16_f32 {v(reg)}, {v(reg)}, {v(reg)}")
    A.e(f"v_lshlrev_b32 {v(reg)}, 16, {v(reg)}")

def group_reduce(A, regs, tmp):
    for sw in ("v_permlane16_swap_b32", "v_permlane32_swap_b32"):
        for n, r in enumerate(regs):
            A.e(f"v_mov_b32 {v(tmp + n)}, {v(r)}")
        A.e("s_nop 1")
        for n, r in enumerate(regs):
            A.e(f"{sw} {v(r)}, {v(tmp + n)}")
        for n, r in enumerate(regs):
            A.e(f"v_add_f32 {v(r)}, {v(r)}, {v(tmp + n)}")

def gen_gemm1(A, name="k4_kernel", NS=3, stamps=False, kidx=0, **kw):
    kernel_header(A, name)
    done = name + "_done"
    if stamps: stamp_start(A)
    A.e("s_load_dwordx2 s[30:31], s[0:1], 80")
    A.e("s_load_dwordx2 s[32:33], s[0:1], 32")
    A.e(f"s_cmp_ge_u32 s2, 256\ns_cbranch_scc1 {done}")
    A.e("s_and_b32 s3, s2, 7\ns_lshr_b32 s29, s2, 3")
    A.e("s_and_b32 s18, s3, 1\ns_lshl_b32 s18, s18, 3\ns_and_b32 s23, s29, 7\ns_add_u32 s18, s18, s23\ns_mov_b32 s40, s18\ns_lshl_b32 s18, s18, 7")
    A.e("s_lshr_b32 s17, s3, 1\ns_lshl_b32 s17, s17, 1\ns_lshr_b32 s23, s29, 3\ns_add_u32 s17, s17, s23")
    A.e("s_cmp_ge_u32 s23, 2\ns_cselect_b32 s23, 6, 0\ns_add_u32 s17, s17, s23\ns_mov_b32 s41, s17\ns_mul_i32 s17, s17, 224")
    prologue_ids(A)
    A.e("s_waitcnt lgkmcnt(0)")
    srd_from(A, 4, 32, 0, D * F * 2)
    srd_from(A, 8, 30, WS_LN2, S * D * 2)
    X = Op('ks', 224, F * 2, 4); Y = Op('kc', 128, D * 2, 8)
    G = Gemm(A, name, D, NS, X, Y, 2, 2, **kw)
    TX, TY = G.TX, G.TY
    cons = name + "_cons"
    A.e("s_nop 4")
    A.e(f"s_cmp_lt_u32 s16, 4\ns_cbranch_scc1 {cons}")
    A.e("s_sub_u32 s25, s16, 4")
    G.emit_producer(0, 1)
    A.e(f"s_branch {done}")
    A.label(cons)
    G.stamp = (lambda n: stamp_mid(A, n)) if stamps else None
    G.emit_consumer(0, 1, None)
    if stamps: stamp_mid(A, 2)
    FR = G.set0
    T = FR
    A.e(f"s_mov_b32 s44, {f2u(GK1)}\ns_mov_b32 s45, {f2u(GK1)}\ns_mov_b32 s46, {f2u(GK2)}\ns_mov_b32 s47, {f2u(GK2)}")
    A.e(f"v_mov_b32 {v(T+8)}, s44\nv_mov_b32 {v(T+9)}, s45")
    A.e("s_nop 7")
    def accq(i, j): return G.accb + 4 * (i * TY + j)
    for i in range(TX):
        for j in range(TY):
            a0 = accq(i, j)
            for hh in (0, 2):
                A.e(f"v_pk_mul_f32 {v(T+hh,2)}, {v(a0+hh,2)}, {v(a0+hh,2)}")
            for hh in (0, 2):
                A.e(f"v_pk_fma_f32 {v(T+hh,2)}, {v(T+hh,2)}, s[46:47], {v(T+8,2)}")
            for hh in (0, 2):
                A.e(f"v_pk_mul_f32 {v(T+hh,2)}, {v(T+hh,2)}, {v(a0+hh,2)}")
            for r in range(4):
                A.e(f"v_exp_f32 {v(T+r)}, {v(T+r)}")
            A.e("s_nop 0")
            for hh in (0, 2):
                A.e(f"v_pk_add_f32 {v(T+hh,2)}, {v(T+hh,2)}, 1.0 op_sel_hi:[1,0]")
            for r in range(4):
                A.e(f"v_rcp_f32 {v(T+r)}, {v(T+r)}")
            A.e("s_nop 0")
            for hh in (0, 2):
                A.e(f"v_pk_mul_f32 {v(a0+hh,2)}, {v(a0+hh,2)}, {v(T+hh,2)}")
    if stamps: stamp_mid(A, 3)
    PK = FR + 16
    def pk(i, j): return PK + 14 * j + 2 * i
    va = PK + 56; vt = va + 1
    z2l = name + "_z2"; st = name + "_store"
    A.e(f"s_cmp_ge_u32 s41, 8\ns_cbranch_scc1 {z2l}")
    srd_from(A, 12, 30, WS_Z1, S * FH * 2)
    A.e(f"s_branch {st}")
    A.label(z2l)
    SP = T
    for n in range(16): A.e(f"v_mov_b32 {v(SP + n)}, 0")
    for j in range(TY):
        for i in range(TX):
            a0 = accq(i, j)
            for hh in (0, 2):
                A.e(f"v_pk_add_f32 {v(SP + 2*j, 2)}, {v(SP + 2*j, 2)}, {v(a0+hh,2)}")
                A.e(f"v_pk_fma_f32 {v(SP + 8 + 2*j, 2)}, {v(a0+hh,2)}, {v(a0+hh,2)}, {v(SP + 8 + 2*j, 2)}")
    R = PK
    for j in range(TY):
        A.e(f"v_add_f32 {v(R + j)}, {v(SP + 2*j)}, {v(SP + 2*j + 1)}")
        A.e(f"v_add_f32 {v(R + 4 + j)}, {v(SP + 8 + 2*j)}, {v(SP + 8 + 2*j + 1)}")
    group_reduce(A, [R + n for n in range(8)], R + 8)
    A.e(f"v_lshrrev_b32 {v(vt)}, 4, v0")
    for j in range(1, 4):
        A.e(f"v_cmp_eq_u32 vcc, {j}, {v(vt)}")
        A.e("s_nop 1")
        A.e(f"v_cndmask_b32 {v(R)}, {v(R)}, {v(R + j)}, vcc")
        A.e(f"v_cndmask_b32 {v(R + 4)}, {v(R + 4)}, {v(R + 4 + j)}, vcc")
    A.e(f"v_mov_b32 {v(R + 1)}, {v(R + 4)}")
    srd_from(A, 36, 30, WS_ST, S * 128)
    A.e("s_lshl_b32 s23, s40, 1\ns_add_u32 s23, s23, s28\ns_lshl_b32 s23, s23, 13")
    A.e("s_sub_u32 s24, s41, 8\ns_lshl_b32 s24, s24, 1\ns_add_u32 s24, s24, s27\ns_lshl_b32 s24, s24, 9\ns_add_u32 s24, s24, s23")
    A.e(f"v_lshlrev_b32 {v(vt)}, 3, v0")
    A.e(f"buffer_store_dwordx2 {v(R,2)}, {v(vt)}, s[36:39], s24 offen sc1")
    if stamps: stamp_mid(A, 4)
    A.e(f"v_and_b32 {v(va)}, 15, v0\nv_lshlrev_b32 {v(va)}, 9, {v(va)}")
    Q = PK + 8
    pl = A.newlabel(name + "_poll"); pd = A.newlabel(name + "_polld"); pf = A.newlabel(name + "_fetch")
    A.e("s_mov_b32 s42, 0x40000\ns_add_u32 s43, s23, 4096")
    A.label(pl)
    A.e(f"buffer_load_dword {v(Q)}, {v(va)}, s[36:39], s23 offen offset:504 sc1")
    A.e("s_waitcnt vmcnt(0)")
    A.e(f"v_cmp_eq_u32 vcc, -1, {v(Q)}")
    A.e("s_sub_u32 s42, s42, 1")
    A.e(f"s_cbranch_scc1 {pf}")
    A.e("s_cmp_eq_u64 vcc, 0")
    A.e(f"s_cbranch_scc1 {pf}")
    A.e(f"s_sleep 2\ns_branch {pl}")
    A.label(pf)
    for p in range(16):
        A.e(f"buffer_load_dwordx2 {v(Q + 2*p, 2)}, {v(vt)}, s[36:39], {'s43' if p >= 8 else 's23'} offen offset:{512 * (p & 7)} sc1")
    A.e("s_waitcnt vmcnt(0)")
    A.e(f"v_max_u32 {v(va+2)}, {v(Q)}, {v(Q+1)}")
    for n in range(2, 32, 2):
        A.e(f"v_max3_u32 {v(va+2)}, {v(va+2)}, {v(Q+n)}, {v(Q+n+1)}")
    A.e(f"v_cmp_eq_u32 vcc, -1, {v(va+2)}")
    A.e("s_sub_u32 s42, s42, 1")
    A.e(f"s_cbranch_scc1 {pd}")
    A.e("s_cmp_eq_u64 vcc, 0")
    A.e(f"s_cbranch_scc0 {pl}")
    A.label(pd)
    if stamps: stamp_mid(A, 5)
    for st_ in (8, 4, 2, 1):
        for p in range(st_):
            A.e(f"v_pk_add_f32 {v(Q + 2*p, 2)}, {v(Q + 2*p, 2)}, {v(Q + 2*(p + st_), 2)}")
    A.e(f"v_mov_b32 {v(R)}, {v(Q)}\nv_mov_b32 {v(R + 4)}, {v(Q + 1)}")
    A.e(f"s_mov_b32 s44, {f2u(1.0 / FH)}\ns_mov_b32 s45, {f2u(1e-5)}")
    m, q = R, R + 4
    A.e(f"v_mul_f32 {v(m)}, s44, {v(m)}")
    A.e(f"v_mul_f32 {v(q)}, s44, {v(q)}")
    A.e(f"v_fma_f32 {v(q)}, -{v(m)}, {v(m)}, {v(q)}")
    A.e(f"v_max_f32 {v(q)}, 0, {v(q)}")
    bf16_round(A, m); bf16_round(A, q)
    A.e(f"v_add_f32 {v(q)}, s45, {v(q)}")
    bf16_round(A, q)
    A.e(f"v_sqrt_f32 {v(q)}, {v(q)}\ns_nop 0")
    bf16_round(A, q)
    A.e(f"v_rcp_f32 {v(q)}, {v(q)}\ns_nop 0")
    A.e(f"v_sub_f32 {v(m)}, 0, {v(m)}")
    for (src, dstb) in ((m, SP), (q, SP + 8)):
        a, b, a2, b2 = dstb, dstb + 2, dstb + 4, dstb + 6
        A.e(f"v_mov_b32 {v(a)}, {v(src)}\nv_mov_b32 {v(b)}, {v(src)}\ns_nop 1")
        A.e(f"v_permlane16_swap_b32 {v(a)}, {v(b)}")
        A.e(f"v_mov_b32 {v(a2)}, {v(a)}\nv_mov_b32 {v(b2)}, {v(b)}\ns_nop 1")
        A.e(f"v_permlane32_swap_b32 {v(a)}, {v(a2)}\nv_permlane32_swap_b32 {v(b)}, {v(b2)}")
        for x in (a, b, a2, b2):
            A.e(f"v_mov_b32 {v(x + 1)}, {v(x)}")
    for i in range(TX):
        for j in range(TY):
            a0 = accq(i, j)
            for hh in (0, 2):
                A.e(f"v_pk_add_f32 {v(a0+hh,2)}, {v(a0+hh,2)}, {v(SP + 2*j, 2)}")
                A.e(f"v_pk_mul_f32 {v(a0+hh,2)}, {v(a0+hh,2)}, {v(SP + 8 + 2*j, 2)}")
    srd_from(A, 12, 30, WS_Z2, S * FH * 2)
    A.e(f"s_sub_u32 s17, s17, {FH}")
    A.label(st)
    if stamps: stamp_mid(A, 6)
    for j in range(TY):
        for i in range(TX):
            a0 = accq(i, j)
            A.e(f"v_cvt_pk_bf16_f32 {v(pk(i,j))}, {v(a0)}, {v(a0+1)}")
            A.e(f"v_cvt_pk_bf16_f32 {v(pk(i,j)+1)}, {v(a0+2)}, {v(a0+3)}")
    lane_out_offset(A, va, vt, 18, 17, 28, 27, TY, TX, FH * 2)
    swap_store(A, G, pk, va + 2, va, 12, FH * 2, TX, TY)
    if stamps:
        A.e("s_waitcnt vmcnt(0)")
        stamp_end(A, name, kidx, 30)
    A.label(done)
    A.e("s_endpgm")
    assert va + 8 <= G.accb, (va, G.accb)
    return G, G.vend

if __name__ == "__main__":
    import sys, json
    which = sys.argv[1]
    kw = json.loads(sys.argv[3]) if len(sys.argv) > 3 else {}
    A = Asm()
    fn = {"1": gen_gemm1, "2": gen_gemm2, "3": gen_gemm3}[which]
    nm = {"1": "k4_kernel", "2": "k5_kernel", "3": "k6_kernel"}[which]
    G, nv = fn(A, stamps=True, **kw)
    lds = G.NS * G.slot
    t = file_text([(nm, 256, 512, lds)], [A.text()], [kernel_desc(nm, nv)])
    open(sys.argv[2], "w").write(t)
    print("vgprs", nv, "lds", lds)
```

```python
import sys, json
from asmlib import *
from layout import *
from gemm import *
from kern_gemm import (srd_from, swap_store, swap_store_setup, swap_store_j, lane_out_offset, group_reduce, bf16_round, f2u, GK1, GK2)
from kern_fft import (nop, fconst, affine, cos_frag, row_reduce, ln_stats, twiddle_table, MF32, MF16)

PX, PWR, PWI, PWIN, PWSP, PBSP, PWOUT, POUT, PDBG, PWS = 80, 82, 84, 88, 90, 92, 94, 96, 98, 30
SW = 16
WS_CNT = 68 * MB
SC = "sc1"

class Mega:
    def __init__(self, opts):
        self.o = opts
        self.A = Asm()
        self.stamps = opts.get("stamps", False)
        self.nstamp = 0
        self.stamp_names = []
        self.PSTR = opts.get("pstr", FH * 2)
        self.ZSTR = opts.get("zstr", FH * 2)
        self.LSTR = opts.get("lstr", D * 2)

    def stamp(self, name):
        if not self.stamps: return
        A = self.A
        A.e("s_memrealtime s[100:101]\ns_waitcnt lgkmcnt(0)")
        A.e(f"v_writelane_b32 v255, s100, {self.nstamp}")
        self.stamp_names.append(name); self.nstamp += 1
        if self.o.get("clk") and (name.endswith(".start") or name.endswith(".loop") or name == "start"):
            A.e("s_memtime s[100:101]\ns_waitcnt lgkmcnt(0)")
            A.e(f"v_writelane_b32 v255, s100, {self.nstamp}")
            self.stamp_names.append(name + ".clk"); self.nstamp += 1
        assert self.nstamp <= 64

    def stamp_flush(self):
        if not self.stamps: return
        A = self.A
        lab = A.newlabel("tsf")
        A.e(f"s_cmp_lg_u32 s{SW}, {self.o.get('stamp_wave', 0)}\ns_cbranch_scc1 {lab}")
        srd_from(A, 64, PWS, WS_TS, 65536)
        A.e("v_mbcnt_lo_u32_b32 v0, -1, 0\nv_mbcnt_hi_u32_b32 v0, -1, v0\nv_lshlrev_b32 v0, 2, v0\ns_lshl_b32 s3, s2, 8")
        A.e("buffer_store_dword v255, v0, s[64:67], s3 offen")
        A.label(lab)

    def cnt_srd(self, b, dst):
        A = self.A
        idx = {1: 0, "W": 1, 2: 2, 3: 3, 4: 4, 5: 5}[b]
        srd_from(A, dst, PWS, WS_CNT + idx * 32768, 32768)
    def cnt_stride(self, b): return 256

    def arrive(self, b, nowait_ge=None, keep=0):
        A = self.A
        if nowait_ge is not None:
            lw = A.newlabel("nw")
            A.e(f"s_cmp_eq_u32 s19, 0\ns_cbranch_scc1 {lw}")
            A.e("s_waitcnt vmcnt(0)")
            A.label(lw)
            A.e("s_waitcnt lgkmcnt(0)\ns_barrier")
        else:
            A.e(f"s_waitcnt vmcnt({keep}) lgkmcnt(0)\ns_barrier")
        lab = A.newlabel("arr")
        A.e(f"s_cmp_lg_u32 s{SW}, 0\ns_cbranch_scc1 {lab}")
        if b == 1:
            g0 = A.newlabel("b0p"); g1 = A.newlabel("b0d")
            srd_from(A, 64, PDBG, 0, 256)
            A.e("s_mov_b32 s3, 0x20000\nv_mov_b32 v250, 0")
            A.label(g0)
            A.e("v_cmp_le_u32 vcc, 32, v252\ns_sub_u32 s3, s3, 1")
            A.e(f"s_cbranch_scc1 {g1}\ns_cmp_lg_u64 vcc, 0\ns_cbranch_scc1 {g1}")
            A.e(f"buffer_load_dword v252, v250, s[64:67], 0 offen {SC}\ns_waitcnt vmcnt(0)\ns_branch {g0}")
            A.label(g1)
        self.cnt_srd(b, 64)
        if b == 3 and self.o.get("half3", False):
            A.e("s_and_b32 s3, s2, 7\ns_lshr_b32 s67, s2, 7\ns_lshl_b32 s67, s67, 3\ns_or_b32 s3, s3, s67\ns_mov_b32 s67, 0x20000\ns_lshl_b32 s3, s3, 8")
        else:
            A.e(f"s_and_b32 s3, s2, 15\ns_lshl_b32 s3, s3, 8")
        A.e("v_lshlrev_b32 v250, 12, v0\nv_add_u32 v250, s3, v250\nv_mov_b32 v251, 1\ns_mov_b64 exec, 0xff")
        if b == 4 and self.o.get("grp4", False):
            lg = A.newlabel("arr4")
            A.e(f"s_mov_b32 s66, 65536\ns_lshr_b32 s3, s2, 3\ns_cmp_ge_u32 s3, 28\ns_cbranch_scc1 {lg}")
            A.e("s_add_u32 s3, s41, 16\ns_lshl_b32 s3, s3, 8\ns_add_u32 s3, s3, 32768\nv_writelane_b32 v250, s3, 8\ns_mov_b64 exec, 0x1ff")
            A.label(lg)
        A.e(f"buffer_atomic_add v251, v250, s[64:67], 0 offen {SC}")
        A.e("s_mov_b64 exec, -1")
        A.label(lab)

    def arrive_group5(self):
        A = self.A
        A.e("s_waitcnt vmcnt(0) lgkmcnt(0)\ns_barrier")
        lab = A.newlabel("arr")
        A.e(f"s_cmp_lg_u32 s{SW}, 0\ns_cbranch_scc1 {lab}\ns_lshr_b32 s3, s2, 3\ns_cmp_ge_u32 s3, 28\ns_cbranch_scc1 {lab}")
        self.cnt_srd(5, 64)
        A.e("s_lshl_b32 s3, s40, 8\nv_mov_b32 v250, s3\nv_mov_b32 v251, 1\ns_mov_b64 exec, 1")
        A.e(f"buffer_atomic_add v251, v250, s[64:67], 0 offen {SC}")
        A.e("s_mov_b64 exec, -1")
        A.label(lab)

    def poll(self, b, vt=250, wave=0):
        A = self.A
        lab = A.newlabel("pw"); lp = A.newlabel("pl"); ld = A.newlabel("pd")
        A.e(f"s_cmp_lg_u32 s{SW}, {wave}\ns_cbranch_scc1 {lab}")
        self.cnt_srd(b, 64)
        if b == 3 and self.o.get("half3", False):
            A.e(f"s_bfe_u32 s3, s2, 0x30004\ns_lshl_b32 s3, s3, 4\ns_and_b32 s67, s40, 1\ns_lshl_b32 s67, s67, 3\ns_add_u32 s3, s3, s67\ns_mov_b32 s67, 0x20000\ns_lshl_b32 s3, s3, 8")
            A.e(f"v_and_b32 {v(vt)}, 7, v0\nv_lshlrev_b32 {v(vt)}, 8, {v(vt)}\nv_add_u32 {v(vt)}, s3, {v(vt)}")
        else:
            A.e(f"s_bfe_u32 s3, s2, 0x30004\ns_lshl_b32 s3, s3, 12\nv_and_b32 {v(vt)}, 15, v0\nv_lshlrev_b32 {v(vt)}, 8, {v(vt)}\nv_add_u32 {v(vt)}, s3, {v(vt)}")
        self.spin(vt, 16, lp, ld)
        A.label(lab)

    def spin(self, va, target, lp, ld):
        A = self.A
        n = self.o.get("npoll", 1)
        regs = [251, 253, 254][:n]
        A.e("s_mov_b32 s3, 0x20000")
        for i, r in enumerate(regs):
            if i: A.e(f"s_sleep {self.o.get('pspace', 10) // (n - 1) if n > 1 else 0}")
            A.e(f"buffer_load_dword {v(r)}, {v(va)}, s[64:67], 0 offen {SC}")
        A.label(lp)
        for i, r in enumerate(regs):
            A.e(f"s_waitcnt vmcnt({n - 1})")
            A.e(f"v_cmp_gt_u32 vcc, {target}, {v(r)}")
            A.e(f"s_sub_u32 s3, s3, 1\ns_cbranch_scc1 {ld}")
            A.e(f"s_cmp_eq_u64 vcc, 0\ns_cbranch_scc1 {ld}")
            if n == 1: A.e(f"s_sleep {self.o.get('sleep', 1)}")
            A.e(f"buffer_load_dword {v(r)}, {v(va)}, s[64:67], 0 offen {SC}")
        A.e(f"s_branch {lp}")
        A.label(ld)

    def wait(self, b, vt=250):
        self.poll(b, vt)
        self.A.e("s_barrier")

    def prefetch(self, ptr, nbytes, tidreg, nth, vtmp, who="s2", nwg=256, base="0"):
        A = self.A
        per = (nbytes + nwg - 1) // nwg
        n = (per + nth * 16 - 1) // (nth * 16)
        srd_from(A, 56, ptr, 0, nbytes)
        A.e(f"v_lshlrev_b32 {v(vtmp)}, 4, {v(tidreg)}\ns_mul_i32 s54, {who}, {per}")
        for i in range(n):
            A.e(f"buffer_load_dwordx4 {v(vtmp + 2, 4)}, {v(vtmp)}, s[56:59], s54 offen")
            if i + 1 < n: A.e(f"s_add_u32 s54, s54, {nth * 16}")
        return n

    def wg_index(self, dst):
        A = self.A
        A.e(f"s_and_b32 s{dst}, s2, 7\ns_lshl_b32 s{dst}, s{dst}, 1\ns_bfe_u32 s3, s2, 0x10003\ns_or_b32 s{dst}, s{dst}, s3\ns_and_b32 s3, s2, 0xf0\ns_or_b32 s{dst}, s{dst}, s3")

    TBL = 98304

    def gen_tables(self):
        A = self.A
        P, Q, K1F, HF, T, DQ, VT, LF, GF, RO = 92, 93, 94, 95, 96, 104, 108, 109, 110, 111
        A.e(f"v_lshlrev_b32 {v(VT)}, 4, v0\nv_add_u32 {v(VT)}, {self.TBL}, {v(VT)}")
        A.e(f"v_and_b32 {v(K1F)}, 31, v0\nv_cvt_f32_u32 {v(K1F)}, {v(K1F)}\nv_lshrrev_b32 {v(HF)}, 5, v0\nv_cvt_f32_u32 {v(HF)}, {v(HF)}")
        A.e(f"v_and_b32 {v(LF)}, 15, v0\nv_cvt_f32_u32 {v(LF)}, {v(LF)}\nv_lshrrev_b32 {v(GF)}, 4, v0\nv_cvt_f32_u32 {v(GF)}, {v(GF)}")
        par = [0]
        def put(q, reg): A.e(f"ds_write_b128 {v(VT)}, {v(reg, 4)} offset:{q * 1024}")
        def frag(q, co, of):
            d = DQ + 8 + 4 * (par[0] & 1); par[0] += 1
            cos_frag(A, d, P, Q, co, of, T); put(q, d)
        def fam(pexpr, qmul, src=K1F, hsrc=HF):
            A.e(f"v_mul_f32 {v(P)}, {fconst(A, pexpr)}, {v(src)}\nv_mul_f32 {v(Q)}, {fconst(A, qmul)}, {v(hsrc)}\nv_mul_f32 {v(Q)}, {v(Q)}, {v(P)}")
        def F3():
            A.e(f"v_bfe_u32 {v(P)}, v0, 1, 4\nv_cvt_f32_u32 {v(P)}, {v(P)}\nv_mul_f32 {v(P)}, {fconst(A, 1/32)}, {v(P)}")
            A.e(f"v_and_b32 {v(T)}, 1, v0\nv_cvt_f32_u32 {v(T)}, {v(T)}\nv_mul_f32 {v(T)}, {fconst(A, 0.25)}, {v(T)}")
            A.e(f"v_mul_f32 {v(Q)}, 4.0, {v(HF)}\nv_fma_f32 {v(Q)}, {v(Q)}, {v(P)}, {v(T)}")
        def idx8():
            A.e(f"v_bfe_u32 {v(T)}, v0, 2, 1\nv_lshlrev_b32 {v(T)}, 2, {v(T)}")
            A.e(f"v_bfe_u32 {v(T+1)}, v0, 3, 1\nv_lshl_add_u32 {v(T)}, {v(T+1)}, 1, {v(T)}")
            A.e(f"v_bfe_u32 {v(T+1)}, v0, 1, 1\nv_add_u32 {v(T)}, {v(T)}, {v(T+1)}\nv_cvt_f32_u32 {v(T)}, {v(T)}")
        def F4():
            idx8()
            A.e(f"v_mul_f32 {v(P)}, {fconst(A, 0.125)}, {v(T)}")
            A.e(f"v_cvt_f32_u32 {v(T+1)}, s17\nv_mul_f32 {v(T+1)}, {fconst(A, 1/2048)}, {v(T+1)}\nv_mul_f32 {v(Q)}, {v(T)}, {v(T+1)}")
            A.e(f"v_and_b32 {v(T+1)}, 1, v0\nv_cvt_f32_u32 {v(T+1)}, {v(T+1)}\nv_fmamk_f32 {v(Q)}, {v(T+1)}, {hex(f2u(0.25))}, {v(Q)}")
            A.e(f"v_mul_f32 {v(T+1)}, 4.0, {v(HF)}\nv_fma_f32 {v(Q)}, {v(T+1)}, {v(P)}, {v(Q)}")
        def F8():
            idx8()
            A.e(f"v_cvt_f32_u32 {v(T+1)}, s17\nv_mul_f32 {v(T+1)}, {fconst(A, 1/2048)}, {v(T+1)}")
            A.e(f"v_fmamk_f32 {v(P)}, {v(T)}, {hex(f2u(0.125))}, {v(T+1)}")
            A.e(f"v_and_b32 {v(T+1)}, 1, v0\nv_cvt_f32_u32 {v(T+1)}, {v(T+1)}\nv_mul_f32 {v(T+1)}, {fconst(A, -0.25)}, {v(T+1)}")
            A.e(f"v_mul_f32 {v(Q)}, 4.0, {v(HF)}\nv_fma_f32 {v(Q)}, {v(Q)}, {v(P)}, {v(T+1)}")
        def F7(t):
            A.e(f"v_and_b32 {v(RO)}, 1, v0\nv_cvt_f32_u32 {v(RO)}, {v(RO)}\nv_mul_f32 {v(RO)}, {fconst(A, 0.25)}, {v(RO)}")
            A.e(f"v_bfe_u32 {v(P)}, v0, 1, 3\nv_add_u32 {v(P)}, {8*t}, {v(P)}\nv_cvt_f32_u32 {v(P)}, {v(P)}\nv_mul_f32 {v(P)}, {fconst(A, 1/16)}, {v(P)}")
            A.e(f"v_mul_f32 {v(DQ)}, 4.0, {v(GF)}\nv_mul_f32 {v(DQ)}, {v(DQ)}, {v(P)}")
        def twid(qc, qs, coefs):
            d = DQ + 8 + 4 * (par[0] & 1); par[0] += 1
            for r in range(4): affine(A, T + r, P, coefs[r], Q)
            for r in range(4): A.e(f"v_cos_f32 {v(d + r)}, {v(T + r)}")
            for r in range(4): A.e(f"v_sin_f32 {v(T + 4 + r)}, {v(T + r)}")
            A.e("s_nop 0"); put(qc, d); put(qs, T + 4)
        j8 = list(range(8)); co2 = [j >> 1 for j in j8]
        perm = lambda t: [16*t + 8*(j >> 2) + (j & 3) for j in j8]
        alt = lambda x: [x * (j & 1) for j in j8]; nalt = lambda x: [x * (1 - (j & 1)) for j in j8]
        def w0():
            fam(1/32, 8.0)
            frag(0, [j for j in j8], [0]*8); frag(1, [16 + j for j in j8], [0]*8); frag(2, [j for j in j8], [0.25]*8)
        def w1():
            fam(1/32, 8.0); frag(3, [16 + j for j in j8], [0.25]*8)
            F3(); frag(12, perm(0), [0]*8); frag(13, perm(1), [0]*8)
        def w2():
            F3(); frag(14, perm(0), [-0.25]*8); frag(15, perm(1), [-0.25]*8)
            F4(); frag(16, co2, alt(-0.25))
        def w3():
            fam(1/1024, 4.0)
            for a in range(4): twid(4 + a, 8 + a, [8*a + r for r in range(4)])
            fam(1/256, 4.0, LF, GF); twid(21, 22, [0, 1, 2, 3])
            F8(); frag(27, co2, alt(0.25))
        def w4():
            fam(1/16, 4.0, LF, GF); frag(17, co2, alt(-0.25)); frag(18, co2, nalt(0.25))
            fam(1/16, 2.0, LF, GF)
            ci = [((j >> 1) & 1) + 8*(j >> 2) for j in j8]
            frag(19, ci, alt(0.25)); frag(20, ci, nalt(-0.25))
        def w5():
            for t in range(2):
                F7(t)
                A.e(f"v_add_f32 {v(Q)}, {v(DQ)}, {v(RO)}"); frag(23 + 2*t, co2, alt(-0.25))
                A.e(f"v_sub_f32 {v(Q)}, {v(DQ)}, {v(RO)}"); frag(24 + 2*t, co2, alt(0.25))
        def w6():
            fam(1/32, 4.0)
            for t in range(2): frag(28 + t, [8*t + (j >> 1) for j in j8], alt(0.25))
            for t in range(2): frag(30 + t, [8*t + (j >> 1) for j in j8], nalt(-0.25))
        def w7():
            fam(1/32, 4.0)
            for t in range(2): frag(32 + t, perm(t), [0]*8)
            for t in range(2): frag(34 + t, perm(t), [0.25]*8)
        end = A.newlabel("tblend")
        jobs = [w0, w1, w2, w3, w4, w5, w6, w7]
        labs = [A.newlabel("tblw") for _ in jobs]
        for n in range(7):
            A.e(f"s_cmp_eq_u32 s{SW}, {n}\ns_cbranch_scc1 {labs[n]}")
        A.e(f"s_branch {labs[7]}")
        for n, job in enumerate(jobs):
            A.label(labs[n]); job(); A.e(f"s_branch {end}")
        A.label(end)
        A.e("s_waitcnt lgkmcnt(0)\ns_barrier")

    def load_tables(self, pairs, vt):
        A = self.A
        A.e(f"v_lshlrev_b32 {v(vt)}, 4, v0\nv_add_u32 {v(vt)}, {self.TBL}, {v(vt)}")
        for n, (q, reg) in enumerate(pairs):
            if n == 12: A.e("s_waitcnt lgkmcnt(4)")
            A.e(f"ds_read_b128 {v(reg, 4)}, {v(vt)} offset:{q * 1024}")

    def p1(self):
        A = self.A
        LU, LX, LW = 0, 16384, 16384 + 17408
        self.wg_index(17)
        srd_from(A, 4, PX, 0, S * D * 2)
        srd_from(A, 8, PWR, 0, S * 513 * 2)
        srd_from(A, 12, PWI, 0, S * 513 * 2)
        XR = 4
        srd_from(A, 36, PWS, WS_CNT, 6 * 32768)
        A.e("s_lshr_b32 s22, s2, 4\ns_lshl_b32 s22, s22, 15\ns_and_b32 s23, s2, 15\ns_lshl_b32 s23, s23, 8\ns_add_u32 s22, s22, s23")
        lcl = A.newlabel("p1clr")
        A.e(f"v_mov_b32 v21, 0\nv_lshlrev_b32 v3, 12, v0\ns_cmp_lg_u32 s{SW}, 0\ns_cbranch_scc1 {lcl}\ns_mov_b64 exec, 0xff")
        A.e(f"buffer_store_dword v21, v3, s[36:39], s22 offen {SC}")
        A.e("s_mov_b64 exec, -1")
        A.label(lcl)
        A.e("v_lshlrev_b32 v2, 4, v0")
        A.e(f"s_lshl_b32 s18, s{SW}, 8\ns_add_u32 s18, s18, s17\ns_lshl_b32 s18, s18, 11")
        A.e(f"buffer_load_dwordx4 {v(XR, 4)}, v2, s[4:7], s18 offen")
        A.e(f"buffer_load_dwordx4 {v(XR + 4, 4)}, v2, s[4:7], s18 offen offset:1024")
        srd_from(A, 36, PWS, WS_ST, 524288)
        A.e(f"s_lshl_b32 s22, s2, 11\ns_lshl_b32 s23, s{SW}, 10\ns_add_u32 s22, s22, s23\ns_cmp_lt_u32 s{SW}, 2\ns_cselect_b32 s22, s22, 0x100000")
        A.e("v_mov_b32 v20, -1\nv_mov_b32 v21, -1\nv_mov_b32 v22, -1\nv_mov_b32 v23, -1")
        A.e(f"buffer_store_dwordx4 v[20:23], v2, s[36:39], s22 offen {SC}")
        BC, BS, TC, TS, FA, FB, FN, A8 = 20, 28, 36, 52, 68, 76, 84, 88
        P, Q, K1F, HF, T = 92, 93, 94, 95, 96
        self.gen_tables()
        self.load_tables([(0, BC), (1, BC + 4), (2, BS), (3, BS + 4), (12, FA), (13, FA + 4), (14, FB), (15, FB + 4), (16, A8)]
                         + [(4 + a, TC + 4*a) for a in range(4)] + [(8 + a, TS + 4*a) for a in range(4)], 92)
        for n in range(4): A.e(f"v_mov_b32 {v(FN + n)}, 0xbf803f80")
        self.stamp("p1.const")
        FX, ST, DR, W0, AD = 104, 136, 144, 208, 212
        A.e("s_mov_b32 s26, 0xffff0000")
        A.e("s_waitcnt vmcnt(1)")
        self.stamp("p1.x")
        A.e(f"s_mul_i32 s20, s17, 8208\ns_lshl_b32 s21, s{SW}, 10\ns_add_u32 s22, s20, s21")
        for arr, srd in ((0, 8), (1, 12)):
            A.e(f"s_add_u32 m0, s21, {LW + arr * 9216}\ns_nop 0")
            A.e(f"buffer_load_dwordx4 v2, {s(srd,4)}, s22 offen lds")
        lw = A.newlabel("p1w8"); l0 = A.newlabel("p1w8a")
        A.e(f"s_cmp_ge_u32 s{SW}, 2\ns_cbranch_scc1 {lw}")
        A.e(f"s_mul_i32 s22, s{SW}, 9216\ns_add_u32 m0, s22, {LW + 8192}\ns_add_u32 s22, s20, 8192")
        A.e(f"s_cmp_eq_u32 s{SW}, 0\ns_cbranch_scc0 {l0}")
        A.e(f"buffer_load_dwordx4 v2, s[8:11], s22 offen lds\ns_branch {lw}")
        A.label(l0)
        A.e("buffer_load_dwordx4 v2, s[12:15], s22 offen lds")
        A.label(lw)
        if self.o.get("diag1"):
            A.e("s_waitcnt vmcnt(3)"); self.stamp("p1.sent"); A.e("s_waitcnt vmcnt(0)"); self.stamp("p1.wdma")
        lg = A.newlabel("p1b0")
        A.e(f"s_cmp_ge_u32 s2, 32\ns_cbranch_scc1 {lg}\ns_cmp_lg_u32 s{SW}, 0\ns_cbranch_scc1 {lg}")
        srd_from(A, 64, PDBG, 0, 256)
        A.e(f"v_mov_b32 v250, 0\nv_mov_b32 v251, 1\ns_mov_b64 exec, 1")
        A.e(f"buffer_atomic_add v251, v250, s[64:67], 0 offen {SC}")
        A.e("s_mov_b64 exec, -1")
        A.label(lg)
        npf = 0
        for n in range(8):
            A.e(f"v_lshlrev_b32 {v(FX + 2*n)}, 16, {v(XR + n)}\nv_and_b32 {v(FX + 2*n + 1)}, s26, {v(XR + n)}")
        sp, qp = ST + 4, ST + 6
        A.e(f"v_pk_add_f32 {v(sp,2)}, {v(FX,2)}, {v(FX+2,2)}\nv_pk_mul_f32 {v(qp,2)}, {v(FX,2)}, {v(FX,2)}")
        for n in range(1, 8):
            if n >= 2: A.e(f"v_pk_add_f32 {v(sp,2)}, {v(sp,2)}, {v(FX+2*n,2)}")
            A.e(f"v_pk_fma_f32 {v(qp,2)}, {v(FX+2*n,2)}, {v(FX+2*n,2)}, {v(qp,2)}")
        A.e(f"v_add_f32 {v(ST)}, {v(sp)}, {v(sp+1)}\nv_add_f32 {v(ST+1)}, {v(qp)}, {v(qp+1)}\ns_nop 1")
        row_reduce(A, [ST, ST + 1], ST + 12)
        ln_stats(A, ST, ST + 1, D)
        A.e(f"v_sub_f32 {v(ST+4)}, 0, {v(ST)}\nv_mov_b32 {v(ST+5)}, {v(ST+4)}\nv_mov_b32 {v(ST+6)}, {v(ST+1)}\nv_mov_b32 {v(ST+7)}, {v(ST+1)}")
        for n in range(8):
            f = FX + 2*n
            A.e(f"v_pk_add_f32 {v(f,2)}, {v(f,2)}, {v(ST+4,2)}\nv_pk_mul_f32 {v(f,2)}, {v(f,2)}, {v(ST+6,2)}")
            A.e(f"v_cvt_pk_bf16_f32 {v(XR + n)}, {v(f)}, {v(f+1)}")
        A.e(f"s_lshl_b32 s22, s{SW}, 11\nv_add_u32 {v(AD)}, s22, v2")
        A.e(f"ds_write_b128 {v(AD)}, {v(XR, 4)} offset:{LU}\nds_write_b128 {v(AD)}, {v(XR + 4, 4)} offset:{LU + 1024}")
        A.e(f"v_lshrrev_b32 {v(T)}, 5, v0\nv_lshlrev_b32 {v(T)}, 3, {v(T)}\nv_bfe_u32 {v(T+1)}, v0, 2, 2\nv_add_u32 {v(T)}, {v(T)}, {v(T+1)}\nv_lshlrev_b32 {v(T)}, 6, {v(T)}")
        A.e(f"v_bfe_u32 {v(T+1)}, v0, 4, 1\nv_lshl_add_u32 {v(T)}, {v(T+1)}, 5, {v(T)}\nv_and_b32 {v(T+1)}, 3, v0\nv_lshl_add_u32 {v(T)}, {v(T+1)}, 3, {v(T)}")
        A.e(f"v_add_u32 {v(AD)}, s22, {v(T)}")
        AF = FX
        for t in range(2):
            for rd in range(2):
                A.e(f"ds_read_b64_tr_b16 {v(AF + 4*t + 2*rd, 2)}, {v(AD)} offset:{LU + 1024*t + 256*rd}")
        for t in range(2):
            A.e(f"s_waitcnt lgkmcnt({2 * (1 - t)})")
            for im, Bf in ((0, BC), (1, BS)):
                d = DR + 16*im
                A.e(f"{MF32} {v(d,16)}, {v(AF + 4*t, 4)}, {v(Bf + 4*t, 4)}, {v(d,16) if t else '0'}")
        TP = FX
        A.e(f"v_and_b32 {v(T)}, 31, v0\nv_lshlrev_b32 {v(AD)}, 5, {v(T)}")
        A.e(f"v_lshrrev_b32 {v(T+1)}, 5, v0\nv_lshl_add_u32 {v(AD)}, {v(T+1)}, 11, {v(AD)}")
        A.e(f"s_lshr_b32 s22, s{SW}, 2\nv_bfe_u32 {v(T+1)}, v0, 3, 1\nv_xor_b32 {v(T+1)}, s22, {v(T+1)}\nv_lshl_add_u32 {v(AD)}, {v(T+1)}, 4, {v(AD)}")
        A.e(f"s_and_b32 s22, s{SW}, 3\ns_lshl_b32 s22, s22, 2\nv_add_u32 {v(AD)}, s22, {v(AD)}")
        nop(A, 4)
        dre, dim = DR, DR + 16
        for p in range(8):
            c, sn = TC + 2*p, TS + 2*p
            A.e(f"v_pk_mul_f32 {v(W0,2)}, {v(dre + 2*p,2)}, {v(c,2)}")
            A.e(f"v_pk_mul_f32 {v(W0+2,2)}, {v(dim + 2*p,2)}, {v(c,2)}")
            A.e(f"v_pk_fma_f32 {v(W0,2)}, {v(dim + 2*p,2)}, {v(sn,2)}, {v(W0,2)}")
            A.e(f"v_pk_fma_f32 {v(W0+2,2)}, {v(dre + 2*p,2)}, {v(sn,2)}, {v(W0+2,2)} neg_lo:[1,0,0] neg_hi:[1,0,0]")
            A.e(f"v_cvt_pk_bf16_f32 {v(TP + p)}, {v(W0)}, {v(W0+1)}")
            A.e(f"v_cvt_pk_bf16_f32 {v(TP + 8 + p)}, {v(W0+2)}, {v(W0+3)}")
        A.e("s_nop 1")
        d, dn, tre, tim = DR, DR + 16, TP, TP + 8
        A.e(f"{MF32} {v(d,16)}, {v(FA,4)}, {v(tre,4)}, 0")
        A.e(f"{MF32} {v(dn,16)}, {v(FN,4)}, {v(tre,4)}, 0")
        A.e(f"{MF32} {v(d,16)}, {v(FA+4,4)}, {v(tre+4,4)}, {v(d,16)}")
        A.e(f"{MF32} {v(dn,16)}, {v(FN,4)}, {v(tre+4,4)}, {v(dn,16)}")
        A.e(f"{MF32} {v(d,16)}, {v(FB,4)}, {v(tim,4)}, {v(d,16)}")
        A.e(f"{MF32} {v(d,16)}, {v(FB+4,4)}, {v(tim+4,4)}, {v(d,16)}")
        OV = 4
        nop(A, 12)
        for e in range(8):
            A.e(f"v_cvt_pk_bf16_f32 {v(OV + e)}, {v(d + 2*e)}, {v(d + 2*e + 1)}")
        for e in range(8):
            A.e(f"ds_write_b32 {v(AD)}, {v(OV + e)} offset:{LX + (4*(e >> 1) + (e & 1)) * 1024}")
        A.e(f"v_cvt_pk_bf16_f32 {v(W0)}, {v(dn)}, 0\ns_lshl_b32 s22, s{SW}, 2\nv_mov_b32 {v(W0+2)}, s22")
        A.e(f"s_mov_b64 exec, 1\nds_write_b32 {v(W0+2)}, {v(W0)} offset:{LX + 512*32}\ns_mov_b64 exec, -1")
        self.stamp("p1.fft")
        A.e("s_waitcnt lgkmcnt(0)\ns_barrier")
        srd_from(A, 64, PDBG, 0, 256)
        A.e(f"v_mov_b32 v250, 0\nbuffer_load_dword v252, v250, s[64:67], 0 offen {SC}")
        self.stamp("p1.rowfft")
        srd_from(A, 48, PWS, WS_U, 257 * KP_STRIDE)
        srd_from(A, 52, PWS, WS_WT, 257 * KP_STRIDE)
        A.e(f"v_and_b32 {v(T)}, 31, v0\nv_lshlrev_b32 {v(AD)}, 5, {v(T)}\nv_lshrrev_b32 {v(T+1)}, 5, v0\nv_bfe_u32 {v(T+2)}, v0, 3, 1\nv_xor_b32 {v(T+1)}, {v(T+1)}, {v(T+2)}\nv_lshl_add_u32 {v(AD)}, {v(T+1)}, 4, {v(AD)}")
        A.e(f"v_mov_b32 {v(AD+2)}, {v(AD)}\ns_lshl_b32 s22, s{SW}, 11\nv_add_u32 {v(AD)}, s22, {v(AD)}")
        RB = FX
        for b in range(2):
            A.e(f"ds_read_b128 {v(RB + 4*b, 4)}, {v(AD)} offset:{LX + 1024*b}")
        A.e(f"ds_read_b128 {v(RB + 8, 4)}, {v(AD+2)} offset:{LX + 16384}")
        SA = AD + 1
        A.e(f"v_bfe_u32 {v(T)}, v0, 1, 4\ns_mov_b32 s22, {KP_STRIDE}\nv_mul_lo_u32 {v(SA)}, {v(T)}, s22")
        A.e(f"v_and_b32 {v(T)}, 1, v0\nv_lshl_add_u32 {v(SA)}, {v(T)}, 5, {v(SA)}\nv_lshrrev_b32 {v(T)}, 5, v0\nv_lshl_add_u32 {v(SA)}, {v(T)}, 4, {v(SA)}")
        A.e(f"s_mul_i32 s22, s{SW}, {32 * KP_STRIDE}\ns_lshl_b32 s23, s17, 6\ns_add_u32 s22, s22, s23")
        for b in range(3):
            A.e(f"s_waitcnt lgkmcnt({2 - b})")
            A.e(f"{MF32} {v(DR + 16*b, 16)}, {v(A8,4)}, {v(RB + 4*b, 4)}, 0")
        WA, WS_ = 214, 215
        A.e(f"v_and_b32 {v(T)}, 1, v1\nv_mul_u32_u24 {v(WA)}, 4104, {v(T)}")
        A.e(f"v_lshrrev_b32 {v(T)}, 2, v1\nv_lshl_add_u32 {v(WA)}, {v(T)}, 2, {v(WA)}")
        A.e(f"v_bfe_u32 {v(T+1)}, v1, 1, 1\nv_lshl_add_u32 {v(WA)}, {v(T+1)}, 1, {v(WA)}")
        A.e(f"s_mov_b32 s24, {KP_STRIDE}\nv_mul_lo_u32 {v(WS_)}, {v(T)}, s24\nv_and_b32 {v(T)}, 3, v1\nv_lshl_add_u32 {v(WS_)}, {v(T)}, 4, {v(WS_)}")
        WO, WI = 120, 128
        nop(A, 2)
        for b in range(2):
            for n in range(4):
                A.e(f"v_cvt_pk_bf16_f32 {v(OV + 4*b + n)}, {v(DR + 16*b + 2*n)}, {v(DR + 16*b + 2*n + 1)}")
            A.e(f"buffer_store_dwordx4 {v(OV + 4*b, 4)}, {v(SA)}, s[48:51], s22 offen {SC}")
            A.e(f"s_add_u32 s22, s22, {16 * KP_STRIDE}")
        lny = A.newlabel("p1ny")
        A.e(f"s_cmp_lg_u32 s{SW}, 7\ns_cbranch_scc1 {lny}")
        for n in range(4):
            A.e(f"v_cvt_pk_bf16_f32 {v(OV + 8 + n)}, {v(DR + 32 + 2*n)}, {v(DR + 32 + 2*n + 1)}")
        A.e(f"s_lshl_b32 s22, s17, 5\ns_add_u32 s22, s22, {256 * KP_STRIDE}\nv_lshrrev_b32 {v(T)}, 5, v0\nv_lshlrev_b32 {v(T)}, 4, {v(T)}")
        A.e("s_mov_b32 exec_lo, 1\ns_mov_b32 exec_hi, 1")
        A.e(f"buffer_store_dwordx4 {v(OV + 8, 4)}, {v(T)}, s[48:51], s22 offen {SC}")
        A.e("s_mov_b64 exec, -1")
        A.label(lny)
        self._p1w = (LW, WA, WS_, WO, WI, FX, T)

    def p1w(self):
        A = self.A
        LW, WA, WS_, WO, WI, FX, T = self._p1w
        for n in range(2):
            if n: A.e("s_waitcnt lgkmcnt(7)")
            for nn in range(4):
                A.e(f"ds_read_u16 {v(WO + 4*n + nn)}, {v(WA)} offset:{LW + 512*n + 1026*nn}")
                A.e(f"ds_read_u16 {v(WI + 4*n + nn)}, {v(WA)} offset:{LW + 9216 + 512*n + 1026*nn}")
        A.e("s_waitcnt lgkmcnt(0)")
        for n in range(8):
            A.e(f"v_lshl_or_b32 {v(WO + n)}, {v(WI + n)}, 16, {v(WO + n)}")
        A.e("s_lshl_b32 s22, s17, 6")
        for n in range(2):
            A.e(f"buffer_store_dwordx4 {v(WO + 4*n, 4)}, {v(WS_)}, s[52:55], s22 offen {SC}")
            A.e(f"s_add_u32 s22, s22, {128 * KP_STRIDE}")
        lwe = A.newlabel("p1we")
        A.e(f"s_cmp_lg_u32 s{SW}, 0\ns_cbranch_scc1 {lwe}")
        A.e("s_mov_b64 exec, 3")
        WO2 = FX
        for nn in range(4):
            A.e(f"ds_read_u16 {v(WO2 + nn)}, {v(WA)} offset:{LW + 1024 + 1026*nn}")
            A.e(f"ds_read_u16 {v(WO2 + 4 + nn)}, {v(WA)} offset:{LW + 9216 + 1024 + 1026*nn}")
        A.e("s_waitcnt lgkmcnt(0)")
        for nn in range(4):
            A.e(f"v_lshl_or_b32 {v(WO2 + nn)}, {v(WO2 + 4 + nn)}, 16, {v(WO2 + nn)}")
        A.e(f"s_lshl_b32 s22, s17, 5\ns_add_u32 s22, s22, {256 * KP_STRIDE}\nv_lshlrev_b32 {v(T)}, 4, v0")
        A.e(f"buffer_store_dwordx4 {v(WO2, 4)}, {v(T)}, s[52:55], s22 offen {SC}")
        A.e("s_mov_b64 exec, -1")
        A.label(lwe)

    def pf_point(self, name, low=False, dst=224, va=222):
        if not self.o.get("pf", True): return
        sched = {"A": 0, "B": 0, "C": 0, "D": 0, "E": 3, "F": 4, "G": 0, "H": 0}
        sched.update(self.o.get("pfs", {}))
        n = sched[name]
        if n == 0: return
        if name == "H" and hasattr(self, "_pfH"): k0 = self._pfH
        else:
            k0 = getattr(self, "_pfk", 0); self._pfk = k0 + n
            if name == "H": self._pfH = k0
        A = self.A
        lab = A.newlabel("pfp")
        if self.o.get("wint"): srd_from(A, 56, PWS, 80 * MB, D * F * 2)
        else: srd_from(A, 56, PWIN, 0, D * F * 2)
        A.e(f"s_and_b32 s54, s{SW}, 3\nv_lshl_add_u32 v{va}, s54, 6, v0\nv_lshlrev_b32 v{va}, 4, v{va}")
        A.e(f"s_cmp_{'ge' if low else 'lt'}_u32 s{SW}, 4\ns_cbranch_scc1 {lab}")
        for k in range(n):
            A.e(f"s_mul_i32 s54, s2, {4096 * n}\ns_add_u32 s54, s54, {k0 * 1048576 + 4096 * k}")
            A.e(f"buffer_load_dwordx4 v[{dst}:{dst+3}], v{va}, s[56:59], s54 offen")
        A.label(lab)

    def p2_pre(self):
        A = self.A
        A.e(f"s_and_b32 s20, s{SW}, 3\ns_cmp_lt_u32 s{SW}, 4\ns_cselect_b32 s19, 1, 0")
        lab = A.newlabel("p2ny")
        A.e(f"s_cmp_lg_u32 s2, 0\ns_cbranch_scc1 {lab}\ns_cmp_lt_u32 s{SW}, 4\ns_cbranch_scc1 {lab}")
        A.e("s_mov_b32 s19, 2")
        A.label(lab)
        self.p2_notask = A.newlabel("p2nt")
        A.e(f"s_cmp_eq_u32 s19, 0\ns_cbranch_scc1 {self.p2_notask}")
        CA, CB, CI, CJ, TC, TS = 40, 48, 56, 64, 72, 76
        A.e("v_and_b32 v36, 15, v0\nv_lshrrev_b32 v37, 4, v0")
        self.load_tables([(17, CA), (18, CA + 4), (19, CI), (20, CI + 4), (21, TC), (22, TS), (23, CB), (25, CB + 4), (24, CJ), (26, CJ + 4)], 80)
        srd_from(A, 4, PWS, WS_U, 257 * KP_STRIDE)
        srd_from(A, 8, PWS, WS_WT, 257 * KP_STRIDE)
        srd_from(A, 12, PWS, WS_Y, 257 * KP_STRIDE)
        A.e(f"s_mul_i32 s18, s2, {KP_STRIDE}")
        A.e(f"v_lshrrev_b32 v38, 2, v36\nv_xor_b32 v38, s20, v38\nv_lshlrev_b32 v38, 4, v38")
        A.e(f"v_lshl_add_u32 v32, v37, 6, v36\nv_lshl_add_u32 v32, v32, 6, v38")
        A.e(f"v_lshl_add_u32 v33, v37, 5, v36\nv_lshl_add_u32 v33, v33, 6, v38")
        A.e("v_and_b32 v38, 3, v0\nv_xor_b32 v38, v38, v37\nv_lshrrev_b32 v39, 2, v0\nv_lshlrev_b32 v39, 6, v39\nv_lshl_add_u32 v31, v38, 4, v39")
        A.e(f"v_lshl_add_u32 v34, v37, 6, v36\nv_lshlrev_b32 v34, 5, v34\ns_lshl_b32 s21, s20, 3\ns_add_u32 s21, s21, 49152\nv_add_u32 v34, s21, v34")
        A.e(f"v_lshl_add_u32 v35, v37, 5, v36\nv_lshlrev_b32 v35, 5, v35\nv_add_u32 v35, s21, v35")
        A.label(self.p2_notask)

    def p2_compute(self, NT, R0, WT, wwait):
        A = self.A
        CA, CB, CI, CJ, TC, TS = 40, 48, 56, 64, 72, 76
        DD, W0, OP = 112, 144, R0
        gap = {4: 4, 2: 6, 1: 8}[NT]
        def twiddle(conj):
            for tau in range(NT):
                re, im = DD + 8*tau, DD + 8*tau + 4
                for hh in (0, 2):
                    A.e(f"v_pk_mul_f32 {v(W0+hh,2)}, {v(re+hh,2)}, {v(TC+hh,2)}")
                    A.e(f"v_pk_mul_f32 {v(W0+4+hh,2)}, {v(im+hh,2)}, {v(TC+hh,2)}")
                for hh in (0, 2):
                    n1 = " neg_lo:[1,0,0] neg_hi:[1,0,0]"
                    A.e(f"v_pk_fma_f32 {v(W0+hh,2)}, {v(im+hh,2)}, {v(TS+hh,2)}, {v(W0+hh,2)}" + (n1 if conj else ""))
                    A.e(f"v_pk_fma_f32 {v(W0+4+hh,2)}, {v(re+hh,2)}, {v(TS+hh,2)}, {v(W0+4+hh,2)}" + ("" if conj else n1))
                for r in range(4):
                    A.e(f"v_cvt_pk_bf16_f32 {v(OP + 4*tau + r)}, {v(W0 + r)}, {v(W0 + 4 + r)}")
            A.e("s_nop 1")
        for tau in range(NT):
            A.e(f"{MF16} {v(DD + 8*tau, 4)}, {v(R0 + 4*tau, 4)}, {v(CA, 4)}, 0")
            A.e(f"{MF16} {v(DD + 8*tau + 4, 4)}, {v(R0 + 4*tau, 4)}, {v(CA + 4, 4)}, 0")
        nop(A, gap)
        twiddle(False)
        for tau in range(NT):
            for t in range(2):
                A.e(f"{MF16} {v(DD + 8*tau + 4*t, 4)}, {v(CB + 4*t, 4)}, {v(OP + 4*tau, 4)}, 0")
        A.e("s_mov_b32 s26, 0xffff0000\n" + wwait)
        nop(A, gap - 1)
        for tau in range(NT):
            for e in range(4):
                vv = DD + 8*tau + 2*e
                w = WT + NT*e + tau
                A.e(f"v_lshlrev_b32 {v(W0)}, 16, {v(w)}\nv_and_b32 {v(W0+1)}, s26, {v(w)}")
                A.e(f"v_pk_mul_f32 {v(W0+2,2)}, {v(vv,2)}, {v(W0,2)} op_sel:[0,0] op_sel_hi:[1,0]")
                A.e(f"v_pk_fma_f32 {v(W0+2,2)}, {v(vv,2)}, {v(W0,2)}, {v(W0+2,2)} op_sel:[1,1,0] op_sel_hi:[0,1,1] neg_lo:[1,0,0]")
                A.e(f"v_cvt_pk_bf16_f32 {v(OP + 4*tau + e)}, {v(W0+2)}, {v(W0+3)}")
        A.e("s_nop 1")
        for tau in range(NT):
            A.e(f"{MF16} {v(DD + 8*tau, 4)}, {v(OP + 4*tau, 4)}, {v(CI, 4)}, 0")
            A.e(f"{MF16} {v(DD + 8*tau + 4, 4)}, {v(OP + 4*tau, 4)}, {v(CI + 4, 4)}, 0")
        nop(A, gap)
        twiddle(True)
        for tau in range(NT):
            for t in range(2):
                A.e(f"{MF16} {v(DD + 8*tau + 4*t, 4)}, {v(CJ + 4*t, 4)}, {v(OP + 4*tau, 4)}, 0")
        nop(A, 8)
        for e in range(4):
            for tau in range(NT):
                vv = DD + 8*tau + 2*e
                A.e(f"v_cvt_pk_bf16_f32 {v(WT + NT*e + tau)}, {v(vv)}, {v(vv+1)}")

    def p2(self):
        A = self.A
        nt = A.newlabel("p2idle"); end = A.newlabel("p2end"); ny = A.newlabel("p2nyq")
        LUI, LWI, LOU = 0, 16384, 32768
        R0, WT, VA, VB = 4, 96, 34, 35
        A.e(f"s_cmp_eq_u32 s19, 0\ns_cbranch_scc1 {nt}\ns_cmp_eq_u32 s19, 2\ns_cbranch_scc1 {ny}")
        A.e(f"s_lshl_b32 s22, s20, 12\ns_add_u32 s23, s22, s18")
        def dma(srd, base, n, vreg):
            for j in range(n):
                A.e(f"s_add_u32 m0, s22, {base + 1024 * j}\ns_add_u32 s24, s23, {1024 * j}")
                A.e(f"buffer_load_dwordx4 {vreg}, {s(srd,4)}, s24 offen {SC} lds")
        dma(4, LUI, 4, "v31")
        A.e("s_barrier")
        dma(8, LWI, 4, "v31")
        A.e("s_waitcnt vmcnt(4)\ns_barrier")
        self.stamp("p2.dma")
        for i in range(4):
            A.e(f"ds_read_b128 {v(R0 + 4*i, 4)}, v32 offset:{LUI + 1024*i}")
        A.e("s_waitcnt lgkmcnt(0)")
        for i in range(4):
            for tau in range(i + 1, 4):
                A.e(f"v_swap_b32 {v(R0 + 4*i + tau)}, {v(R0 + 4*tau + i)}")
        A.e("s_nop 1")
        wl = ["s_waitcnt vmcnt(0)", "s_barrier"] + [f"ds_read_b128 {v(WT + 4*e, 4)}, v33 offset:{LWI + 1024*(e & 1) + 8192*(e >> 1)}" for e in range(4)] + ["s_waitcnt lgkmcnt(0)"]
        self.p2_compute(4, R0, WT, "\n".join(wl))
        self.stamp("p2.fft")
        for e in range(4):
            A.e(f"ds_write_b128 v33, {v(WT + 4*e, 4)} offset:{LOU + 1024*(e & 1) + 8192*(e >> 1)}")
        A.e("s_waitcnt lgkmcnt(0)\ns_barrier")
        A.e(f"v_lshlrev_b32 v30, 4, v0\nv_add_u32 v30, s22, v30")
        for j in range(4):
            A.e(f"ds_read_b128 {v(R0 + 4*j, 4)}, v30 offset:{LOU + 1024*j}")
        for j in range(4):
            A.e(f"s_waitcnt lgkmcnt({3 - j})")
            A.e(f"buffer_store_dwordx4 {v(R0 + 4*j, 4)}, v31, s[12:15], s23 offen offset:{1024*j} {SC}")
        A.e(f"s_branch {end}")
        A.label(ny)
        LN0 = 49152
        A.e(f"s_and_b32 s22, s{SW}, 1\ns_lshl_b32 s22, s22, 12\ns_add_u32 s23, s22, {256 * KP_STRIDE}\nv_lshlrev_b32 v30, 4, v0")
        l1 = A.newlabel("nyd"); l2 = A.newlabel("nyd")
        A.e(f"s_cmp_lt_u32 s{SW}, 6\ns_cbranch_scc1 {l1}")
        dma(4, LN0, 4, "v30")
        A.label(l1)
        self.poll("W", wave=5)
        A.e("s_barrier")
        A.e(f"s_cmp_lt_u32 s{SW}, 6\ns_cbranch_scc1 {l2}")
        dma(8, LN0 + 8192, 4, "v30")
        A.label(l2)
        A.e("s_waitcnt vmcnt(4)\ns_barrier")
        A.e(f"s_lshl_b32 s22, s20, 11\ns_add_u32 s23, s22, {256 * KP_STRIDE}")
        for tau in range(2):
            for i in range(4):
                A.e(f"ds_read_b32 {v(R0 + 4*tau + i)}, {v(VA)} offset:{512*i + 4*tau}")
        A.e("s_waitcnt lgkmcnt(0)\ns_nop 1")
        wl = ["s_waitcnt vmcnt(0)", "s_barrier"]
        for e in range(4):
            for tau in range(2):
                wl.append(f"ds_read_b32 {v(WT + 2*e + tau)}, {v(VB)} offset:{8192 + 512*(e & 1) + 4096*(e >> 1) + 4*tau}")
        wl.append("s_waitcnt lgkmcnt(0)")
        self.p2_compute(2, R0, WT, "\n".join(wl))
        for e in range(4):
            A.e(f"ds_write_b64 {v(VB)}, {v(WT + 2*e, 2)} offset:{16384 + 512*(e & 1) + 4096*(e >> 1)}")
        A.e("s_waitcnt lgkmcnt(0)\ns_barrier")
        A.e(f"s_add_u32 s24, s22, {LN0 + 16384}\nv_add_u32 v29, s24, v30")
        for j in range(2):
            A.e(f"ds_read_b128 {v(R0 + 4*j, 4)}, v29 offset:{1024*j}")
        for j in range(2):
            A.e(f"s_waitcnt lgkmcnt({1 - j})")
            A.e(f"buffer_store_dwordx4 {v(R0 + 4*j, 4)}, v30, s[12:15], s23 offen offset:{1024*j} {SC}")
        A.e(f"s_branch {end}")
        A.label(nt)
        self.poll("W", wave=5)
        A.e("s_barrier\ns_barrier")
        self.pf_point("C")
        A.e("s_barrier\ns_barrier")
        self.pf_point("D")
        A.label(end)

    def p3_pre(self):
        A = self.A
        self.wg_index(17)
        srd_from(A, 4, PX, 0, S * D * 2)
        srd_from(A, 8, PWS, WS_Y, 257 * KP_STRIDE)
        srd_from(A, 12, PWS, WS_H, S * D * 2)
        srd_from(A, 48, PWS, WS_LN2, S * self.LSTR)
        T = 96
        XR = 24
        A.e("v_and_b32 v3, 31, v0\nv_lshlrev_b32 v3, 6, v3\nv_lshrrev_b32 v40, 5, v0\nv_lshl_add_u32 v3, v40, 3, v3")
        A.e(f"s_lshl_b32 s18, s{SW}, 8\ns_add_u32 s18, s18, s17\ns_lshl_b32 s18, s18, 11")
        for q in range(4):
            A.e(f"buffer_load_dwordx2 {v(XR + 2*q, 2)}, v3, s[4:7], s18 offen offset:{16*q}")
        A8, BR, BI, TC, TS, CC, CS = 40, 44, 52, 60, 76, 104, 112
        self.load_tables([(27, A8), (28, BR), (29, BR + 4), (30, BI), (31, BI + 4), (32, CC), (33, CC + 4), (34, CS), (35, CS + 4)]
                         + [(4 + a, TC + 4*a) for a in range(4)] + [(8 + a, TS + 4*a) for a in range(4)], 92)
        A.e(f"v_bfe_u32 {v(T)}, v0, 1, 4\ns_mov_b32 s22, {KP_STRIDE}\nv_mul_lo_u32 v2, {v(T)}, s22")
        A.e(f"v_and_b32 {v(T)}, 1, v0\nv_lshl_add_u32 v2, {v(T)}, 5, v2\nv_lshrrev_b32 {v(T)}, 5, v0\nv_lshl_add_u32 v2, {v(T)}, 4, v2")
        A.e(f"v_lshlrev_b32 v23, 4, {v(T)}")
        A.e(f"s_mul_i32 s22, s{SW}, {32 * KP_STRIDE}\ns_lshl_b32 s23, s17, 6\ns_add_u32 s22, s22, s23")
        LY = self.o.get("p3_lds", 139264); LN = LY + 16384
        AD, TA, TB, NYA, SG, WA_, RA_, GA_, LNW = 192, 193, 194, 195, 196, 197, 201, 202, 203
        A.e(f"v_lshrrev_b32 {v(T)}, 5, v0\nv_lshlrev_b32 {v(AD)}, 13, {v(T)}")
        A.e(f"v_and_b32 {v(T)}, 31, v0\nv_lshl_add_u32 {v(AD)}, {v(T)}, 6, {v(AD)}")
        A.e(f"s_lshr_b32 s24, s{SW}, 1\nv_bfe_u32 {v(T)}, v0, 2, 2\nv_xor_b32 {v(T)}, s24, {v(T)}\nv_lshl_add_u32 {v(AD)}, {v(T)}, 4, {v(AD)}")
        A.e(f"s_and_b32 s24, s{SW}, 1\ns_lshl_b32 s24, s24, 3\ns_add_u32 s24, s24, {LY}\nv_add_u32 {v(AD)}, s24, {v(AD)}")
        A.e(f"v_and_b32 {v(T+2)}, 31, v0\nv_lshlrev_b32 {v(TA)}, 6, {v(T+2)}\ns_lshl_b32 s24, s{SW}, 11\ns_add_u32 s24, s24, {LY}\nv_add_u32 {v(TA)}, s24, {v(TA)}")
        A.e(f"v_lshrrev_b32 {v(T+2)}, 5, v0\nv_bfe_u32 {v(T+3)}, v0, 2, 2\nv_xor_b32 {v(T+2)}, {v(T+2)}, {v(T+3)}")
        A.e(f"v_xor_b32 {v(T+3)}, 2, {v(T+2)}")
        A.e(f"v_lshl_add_u32 {v(TB)}, {v(T+3)}, 4, {v(TA)}\nv_lshl_add_u32 {v(TA)}, {v(T+2)}, 4, {v(TA)}")
        A.e(f"s_lshl_b32 s25, s{SW}, 2\ns_add_u32 s25, s25, {LN}\nv_mov_b32 {v(NYA)}, s25\nv_add_u32 {v(LNW)}, {LN}, v23")
        A.e(f"v_and_b32 {v(SG)}, 1, v0\nv_cvt_f32_u32 {v(SG)}, {v(SG)}\nv_fma_f32 {v(SG)}, {v(SG)}, -2.0, 1.0")
        A.e(f"v_cmp_gt_u32 vcc, 32, v0\ns_nop 1\nv_cndmask_b32 {v(SG)}, 0, {v(SG)}, vcc")
        A.e(f"v_and_b32 {v(T)}, 31, v0\nv_lshlrev_b32 {v(T+1)}, 6, {v(T)}\nv_lshrrev_b32 {v(T+2)}, 5, v0\nv_lshl_add_u32 {v(T+1)}, {v(T+2)}, 3, {v(T+1)}\nv_add_u32 {v(T+1)}, s24, {v(T+1)}")
        A.e(f"v_bfe_u32 {v(T)}, v0, 1, 2")
        for q in range(4):
            A.e(f"v_xor_b32 {v(T+2)}, {q}, {v(T)}\nv_lshl_add_u32 {v(WA_ + q)}, {v(T+2)}, 4, {v(T+1)}")
        A.e(f"v_lshrrev_b32 {v(T)}, 2, v0\nv_lshlrev_b32 {v(RA_)}, 6, {v(T)}\nv_bfe_u32 {v(T)}, v0, 3, 2\nv_and_b32 {v(T+1)}, 3, v0\nv_xor_b32 {v(T)}, {v(T)}, {v(T+1)}\nv_lshl_add_u32 {v(RA_)}, {v(T)}, 4, {v(RA_)}\nv_add_u32 {v(RA_)}, s24, {v(RA_)}")
        A.e(f"v_lshlrev_b32 {v(GA_)}, 4, v0")
        A.e(f"s_lshr_b32 s25, s18, 11\ns_mul_i32 s25, s25, {self.LSTR}")
        A.e("s_mov_b32 s26, 0xffff0000")
        A.e(f"s_mov_b32 s44, {hex(f2u(2.0**-20))}\ns_mov_b32 s45, {hex(f2u(2.0**-20))}")
        A.e("s_waitcnt lgkmcnt(0)")

    def p3(self):
        A = self.A
        LY = self.o.get("p3_lds", 139264); LN = LY + 16384
        mimic = self.o.get("mimic", True)
        T, XR = 96, 24
        A8, BR, BI, TC, TS, CC, CS = 40, 44, 52, 60, 76, 104, 112
        RB = 4
        for b in range(2):
            A.e(f"buffer_load_dwordx4 {v(RB + 4*b, 4)}, v2, s[8:11], s22 offen {SC}")
            A.e(f"s_add_u32 s22, s22, {16 * KP_STRIDE}")
        A.e(f"s_lshl_b32 s22, s17, 5\ns_add_u32 s22, s22, {256 * KP_STRIDE}")
        A.e(f"buffer_load_dwordx4 {v(12, 4)}, v23, s[8:11], s22 offen {SC}")
        DR, OV = 144, 120
        AD, TA, TB, NYA, SG, WA_, RA_, GA_, LNW = 192, 193, 194, 195, 196, 197, 201, 202, 203
        for b in range(3):
            A.e(f"s_waitcnt vmcnt({2 - b})")
            A.e(f"{MF32} {v(DR + 16*b, 16)}, {v(A8,4)}, {v(RB + 4*b, 4)}, 0")
        self.pf_point("F")
        nop(A, 12)
        for b in range(2):
            for n in range(4):
                A.e(f"v_cvt_pk_bf16_f32 {v(OV + 4*b + n)}, {v(DR + 16*b + 2*n)}, {v(DR + 16*b + 2*n + 1)}")
        l0 = A.newlabel("p3dc"); l1 = A.newlabel("p3ny")
        A.e(f"s_cmp_lg_u32 s{SW}, 0\ns_cbranch_scc1 {l0}")
        A.e("s_mov_b32 exec_lo, 1\ns_mov_b32 exec_hi, 1")
        for n in range(4):
            A.e(f"v_mul_f32 {v(T)}, 0.5, {v(DR + 2*n)}\nv_cvt_pk_bf16_f32 {v(OV + n)}, {v(T)}, 0")
        A.e("s_mov_b64 exec, -1")
        A.label(l0)
        A.e(f"s_cmp_lg_u32 s{SW}, 7\ns_cbranch_scc1 {l1}")
        for n in range(4):
            A.e(f"v_mul_f32 {v(T+2+n)}, 0.5, {v(DR + 32 + 2*n)}")
        A.e("s_mov_b32 exec_lo, 1\ns_mov_b32 exec_hi, 1")
        A.e(f"ds_write_b128 {v(LNW)}, {v(T+2, 4)}")
        A.e("s_mov_b64 exec, -1")
        A.label(l1)
        for b in range(2):
            for n in range(4):
                A.e(f"ds_write_b32 {v(AD)}, {v(OV + 4*b + n)} offset:{2048*n + 4*b}")
        A.e("s_waitcnt lgkmcnt(0)\ns_barrier")
        self.stamp("p3.radix8")
        AF, NY = 120, 136
        A.e(f"ds_read_b128 {v(AF, 4)}, {v(TA)}\nds_read_b128 {v(AF + 4, 4)}, {v(TB)}")
        A.e(f"ds_read_b32 {v(NY)}, {v(NYA)}")
        for t in range(2):
            A.e(f"s_waitcnt lgkmcnt({2 - t})")
            for im, Bf in ((0, BR), (1, BI)):
                d = DR + 16*im
                A.e(f"{MF32} {v(d,16)}, {v(AF + 4*t, 4)}, {v(Bf + 4*t, 4)}, {v(d,16) if t else '0'}")
        A.e("s_waitcnt lgkmcnt(0)")
        TP, W0 = 4, 208
        nop(A, 11)
        dre, dim = DR, DR + 16
        A.e(f"v_fma_f32 {v(dre)}, {v(SG)}, {v(NY)}, {v(dre)}")
        for p in range(8):
            c, sn = TC + 2*p, TS + 2*p
            A.e(f"v_pk_mul_f32 {v(W0,2)}, {v(dre + 2*p,2)}, {v(c,2)}")
            A.e(f"v_pk_mul_f32 {v(W0+2,2)}, {v(dim + 2*p,2)}, {v(c,2)}")
            A.e(f"v_pk_fma_f32 {v(W0,2)}, {v(dim + 2*p,2)}, {v(sn,2)}, {v(W0,2)} neg_lo:[1,0,0] neg_hi:[1,0,0]")
            A.e(f"v_pk_fma_f32 {v(W0+2,2)}, {v(dre + 2*p,2)}, {v(sn,2)}, {v(W0+2,2)}")
            A.e(f"v_cvt_pk_bf16_f32 {v(TP + p)}, {v(W0)}, {v(W0+1)}")
            A.e(f"v_cvt_pk_bf16_f32 {v(TP + 8 + p)}, {v(W0+2)}, {v(W0+3)}")
        A.e("s_nop 1")
        d, tre, tim = DR, TP, TP + 8
        A.e(f"{MF32} {v(d,16)}, {v(tre,4)}, {v(CC,4)}, 0")
        A.e(f"{MF32} {v(d,16)}, {v(tre+4,4)}, {v(CC+4,4)}, {v(d,16)}")
        A.e(f"{MF32} {v(d,16)}, {v(tim,4)}, {v(CS,4)}, {v(d,16)}")
        A.e(f"{MF32} {v(d,16)}, {v(tim+4,4)}, {v(CS+4,4)}, {v(d,16)}")
        hf, ST, HP, LP = DR + 16, 120, 4, 32
        for n in range(8):
            A.e(f"v_lshlrev_b32 {v(hf + 2*n)}, 16, {v(XR + n)}\nv_and_b32 {v(hf + 2*n + 1)}, s26, {v(XR + n)}")
        for n in range(8):
            A.e(f"v_pk_mul_f32 {v(d + 2*n,2)}, {v(d + 2*n,2)}, s[44:45]")
            if mimic:
                A.e(f"v_cvt_pk_bf16_f32 {v(W0)}, {v(d + 2*n)}, {v(d + 2*n + 1)}")
                A.e(f"v_lshlrev_b32 {v(d + 2*n)}, 16, {v(W0)}\nv_and_b32 {v(d + 2*n + 1)}, s26, {v(W0)}")
            A.e(f"v_pk_add_f32 {v(hf + 2*n,2)}, {v(hf + 2*n,2)}, {v(d + 2*n,2)}")
            A.e(f"v_cvt_pk_bf16_f32 {v(HP + n)}, {v(hf + 2*n)}, {v(hf + 2*n + 1)}")
            A.e(f"v_lshlrev_b32 {v(hf + 2*n)}, 16, {v(HP + n)}\nv_and_b32 {v(hf + 2*n + 1)}, s26, {v(HP + n)}")
        sp, qp = ST + 4, ST + 6
        A.e(f"v_pk_add_f32 {v(sp,2)}, {v(hf,2)}, {v(hf+2,2)}\nv_pk_mul_f32 {v(qp,2)}, {v(hf,2)}, {v(hf,2)}")
        for n in range(1, 8):
            if n >= 2: A.e(f"v_pk_add_f32 {v(sp,2)}, {v(sp,2)}, {v(hf+2*n,2)}")
            A.e(f"v_pk_fma_f32 {v(qp,2)}, {v(hf+2*n,2)}, {v(hf+2*n,2)}, {v(qp,2)}")
        A.e(f"v_add_f32 {v(ST)}, {v(sp)}, {v(sp+1)}\nv_add_f32 {v(ST+1)}, {v(qp)}, {v(qp+1)}\ns_nop 1")
        def row_store(src, srd, tmp, so=18):
            for q in range(4):
                A.e(f"ds_write_b64 {v(WA_ + q)}, {v(src + 2*q, 2)}")
            for n in range(2):
                A.e(f"ds_read_b128 {v(tmp + 4*n, 4)}, {v(RA_)} offset:{1024*n}")
            for n in range(2):
                A.e(f"s_waitcnt lgkmcnt({1 - n})")
                A.e(f"buffer_store_dwordx4 {v(tmp + 4*n, 4)}, {v(GA_)}, {s(srd,4)}, s{so} offen offset:{1024*n} {SC}")
        row_reduce(A, [ST, ST + 1], ST + 12)
        ln_stats(A, ST, ST + 1, D)
        A.e(f"v_sub_f32 {v(ST+4)}, 0, {v(ST)}\nv_mov_b32 {v(ST+5)}, {v(ST+4)}\nv_mov_b32 {v(ST+6)}, {v(ST+1)}\nv_mov_b32 {v(ST+7)}, {v(ST+1)}")
        for n in range(8):
            f = hf + 2*n
            A.e(f"v_pk_add_f32 {v(f,2)}, {v(f,2)}, {v(ST+4,2)}")
            if mimic:
                A.e(f"v_cvt_pk_bf16_f32 {v(W0)}, {v(f)}, {v(f+1)}")
                A.e(f"v_lshlrev_b32 {v(f)}, 16, {v(W0)}\nv_and_b32 {v(f+1)}, s26, {v(W0)}")
            A.e(f"v_pk_mul_f32 {v(f,2)}, {v(f,2)}, {v(ST+6,2)}")
            A.e(f"v_cvt_pk_bf16_f32 {v(LP + n)}, {v(f)}, {v(f+1)}")
        row_store(LP, 48, 12, 25)
        row_store(HP, 12, 20 if False else 120)

    def gemm_phase(self, G, b, tilemap, early, pre_last, epilogue, vb=1, ptail=None, cvb=3, idle=None, init_pre=None, init_post=None, init_fin=None, poll=None, run=None, pre_cons=None, arrive=None):
        A = self.A
        skip = A.newlabel(G.name + "_skip"); cons = A.newlabel(G.name + "_cons"); end = A.newlabel(G.name + "_end")
        tilemap(skip)
        A.e(f"s_cmp_lt_u32 s{SW}, 4\ns_cbranch_scc1 {cons}")
        A.e(f"s_sub_u32 s25, s{SW}, 4")
        G.emit_producer_setup(0, vb)
        if arrive: arrive()
        G.emit_producer_run(early=early if self.o.get("early", True) else None, gate=lambda: A.e("s_barrier"))
        if ptail: ptail()
        A.e(f"s_branch {end}")
        A.label(cons)
        if pre_cons: pre_cons()
        G.emit_consumer_pre(0, cvb, zero=(init_pre is None and init_post is None))
        if init_pre: init_pre()
        if arrive: arrive()
        (poll or self.poll)(b)
        A.e("s_barrier")
        self.stamp(G.name + ".start")
        if init_post: init_post()
        if run: run()
        else: G.emit_consumer_run(pre_last, init_fin)
        self.stamp(G.name + ".loop")
        epilogue()
        A.e(f"s_branch {end}")
        A.label(skip)
        if arrive: arrive()
        if idle: idle()
        A.label(end)

    def tilemap_16x14(self, skip):
        A = self.A
        A.e("s_and_b32 s3, s2, 7\ns_lshr_b32 s29, s2, 3")
        A.e(f"s_cmp_ge_u32 s29, 28\ns_cbranch_scc1 {skip}")
        A.e("s_and_b32 s18, s3, 3\ns_lshl_b32 s18, s18, 2\ns_and_b32 s23, s29, 3\ns_add_u32 s18, s18, s23\ns_mov_b32 s40, s18\ns_lshl_b32 s18, s18, 7")
        A.e("s_lshr_b32 s17, s3, 2\ns_mul_i32 s17, s17, 7\ns_lshr_b32 s23, s29, 2\ns_add_u32 s17, s17, s23\ns_mov_b32 s41, s17\ns_lshl_b32 s17, s17, 7")

    ZP = 16

    def l2_wsp(self, tid):
        A = self.A
        srd_from(A, 56, PWSP, 0, S * S * 2)
        A.e("s_and_b32 s54, s2, 3\ns_lshl_b32 s54, s54, 21\ns_lshr_b32 s55, s2, 3\ns_lshl_b32 s55, s55, 16\ns_add_u32 s54, s54, s55")
        A.e(f"v_lshlrev_b32 v22, 4, {v(tid)}")
        for n in range(16):
            A.e("buffer_load_dwordx4 v[24:27], v22, s[56:59], s54 offen\ns_add_u32 s54, s54, 4096")

    def l2_wout(self, wave_sgpr):
        A = self.A
        srd_from(A, 56, PWOUT, 0, FH * D * 2)
        A.e(f"s_lshr_b32 s55, s2, 3\ns_mul_i32 s55, s55, 56\ns_mul_i32 s54, s{wave_sgpr}, 14\ns_add_u32 s55, s55, s54\ns_lshl_b32 s55, s55, 11")
        A.e("s_bfe_u32 s54, s2, 0x10002\ns_lshl_b32 s54, s54, 10\ns_add_u32 s54, s54, s55")
        A.e("v_lshlrev_b32 v22, 4, v0")
        for n in range(14):
            A.e("buffer_load_dwordx4 v[24:27], v22, s[56:59], s54 offen\ns_add_u32 s54, s54, 2048")

    def p4_idle(self):
        A = self.A
        if not self.o.get("pf", True): return
        A.e("s_and_b32 s24, s2, 7\ns_lshl_b32 s24, s24, 2\ns_sub_u32 s23, s29, 28\ns_add_u32 s23, s23, s24")
        A.e(f"v_lshl_add_u32 v4, s{SW}, 6, v0\nv_lshlrev_b32 v4, 4, v4")
        retile = self.o.get("wo_tile", True)
        jobs = ((PWSP, S * S * 2),) if self.o.get("pfsp", True) else ()
        for ptr, nbytes in jobs + (() if retile else ((PWOUT, FH * D * 2),)):
            per = nbytes // 32; n = (per + 8191) // 8192
            srd_from(A, 56, ptr, 0, nbytes)
            lp = A.newlabel("pfl")
            A.e(f"s_mul_i32 s54, s23, {per}\ns_mov_b32 s55, {n}")
            A.label(lp)
            A.e(f"buffer_load_dwordx4 v[8:11], v4, s[56:59], s54 offen\ns_add_u32 s54, s54, 8192")
            A.e(f"s_waitcnt vmcnt({self.o.get('pfq', 6)})")
            if self.o.get("pfsleep"): A.e(f"s_sleep {self.o['pfsleep']}")
            A.e(f"s_sub_u32 s55, s55, 1\ns_cmp_lg_u32 s55, 0\ns_cbranch_scc1 {lp}")
        if retile and self.o.get("wo_job", True) and not self.o.get("wo_late"): self.wo_copy()

    def wo_copy(self, setup=False):
        A = self.A
        if setup:
            A.e("s_and_b32 s3, s2, 7\ns_lshr_b32 s29, s2, 3\ns_sub_u32 s23, s29, 28\ns_lshl_b32 s24, s3, 2\ns_add_u32 s23, s23, s24")
            A.e(f"v_lshl_add_u32 v4, s{SW}, 6, v0\nv_lshlrev_b32 v4, 4, v4")
        if True:
            srd_from(A, 56, PWOUT, 0, FH * D * 2)
            srd_from(A, 48, PWS, WS_Z1, 16 * 229376)
            A.e(f"v_lshl_add_u32 v5, s{SW}, 6, v0")
            A.e("v_bfe_u32 v6, v5, 3, 4\ns_mov_b32 s54, 229376\nv_mul_lo_u32 v6, v6, s54")
            A.e("v_lshrrev_b32 v7, 7, v5\nv_lshl_add_u32 v6, v7, 7, v6\nv_and_b32 v7, 7, v5\nv_lshl_add_u32 v6, v7, 4, v6")
            A.e(f"s_mul_i32 s54, s23, 114688\ns_mul_i32 s55, s23, {56 * 128}")
            for half in range(2):
                for r in range(7):
                    A.e(f"buffer_load_dwordx4 {v(12 + 4*r, 4)}, v4, s[56:59], s54 offen\ns_add_u32 s54, s54, 8192")
                for r in range(7):
                    A.e("s_waitcnt vmcnt(6)")
                    A.e(f"buffer_store_dwordx4 {v(12 + 4*r, 4)}, v6, s[48:51], s55 offen {SC}\ns_add_u32 s55, s55, 512")
                A.e("s_waitcnt vmcnt(0)")

    def gelu2(self, qa, qb, T):
        A = self.A
        pr = ((qa, T), (qb, T + 10))
        for a0, t in pr:
            for hh in (0, 2): A.e(f"v_pk_mul_f32 {v(t+hh,2)}, {v(a0+hh,2)}, {v(a0+hh,2)}")
        for a0, t in pr:
            for hh in (0, 2): A.e(f"v_pk_fma_f32 {v(t+hh,2)}, {v(t+hh,2)}, s[46:47], {v(T+8,2)}")
        for a0, t in pr:
            for hh in (0, 2): A.e(f"v_pk_mul_f32 {v(t+hh,2)}, {v(t+hh,2)}, {v(a0+hh,2)}")
        for a0, t in pr:
            for r in range(4): A.e(f"v_exp_f32 {v(t+r)}, {v(t+r)}")
        for a0, t in pr:
            for hh in (0, 2): A.e(f"v_pk_add_f32 {v(t+hh,2)}, {v(t+hh,2)}, 1.0 op_sel_hi:[1,0]")
            for r in range(4): A.e(f"v_rcp_f32 {v(t+r)}, {v(t+r)}")
        for a0, t in pr:
            for hh in (0, 2): A.e(f"v_pk_mul_f32 {v(a0+hh,2)}, {v(a0+hh,2)}, {v(t+hh,2)}")

    def gelu_consts(self, T):
        A = self.A
        A.e(f"s_mov_b32 s44, {f2u(GK1)}\ns_mov_b32 s45, {f2u(GK1)}\ns_mov_b32 s46, {f2u(GK2)}\ns_mov_b32 s47, {f2u(GK2)}")
        A.e(f"v_mov_b32 {v(T+8)}, s44\nv_mov_b32 {v(T+9)}, s45")

    def p4b(self):
        A = self.A
        NS = self.o.get("NS1", 4)
        wint = self.o.get("wint")
        X = Op('ks', 128, 256 if wint == "tiled" else F * 2, 4); X.base_sgpr = 45
        Y = Op('kc', 128, self.LSTR, 8); Y.aux = self.o.get("g1yaux", SC)
        X.aux = self.o.get("g1xaux", "")
        wrapX = (16 * KS * 256 + 1024 * 256) if wint == "tiled" else (16 * KS * F * 2 + FH * 2)
        G = Gemm(A, "g1", 2 * D, NS, X, Y, 2, 2, wrap=(16, wrapX, 16 * 128), **self.o.get("g1", {}))
        self.G1 = G
        def tilemap(skip):
            self.tilemap_16x14(skip)
            if wint: srd_from(A, 4, PWS, 80 * MB, D * F * 2)
            else: srd_from(A, 4, PWIN, 0, D * F * 2)
            srd_from(A, 8, PWS, WS_LN2, S * self.LSTR)
            if wint == "tiled": A.e(f"s_mul_i32 s45, s41, {2 * 1024 * 256}\ns_add_u32 s45, s45, {1024 * 256}")
            else: A.e(f"s_add_u32 s45, s17, {FH}\ns_lshl_b32 s45, s45, 1")
        slow = []
        def run():
            assert G.set0 == 56 and G.accb == 120, (G.set0, G.accb)
            accA, accB = 120, 184
            self.accB = accB
            G.consumer_head()
            G.stages_loop(16, accA)
            self.stamp("g1.passA")
            T, SP, R, TMP, P4 = 2, 16, 32, 88, 96
            self.gelu_consts(T)
            for n in range(16): A.e(f"v_mov_b32 {v(SP + n)}, 0")
            def q(acc, i, j): return acc + 4 * (i * 4 + j)
            for j in range(4):
                for i in range(4):
                    if i % 2 == 0: self.gelu2(q(accA, i, j), q(accA, i + 1, j), T)
                    a0 = q(accA, i, j)
                    for hh in (0, 2):
                        A.e(f"v_pk_add_f32 {v(SP + 2*j, 2)}, {v(SP + 2*j, 2)}, {v(a0+hh,2)}")
                        A.e(f"v_pk_fma_f32 {v(SP + 8 + 2*j, 2)}, {v(a0+hh,2)}, {v(a0+hh,2)}, {v(SP + 8 + 2*j, 2)}")
            for j in range(4):
                A.e(f"v_add_f32 {v(R + j)}, {v(SP + 2*j)}, {v(SP + 2*j + 1)}")
                A.e(f"v_add_f32 {v(R + 4 + j)}, {v(SP + 8 + 2*j)}, {v(SP + 8 + 2*j + 1)}")
            group_reduce(A, [R + n for n in range(8)], TMP)
            A.e(f"v_cmp_le_u32 vcc, 16, v0\ns_nop 1")
            A.e(f"v_cndmask_b32 {v(P4)}, {v(R)}, {v(R + 2)}, vcc\nv_cndmask_b32 {v(P4 + 1)}, {v(R + 4)}, {v(R + 6)}, vcc")
            A.e(f"v_cndmask_b32 {v(P4 + 2)}, {v(R + 1)}, {v(R + 3)}, vcc\nv_cndmask_b32 {v(P4 + 3)}, {v(R + 5)}, {v(R + 7)}, vcc")
            srd_from(A, 36, PWS, WS_ST, 524288)
            A.e(f"s_lshl_b32 s51, s40, 1\ns_add_u32 s51, s51, s28\ns_mul_i32 s51, s51, {28 * 512}")
            A.e("s_lshl_b32 s24, s41, 1\ns_add_u32 s24, s24, s27\ns_lshl_b32 s24, s24, 9\ns_add_u32 s24, s24, s51")
            A.e(f"v_lshlrev_b32 v1, 4, v0\ns_mov_b32 exec_hi, 0")
            A.e(f"buffer_store_dwordx4 {v(P4,4)}, v1, s[36:39], s24 offen {SC}")
            A.e("s_mov_b32 exec_hi, -1")
            A.e("s_add_u32 s52, s51, 4096\ns_add_u32 s53, s51, 8192\ns_add_u32 s55, s51, 12288")
            A.e("v_and_b32 v1, 15, v0\nv_lshlrev_b32 v1, 4, v1\nv_bfe_u32 v2, v0, 4, 1\nv_lshl_add_u32 v1, v2, 3, v1\nv_lshrrev_b32 v2, 5, v0\nv_lshl_add_u32 v1, v2, 8, v1")
            VA = 34
            srd_from(A, 12, PWS, WS_Z2, S * self.ZSTR)
            lane_out_offset(A, VA, VA + 1, 18, 17, 28, 27, 4, 4, self.ZSTR)
            A.e(f"v_lshrrev_b32 {v(VA+1)}, 4, v0\nv_lshlrev_b32 {v(VA+2)}, 3, {v(VA+1)}\nv_sub_u32 {v(VA)}, {v(VA)}, {v(VA+2)}")
            A.e(f"v_and_b32 {v(VA+2)}, 1, {v(VA+1)}\nv_lshl_add_u32 {v(VA)}, {v(VA+2)}, 5, {v(VA)}")
            A.e(f"v_lshrrev_b32 {v(VA+2)}, 1, {v(VA+1)}\nv_lshl_add_u32 {v(VA)}, {v(VA+2)}, 4, {v(VA)}")
            self.stamp("g1.pub")
            Q, AC = 2, 30
            def loads(b):
                out = []
                for n in range(14):
                    p = 14 * b + n
                    so = ("s51", "s52", "s53", "s55")[p >> 3]
                    out.append(f"buffer_load_dwordx2 {v(Q + 2*n, 2)}, v1, s[36:39], {so} offen offset:{512 * (p & 7)} {SC}")
                return out
            def check(b):
                ok = A.newlabel("xok"); rt = A.newlabel("xrt")
                A.e("s_waitcnt vmcnt(0)")
                A.e(f"v_max_u32 v32, {v(Q)}, {v(Q+1)}")
                for n in range(2, 28, 2): A.e(f"v_max3_u32 v32, v32, {v(Q+n)}, {v(Q+n+1)}")
                A.e(f"v_cmp_eq_u32 vcc, -1, v32\ns_nop 1\ns_cmp_lg_u64 vcc, 0\ns_cbranch_scc1 {rt}")
                A.label(ok)
                slow.append((rt, ok, b))
            def tree(first):
                out = []; n = 14
                while n > 1:
                    hi = n // 2
                    for p in range(hi): out.append(f"v_pk_add_f32 {v(Q + 2*p, 2)}, {v(Q + 2*p, 2)}, {v(Q + 2*(n - 1 - p), 2)}")
                    n -= hi
                if first: out += [f"v_mov_b32 {v(AC)}, {v(Q)}", f"v_mov_b32 {v(AC+1)}, {v(Q+1)}"]
                else: out.append(f"v_pk_add_f32 {v(AC, 2)}, {v(AC, 2)}, {v(Q, 2)}")
                return out
            self._p4_loads = loads; self._p4_Q = Q
            G.stages_loop(4, accB)
            l1 = loads(0)
            G.stage(accB, extraA=l1[:8], extraB=l1[8:])
            G.stage(accB)
            check(0)
            w = tree(True) + loads(1)
            G.stage(accB, extraA=w[:10], extraB=w[10:])
            G.stage(accB)
            check(1)
            m, qv = AC, AC + 1
            rnd = lambda r: [f"v_cvt_pk_bf16_f32 {v(r)}, {v(r)}, {v(r)}", f"v_lshlrev_b32 {v(r)}, 16, {v(r)}"]
            st = tree(False)
            st += [f"v_mul_f32 {v(m)}, {hex(f2u(1.0 / FH))}, {v(m)}", f"v_mul_f32 {v(qv)}, {hex(f2u(1.0 / FH))}, {v(qv)}",
                   f"v_fma_f32 {v(qv)}, -{v(m)}, {v(m)}, {v(qv)}", f"v_max_f32 {v(qv)}, 0, {v(qv)}"]
            st += rnd(m) + rnd(qv) + [f"v_add_f32 {v(qv)}, {hex(f2u(1e-5))}, {v(qv)}"] + rnd(qv)
            st += [f"v_sqrt_f32 {v(qv)}, {v(qv)}", "s_nop 0"] + rnd(qv) + [f"v_rcp_f32 {v(qv)}, {v(qv)}", "s_nop 0", f"v_sub_f32 {v(m)}, 0, {v(m)}"]
            SP2 = 2
            for (src, dstb) in ((m, SP2), (qv, SP2 + 8)):
                a, b_, a2, b2 = dstb, dstb + 2, dstb + 4, dstb + 6
                st += [f"v_mov_b32 {v(a)}, {v(src)}", f"v_mov_b32 {v(b_)}, {v(src)}", "s_nop 1", f"v_permlane16_swap_b32 {v(a)}, {v(b_)}",
                       f"v_mov_b32 {v(a2)}, {v(a)}", f"v_mov_b32 {v(b2)}, {v(b_)}", "s_nop 1",
                       f"v_permlane32_swap_b32 {v(a)}, {v(a2)}", f"v_permlane32_swap_b32 {v(b_)}, {v(b2)}"]
                st += [f"v_mov_b32 {v(x + 1)}, {v(x)}" for x in (a, b_, a2, b2)]
            h = len(st) // 2
            G.stage(accB, extraA=st[:10], extraB=st[10:32])
            G.stage(accB, extraA=st[32:42], extraB=st[42:])
            PK = 18
            for j in range(4):
                nm = []
                for i in range(4):
                    a0 = q(accA, i, j)
                    for hh in (0, 2):
                        nm.append(f"v_pk_add_f32 {v(a0+hh,2)}, {v(a0+hh,2)}, {v(SP2 + 2*j, 2)}")
                        nm.append(f"v_pk_mul_f32 {v(a0+hh,2)}, {v(a0+hh,2)}, {v(SP2 + 8 + 2*j, 2)}")
                    nm += [f"v_cvt_pk_bf16_f32 {v(PK + 2*i)}, {v(a0)}, {v(a0+1)}", f"v_cvt_pk_bf16_f32 {v(PK + 2*i + 1)}, {v(a0+2)}, {v(a0+3)}"]
                nm += [f"s_mov_b32 s24, {16 * j * self.ZSTR}", "s_nop 0"]
                for ip in range(2):
                    z0 = PK + 4 * ip
                    nm += [f"v_permlane16_swap_b32 {v(z0)}, {v(z0+2)}", f"v_permlane16_swap_b32 {v(z0+1)}, {v(z0+3)}",
                           f"buffer_store_dwordx4 {v(z0,4)}, {v(VA)}, s[12:15], s24 offen offset:{64 * ip} {SC}"]
                G.stage(accB, extraA=nm[:10], extraB=nm[10:])
            G.stage(accB)
            G.stage(accB, last=True)
        def epi():
            fin = A.newlabel("g1fin")
            A.e(f"s_branch {fin}")
            for rt, ok, b in slow:
                lp = A.newlabel("xlp")
                A.label(rt)
                A.e("s_mov_b32 s42, 0x8000")
                A.label(lp)
                A.e("s_sleep 2")
                for ln in self._p4_loads(b): A.e(ln)
                A.e("s_waitcnt vmcnt(0)")
                Q = self._p4_Q
                A.e(f"v_max_u32 v32, {v(Q)}, {v(Q+1)}")
                for n in range(2, 28, 2): A.e(f"v_max3_u32 v32, v32, {v(Q+n)}, {v(Q+n+1)}")
                A.e(f"v_cmp_eq_u32 vcc, -1, v32\ns_sub_u32 s42, s42, 1\ns_cbranch_scc1 {ok}\ns_cmp_lg_u64 vcc, 0\ns_cbranch_scc1 {lp}\ns_branch {ok}")
            A.label(fin)
        def zero():
            for n in range(128): A.e(f"v_mov_b32 {v(120 + n)}, 0")
        self.gemm_phase(G, 3, tilemap, X, None, epi, cvb=41, idle=self.p4_idle, run=run, init_pre=zero, arrive=self.hook3)

    def z1_finish(self):
        A = self.A
        T = 48
        self.gelu_consts(T)
        for j in range(4):
            for i in range(4):
                if i % 2 == 0: self.gelu2(self.accB + 4 * (i * 4 + j), self.accB + 4 * ((i + 1) * 4 + j), T)
                a0 = self.accB + 4 * (i * 4 + j); z = self.ZP + 2 * (4 * j + i)
                A.e(f"v_cvt_pk_bf16_f32 {v(z)}, {v(a0)}, {v(a0+1)}\nv_cvt_pk_bf16_f32 {v(z+1)}, {v(a0+2)}, {v(a0+3)}")

    def p4(self):
        A = self.A
        NS = self.o.get("NS1", 3)
        X = Op('ks', 256, F * 2, 4); X.segmap = FH * 2; X.xorfam = True
        Y = Op('kc', 128, self.LSTR, 8); Y.aux = SC
        G = Gemm(A, "g1", D, NS, X, Y, 2, 2, **{**dict(per=1), **self.o.get("g1", {})})
        def tilemap(skip):
            self.tilemap_16x14(skip)
            srd_from(A, 4, PWIN, 0, D * F * 2)
            srd_from(A, 8, PWS, WS_LN2, S * self.LSTR)
        idle = self.p4_idle
        def epi():
            TX, TY = G.TX, G.TY
            assert G.set0 == 16 and G.accb == 112, (G.set0, G.accb)
            ZP = self.ZP; T = 48
            srd_from(A, 36, PBSP, 0, S * 2)
            A.e(f"s_lshl_b32 s23, s28, 6\ns_add_u32 s23, s23, s18\nv_and_b32 v244, 15, v0\nv_add_u32 v244, s23, v244\nv_lshlrev_b32 v244, 1, v244")
            for j in range(4):
                A.e(f"buffer_load_ushort v{240 + j}, v244, s[36:39], 0 offen offset:{32 * j}")
            A.e(f"s_mov_b32 s44, {f2u(GK1)}\ns_mov_b32 s45, {f2u(GK1)}\ns_mov_b32 s46, {f2u(GK2)}\ns_mov_b32 s47, {f2u(GK2)}")
            A.e(f"v_mov_b32 {v(T+8)}, s44\nv_mov_b32 {v(T+9)}, s45")
            SP = 64
            for n in range(16): A.e(f"v_mov_b32 {v(SP + n)}, 0")
            A.e("s_nop 3")
            def accq(i, j): return G.accb + 4 * (i * TY + j)
            def gelu2(qa, qb):
                ta, tb = T, T + 10
                pr = ((qa, ta), (qb, tb))
                for a0, t in pr:
                    for hh in (0, 2): A.e(f"v_pk_mul_f32 {v(t+hh,2)}, {v(a0+hh,2)}, {v(a0+hh,2)}")
                for a0, t in pr:
                    for hh in (0, 2): A.e(f"v_pk_fma_f32 {v(t+hh,2)}, {v(t+hh,2)}, s[46:47], {v(T+8,2)}")
                for a0, t in pr:
                    for hh in (0, 2): A.e(f"v_pk_mul_f32 {v(t+hh,2)}, {v(t+hh,2)}, {v(a0+hh,2)}")
                for a0, t in pr:
                    for r in range(4): A.e(f"v_exp_f32 {v(t+r)}, {v(t+r)}")
                for a0, t in pr:
                    for hh in (0, 2): A.e(f"v_pk_add_f32 {v(t+hh,2)}, {v(t+hh,2)}, 1.0 op_sel_hi:[1,0]")
                    for r in range(4): A.e(f"v_rcp_f32 {v(t+r)}, {v(t+r)}")
                for a0, t in pr:
                    for hh in (0, 2): A.e(f"v_pk_mul_f32 {v(a0+hh,2)}, {v(a0+hh,2)}, {v(t+hh,2)}")
            for j in range(TY):
                for i in range(4, 8):
                    if i % 2 == 0: gelu2(accq(i, j), accq(i + 1, j))
                    a0 = accq(i, j)
                    for hh in (0, 2):
                        A.e(f"v_pk_add_f32 {v(SP + 2*j, 2)}, {v(SP + 2*j, 2)}, {v(a0+hh,2)}")
                        A.e(f"v_pk_fma_f32 {v(SP + 8 + 2*j, 2)}, {v(a0+hh,2)}, {v(a0+hh,2)}, {v(SP + 8 + 2*j, 2)}")
            R = 80; vt, va = 96, 97
            for j in range(TY):
                A.e(f"v_add_f32 {v(R + j)}, {v(SP + 2*j)}, {v(SP + 2*j + 1)}")
                A.e(f"v_add_f32 {v(R + 4 + j)}, {v(SP + 8 + 2*j)}, {v(SP + 8 + 2*j + 1)}")
            group_reduce(A, [R + n for n in range(8)], R + 8)
            A.e(f"v_cmp_le_u32 vcc, 16, v0\ns_nop 1")
            P4 = R + 8
            A.e(f"v_cndmask_b32 {v(P4)}, {v(R)}, {v(R + 2)}, vcc\nv_cndmask_b32 {v(P4 + 1)}, {v(R + 4)}, {v(R + 6)}, vcc")
            A.e(f"v_cndmask_b32 {v(P4 + 2)}, {v(R + 1)}, {v(R + 3)}, vcc\nv_cndmask_b32 {v(P4 + 3)}, {v(R + 5)}, {v(R + 7)}, vcc")
            srd_from(A, 36, PWS, WS_ST, 524288)
            A.e(f"s_lshl_b32 s23, s40, 1\ns_add_u32 s23, s23, s28\ns_mul_i32 s23, s23, {28 * 512}")
            A.e("s_lshl_b32 s24, s41, 1\ns_add_u32 s24, s24, s27\ns_lshl_b32 s24, s24, 9\ns_add_u32 s24, s24, s23")
            A.e(f"v_lshlrev_b32 v1, 4, v0\ns_mov_b32 exec_hi, 0")
            A.e(f"buffer_store_dwordx4 {v(P4,4)}, v1, s[36:39], s24 offen {SC}")
            A.e("s_mov_b32 exec_hi, -1")
            A.e("v_and_b32 v1, 15, v0\nv_lshlrev_b32 v1, 4, v1\nv_bfe_u32 v2, v0, 4, 1\nv_lshl_add_u32 v1, v2, 3, v1\nv_lshrrev_b32 v2, 5, v0\nv_lshl_add_u32 v1, v2, 8, v1")
            self.stamp("g1.z2")
            for j in range(TY):
                for i in range(4):
                    if i % 2 == 0: gelu2(accq(i, j), accq(i + 1, j))
                    a0 = accq(i, j); z = ZP + 2 * (4 * j + i)
                    A.e(f"v_cvt_pk_bf16_f32 {v(z)}, {v(a0)}, {v(a0+1)}\nv_cvt_pk_bf16_f32 {v(z+1)}, {v(a0+2)}, {v(a0+3)}")
            self.stamp("g1.z1")
            A.e("v_and_b32 v2, 31, v0\nv_min_u32 v2, 27, v2\nv_lshlrev_b32 v2, 9, v2")
            Q = 56
            pl = A.newlabel("g1poll"); pd = A.newlabel("g1polld"); pf = A.newlabel("g1fetch")
            A.e("s_mov_b32 s42, 0x20000\ns_add_u32 s48, s23, 4096\ns_add_u32 s49, s23, 8192\ns_add_u32 s50, s23, 12288")
            A.e(f"s_branch {pf}")
            A.label(pl)
            A.e(f"buffer_load_dword {v(Q)}, v2, s[36:39], s23 offen offset:504 {SC}\ns_waitcnt vmcnt(0)")
            A.e(f"v_cmp_eq_u32 vcc, -1, {v(Q)}")
            A.e(f"s_sub_u32 s42, s42, 1\ns_cbranch_scc1 {pf}")
            A.e(f"s_cmp_eq_u64 vcc, 0\ns_cbranch_scc1 {pf}")
            A.e(f"s_sleep 1\ns_branch {pl}")
            A.label(pf)
            for p in range(28):
                so = ("s23", "s48", "s49", "s50")[p >> 3]
                A.e(f"buffer_load_dwordx2 {v(Q + 2*p, 2)}, v1, s[36:39], {so} offen offset:{512 * (p & 7)} {SC}")
            A.e("s_waitcnt vmcnt(0)")
            A.e(f"v_max_u32 v3, {v(Q)}, {v(Q+1)}")
            for n in range(2, 56, 2):
                A.e(f"v_max3_u32 v3, v3, {v(Q+n)}, {v(Q+n+1)}")
            A.e(f"v_cmp_eq_u32 vcc, -1, v3")
            A.e(f"s_sub_u32 s42, s42, 1\ns_cbranch_scc1 {pd}")
            A.e(f"s_cmp_eq_u64 vcc, 0\ns_cbranch_scc0 {pf if self.o.get('xretry') else pl}")
            A.label(pd)
            self.stamp("g1.xchg")
            n = 28
            while n > 1:
                hi = n // 2
                for p in range(hi):
                    A.e(f"v_pk_add_f32 {v(Q + 2*p, 2)}, {v(Q + 2*p, 2)}, {v(Q + 2*(n - 1 - p), 2)}")
                n -= hi
            m, q = Q, Q + 1
            A.e(f"s_mov_b32 s44, {f2u(1.0 / FH)}\ns_mov_b32 s45, {f2u(1e-5)}")
            A.e(f"v_mul_f32 {v(m)}, s44, {v(m)}\nv_mul_f32 {v(q)}, s44, {v(q)}")
            A.e(f"v_fma_f32 {v(q)}, -{v(m)}, {v(m)}, {v(q)}\nv_max_f32 {v(q)}, 0, {v(q)}")
            bf16_round(A, m); bf16_round(A, q)
            A.e(f"v_add_f32 {v(q)}, s45, {v(q)}")
            bf16_round(A, q)
            A.e(f"v_sqrt_f32 {v(q)}, {v(q)}\ns_nop 0")
            bf16_round(A, q)
            A.e(f"v_rcp_f32 {v(q)}, {v(q)}\ns_nop 0")
            A.e(f"v_sub_f32 {v(m)}, 0, {v(m)}")
            SP2 = 64
            for (src, dstb) in ((m, SP2), (q, SP2 + 8)):
                a, b_, a2, b2 = dstb, dstb + 2, dstb + 4, dstb + 6
                A.e(f"v_mov_b32 {v(a)}, {v(src)}\nv_mov_b32 {v(b_)}, {v(src)}\ns_nop 1")
                A.e(f"v_permlane16_swap_b32 {v(a)}, {v(b_)}")
                A.e(f"v_mov_b32 {v(a2)}, {v(a)}\nv_mov_b32 {v(b2)}, {v(b_)}\ns_nop 1")
                A.e(f"v_permlane32_swap_b32 {v(a)}, {v(a2)}\nv_permlane32_swap_b32 {v(b_)}, {v(b2)}")
                for x in (a, b_, a2, b2): A.e(f"v_mov_b32 {v(x + 1)}, {v(x)}")
            PK = 80
            def pk(i, j): return PK + 2 * (4 * j + i)
            srd_from(A, 12, PWS, WS_Z2, S * self.ZSTR)
            va2, T2 = 4, 6
            lane_out_offset(A, va2, va2 + 1, 18, 17, 28, 27, TY, 4, self.ZSTR)
            swap_store_setup(A, T2, va2)
            for j in range(TY):
                for i in range(4):
                    a0 = accq(i + 4, j)
                    for hh in (0, 2):
                        A.e(f"v_pk_add_f32 {v(a0+hh,2)}, {v(a0+hh,2)}, {v(SP2 + 2*j, 2)}")
                        A.e(f"v_pk_mul_f32 {v(a0+hh,2)}, {v(a0+hh,2)}, {v(SP2 + 8 + 2*j, 2)}")
                    A.e(f"v_cvt_pk_bf16_f32 {v(pk(i,j))}, {v(a0)}, {v(a0+1)}\nv_cvt_pk_bf16_f32 {v(pk(i,j)+1)}, {v(a0+2)}, {v(a0+3)}")
                swap_store_j(A, pk, T2, va2, 12, self.ZSTR, 4, j, aux=SC)
        def zero_acc():
            for n in range(128): A.e(f"v_mov_b32 {v(112 + n)}, 0")
        def ptail():
            if self.o.get("l2pf", False):
                A.e("v_lshl_add_u32 v20, s25, 6, v0")
                self.l2_wsp(20)
        def idle2():
            self.pf_point("H", low=True, dst=246, va=245)
            idle()
            if self.o.get("l2pf", False):
                lab = A.newlabel("l2i")
                A.e(f"s_waitcnt vmcnt(0)\ns_cmp_ge_u32 s{SW}, 4\ns_cbranch_scc1 {lab}")
                A.e(f"v_lshl_add_u32 v20, s{SW}, 6, v0")
                self.l2_wsp(20)
                A.label(lab)
        self.gemm_phase(G, 3, tilemap, X, None, epi, idle=idle2, ptail=ptail, arrive=self.hook3,
                        init_post=lambda: self.pf_point("H", low=True, dst=246, va=245), init_pre=zero_acc)

    def p5(self):
        A = self.A
        NS = self.o.get("NS2", 4)
        X = Op('ks', 128, self.ZSTR, 4); Y = Op('kc', 128, S * 2, 8); X.aux = SC
        G = Gemm(A, "g2", S, NS, X, Y, 2, 2, **self.o.get("g2", {}))
        st = {}
        def tilemap(skip):
            self.tilemap_16x14(skip)
            srd_from(A, 4, PWS, WS_Z2, S * self.ZSTR)
            srd_from(A, 8, PWSP, 0, S * S * 2)
        def init_pre():
            if self.o.get("twopass", False):
                ZB = G.vend
                srd_from(A, 36, PBSP, 0, S * 2)
                vb_ = ZB + 5
                A.e(f"s_lshl_b32 s23, s28, 6\ns_add_u32 s23, s23, s18")
                A.e(f"v_and_b32 {v(vb_)}, 15, v0\nv_add_u32 {v(vb_)}, s23, {v(vb_)}\nv_lshlrev_b32 {v(vb_)}, 1, {v(vb_)}")
                for j in range(4):
                    A.e(f"buffer_load_ushort {v(ZB + j)}, {v(vb_)}, s[36:39], 0 offen offset:{32 * j}")
                A.e("s_waitcnt vmcnt(0)")
            else:
                ZB = 240
            for j in range(4): A.e(f"v_lshlrev_b32 {v(ZB + j)}, 16, {v(ZB + j)}")
            for i in range(4):
                for j in range(4):
                    for r in range(4): A.e(f"v_mov_b32 {v(G.accb + 4 * (i * 4 + j) + r)}, {v(ZB + j)}")
        def epi():
            ZB = G.vend; va = ZB + 4; T = ZB + 8; ZP = self.ZP
            srd_from(A, 12, PWS, WS_P, S * self.PSTR)
            lane_out_offset(A, va, va + 1, 18, 17, 28, 27, 4, 4, self.PSTR)
            A.e("s_mov_b32 s26, 0xffff0000")
            swap_store_setup(A, T, va)
            for j in range(4):
                for i in range(4):
                    a0 = G.accb + 4 * (i * 4 + j); z = ZP + 2 * (4 * j + i)
                    t = T + 4 * ((i + j) & 1)
                    A.e(f"v_lshlrev_b32 {v(t)}, 16, {v(z)}\nv_and_b32 {v(t+1)}, s26, {v(z)}")
                    A.e(f"v_lshlrev_b32 {v(t+2)}, 16, {v(z+1)}\nv_and_b32 {v(t+3)}, s26, {v(z+1)}")
                    A.e(f"v_pk_mul_f32 {v(a0,2)}, {v(a0,2)}, {v(t,2)}\nv_pk_mul_f32 {v(a0+2,2)}, {v(a0+2,2)}, {v(t+2,2)}")
                    A.e(f"v_cvt_pk_bf16_f32 {v(z)}, {v(a0)}, {v(a0+1)}\nv_cvt_pk_bf16_f32 {v(z+1)}, {v(a0+2)}, {v(a0+3)}")
                swap_store_j(A, lambda i, j: ZP + 2 * (4 * j + i), T, va, 12, self.PSTR, 4, j, aux=SC)
        def ptail():
            if self.o.get("grp4", False): self.poll(4, wave=4)
            if self.o.get("l2pf", False): self.l2_wout(25)
        def idle():
            if self.o.get("grp4", False): self.poll(4)
            else: self.wait(4)
            if self.o.get("l2pf2idle", False):
                lab = A.newlabel("l2j")
                A.e(f"s_cmp_ge_u32 s{SW}, 4\ns_cbranch_scc1 {lab}")
                self.l2_wout(SW)
                A.label(lab)
        def poll_f(b):
            lab = A.newlabel("pw"); lp = A.newlabel("pl"); ld = A.newlabel("pd")
            A.e(f"s_cmp_lg_u32 s{SW}, 0\ns_cbranch_scc1 {lab}")
            self.cnt_srd(5, 64)
            A.e("s_add_u32 s3, s41, 16\ns_lshl_b32 s3, s3, 8\nv_mov_b32 v250, s3")
            self.spin(250, 16, lp, ld)
            A.label(lab)
        self.gemm_phase(G, 4, tilemap, Y, None, epi, cvb=48, ptail=ptail, idle=idle, init_pre=init_pre,
                        poll=poll_f if self.o.get("grp4", False) else None,
                        pre_cons=self.z1_finish if self.o.get("twopass", False) else None, arrive=self.hook4)

    def p6(self):
        A = self.A
        NS = self.o.get("NS3", 4); BN = 64
        wt = self.o.get("wo_tile", True) and self.o.get("pf", True)
        X = Op('ks', BN, 128 if wt else D * 2, 4); Y = Op('kc', 128, self.PSTR, 8); Y.aux = SC
        if wt: X.aux = SC; X.base_sgpr = 41
        G = Gemm(A, "g3", FH, NS, X, Y, 2, 2, **self.o.get("g3", {}))
        TX, TY = G.TX, G.TY
        st = {}; nq = TX * TY
        def tilemap(skip):
            A.e("s_and_b32 s3, s2, 7\ns_lshr_b32 s29, s2, 3")
            A.e("s_and_b32 s18, s3, 3\ns_lshl_b32 s18, s18, 2\ns_and_b32 s23, s29, 3\ns_add_u32 s18, s18, s23\ns_lshl_b32 s18, s18, 7")
            A.e(f"s_lshr_b32 s17, s3, 2\ns_mul_i32 s17, s17, 8\ns_lshr_b32 s23, s29, 2\ns_xor_b32 s23, s23, {self.o.get('g3x', 0)}\ns_add_u32 s17, s17, s23\ns_mul_i32 s17, s17, {BN}")
            if wt:
                srd_from(A, 4, PWS, WS_Z1, 16 * 229376)
                A.e("s_lshr_b32 s41, s17, 6\ns_mul_i32 s41, s41, 229376")
            else: srd_from(A, 4, PWOUT, 0, FH * D * 2)
            srd_from(A, 8, PWS, WS_P, S * self.PSTR)
        def h_loads():
            ZB = G.vend
            va = ZB + 2 * nq
            for j in range(TY):
                A.e(f"s_mov_b32 s24, {16 * j * D * 2}")
                for i in range(TX):
                    A.e(f"buffer_load_dwordx2 {v(ZB + 2 * (TX * j + i), 2)}, {v(va)}, s[12:15], s24 offen offset:{32 * i} {SC}")
        def init_pre():
            ZB = G.vend
            srd_from(A, 12, PWS, WS_H, S * D * 2)
            va, vb_ = ZB + 2 * nq, ZB + 2 * nq + 1
            lane_out_offset(A, va, vb_, 18, 17, 28, 27, TY, TX, D * 2)
            h_loads()
        init_post = None
        def init_fin():
            ZB = G.vend
            A.e("s_mov_b32 s26, 0xffff0000\ns_waitcnt vmcnt(0)")
            for j in range(TY):
                for i in range(TX):
                    a0 = G.accb + 4 * (i * TY + j); z = ZB + 2 * (TX * j + i)
                    A.e(f"v_lshlrev_b32 {v(a0)}, 16, {v(z)}\nv_and_b32 {v(a0+1)}, s26, {v(z)}")
                    A.e(f"v_lshlrev_b32 {v(a0+2)}, 16, {v(z+1)}\nv_and_b32 {v(a0+3)}, s26, {v(z+1)}")
            A.e("s_nop 1")
            self.stamp("g3.hinit")
        def epi():
            ZB = G.vend; va = ZB + 2 * nq
            srd_from(A, 12, POUT, 0, S * D * 2)
            A.e("s_nop 3")
            T = (va + 2 + 1) // 2 * 2
            swap_store_setup(A, T, va)
            for j in range(TY):
                for i in range(TX):
                    a0 = G.accb + 4 * (i * TY + j); z = ZB + 2 * (TX * j + i)
                    A.e(f"v_cvt_pk_bf16_f32 {v(z)}, {v(a0)}, {v(a0+1)}\nv_cvt_pk_bf16_f32 {v(z+1)}, {v(a0+2)}, {v(a0+3)}")
                swap_store_j(A, lambda i, j: ZB + 2 * (TX * j + i), T, va, 12, D * 2, TX, j, aux=self.o.get('outaux', ''))
        def poll_group(b):
            lab = A.newlabel("pw"); lp = A.newlabel("pl"); ld = A.newlabel("pd")
            A.e(f"s_cmp_lg_u32 s{SW}, 0\ns_cbranch_scc1 {lab}")
            self.cnt_srd(b, 64)
            A.e("s_lshr_b32 s3, s18, 7\ns_lshl_b32 s3, s3, 8\nv_mov_b32 v250, s3")
            self.spin(250, 14, lp, ld)
            A.label(lab)
        self.gemm_phase(G, 5, tilemap, X, None, epi, init_pre=init_pre, init_post=init_post, init_fin=init_fin,
                        poll=poll_group if self.o.get('grp5', True) else None, arrive=self.hook5)

    def build(self, name):
        A = self.A
        kernel_header(A, name)
        done = "L_done"
        A.e("s_load_dwordx4 s[80:83], s[0:1], 0\ns_load_dwordx2 s[84:85], s[0:1], 16\ns_load_dwordx8 s[88:95], s[0:1], 32")
        A.e("s_load_dwordx4 s[96:99], s[0:1], 64\ns_load_dwordx2 s[30:31], s[0:1], 80")
        A.e(f"s_cmp_ge_u32 s2, 256\ns_cbranch_scc1 {done}")
        if self.o.get("scramble"):
            A.e("s_and_b32 s3, s2, 7\ns_lshl_b32 s3, s3, 5\ns_lshr_b32 s2, s2, 3\ns_or_b32 s2, s2, s3")
        A.e(f"v_mov_b32 v1, v0\nv_lshrrev_b32 v2, 6, v0\nv_and_b32 v0, 63, v0\ns_nop 0\nv_readfirstlane_b32 s{SW}, v2")
        if self.stamps: A.e("v_mov_b32 v255, 0")
        if self.o.get("codepf", True):
            A.e("s_getpc_b64 s[52:53]")
            A.label("L_pc")
            A.e(f"s_lshr_b32 s3, s2, 3\ns_lshl_b32 s3, s3, 3\ns_add_u32 s3, s3, s{SW}")
            A.e("s_mov_b32 s54, (L_done - L_pc) / 1024")
            lab = A.newlabel("cpf")
            A.e(f"s_cmp_ge_u32 s3, s54\ns_cbranch_scc1 {lab}")
            A.e("s_lshl_b32 s3, s3, 10\nv_lshl_add_u32 v2, v0, 4, s3")
            A.e("global_load_dwordx4 v[228:231], v2, s[52:53]")
            A.label(lab)
        A.e("s_waitcnt lgkmcnt(0)")
        self.stamp("start")
        pw = self.o.get("prework", [])
        e1, e2, e3, e4, e5 = [(n in pw) for n in (1, 2, 3, 4, 5)]
        self.p1(); self.stamp("p1.end")
        A.e("s_waitcnt vmcnt(3)\ns_barrier")
        self.p1w()
        if e1: self.p2_pre()
        self.arrive(1, keep=2); self.stamp("p1.arrived")
        self.arrive("W"); self.stamp("p1.w")
        self.pf_point("A")
        if not e1: self.p2_pre()
        self.stamp("p2.pre"); self.wait(1); self.stamp("b1")
        lb = A.newlabel("pfb"); A.e(f"s_cmp_eq_u32 s19, 2\ns_cbranch_scc1 {lb}"); self.pf_point("B"); A.label(lb)
        self.p2(); self.stamp("p2.end")
        if e2:
            self.p3_pre()
        self.arrive(2, nowait_ge=6); self.stamp("p2.arrived")
        self.pf_point("E")
        if not e2: self.p3_pre()
        self.stamp("p3.pre"); self.wait(2); self.stamp("b2")
        self.p3(); self.stamp("p3.end")
        def a3():
            self.arrive(3, keep=2); self.pf_point("G")
        def a5():
            if self.o.get("grp5", True): self.arrive_group5()
            else: self.arrive(5)
        a4 = lambda: self.arrive(4)
        self.hook3, self.hook4, self.hook5 = (a3 if e3 else None, a4 if e4 else None, a5 if e5 else None)
        if not e3: a3()
        self.stamp("p3.arrived")
        if self.o.get("twopass", False): self.p4b()
        else: self.p4()
        self.stamp("p4.end")
        if not e4: a4()
        self.stamp("p4.arrived")
        self.p5(); self.stamp("p5.end")
        if not e5: a5()
        self.stamp("p5.arrived")
        self.p6()
        if self.stamps: A.e("s_waitcnt vmcnt(0)")
        self.stamp("p6.end")
        self.stamp_flush()
        A.label(done)
        A.e("s_endpgm")

HEADER = """Kernarg layout (88 bytes, pointers only, base s[0:1]):
  0 A_x (1,2048,1024) bf16 | 8 A_w_r (2048,513) | 16 A_w_i (2048,513) | 24 B_x (not used by the reference) | 32 B_w_in (1024,3584)
  40 B_w_sp (2048,2048) | 48 B_b_sp (2048) | 56 B_w_out (1792,1024) | 64 out (1,2048,1024) bf16 | 72 debug (256 B) | 80 ws
One persistent kernel, 256 workgroups of 8 waves (one per CU; LDS use keeps them one per CU, all co-resident). Text emitted by the author's generator scripts.
phase 1: LayerNorm + 1024-point real FFT of every row (two 32x32 DFT stages on MFMA) + radix-8 step of the 2048-point column FFT; W is re-tiled
phase 2: 256-point column FFTs (two 16x16 stages), multiply by W, inverse 256-point FFTs (the Nyquist column is handled by workgroup 0)
phase 3: inverse radix-8 step, inverse 1024-point real FFT (imaginary parts of the DC / Nyquist bins dropped as irfft does), residual, LayerNorm
phase 4: z = gelu_tanh(ln2 @ w_in); each tile holds 128 z1 and 128 z2 columns; LayerNorm of z2 with row sums exchanged between workgroups
phase 5: P = z1 * (w_sp @ z2n + b_sp); z1 stays in registers from phase 4
phase 6: out = h + P @ w_out
Hand-offs between workgroups: write-through (sc1) stores, s_waitcnt vmcnt(0), then arrival counters (atomic add); consumers poll with sc1 loads and read
handed-off data with sc1 loads.  Counters live in ws lines that phase 1 clears; the clearing of the first two barriers is itself counted in debug[0].
All spins are bounded.  Workgroup ids are mapped to tiles for L2 locality under round-robin XCD placement (speed only).
GEMMs: 4 producer waves (LDS-DMA ring) + 4 consumer waves (16x16x32 bf16 MFMA).  Idle waves / tile-less workgroups read weights ahead of their GEMM."""
NAME = "sequential_preLN__spectral_gfnet__mixer_gmlp__prompt_kernel"

def build(opts=None):
    opts = opts or {}
    m = Mega(opts)
    m.build(NAME)
    lds = 163840
    out = ["; " + l for l in HEADER.split("\n")]
    out.append(f"; @launch grid=(256,1,1) block=(512,1,1) lds={lds}")
    out.append('.amdgcn_target "amdgcn-amd-amdhsa--gfx950"')
    out.append(".text")
    t = "\n".join(out) + "\n" + m.A.text() + '.section .rodata,"a"\n' + kernel_desc(NAME, 256)
    return t, m.stamp_names

if __name__ == "__main__":
    opts = json.loads(sys.argv[2]) if len(sys.argv) > 2 else {}
    t, names = build(opts)
    open(sys.argv[1], "w").write(t)
    print("bytes", len(t), "stamps", names)
```

```python
from asmlib import *
from banks import cycles

KS = 64

def sigma(RB, k):
    if RB in (256, 512): return (k & 3) | (((k >> 3) & 1) << 2)
    if RB == 448: return (k >> 3) & 1
    if RB == 128: return ((k >> 1) & 1) | (((k >> 3) & 1) << 1)
    raise ValueError(RB)

class Op:
    def __init__(self, kind, R, stride, srd):
        self.kind, self.R, self.stride, self.srd = kind, R, stride, srd
        self.bytes = R * KS * 2
        self.ndma = self.bytes // 1024
        self.RB = 2 * R if kind == 'ks' else 128
    def read_addr(self, lane, idx0, t, h, rd=0):
        if self.kind == 'kc':
            row = idx0 + 16 * t + (lane & 15)
            return row * 128 + (((4 * h + (lane >> 4)) ^ ((row >> 1) & 7)) * 16)
        G, r, c = lane >> 4, (lane >> 2) & 3, lane & 3
        k = 32 * h + 8 * G + 4 * rd + r
        u = idx0 // 16 + t
        return k * self.RB + ((2 * u + (c >> 1)) ^ (sigma(self.RB, k) << 1)) * 16 + (c & 1) * 8

def check_conflicts(op, origins, T):
    for idx0 in origins:
        for t in range(T):
            for h in range(2):
                if op.kind == 'kc':
                    a = [op.read_addr(l, idx0, t, h) for l in range(64)]
                    assert cycles(a, 'b128') == 4
                else:
                    for rd in range(2):
                        a = [op.read_addr(l, idx0, t, h, rd) for l in range(64)]
                        assert cycles(a, 'tr_b64') == 2, (op.RB, idx0, t, h, rd, cycles(a, 'tr_b64'))

class Gemm:
    def __init__(self, A, name, Ktot, NS, X, Y, WX, WY, mode='pc', no_mfma=False, no_dma=False, no_read=False, lds0=0, shadow=True, prio=0, rot=None, nobar=False, unroll=1, wrap=None, per=2):
        self.A, self.name, self.Ktot, self.NS, self.X, self.Y = A, name, Ktot, NS, X, Y
        self.WX, self.WY = WX, WY
        self.TX = X.R // 16 // WX
        self.TY = Y.R // 16 // WY
        self.nst = Ktot // KS
        self.slot = X.bytes + Y.bytes
        self.mode = mode
        self.lds0 = lds0
        self.shadow = shadow
        self.prio = prio
        self.rot = rot
        self.per = per
        self.wrap = wrap
        self.nobar = nobar
        self.unroll = unroll
        self.no_mfma, self.no_dma, self.no_read = no_mfma, no_dma, no_read
        self.nd = X.ndma + Y.ndma
        assert self.nd % 4 == 0
        self.P = self.nd // 4
        check_conflicts(X, [16 * self.TX * w for w in range(WX)], self.TX)
        check_conflicts(Y, [16 * self.TY * w for w in range(WY)], self.TY)
        assert self.NS * self.slot <= 163840

    S_WAVE, S_X0, S_Y0, S_SOX, S_SOY, S_SLOT, S_CNT, S_T0, S_T1, S_LW = 16, 17, 18, 19, 20, 21, 22, 23, 24, 25
    S_KX, S_KY = 42, 43

    def emit_dma_setup(self, vb, lane):
        A = self.A
        t0, t1, t2 = vb + self.P, vb + self.P + 1, vb + self.P + 2
        self.pieces = []
        X, Y = self.X, self.Y
        assert X.ndma % 4 == 0 and Y.ndma % 4 == 0
        n = 0
        for op in (X, Y):
            for jj in range(op.ndma // 4):
                dst = vb + n
                if getattr(op, 'tiled', False):
                    A.e(f"s_lshl_b32 {s(self.S_T0)}, {s(self.S_LW)}, 10")
                    A.e(f"s_add_u32 {s(self.S_T0)}, {s(self.S_T0)}, {4096 * jj}")
                    A.e(f"v_lshlrev_b32 {v(t0)}, 4, {v(lane)}")
                    A.e(f"v_add_u32 {v(dst)}, {s(self.S_T0)}, {v(t0)}")
                elif op.kind == 'kc':
                    A.e(f"s_and_b32 {s(self.S_T0)}, {s(self.S_LW)}, 1")
                    A.e(f"s_lshl_b32 {s(self.S_T0)}, {s(self.S_T0)}, 2")
                    A.e(f"v_lshrrev_b32 {v(t0)}, 4, {v(lane)}")
                    A.e(f"v_xor_b32 {v(t0)}, {s(self.S_T0)}, {v(t0)}")
                    A.e(f"v_and_b32 {v(t1)}, 7, {v(lane)}")
                    A.e(f"v_xor_b32 {v(t0)}, {v(t0)}, {v(t1)}")
                    A.e(f"v_lshlrev_b32 {v(t0)}, 4, {v(t0)}")
                    A.e(f"s_lshl_b32 {s(self.S_T0)}, {s(self.S_LW)}, 3")
                    A.e(f"s_add_u32 {s(self.S_T0)}, {s(self.S_T0)}, {32 * jj}")
                    A.e(f"v_lshrrev_b32 {v(t1)}, 3, {v(lane)}")
                    A.e(f"v_add_u32 {v(t1)}, {s(self.S_T0)}, {v(t1)}")
                    A.e(f"s_mov_b32 {s(self.S_T1)}, {op.stride}")
                    A.e(f"v_mul_lo_u32 {v(t1)}, {v(t1)}, {s(self.S_T1)}")
                    A.e(f"v_add_u32 {v(dst)}, {v(t0)}, {v(t1)}")
                else:
                    CPR = op.RB // 16
                    A.e(f"s_lshl_b32 {s(self.S_T0)}, {s(self.S_LW)}, 6")
                    A.e(f"s_add_u32 {s(self.S_T0)}, {s(self.S_T0)}, {256 * jj}")
                    A.e(f"v_add_u32 {v(t0)}, {s(self.S_T0)}, {v(lane)}")
                    if CPR & (CPR - 1) == 0:
                        sh = CPR.bit_length() - 1
                        A.e(f"v_lshrrev_b32 {v(t1)}, {sh}, {v(t0)}")
                        A.e(f"v_and_b32 {v(t0)}, {CPR - 1}, {v(t0)}")
                    else:
                        magic = (65536 + CPR - 1) // CPR
                        for p in range(64 * op.ndma):
                            assert (p * magic) >> 16 == p // CPR
                        A.e(f"v_mul_u32_u24 {v(t1)}, {magic}, {v(t0)}")
                        A.e(f"v_lshrrev_b32 {v(t1)}, 16, {v(t1)}")
                        A.e(f"v_mul_u32_u24 {v(t2)}, {CPR}, {v(t1)}")
                        A.e(f"v_sub_u32 {v(t0)}, {v(t0)}, {v(t2)}")
                    if op.RB in (256, 512):
                        A.e(f"v_and_b32 {v(t2)}, 3, {v(t1)}")
                        A.e(f"v_lshlrev_b32 {v(t2)}, 1, {v(t2)}")
                        A.e(f"v_xor_b32 {v(t0)}, {v(t0)}, {v(t2)}")
                        A.e(f"v_and_b32 {v(t2)}, 8, {v(t1)}")
                        A.e(f"v_xor_b32 {v(t0)}, {v(t0)}, {v(t2)}")
                    elif op.RB == 448:
                        A.e(f"v_lshrrev_b32 {v(t2)}, 2, {v(t1)}")
                        A.e(f"v_and_b32 {v(t2)}, 2, {v(t2)}")
                        A.e(f"v_xor_b32 {v(t0)}, {v(t0)}, {v(t2)}")
                    elif op.RB == 128:
                        A.e(f"v_and_b32 {v(t2)}, 2, {v(t1)}")
                        A.e(f"v_xor_b32 {v(t0)}, {v(t0)}, {v(t2)}")
                        A.e(f"v_lshrrev_b32 {v(t2)}, 1, {v(t1)}")
                        A.e(f"v_and_b32 {v(t2)}, 4, {v(t2)}")
                        A.e(f"v_xor_b32 {v(t0)}, {v(t0)}, {v(t2)}")
                    if getattr(op, 'segmap', None):
                        A.e(f"v_bfe_u32 {v(t2)}, {v(t0)}, 3, 1\nv_mul_u32_u24 {v(t2)}, {op.segmap}, {v(t2)}")
                        A.e(f"v_bfe_u32 {v(dst)}, {v(t0)}, 4, 1\nv_lshl_add_u32 {v(t2)}, {v(dst)}, 7, {v(t2)}")
                        A.e(f"v_and_b32 {v(t0)}, 7, {v(t0)}\nv_lshl_add_u32 {v(t0)}, {v(t0)}, 4, {v(t2)}")
                    else:
                        A.e(f"v_lshlrev_b32 {v(t0)}, 4, {v(t0)}")
                    A.e(f"s_mov_b32 {s(self.S_T1)}, {op.stride}")
                    A.e(f"v_mul_lo_u32 {v(t1)}, {v(t1)}, {s(self.S_T1)}")
                    A.e(f"v_add_u32 {v(dst)}, {v(t0)}, {v(t1)}")
                ldsoff = (0 if op is X else X.bytes) + 4096 * jj
                self.pieces.append((op, dst, ldsoff))
                n += 1

    def emit_dma_stage(self, sslot, only=None):
        groups = []
        for (op, vo, ldsoff) in self.pieces:
            if only is not None and op is not only: continue
            so = self.S_SOX if op is self.X else self.S_SOY
            aux = getattr(op, 'aux', '')
            g = [f"s_add_u32 m0, {s(sslot)}, {self.lds0 + ldsoff}", "s_nop 0",
                 f"buffer_load_dwordx4 {v(vo)}, {s(op.srd, 4)}, {s(so)} offen {aux} lds"]
            if self.no_dma: g = []
            groups.append(g)
        adv = []
        for op, so, kc, a in ((self.X, self.S_SOX, self.S_KX, self.advX), (self.Y, self.S_SOY, self.S_KY, self.advY)):
            if only is None or only is op:
                adv.append(f"s_add_u32 {s(so)}, {s(so)}, {a}")
                if self.wrap:
                    d = self.wrap[1] if op is self.X else self.wrap[2]
                    adv += [f"s_add_u32 {s(kc)}, {s(kc)}, 1", f"s_cmp_eq_u32 {s(kc)}, {self.wrap[0]}",
                            f"s_cselect_b32 {s(self.S_T0)}, {d}, 0", f"s_sub_u32 {s(so)}, {s(so)}, {s(self.S_T0)}"]
                if self.rot:
                    adv += [f"s_add_u32 {s(kc)}, {s(kc)}, 1", f"s_cmp_eq_u32 {s(kc)}, {self.nst}",
                            f"s_cselect_b32 {s(self.S_T0)}, {a * self.nst}, 0", f"s_cselect_b32 {s(kc)}, 0, {s(kc)}",
                            f"s_sub_u32 {s(so)}, {s(so)}, {s(self.S_T0)}"]
        return groups, adv

    def adv(self, op):
        if getattr(op, 'tiled', False): return op.bytes
        return 128 if op.kind == 'kc' else KS * op.stride
    @property
    def advX(self): return self.adv(self.X)
    @property
    def advY(self): return self.adv(self.Y)

    def emit_soff_init(self):
        A = self.A
        for op, so, o in ((self.X, self.S_SOX, self.S_X0), (self.Y, self.S_SOY, self.S_Y0)):
            if getattr(op, 'base_sgpr', None) is not None:
                A.e(f"s_mov_b32 {s(so)}, {s(op.base_sgpr)}")
            elif getattr(op, 'tiled', False):
                A.e(f"s_mul_i32 {s(so)}, {s(o)}, {self.nst * op.bytes // op.R}")
            elif op.kind == 'kc':
                A.e(f"s_mul_i32 {s(so)}, {s(o)}, {op.stride}")
            else:
                A.e(f"s_lshl_b32 {s(so)}, {s(o)}, 1")

    def slot_next(self, sreg):
        return [f"s_add_u32 {s(sreg)}, {s(sreg)}, {self.slot}",
                f"s_cmp_ge_u32 {s(sreg)}, {s(self.S_T1)}",
                f"s_cselect_b32 {s(self.S_T0)}, {self.NS * self.slot}, 0",
                f"s_sub_u32 {s(sreg)}, {s(sreg)}, {s(self.S_T0)}"]

    def emit_producer_setup(self, lane, vb):
        A = self.A
        self.emit_dma_setup(vb, lane)
        self.emit_soff_init()
        if self.wrap: A.e(f"s_mov_b32 {s(self.S_KX)}, 0\ns_mov_b32 {s(self.S_KY)}, 0")
        if self.rot:
            a, b = self.rot
            A.e(f"s_and_b32 {s(self.S_T0)}, s29, 3\ns_mul_i32 {s(self.S_KX)}, {s(self.S_T0)}, {a}")
            A.e(f"s_lshr_b32 {s(self.S_T0)}, s29, 2\ns_mul_i32 {s(self.S_T0)}, {s(self.S_T0)}, {b}\ns_add_u32 {s(self.S_KX)}, {s(self.S_KX)}, {s(self.S_T0)}")
            A.e(f"s_cmp_ge_u32 {s(self.S_KX)}, {self.nst}\ns_cselect_b32 {s(self.S_T0)}, {self.nst}, 0\ns_sub_u32 {s(self.S_KX)}, {s(self.S_KX)}, {s(self.S_T0)}")
            A.e(f"s_mov_b32 {s(self.S_KY)}, {s(self.S_KX)}")
            A.e(f"s_mul_i32 {s(self.S_T0)}, {s(self.S_KX)}, {self.advX}\ns_add_u32 {s(self.S_SOX)}, {s(self.S_SOX)}, {s(self.S_T0)}")
            A.e(f"s_mul_i32 {s(self.S_T0)}, {s(self.S_KX)}, {self.advY}\ns_add_u32 {s(self.S_SOY)}, {s(self.S_SOY)}, {s(self.S_T0)}")
            assert 3 * a + 7 * b < 2 * self.nst
        SL = self.S_SLOT
        A.e(f"s_lshl_b32 {s(SL)}, {s(self.S_LW)}, 10")
        A.e(f"s_add_u32 {s(26)}, {s(SL)}, {self.NS * self.slot}")

    def _pstage(self, only=None):
        A, SL = self.A, self.S_SLOT
        groups, adv = self.emit_dma_stage(SL, only)
        for g in groups:
            for ln in g: A.e(ln)
        for ln in adv: A.e(ln)
        A.e(f"s_add_u32 {s(SL)}, {s(SL)}, {self.slot}")
        A.e(f"s_cmp_ge_u32 {s(SL)}, {s(26)}")
        A.e(f"s_cselect_b32 {s(self.S_T0)}, {self.NS * self.slot}, 0")
        A.e(f"s_sub_u32 {s(SL)}, {s(SL)}, {s(self.S_T0)}")

    def emit_producer_run(self, early=None, gate=None):
        A, P, NS, nst = self.A, self.P, self.NS, self.nst
        npro = min(NS, nst)
        assert npro == NS
        if early is None:
            if gate: gate()
            for i in range(npro): self._pstage()
            PL = P
        else:
            late = self.Y if early is self.X else self.X
            for i in range(npro): self._pstage(early)
            if gate: gate()
            for i in range(npro): self._pstage(late)
            PL = late.ndma // 4
        if self.no_dma: PL = P = 0
        A.e(f"s_waitcnt vmcnt({(npro - 1) * PL})")
        A.e("s_barrier")
        nsteady = nst - NS
        peel = min(NS - 1, nsteady) if early is not None else 0
        for b in range(1, peel + 1):
            A.e(f"s_waitcnt vmcnt({(npro - 1 - b) * PL + (b - 1) * P})")
            if not self.nobar: A.e("s_barrier")
            self._pstage()
        if nsteady - peel > 0:
            lp = A.newlabel(self.name + "_pl")
            A.e(f"s_mov_b32 {s(self.S_CNT)}, {nsteady - peel}")
            A.label(lp)
            A.e(f"s_waitcnt vmcnt({(NS - 2) * P})")
            if not self.nobar: A.e("s_barrier")
            self._pstage()
            A.e(f"s_sub_u32 {s(self.S_CNT)}, {s(self.S_CNT)}, 1")
            A.e(f"s_cmp_lg_u32 {s(self.S_CNT)}, 0")
            A.e(f"s_cbranch_scc1 {lp}")
        for b in range(nsteady + 1, nst):
            left = nst - 1 - b
            A.e(f"s_waitcnt vmcnt({min(left, NS - 2) * P})")
            if not self.nobar: A.e("s_barrier")

    def emit_producer(self, lane, vb):
        self.emit_producer_setup(lane, vb)
        self.emit_producer_run()

    def emit_consumer_setup(self, lane, vb):
        A, X, Y = self.A, self.X, self.Y
        self.addr = {}
        self.abase = []
        SWX, SWY = 27, 28
        A.e(f"s_and_b32 {s(SWX)}, {s(self.S_WAVE)}, {self.WX - 1}")
        A.e(f"s_lshr_b32 {s(SWY)}, {s(self.S_WAVE)}, {self.WX.bit_length() - 1}")
        nxt = vb
        t0, t1, t2, t3 = 0, 0, 0, 0
        plan = []
        for nm, op, T, W in (('X', X, self.TX, self.WX), ('Y', Y, self.TY, self.WY)):
            origins = [16 * T * w for w in range(W)]
            keys = []
            for t in range(T):
                for h in range(2):
                    for rd in (range(2) if op.kind == 'ks' else [0]):
                        vec = [[op.read_addr(l, o, t, h, rd) for l in range(64)] for o in origins]
                        found = None
                        if getattr(op, 'xorfam', False) and t > 0:
                            r0, d0 = self.addr[(nm, 0, h, rd)]
                            v0_ = [[op.read_addr(l, o, 0, h, rd) for l in range(64)] for o in origins]
                            assert all(vec[w][l] == (v0_[w][l] ^ (t << 5)) for w in range(W) for l in range(64))
                            self.addr[(nm, t, h, rd)] = (('x', r0, t), d0)
                            continue
                        for (kv, reg) in keys:
                            d = vec[0][0] - kv[0][0]
                            if d >= 0 and all(vec[w][l] - kv[w][l] == d for w in range(W) for l in range(64)):
                                found = (reg, d); break
                        if found is None:
                            reg = len(plan)
                            plan.append((nm, op, t, h, rd))
                            keys.append((vec, reg))
                            found = (reg, 0)
                        self.addr[(nm, t, h, rd)] = found
        nreg = len(plan)
        base0 = vb; cur0 = vb + nreg
        self.xor = {}
        for key, (reg, d) in list(self.addr.items()):
            if isinstance(reg, tuple):
                if (reg[1], reg[2]) not in self.xor: self.xor[(reg[1], reg[2])] = nreg + len(self.xor)
                self.addr[key] = (self.xor[(reg[1], reg[2])], d)
        tmp = vb + 2 * nreg + len(self.xor)
        a, b, c = tmp, tmp + 1, tmp + 2
        for i, (nm, op, t, h, rd) in enumerate(plan):
            dst = base0 + i
            T = self.TX if nm == 'X' else self.TY
            sw = SWX if nm == 'X' else SWY
            opoff = 0 if nm == 'X' else X.bytes
            if op.kind == 'kc':
                A.e(f"v_and_b32 {v(a)}, 15, {v(lane)}")
                A.e(f"v_lshrrev_b32 {v(b)}, 1, {v(a)}")
                A.e(f"v_lshrrev_b32 {v(c)}, 4, {v(lane)}")
                A.e(f"v_xor_b32 {v(b)}, {v(b)}, {v(c)}")
                if h: A.e(f"v_xor_b32 {v(b)}, 4, {v(b)}")
                A.e(f"v_lshlrev_b32 {v(b)}, 4, {v(b)}")
                A.e(f"v_lshlrev_b32 {v(a)}, 7, {v(a)}")
                A.e(f"v_add_u32 {v(a)}, {v(a)}, {v(b)}")
                A.e(f"s_mul_i32 {s(self.S_T0)}, {s(sw)}, {16 * T * 128}")
                A.e(f"s_add_u32 {s(self.S_T0)}, {s(self.S_T0)}, {opoff + t * 2048}")
                A.e(f"v_add_u32 {v(dst)}, {s(self.S_T0)}, {v(a)}")
            else:
                RB = op.RB
                A.e(f"v_lshrrev_b32 {v(a)}, 4, {v(lane)}")
                A.e(f"v_bfe_u32 {v(b)}, {v(lane)}, 2, 2")
                if RB in (256, 512):
                    A.e(f"v_and_b32 {v(c)}, 1, {v(a)}")
                    A.e(f"v_lshlrev_b32 {v(c)}, 2, {v(c)}")
                    A.e(f"v_or_b32 {v(c)}, {v(c)}, {v(b)}")
                elif RB == 448:
                    A.e(f"v_and_b32 {v(c)}, 1, {v(a)}")
                elif RB == 128:
                    A.e(f"v_and_b32 {v(c)}, 1, {v(a)}")
                    A.e(f"v_lshlrev_b32 {v(c)}, 1, {v(c)}")
                    A.e(f"v_lshrrev_b32 {v(dst)}, 1, {v(b)}")
                    A.e(f"v_or_b32 {v(c)}, {v(c)}, {v(dst)}")
                A.e(f"v_lshl_add_u32 {v(a)}, {v(a)}, 3, {v(b)}")
                A.e(f"s_mov_b32 {s(self.S_T1)}, {RB}")
                A.e(f"v_mul_lo_u32 {v(a)}, {v(a)}, {s(self.S_T1)}")
                A.e(f"s_mul_i32 {s(self.S_T0)}, {s(sw)}, {T}")
                A.e(f"s_add_u32 {s(self.S_T0)}, {s(self.S_T0)}, {t}")
                A.e(f"v_xor_b32 {v(c)}, {s(self.S_T0)}, {v(c)}")
                A.e(f"v_lshlrev_b32 {v(c)}, 5, {v(c)}")
                A.e(f"v_add_u32 {v(a)}, {v(a)}, {v(c)}")
                A.e(f"v_and_b32 {v(b)}, 3, {v(lane)}")
                A.e(f"v_lshlrev_b32 {v(b)}, 3, {v(b)}")
                A.e(f"v_add_u32 {v(a)}, {v(a)}, {v(b)}")
                A.e(f"v_add_u32 {v(dst)}, {opoff + (32 * h + 4 * rd) * RB}, {v(a)}")
        self.nab = nreg; self.base0 = base0; self.cur0 = cur0
        return tmp

    def reads(self, setbase, h):
        out = []
        X, Y = self.X, self.Y
        def one(nm, op, t, dst):
            if op.kind == 'kc':
                reg, imm = self.addr[(nm, t, h, 0)]
                return [f"ds_read_b128 {v(dst, 4)}, {v(self.cur0 + reg)} offset:{imm}"]
            res = []
            for rd in range(2):
                reg, imm = self.addr[(nm, t, h, rd)]
                res.append(f"ds_read_b64_tr_b16 {v(dst + 2 * rd, 2)}, {v(self.cur0 + reg)} offset:{imm}")
            return res
        xs = [one('X', X, t, setbase + 4 * t) for t in range(self.TX)]
        ys = [one('Y', Y, t, setbase + 4 * self.TX + 4 * t) for t in range(self.TY)]
        order = []
        order += ys[0] + xs[0]
        rest = ys[1:]
        for y in rest: order += y
        for x in xs[1:]: order += x
        if self.no_read: return []
        return order

    def mfmas(self, setbase, accb=None):
        out = []
        accb = self.accb if accb is None else accb
        for i in range(self.TX):
            for j in range(self.TY):
                a0 = accb + 4 * (i * self.TY + j)
                out.append(f"v_mfma_f32_16x16x32_bf16 {v(a0,4)}, {v(setbase + 4*i, 4)}, {v(setbase + 4*self.TX + 4*j, 4)}, {v(a0,4)}")
        if self.no_mfma: return []
        return out

    def interleave(self, mf, other, per=1, start=0):
        A = self.A
        o = list(other)
        if not mf:
            for ln in o: A.e(ln)
            return
        for n, m in enumerate(mf):
            A.e(m)
            if n >= start:
                for _ in range(per):
                    if o: A.e(o.pop(0))
        for ln in o: A.e(ln)

    def cur_update(self):
        out = [f"v_add_u32 {v(self.cur0 + i)}, {s(self.S_SLOT)}, {v(self.base0 + i)}" for i in range(self.nab)]
        out += [f"v_xor_b32 {v(self.cur0 + x)}, {t << 5}, {v(self.cur0 + r)}" for (r, t), x in self.xor.items()]
        return out

    def emit_consumer_pre(self, lane, vb, zero=True):
        A, NS = self.A, self.NS
        f = self.emit_consumer_setup(lane, vb)
        nfr = 4 * (self.TX + self.TY)
        set0 = (f + 3) // 4 * 4; set1 = set0 + nfr
        self.set0, self.set1 = set0, set1
        self.accb = set1 + nfr
        self.vend = self.accb + 4 * self.TX * self.TY
        if zero:
            for i in range(4 * self.TX * self.TY):
                A.e(f"v_mov_b32 {v(self.accb + i)}, 0")
        A.e(f"s_mov_b32 {s(self.S_SLOT)}, {self.lds0}")
        for ln in self.cur_update(): A.e(ln)

    def emit_consumer_run(self, pre_last=None, after_bar0=None):
        A, NS, nst = self.A, self.NS, self.nst
        set0, set1 = self.set0, self.set1
        SL = self.S_SLOT
        if self.prio: A.e(f"s_setprio {self.prio}")
        if getattr(self, 'stamp', None): self.stamp(0)
        A.e("s_barrier")
        if getattr(self, 'stamp', None): self.stamp(1)
        for ln in self.reads(set0, 0): A.e(ln)
        if after_bar0: after_bar0()
        A.e("s_waitcnt lgkmcnt(0)")
        lim = self.lds0 + NS * self.slot
        def body(last):
            sl = [] if last else [f"s_add_u32 {s(SL)}, {s(SL)}, {self.slot}",
                  f"s_cmp_ge_u32 {s(SL)}, {lim}",
                  f"s_cselect_b32 {s(self.S_T0)}, {NS * self.slot}, 0",
                  f"s_sub_u32 {s(SL)}, {s(SL)}, {s(self.S_T0)}"]
            shadow = self.shadow
            self.interleave(self.mfmas(set0), self.reads(set1, 1) + sl + (self.cur_update() if (shadow and not last) else []), per=self.per)
            A.e("s_waitcnt lgkmcnt(0)")
            if last:
                self.interleave(self.mfmas(set1), [])
                return
            if not shadow:
                for ln in self.cur_update(): A.e(ln)
            if not self.nobar: A.e("s_barrier")
            self.interleave(self.mfmas(set1), self.reads(set0, 0) + [f"s_sub_u32 {s(self.S_CNT)}, {s(self.S_CNT)}, 1"], per=self.per)
            A.e("s_waitcnt lgkmcnt(0)")
        lp = A.newlabel(self.name + "_cl")
        U = self.unroll
        for _ in range((nst - 1) % U): body(False)
        A.e(f"s_mov_b32 {s(self.S_CNT)}, {(nst - 1) // U * U}")
        A.label(lp)
        for _ in range(U): body(False)
        A.e(f"s_cmp_lg_u32 {s(self.S_CNT)}, 0")
        A.e(f"s_cbranch_scc1 {lp}")
        if pre_last: pre_last()
        body(True)
        if self.prio: A.e("s_setprio 0")

    def stage(self, accb=None, last=False, extraA=(), extraB=()):
        A, NS, SL = self.A, self.NS, self.S_SLOT
        set0, set1 = self.set0, self.set1
        lim = self.lds0 + NS * self.slot
        sl = [] if last else [f"s_add_u32 {s(SL)}, {s(SL)}, {self.slot}", f"s_cmp_ge_u32 {s(SL)}, {lim}",
                              f"s_cselect_b32 {s(self.S_T0)}, {NS * self.slot}, 0", f"s_sub_u32 {s(SL)}, {s(SL)}, {s(self.S_T0)}"]
        self.interleave(self.mfmas(set0, accb), self.reads(set1, 1) + sl + ([] if last else self.cur_update()) + list(extraA), per=2)
        A.e("s_waitcnt lgkmcnt(0)")
        if last:
            self.interleave(self.mfmas(set1, accb), list(extraB), per=2)
            return
        A.e("s_barrier")
        self.interleave(self.mfmas(set1, accb), self.reads(set0, 0) + [f"s_sub_u32 {s(self.S_CNT)}, {s(self.S_CNT)}, 1"] + list(extraB), per=2)
        A.e("s_waitcnt lgkmcnt(0)")

    def stages_loop(self, n, accb=None):
        A = self.A
        if n == 1: self.stage(accb); return
        lp = A.newlabel(self.name + "_cl")
        A.e(f"s_mov_b32 {s(self.S_CNT)}, {n}")
        A.label(lp)
        self.stage(accb)
        A.e(f"s_cmp_lg_u32 {s(self.S_CNT)}, 0")
        A.e(f"s_cbranch_scc1 {lp}")

    def consumer_head(self):
        A = self.A
        A.e("s_barrier")
        for ln in self.reads(self.set0, 0): A.e(ln)
        A.e("s_waitcnt lgkmcnt(0)")

    def emit_consumer(self, lane, vb, pre_last=None):
        self.emit_consumer_pre(lane, vb)
        self.emit_consumer_run(pre_last)
```
